```python
import torch

def _softmax(x, axis=-1):
    return torch.softmax(x, dim=axis)
def _gelu(x):
    return torch.nn.functional.gelu(x, approximate="tanh")
def _silu(x):
    return torch.nn.functional.silu(x)
def _sigmoid(x):
    return torch.sigmoid(x)
def _layernorm(x, axis=-1, eps=1e-5):
    m = x.mean(dim=axis, keepdim=True)
    v = x.var(dim=axis, keepdim=True, unbiased=False)
    return (x - m) / torch.sqrt(v + eps)
def _scatter_add(tgt, idx, src, axis=0):
    return tgt.clone().index_add_(axis, idx, src)
def _segment_sum(src, seg, n):
    out = torch.zeros((n,) + src.shape[1:], dtype=src.dtype)
    return out.index_add_(0, seg, src)
def _pad(x, pw):
    flat = tuple(v for pair in reversed(pw) for v in pair)
    return torch.nn.functional.pad(x, flat)

kernel_name = 'concat_heads__ssm_conv_s4__linear_attn_block__prompt'

def setup_inputs():

    _w = (lambda a: (lambda t: t.to(torch.bfloat16) if t.is_floating_point() else t)(torch.as_tensor(a)))
    def _A_setup():
        B, L, D, N = 1, 2048, 576, 128
        A_re = -(lambda _x: torch.exp(torch.as_tensor(_x)))((lambda *s: torch.randn(*s, dtype=torch.bfloat16) * 6.4)(D, N))
        A_im = torch.pi * (lambda *s: torch.randn(*s, dtype=torch.bfloat16) * 0.05)(D, N)
        B_re = (lambda *s: torch.randn(*s, dtype=torch.bfloat16) * 0.1)(D, N)
        B_im = (lambda *s: torch.randn(*s, dtype=torch.bfloat16) * 0.1)(D, N)
        C_re = (lambda *s: torch.randn(*s, dtype=torch.bfloat16) * 0.1)(D, N)
        C_im = (lambda *s: torch.randn(*s, dtype=torch.bfloat16) * 0.1)(D, N)
        log_dt = (lambda *s: torch.randn(*s, dtype=torch.bfloat16) * 0.05)(D) * 0.5 - 4.0
        Dskip = (lambda *s: torch.randn(*s, dtype=torch.bfloat16) * 0.05)(D)
        return {
            "u": _w((lambda *s: torch.randn(*s, dtype=torch.bfloat16) * 0.05)(B, L, D)),
            "A_re": _w(A_re),
            "A_im": _w(A_im),
            "B_re": _w(B_re),
            "B_im": _w(B_im),
            "C_re": _w(C_re),
            "C_im": _w(C_im),
            "log_dt": _w(log_dt),
            "Dskip": _w(Dskip),
        }
    _A_in = _A_setup()

    def _B_setup():
        B, S, D = 1, 2048, 576
        return {
            "x": _w((lambda *s: torch.randn(*s, dtype=torch.bfloat16) * 0.05)(B, S, D)),
            "wqkv": _w((lambda *s: torch.randn(*s, dtype=torch.bfloat16) * 0.4)(D, 3 * D)),
            "wo": _w((lambda *s: torch.randn(*s, dtype=torch.bfloat16) * 0.05)(D, D)),
        }
    _B_in = _B_setup()

    return {
        "A_u": _A_in["u"],
        "A_A_re": _A_in["A_re"],
        "A_A_im": _A_in["A_im"],
        "A_B_re": _A_in["B_re"],
        "A_B_im": _A_in["B_im"],
        "A_C_re": _A_in["C_re"],
        "A_C_im": _A_in["C_im"],
        "A_log_dt": _A_in["log_dt"],
        "A_Dskip": _A_in["Dskip"],
        "B_x": _B_in["x"],
        "B_wqkv": _B_in["wqkv"],
        "B_wo": _B_in["wo"],
    }

def reference(A_u, A_A_re, A_A_im, A_B_re, A_B_im, A_C_re, A_C_im, A_log_dt, A_Dskip, B_x, B_wqkv, B_wo):
    def _A_ref(u, A_re, A_im, B_re, B_im, C_re, C_im, log_dt, Dskip):
        Bsz, L, D = u.shape
        dt = torch.exp(log_dt)[:, None]
        A = A_re + 1j * A_im
        Bc = B_re + 1j * B_im
        Cc = C_re + 1j * C_im
        logdA = dt * A
        dB = dt * Bc
        l = (lambda x, dt: x.to(dt))(torch.arange(L), A_re.dtype)
        P = torch.exp(logdA[:, :, None] * l[None, None, :])
        K = torch.einsum("dn,dnl,dn->dl", Cc, P, dB).real
        L2 = 2 * L
        Kp = _pad(K, ((0, 0), (0, L)))
        up = (lambda x, *d: x.permute(*d))(u, 0, 2, 1)
        up = _pad(up, ((0, 0), (0, 0), (0, L)))
        Kf = (lambda x, axes=(-2,-1): torch.fft.rfft2(x.float(), dim=axes))(Kp[:, None, :], axes=(-2, -1))
        Uf = (lambda x, axes=(-2,-1): torch.fft.rfft2(x.float(), dim=axes))(up[:, :, None, :], axes=(-2, -1))
        Yf = Uf * Kf[None, :, :, :]
        y = (lambda x, s, axes=(-2,-1): torch.fft.irfft2(x, s=s, dim=axes).to(torch.bfloat16))(Yf, (1, L2), axes=(-2, -1))[:, :, 0, :L]
        y = (lambda x, *d: x.permute(*d))(y, 0, 2, 1) + u * Dskip[None, None, :]
        return y

    def _B_ref(x, wqkv, wo):
        B, S, D = x.shape
        H = 32; Dh = D // H
        qkv = (lambda x, *d: x.permute(*d))((x @ wqkv).reshape(B, S, 3, H, Dh), 2, 0, 3, 1, 4)
        q, k, v = qkv[0], qkv[1], qkv[2]
        phi = lambda t: torch.where(t > 0, t + 1, torch.exp(t)) + 1e-6
        pq, pk = phi(q), phi(k)
        kv = torch.einsum("bhsd,bhse->bhde", pk, v)
        z = torch.einsum("bhsd->bhd", pk)
        num = torch.einsum("bhqd,bhde->bhqe", pq, kv)
        den = torch.einsum("bhqd,bhd->bhq", pq, z)[..., None] + 1e-6
        o = num / den
        return (lambda x, *d: x.permute(*d))(o, 0, 2, 1, 3).reshape(B, S, D) @ wo

    a = _A_ref(A_u, A_A_re, A_A_im, A_B_re, A_B_im, A_C_re, A_C_im, A_log_dt, A_Dskip)
    b = _B_ref(B_x, B_wqkv, B_wo)
    return torch.concatenate([a, b], axis=-1)
```

```python
import re

TRANS = ('v_exp_f32', 'v_log_f32', 'v_rcp_f32', 'v_rsq_f32', 'v_sqrt_f32', 'v_sin_f32', 'v_cos_f32', 'v_rcp_iflag_f32')

def regs_of(tok):
    tok = tok.strip()
    neg = tok.lstrip('-')
    if neg.startswith('abs(') or neg.startswith('|'):
        neg = neg.replace('abs(', '').replace(')', '').replace('|', '')
    m = re.fullmatch(r'([vas])(\d+)', neg)
    if m: return {(m.group(1), int(m.group(2)))}
    m = re.fullmatch(r'([vas])\[(\d+):(\d+)\]', neg)
    if m: return {(m.group(1), i) for i in range(int(m.group(2)), int(m.group(3)) + 1)}
    if neg == 'vcc': return {('s', 'vcc_lo'), ('s', 'vcc_hi')}
    if neg in ('vcc_lo', 'vcc_hi'): return {('s', neg)}
    if neg == 'exec': return {('s', 'exec_lo'), ('s', 'exec_hi')}
    if neg in ('exec_lo', 'exec_hi'): return {('s', neg)}
    if neg == 'm0': return {('s', 'm0')}
    return set()

class Ins:
    def __init__(self, text):
        self.text = text
        t = text.split(';')[0].strip()
        self.label = t.endswith(':')
        self.op = t.split()[0] if t else ''
        rest = t[len(self.op):].strip()
        ops = [x.strip() for x in re.split(r',(?![^\[]*\])', rest)] if rest else []
        if ops:
            last = ops[-1].split()
            ops[-1] = last[0] if last else ''
            self.mods = ' '.join(last[1:])
        else:
            self.mods = ''
        self.ops = ops
        op = self.op
        base = re.sub(r'_(e32|e64|dpp|sdwa)$', '', op)
        self.base = base
        self.is_mfma = op.startswith('v_mfma')
        self.is_valu = op.startswith('v_') and not self.is_mfma
        self.is_trans = base in TRANS
        self.is_ds = op.startswith('ds_')
        self.is_vmem = op.startswith(('buffer_', 'global_', 'flat_'))
        self.is_salu = op.startswith('s_')
        self.w = set(); self.r = set()
        R = [regs_of(x) for x in ops]
        if self.label or not op or op.startswith('.'):
            pass
        elif self.is_mfma:
            self.w = R[0]; self.a = R[1]; self.b = R[2]; self.c = R[3]; self.r = R[1] | R[2] | R[3]
            self.passes = 8 if '32x32' in op else 4
        elif self.is_valu:
            if base.startswith('v_cmp'):
                self.w = R[0]; self.r = set().union(*R[1:])
            elif base in ('v_add_co_u32', 'v_sub_co_u32', 'v_addc_co_u32', 'v_subb_co_u32', 'v_mad_u64_u32', 'v_div_scale_f32'):
                self.w = R[0] | R[1]; self.r = set().union(*R[2:])
            elif base in ('v_permlane32_swap_b32', 'v_permlane16_swap_b32', 'v_swap_b32'):
                self.w = R[0] | R[1]; self.r = R[0] | R[1]
            elif base == 'v_nop':
                pass
            else:
                self.w = R[0]; self.r = set().union(*R[1:]) if len(R) > 1 else set()
                if base in ('v_fmac_f32', 'v_writelane_b32', 'v_dot2c_f32_bf16', 'v_pk_fmac_f16'): self.r |= R[0]
        elif self.is_ds:
            if base.startswith(('ds_read', 'ds_bpermute', 'ds_permute', 'ds_swizzle')) or '_rtn' in base:
                self.w = R[0]; self.r = set().union(*R[1:]) if len(R) > 1 else set()
            else:
                self.r = set().union(*R)
            if 'addtid' in base: self.r |= {('s', 'm0')}
        elif self.is_vmem:
            if ' lds' in (' ' + self.mods + ' ').replace(' lds ', ' lds '):
                pass
            mods = self.mods.split()
            self.lds = 'lds' in mods or 'load_lds' in base
            if self.lds:
                self.r = set().union(*R) | {('s', 'm0')}
            elif '_load' in base or ('atomic' in base and 'sc0' in mods):
                self.w = R[0]; self.r = set().union(*R[1:])
                if 'atomic' in base and base.startswith('buffer'): self.r |= R[0]
            elif base in ('buffer_wbl2', 'buffer_inv'):
                pass
            else:
                self.r = set().union(*R)
            self.wide_store = ('store' in base and ('x3' in base or 'x4' in base))
            if self.wide_store:
                self.data = R[0] if base.startswith('buffer') else R[1]
        elif self.is_salu:
            if base in ('s_waitcnt', 's_barrier', 's_nop', 's_endpgm', 's_branch', 's_setprio', 's_sleep') or base.startswith('s_cbranch'):
                pass
            elif base.startswith('s_cmp') or base.startswith('s_bitcmp'):
                self.r = set().union(*R)
            elif 'saveexec' in base:
                self.w = R[0] | regs_of('exec'); self.r = set().union(*R[1:]) | regs_of('exec')
            else:
                self.w = R[0]; self.r = set().union(*R[1:]) if len(R) > 1 else set()
        self.states = 0 if (self.label or not op or op.startswith('.')) else 1
        if base == 's_nop': self.states = int(ops[0], 0) + 1

def vec(s): return {x for x in s if x[0] in 'va'}
def sca(s): return {x for x in s if x[0] == 's'}

def need(p, c):
    n = 0
    if p.is_valu:
        wv = vec(p.w); ws = sca(p.w)
        if p.is_trans and c.is_valu and not c.is_trans and (wv & c.r): n = max(n, 1)
        if c.is_mfma and (wv & c.r): n = max(n, 2)
        if c.base in ('v_readfirstlane_b32', 'v_readlane_b32') and (wv & c.r): n = max(n, 1)
        if c.base.startswith('v_permlane') and (wv & c.r): n = max(n, 2)
        if c.is_valu and 'dpp' in (c.op + c.mods) or (c.is_valu and ('row_' in c.mods or 'quad_perm' in c.mods)):
            if wv & c.r: n = max(n, 2)
        if ws:
            if c.is_vmem and (ws & c.r): n = max(n, 5)
            if c.is_valu and (ws & c.r):
                n = max(n, 4 if c.base in ('v_readlane_b32', 'v_writelane_b32') else 2)
            if c.is_salu and (ws & c.r): n = max(n, 1)
            if c.base.startswith('s_cbranch_vcc') and (ws & regs_of('vcc')): n = max(n, 1)
    if p.is_salu and ('s', 'm0') in p.w and (c.is_vmem or c.is_ds) and ('s', 'm0') in c.r: n = max(n, 1)
    if p.is_mfma:
        big = 12 if p.passes == 8 else 8
        if c.is_mfma:
            if p.w & (c.a | c.b): n = max(n, big)
            if p.w & c.c:
                if not (p.w == c.c and p.passes == c.passes): n = max(n, 10 if p.passes == 8 else 6)
            elif p.w & c.w: n = max(n, 10 if p.passes == 8 else 6)
        elif c.is_valu or c.is_ds or c.is_vmem:
            if p.w & (c.r | c.w): n = max(n, big)
            if c.is_valu and (p.c & c.w): n = max(n, 7 if p.passes == 8 else 3)
    if p.is_vmem and getattr(p, 'wide_store', False) and (p.data & c.w):
        n = max(n, 2 if c.is_valu else 1)
    return n

def pad_hazards(lines, window=24):
    ins = [Ins(l) for l in lines]
    labels = {i.op[:-1]: k for k, i in enumerate(ins) if i.label}
    out = []
    def required(hist, c):
        d = 0; req = 0
        for p in reversed(hist[-window:]):
            n = need(p, c)
            if n > d: req = max(req, n - d)
            d += p.states
            if d >= 20: break
        return req
    added = 0
    for k, c in enumerate(ins):
        if c.states:
            r = required(out, c)
            if r:
                out.append(Ins('s_nop %d' % (r - 1))); added += r
        if c.base == 's_branch' or c.base.startswith('s_cbranch'):
            tgt = labels.get(c.ops[0])
            if tgt is not None:
                hist = list(out) + [c]
                extra = 0; d = 0
                sim = list(hist)
                for t in ins[tgt:tgt + window]:
                    if t.states:
                        r = required(sim, t)
                        if r: extra = max(extra, r)
                    sim.append(t)
                    if t.base == 's_branch' or t.base == 's_endpgm': break
                if extra:
                    out.append(Ins('s_nop %d' % (extra - 1))); added += extra
        out.append(c)
    return [i.text for i in out], added

class Asm:
    def __init__(self):
        self.L = []; self.nvm = 0; self.nlg = 0
    def __call__(self, s):
        for l in s.split('\n'):
            l = l.strip()
            if not l: continue
            self.L.append(l)
            op = l.split()[0]
            if op.startswith(('buffer_', 'global_')) and op not in ('buffer_wbl2', 'buffer_inv'): self.nvm += 1
            elif op.startswith('ds_'): self.nlg += 1
        return self
    def vm(self):  return self.nvm
    def lg(self):  return self.nlg
    def wait_vm(self, tok):
        n = self.nvm - tok
        assert n >= 0
        self('s_waitcnt vmcnt(%d)' % min(n, 63))
    def wait_lg(self, tok):
        n = self.nlg - tok
        assert n >= 0
        self('s_waitcnt lgkmcnt(%d)' % min(n, 15))
    def label(self, n): self.L.append(n + ':')

def v(i, n=1): return 'v%d' % i if n == 1 else 'v[%d:%d]' % (i, i + n - 1)
def a(i, n=1): return 'a%d' % i if n == 1 else 'a[%d:%d]' % (i, i + n - 1)
def s(i, n=1): return 's%d' % i if n == 1 else 's[%d:%d]' % (i, i + n - 1)
```

```python
from asmlib import *
import math, struct

def f2u(x): return struct.unpack('<I', struct.pack('<f', x))[0]
LOG2E = f2u(math.log2(math.e)); INV2PI = f2u(1.0 / (2 * math.pi))

A_WORK = 64; A_WS = 8704
A_CMP = A_WORK + 8 * A_WS
A_UT = A_CMP + 8 * 3072
A_END = A_UT + 8 * 4608
ROWB = 272
R1OFF = 4160

def cmul(e, dst, x, y, t):
    return [lambda: e('v_pk_mul_f32 %s, %s, %s op_sel_hi:[1,0]' % (v(t, 2), v(x, 2), v(y, 2))),
            lambda: e('v_pk_fma_f32 %s, %s, %s, %s op_sel:[1,1,0] op_sel_hi:[0,1,1] neg_lo:[0,1,0]' % (v(dst, 2), v(x, 2), v(y, 2), v(t, 2)))]

def interleave(*streams):
    streams = [list(x) for x in streams]
    while any(streams):
        for st in streams:
            if st: st.pop(0)()

def role_a(e, stamp=None):
    stamp = stamp or (lambda i: None)
    e.label('L_roleA')
    e('s_load_dwordx16 s[4:19], s[0:1], 0')
    e('s_load_dwordx2 s[20:21], s[0:1], 64')
    e('s_load_dwordx2 s[22:23], s[0:1], 96')
    e('s_sub_u32 s24, s2, 128')
    e('s_and_b32 s25, s24, 7')
    e('s_lshr_b32 s24, s24, 3')
    e('s_and_b32 s26, s24, 3')
    e('s_lshr_b32 s24, s24, 2')
    e('s_lshl_b32 s24, s24, 3')
    e('s_add_u32 s25, s25, s24')
    e('s_cmp_ge_u32 s25, 18')
    e('s_cbranch_scc1 L_exit')
    e('s_lshl_b32 s25, s25, 2')
    e('s_add_u32 s25, s25, s26')
    e('v_lshrrev_b32 v10, 6, v0')
    e('v_and_b32 v1, 63, v0')
    e('v_readfirstlane_b32 s24, v10')
    e('s_mov_b32 s30, 0x05040100')
    e('s_mov_b32 s31, 0x07060302')
    e('s_lshl_b32 s28, s25, 3')
    e('s_add_u32 s28, s28, s24')
    e('s_lshl_b32 s29, s28, 8')
    e('v_lshl_add_u32 v10, v1, 2, s29')
    e('s_lshl_b32 s29, s28, 1')
    e('v_mov_b32 v11, s29')
    e('v_lshlrev_b32 v12, 2, v0')
    e('v_mul_u32_u24 v13, 1152, v12')
    e('s_lshl_b32 s29, s25, 4')
    e('v_add_u32 v13, s29, v13')
    e('v_mul_u32_u24 v14, 2304, v12')
    e('v_add_u32 v14, s29, v14')
    e('s_mul_i32 s27, s24, %d' % A_WS)
    e('s_add_u32 s27, s27, %d' % A_WORK)
    e('s_mov_b32 m0, s27')
    e('s_waitcnt lgkmcnt(0)')
    e('global_load_ushort v8, v11, s[18:19]')
    for k in range(6):
        e('global_load_dword %s, v10, %s' % (v(2 + k), s(6 + 2 * k, 2)))
    e('global_load_ushort v9, v11, s[20:21]')
    t_par = e.vm()
    def uload(slot):
        for sub in range(4):
            if sub < 3:
                e('s_cmp_lg_u32 s26, %d' % sub)
                e('s_cbranch_scc1 L_a_u%d_%d' % (slot, sub + 1))
            i = (slot + sub) & 3
            e('global_load_dwordx4 %s, v13, s[4:5] offset:%d' % (v(16 + 4 * i, 4), 1152 * i))
            if sub < 3:
                e('s_branch L_a_udone%d' % slot)
                e.label('L_a_u%d_%d' % (slot, sub + 1))
                e.nvm -= 1
        e.label('L_a_udone%d' % slot)
    stamp(0)
    e('s_mul_i32 s33, s24, 4608')
    e('s_add_u32 s33, s33, %d' % A_UT)
    e('v_lshl_add_u32 v15, v1, 3, s33')
    e('v_mov_b32 v36, 0')
    e('v_mov_b32 v37, 0')
    e('ds_write_b64 v15, v[36:37]')
    e('v_and_b32 v36, 31, v1')
    e('v_lshrrev_b32 v37, 5, v1')
    e('v_mul_u32_u24 v86, %d, v36' % ROWB)
    e('v_lshl_add_u32 v86, v37, 4, v86')
    e('v_add_u32 v86, s27, v86')
    for i in range(16): e('v_mov_b32 %s, 0' % v(96 + i))
    e.wait_vm(t_par)
    stamp(1)
    e('v_lshlrev_b32 v8, 16, v8')
    e('v_mul_f32 v8, 0x%08x, v8' % LOG2E)
    e('v_exp_f32 v8, v8')
    e('v_lshlrev_b32 v9, 16, v9')
    e('v_cvt_pk_bf16_f32 v8, v8, v8')
    e('v_cmp_eq_u32 vcc, 0, v1')
    e('v_lshlrev_b32 v32, 16, v8')
    e('v_cndmask_b32 v35, 0, v9, vcc')
    e('v_mul_f32 v33, 0x%08x, v32' % LOG2E)
    e('v_mul_f32 v34, 0x%08x, v32' % INV2PI)
    e('s_mov_b32 s32, 2')
    e.label('L_a_pass')
    stamp(8)
    uload(0)
    stamp(9)
    for k in range(6): e('v_lshlrev_b32 %s, 16, %s' % (v(36 + k), v(2 + k)))
    for k in range(6): e('v_lshrrev_b32 %s, 16, %s' % (v(2 + k), v(2 + k)))
    e('v_mul_f32 v36, v33, v36')
    e('v_mul_f32 v37, v34, v37')
    e('v_mul_f32 v38, v32, v38')
    e('v_mul_f32 v39, v32, v39')
    e('v_mul_f32 v70, 0x43800000, v36')
    e('v_mul_f32 v71, 0x43800000, v37')
    e('v_mul_f32 v72, 0x41000000, v36')
    e('v_mul_f32 v73, 0x41000000, v37')
    e('v_fract_f32 v71, v71')
    e('v_fract_f32 v37, v37')
    e('v_fract_f32 v73, v73')
    e('v_exp_f32 v70, v70')
    e('v_cos_f32 v48, v71')
    e('v_sin_f32 v49, v71')
    e('v_exp_f32 v36, v36')
    e('v_cos_f32 v44, v37')
    e('v_sin_f32 v45, v37')
    e('v_exp_f32 v72, v72')
    e('v_cos_f32 v46, v73')
    e('v_sin_f32 v47, v73')
    for f in cmul(e, 42, 38, 40, 74): f()
    e('v_mul_f32 v48, v70, v48')
    e('v_mul_f32 v49, v70, v49')
    e('v_mul_f32 v44, v36, v44')
    e('v_mul_f32 v45, v36, v45')
    e('v_mul_f32 v46, v72, v46')
    e('v_mul_f32 v47, v72, v47')
    cv = {}
    def put(src, row, neg, ch=0):
        cv[ch] = cv.get(ch, 0) + 1
        r = 78 + 2 * ch + (cv[ch] & 1)
        return [lambda: e('v_cvt_pk_bf16_f32 %s, %s, %s%s' % (v(r), v(src), '-' if neg else '', v(src + 1))),
                lambda: e('ds_write_addtid_b32 %s offset:%d' % (v(r), row * ROWB))]
    chA = put(42, 0, True)
    rowsA = [8, 12, 14, 16, 17, 18, 19, 20]
    src = 42
    for r in rowsA:
        chA += cmul(e, 50, src, 48, 70) + put(50, r, True); src = 50
    putB = lambda x, r, n: put(x, r, n, 1)
    chB = cmul(e, 60, 44, 44, 72) + cmul(e, 68, 42, 44, 74) + putB(68, 1, True)
    chB += cmul(e, 62, 42, 60, 72) + putB(62, 2, True) + cmul(e, 68, 68, 60, 74) + putB(68, 3, True)
    chB += cmul(e, 64, 62, 60, 72) + putB(64, 4, True) + cmul(e, 68, 68, 60, 74) + putB(68, 5, True)
    chB += cmul(e, 66, 64, 60, 72) + putB(66, 6, True) + cmul(e, 68, 68, 60, 74) + putB(68, 7, True)
    chB += cmul(e, 64, 64, 48, 72) + putB(64, 10, True) + cmul(e, 62, 62, 48, 74) + putB(62, 9, True)
    chB += cmul(e, 64, 64, 48, 72) + putB(64, 13, True) + cmul(e, 66, 66, 48, 74) + putB(66, 11, True)
    chB += cmul(e, 64, 64, 48, 72) + putB(64, 15, True)
    chC = cmul(e, 54, 46, 46, 76) + cmul(e, 56, 54, 46, 76) + cmul(e, 58, 54, 54, 76)
    stamp(10)
    interleave(chA, chB, chC)
    stamp(11)
    uload(1)
    stamp(12)
    e('s_add_u32 s26, s26, 2')
    e('s_and_b32 s26, s26, 3')
    for k in range(8): e('ds_read_b128 %s, v86 offset:%d' % (a(4 * k, 4), 32 * k))
    e('v_mov_b32 v52, 0x3f80')
    e('ds_write_addtid_b32 v52')
    for f in put(46, 1, False) + put(54, 2, False) + put(56, 3, False) + put(58, 4, False): f()
    regs = {0: (58, 50), 1: (46, 52), 2: (54, 54), 3: (56, 56)}
    chains = []
    for c in (1, 2, 3, 0):
        st = []
        src, run = regs[c]
        for j in range(5, 32):
            if j % 4 != c: continue
            st += cmul(e, run, src, 58, 70 + 2 * c) + put(run, j, False, c); src = run
        chains.append(st)
    interleave(*chains)
    stamp(13)
    t0 = e.lg()
    for k in range(8): e('ds_read_b128 %s, v86 offset:%d' % (a(32 + 4 * k, 4), 32 * k))
    for k in range(8):
        e.wait_lg(t0 + k + 1)
        e('v_mfma_f32_32x32x16_bf16 v[96:111], %s, %s, v[96:111]' % (a(4 * k, 4), a(32 + 4 * k, 4)))
    e('s_sub_u32 s32, s32, 1')
    e('s_cmp_lg_u32 s32, 0')
    e('s_cbranch_scc1 L_a_pass')
    stamp(2)
    e('s_mul_i32 s34, s24, 3072')
    e('s_add_u32 s34, s34, %d' % A_CMP)
    e('v_and_b32 v36, 31, v1')
    e('v_lshrrev_b32 v37, 5, v1')
    e('v_cmp_eq_u32 vcc, 0, v37')
    e('v_lshlrev_b32 v38, 5, v36')
    e('v_lshl_add_u32 v38, v37, 4, v38')
    e('v_add_u32 v38, s34, v38')
    e('v_lshlrev_b32 v39, 4, v36')
    e('v_add_u32 v39, 1024, v39')
    e('v_lshlrev_b32 v40, 3, v36')
    e('v_add_u32 v40, 1536, v40')
    e('v_cndmask_b32 v41, v40, v39, vcc')
    e('v_add_u32 v39, 8, v39')
    e('v_add_u32 v40, 256, v40')
    e('v_cndmask_b32 v42, v40, v39, vcc')
    e('v_add_u32 v41, s34, v41')
    e('v_add_u32 v42, s34, v42')
    e('v_lshlrev_b32 v43, 9, v37')
    e('v_lshl_add_u32 v43, v36, 2, v43')
    e('s_add_u32 s35, s34, 2048')
    e('v_add_u32 v43, s35, v43')
    e('v_lshl_add_u32 v44, v1, 3, s34')
    e('v_lshl_add_u32 v45, v1, 4, s34')
    e('v_cmp_eq_u32 vcc, 0, v1')
    e('v_add_u32 v46, 1024, v44')
    e('v_mov_b32 v47, 1020')
    e('v_add_u32 v47, s34, v47')
    e('v_cndmask_b32 v46, v46, v47, vcc')
    e('v_subrev_u32 v47, 4, v45')
    e('v_cndmask_b32 v47, v47, v45, vcc')
    e('v_lshlrev_b32 v48, 5, v1')
    e('v_sub_u32 v48, s27, v48')
    e('v_lshlrev_b32 v49, 4, v1')
    e('v_sub_u32 v49, s27, v49')
    e('v_lshlrev_b32 v50, 3, v1')
    e('v_sub_u32 v50, s27, v50')
    e('v_add_u32 v48, 2016, v48')
    e('v_add_u32 v49, 3056, v49')
    e('v_add_u32 v50, 3576, v50')
    e('ds_write_b128 v38, v[96:99]')
    e('ds_write_b64 v41, v[100:101]')
    e('ds_write_b64 v42, v[102:103]')
    e('ds_write2_b32 v43, v104, v105 offset0:0 offset1:32')
    e('ds_write2_b32 v43, v106, v107 offset0:64 offset1:96')
    t0 = e.lg()
    e('ds_read_b64 v[52:53], v44 offset:2048')
    e('ds_read_b32 v54, v44 offset:2056')
    e('ds_read_b64 v[56:57], v44 offset:1536')
    e('ds_read_b32 v58, v44 offset:1544')
    e('ds_read_b64 v[60:61], v44 offset:1024')
    e('ds_read_b32 v62, v44 offset:1032')
    e('ds_read_b32 v63, v46')
    e('ds_read_b128 v[64:67], v45')
    e('ds_read_b32 v68, v47')
    e('v_and_b32 v36, 3, v1')
    e('v_lshlrev_b32 v36, 3, v36')
    e('v_bfe_u32 v37, v1, 2, 1')
    e('v_mul_u32_u24 v37, %d, v37' % R1OFF)
    e('v_add3_u32 v36, v36, v37, s27')
    e('v_mov_b32 v38, 0')
    e('v_mov_b32 v39, 0')
    e('ds_write_b64 v36, v[38:39] offset:4096')
    def pk(d, x, y): e('v_cvt_pk_bf16_f32 %s, %s, %s' % (v(d), v(x), v(y)))
    def quad(base, pairs):
        for k, (x, y) in enumerate(pairs): pk(base + k, x, y)
    e.wait_lg(t0 + 2)
    A_, B_, C_ = 52, 53, 54
    quad(72, [(C_, C_), (C_, C_), (B_, B_), (B_, B_)]); e('ds_write_b128 v48, v[72:75] offset:%d' % R1OFF)
    quad(76, [(B_, B_), (B_, A_), (A_, A_), (A_, A_)]); e('ds_write_b128 v48, v[76:79] offset:%d' % (R1OFF + 16))
    quad(80, [(C_, C_), (C_, B_), (B_, B_), (B_, B_)]); e('ds_write_b128 v48, v[80:83]')
    quad(88, [(B_, B_), (A_, A_), (A_, A_), (A_, A_)]); e('ds_write_b128 v48, v[88:91] offset:16')
    e.wait_lg(t0 + 9)
    A_, B_, C_ = 56, 57, 58
    quad(72, [(C_, C_), (B_, B_), (B_, A_), (A_, A_)]); e('ds_write_b128 v49, v[72:75] offset:%d' % R1OFF)
    quad(76, [(C_, B_), (B_, B_), (A_, A_), (A_, A_)]); e('ds_write_b128 v49, v[76:79]')
    A_, B_, C_ = 60, 61, 62
    e('v_add_f32 v64, v64, v35')
    e('v_cndmask_b32 v68, v68, v38, vcc')
    quad(80, [(C_, B_), (A_, A_)]); e('ds_write_b64 v50, v[80:81] offset:%d' % R1OFF)
    quad(82, [(B_, A_), (A_, 63)]); e('ds_write_b64 v50, v[82:83]')
    quad(88, [(67, 66), (65, 64)]); e('ds_write_b64 v50, v[88:89] offset:%d' % (R1OFF + 512))
    quad(90, [(66, 65), (64, 68)]); e('ds_write_b64 v50, v[90:91] offset:512')
    stamp(3)
    e('v_lshlrev_b32 v15, 3, v0')
    e('v_add_u32 v15, %d, v15' % (A_UT + 512))
    e('s_waitcnt vmcnt(0)')
    stamp(4)
    for c in range(8):
        sel = 's31' if c & 1 else 's30'
        d = 36 + 2 * (c % 8)
        e('v_perm_b32 %s, %s, %s, %s' % (v(d), v(20 + (c >> 1)), v(16 + (c >> 1)), sel))
        e('v_perm_b32 %s, %s, %s, %s' % (v(d + 1), v(28 + (c >> 1)), v(24 + (c >> 1)), sel))
        e('ds_write_b64 v15, %s offset:%d' % (v(d, 2), c * 4608))
    e('v_and_b32 v2, 15, v1')
    e('v_lshrrev_b32 v3, 4, v1')
    e('v_and_b32 v4, 1, v2')
    e('v_sub_u32 v5, v2, v4')
    e('v_lshlrev_b32 v5, 1, v5')
    e('v_mul_u32_u24 v4, %d, v4' % R1OFF)
    e('v_lshl_add_u32 v4, v3, 4, v4')
    e('v_sub_u32 v4, v4, v5')
    e('s_add_u32 s35, s27, %d' % (4060 - 512))
    e('v_add_u32 v16, s35, v4')
    e('v_subrev_u32 v17, 1024, v16')
    e('v_subrev_u32 v18, 2048, v16')
    e('v_subrev_u32 v19, 3072, v16')
    e('v_lshlrev_b32 v20, 5, v2')
    e('v_lshl_add_u32 v21, v3, 3, v20')
    e('v_lshl_add_u32 v20, v3, 4, v20')
    e('s_add_u32 s35, s33, 480')
    e('v_add_u32 v20, s35, v20')
    e('s_add_u32 s35, s33, 512')
    e('v_add_u32 v21, s35, v21')
    ACC = 64
    for i in range(32): e('v_mov_b32 %s, 0' % v(ACC + i))
    e('s_waitcnt lgkmcnt(0)')
    e('s_barrier')
    stamp(5)
    def loadA(i):
        o = 0 if i & 1 else 128
        e('ds_read2_b32 %s, %s offset0:%d offset1:%d' % (a(4 * i, 2), v(16 + (i >> 1)), o, o + 1))
        e('ds_read2_b32 %s, %s offset0:%d offset1:%d' % (a(4 * i + 2, 2), v(16 + (i >> 1)), o + 2, o + 3))
    def loadB(m): e('ds_read_b128 %s, v20 offset:%d' % (a(32 + 4 * m, 4), 512 * m))
    for i in range(8): loadA(i); loadB(7 - i)
    e('s_mov_b32 s32, 8')
    e.label('L_a_conv')
    for r in range(16, 21): e('v_subrev_u32 %s, 64, %s' % (v(r), v(r)))
    for i in range(8):
        ns = list(range(i, 8))
        if i == 0: ns = ns[::-1]
        for n in ns:
            if i == 0:
                j = 7 - n
                if j == 0 or j >= 3: e('s_waitcnt lgkmcnt(%d)' % min(15, 21 - 3 * j))
            e('v_mfma_f32_16x16x32_bf16 %s, %s, %s, %s' % (v(ACC + 4 * n, 4), a(4 * i, 4), a(32 + 4 * (n - i), 4), v(ACC + 4 * n, 4)))
        loadA(i); loadB(7 - i)
    e('s_sub_u32 s32, s32, 1')
    e('s_cmp_lg_u32 s32, 0')
    e('s_cbranch_scc1 L_a_conv')
    stamp(6)
    for n in range(8):
        pk(36 + 2 * n, ACC + 4 * n, ACC + 4 * n + 1)
        pk(37 + 2 * n, ACC + 4 * n + 2, ACC + 4 * n + 3)
        e('ds_write_b64 v21, %s offset:%d' % (v(36 + 2 * n, 2), 512 * n))
    e('v_add_u32 v13, 4608, v14')
    e('s_waitcnt lgkmcnt(0)')
    e('s_barrier')
    t0 = e.lg()
    for c in range(8): e('ds_read_b64 %s, v15 offset:%d' % (v(36 + 2 * c, 2), c * 4608))
    e.wait_lg(t0 + 8)
    for i in range(4):
        sel = 's31' if i & 1 else 's30'
        for c2 in range(4):
            e('v_perm_b32 %s, %s, %s, %s' % (v(64 + 4 * i + c2), v(36 + 2 * (2 * c2 + 1) + (i >> 1)), v(36 + 2 * (2 * c2) + (i >> 1)), sel))
        e('global_store_dwordx4 %s, %s, s[22:23] offset:%d' % ('v13' if i >= 2 else 'v14', v(64 + 4 * i, 4), 2304 * (i & 1)))
    stamp(7)
    e('s_endpgm')
```

```python
from asmlib import *
from gen_a import f2u, LOG2E
EPS = f2u(1e-6)
SLOT = 34816; WOFF = 16384
WQ_LO = SLOT; WQ_HI = 4 * SLOT; IMG = WQ_HI + 3 * 4608
SCR = 3 * SLOT
CST = WOFF
KVP = 0; OB = 0x80000
SPIN = 20000
def wq_base(ks): return WQ_LO + 4608 * ks if ks < 15 else WQ_HI + 4608 * (ks - 15)

def div_small(e, q, r, x, d, t):
    e('v_mul_u32_u24 %s, %d, %s' % (v(q), (1 << 16) // d + 1, v(x)))
    e('v_lshrrev_b32 %s, 16, %s' % (v(q), v(q)))
    e('v_mul_u32_u24 %s, %d, %s' % (v(t), d, v(q)))
    e('v_sub_u32 %s, %s, %s' % (v(r), v(x), v(t)))
for d in (5, 9, 18):
    assert all((x * ((1 << 16) // d + 1)) >> 16 == x // d for x in range(1024))

def phi_pair(e, x, dst, t):
    return [lambda: e('v_pk_mul_f32 %s, %s, s[36:37]' % (v(t, 2), v(x, 2))),
            lambda: e('v_max_f32 %s, s38, %s' % (v(t + 2), v(x))),
            lambda: e('v_max_f32 %s, s38, %s' % (v(t + 3), v(x + 1))),
            lambda: e('v_exp_f32_e64 %s, %s clamp' % (v(t), v(t))),
            lambda: e('v_exp_f32_e64 %s, %s clamp' % (v(t + 1), v(t + 1))),
            lambda: None,
            lambda: e('v_pk_add_f32 %s, %s, %s' % (v(t, 2), v(t, 2), v(t + 2, 2))),
            lambda: e('v_cvt_pk_bf16_f32 %s, %s, %s' % (v(dst), v(t), v(t + 1)))]
def zipper(*streams):
    streams = [list(x) for x in streams]
    while any(streams):
        for st in streams:
            if st: st.pop(0)()

def role_b(e, stamp, opts):
    stamp = stamp or (lambda i: None)
    rot = int(opts.get('rot', 1))
    e('s_load_dwordx8 s[4:11], s[0:1], 72')
    e('s_load_dwordx4 s[12:15], s[0:1], 104')
    e('v_lshrrev_b32 v2, 6, v0')
    e('v_and_b32 v1, 63, v0')
    e('v_readfirstlane_b32 s24, v2')
    e('s_and_b32 s32, s2, 7')
    e('s_lshr_b32 s33, s2, 3')
    e('s_and_b32 s34, s33, 3')
    e('s_lshr_b32 s33, s33, 2')
    e('s_lshr_b32 s25, s32, 1')
    e('s_lshl_b32 s25, s25, 2')
    e('s_add_u32 s25, s25, s34')
    e('s_and_b32 s26, s32, 1')
    e('s_lshl_b32 s26, s26, 2')
    e('s_add_u32 s26, s26, s33')
    if rot:
        e('s_add_u32 s27, s33, s34')
        e('s_and_b32 s27, s27, 3')
        e('s_lshl_b32 s27, s27, 1')
        e('s_lshr_b32 s35, s32, 1')
        e('s_xor_b32 s35, s35, s32')
        e('s_and_b32 s35, s35, 1')
        e('s_add_u32 s27, s27, s35')
    else:
        e('s_mov_b32 s27, 0')
    e('v_and_b32 v2, 15, v1')
    e('v_lshrrev_b32 v3, 4, v1')
    e('s_cmp_ge_u32 s24, 4')
    e('s_cbranch_scc1 L_b_loader')
    compute(e, stamp, opts)
    e.label('L_b_loader')
    loader(e, stamp, opts)

def compute(e, stamp, opts):
    e.nvm = 0; e.nlg = 0
    ACC = 8; RING = 80; NR = 6; D = 4
    acc = lambda ct, rt: ACC + 8 * ct + 4 * rt
    e('s_mov_b32 s36, 0x%08x' % LOG2E)
    e('s_mov_b32 s37, s36')
    e('s_mov_b32 s38, 0x%08x' % EPS)
    e('s_lshl_b32 s32, s24, 12')
    e('v_and_b32 v104, 7, v2')
    e('v_xor_b32 v105, v3, v104')
    e('v_lshlrev_b32 v106, 7, v2')
    e('v_add_u32 v106, s32, v106')
    e('v_lshl_add_u32 v4, v105, 4, v106')
    e('v_xor_b32 v105, 4, v105')
    e('v_lshl_add_u32 v5, v105, 4, v106')
    e('v_lshrrev_b32 v104, 2, v2')
    e('v_and_b32 v105, 3, v2')
    e('v_lshlrev_b32 v105, 3, v105')
    e('v_lshl_add_u32 v106, v3, 2, v104')
    e('v_mul_u32_u24 v106, 288, v106')
    e('v_add_u32 v106, v106, v105')
    e('v_add_u32 v6, %d, v106' % WOFF)
    e('v_lshlrev_b32 v104, 1, v104')
    e('v_lshl_add_u32 v104, v3, 3, v104')
    e('v_mul_u32_u24 v104, 144, v104')
    e('v_add_u32 v104, v104, v105')
    e('v_add_u32 v7, %d, v104' % WQ_LO)
    e('v_cmp_gt_u32 vcc, 8, v2')
    e('v_mov_b32 v104, s38')
    for ct in range(9):
        for k in range(8):
            if ct < 4: e('v_mov_b32 %s, s38' % v(acc(ct, 0) + k))
            elif ct == 4: e('v_cndmask_b32 %s, 0, v104, vcc' % v(acc(ct, 0) + k))
            else: e('v_mov_b32 %s, 0' % v(acc(ct, 0) + k))
    e('v_cmp_gt_u32 s[40:41], 2, v3')
    e('v_cmp_gt_u32 s[42:43], 3, v3')
    e('s_waitcnt lgkmcnt(0)')
    stamp(0)
    F = [(p, s_, ct) for p in range(9) for s_ in range(2) for ct in range(9)]
    tok = {}
    def issue(f):
        p, s_, ct = F[f]
        if ct == 0 and s_ == 0:
            if p:
                dl = SLOT if p % 4 else -3 * SLOT
                for r in (4, 5, 6): e('v_add_u32 %s, %d, %s' % (v(r), dl, v(r)) if dl > 0 else 'v_subrev_u32 %s, %d, %s' % (v(r), -dl, v(r)))
            if p == 8: e('s_waitcnt lgkmcnt(0)')
            e('s_barrier')
            if p == 0: stamp(1)
            if p == 4: stamp(2)
            if p == 8: stamp(3)
        if ct == 0:
            for rt in range(2): e('ds_read_b128 %s, %s offset:%d' % (a(16 * p + 8 * s_ + 4 * rt, 4), v(4 + s_), 2048 * rt))
        r = RING + 4 * (f % NR)
        for h in range(2): e('ds_read_b64_tr_b16 %s, v6 offset:%d' % (v(r + 2 * h, 2), 9216 * s_ + 4608 * h + 32 * ct))
        tok[f] = e.lg()
    for f in range(D): issue(f)
    for f, (p, s_, ct) in enumerate(F):
        if f + D < len(F): issue(f + D)
        e.wait_lg(tok[f])
        for rt in range(2):
            e('v_mfma_f32_16x16x32_bf16 %s, %s, %s, %s' % (v(acc(ct, rt), 4), a(16 * p + 8 * s_ + 4 * rt, 4), v(RING + 4 * (f % NR), 4), v(acc(ct, rt), 4)))
    stamp(4)
    e('s_lshl_b32 s32, s24, 13')
    e('s_add_u32 s32, s32, %d' % SCR)
    e('v_lshl_add_u32 v4, v1, 4, s32')
    e('s_lshl_b32 s32, s24, 12')
    e('v_lshl_add_u32 v5, v1, 4, s32')
    def put(fi, r):
        if fi < 8: e('ds_write_b128 v4, %s offset:%d' % (v(r, 4), 1024 * fi))
        else: e('ds_write_b128 v5, %s offset:%d' % (v(r, 4), 1024 * (fi - 8)))
    for t in range(5):
        o = 96 + 4 * (t & 1)
        zipper(*[phi_pair(e, acc(t, 0) + 2 * k, o + k, 80 + 4 * k) for k in range(4)])
        put(t, o)
    for t in range(5):
        o = 80 + 4 * t
        for k in range(4): e('v_cvt_pk_bf16_f32 %s, %s, %s' % (v(o + k), v(acc(4 + t, 0) + 2 * k), v(acc(4 + t, 0) + 2 * k + 1)))
        put(5 + t, o)
    for k in range(40): e('v_mov_b32 %s, s38' % v(ACC + k))
    e('v_add_u32 v6, %d, v7' % (WQ_HI - WQ_LO))
    e('s_waitcnt lgkmcnt(0)')
    stamp(5)
    e('s_barrier')
    def gemm144(xreg, wait_x=None):
        G = [(ks, ct) for ks in range(18) for ct in range(5)]
        tk = {}
        def iss(f):
            ks, ct = G[f]
            r = RING + 4 * (f % NR)
            ad, off = ('v7', wq_base(ks) - WQ_LO) if ks < 15 else ('v6', wq_base(ks) - WQ_HI)
            for h in range(2): e('ds_read_b64_tr_b16 %s, %s offset:%d' % (v(r + 2 * h, 2), ad, off + 144 * h + 32 * ct))
            tk[f] = e.lg()
        for f in range(D): iss(f)
        for f, (ks, ct) in enumerate(G):
            if f + D < len(G): iss(f + D)
            if ct == 0 and wait_x: wait_x(ks)
            e.wait_lg(tk[f])
            for rt in range(2):
                e('v_mfma_f32_16x16x32_bf16 %s, %s, %s, %s' % (v(acc(ct, rt), 4), v(RING + 4 * (f % NR), 4), a(xreg(ks, rt), 4), v(acc(ct, rt), 4)))
    gemm144(lambda ks, rt: 8 * ks + 4 * rt)
    stamp(6)
    PQ = 48
    for t in range(5):
        zipper(*[phi_pair(e, acc(t, k >> 1) + 2 * (k & 1), PQ + 10 * (k >> 1) + 2 * t + (k & 1), 80 + 4 * k) for k in range(4)])
    DEN = 68
    for k in range(8): e('v_mov_b32 %s, s38' % v(DEN + k))
    e('v_lshlrev_b32 v4, 3, v1')
    e('v_add_u32 v4, %d, v4' % IMG)
    e('s_lshl_b32 s32, s25, 3')
    e('s_lshl_b32 s33, s24, 1')
    e('s_add_u32 s32, s32, s33')
    e('s_mul_i32 s32, s32, %d' % (18 * 1024))
    e('s_add_u32 s32, s32, %d' % OB)
    e('v_lshl_add_u32 v105, v1, 4, s32')
    e('s_lshl_b32 s33, s26, 11')
    e('v_add_u32 v5, s33, v105')
    e('s_lshr_b32 s33, s26, 2')
    e('s_lshl_b32 s33, s33, 10')
    e('s_and_b32 s34, s26, 3')
    e('s_lshl_b32 s34, s34, 8')
    e('s_add_u32 s33, s33, s34')
    e('s_add_u32 s33, s33, s32')
    e('s_add_u32 s33, s33, %d' % (16 * 1024 - 16))
    e('v_lshlrev_b32 v104, 4, v2')
    e('v_lshl_add_u32 v104, v3, 3, v104')
    e('v_add_u32 v104, s33, v104')
    stamp(7)
    e('s_barrier')
    stamp(8)
    t0 = e.lg()
    for pl in list(range(13, 18)) + list(range(13)): e('ds_read_b64 %s, v4 offset:%d' % (a(2 * pl, 2), 512 * pl))
    def mm(d, pl, dt, n, rt, c):
        e('v_mfma_f32_16x16x%d_bf16 %s, %s, %s, %s' % (16 * n, v(d, 4), a(2 * pl, 2 * n), v(PQ + 10 * rt + 2 * dt, 2 * n), c))
    e.wait_lg(t0 + 5)
    for pl, dt, n in ((13, 0, 2), (15, 2, 2), (17, 4, 1)):
        for rt in range(2): mm(DEN + 4 * rt, pl, dt, n, rt, v(DEN + 4 * rt, 4))
    e.wait_lg(t0 + 18)
    for u, first in enumerate((0, 0, 1, 2, 3)):
        for rt in range(2): mm(acc(u, rt), 2 * u + first, first, 2, rt, '0')
    for u, first in ((1, 0), (2, 1), (3, 2)):
        for rt in range(2): mm(acc(u, rt), 2 * u + first + 2, first + 2, 1, rt, v(acc(u, rt), 4))
    for k in range(8): e('v_rcp_f32 %s, %s' % (v(DEN + k), v(DEN + k)))
    e('v_mov_b32 v106, 0x7fc07fc0')
    OUT = 80
    for rt in range(2):
        i = DEN + 4 * rt; t = 76; o = OUT + 10 * rt
        e('v_cndmask_b32 %s, %s, %s, s[42:43]' % (v(t), v(i + 1), v(i)))
        e('v_cndmask_b32 %s, %s, %s, s[40:41]' % (v(t + 1), v(i + 1), v(i)))
        e('v_cndmask_b32 %s, %s, %s, s[42:43]' % (v(t + 2), v(i + 2), v(i + 1)))
        e('v_cndmask_b32 %s, %s, %s, s[42:43]' % (v(t + 3), v(i + 3), v(i + 2)))
        sc = {0: (i, i), 1: (t, t + 1), 2: (t + 2, t + 2), 3: (i + 2, t + 3), 4: (i + 3, i + 3)}
        for u in (1, 2, 3, 4, 0):
            for k in range(4): e('v_mul_f32 %s, %s, %s' % (v(acc(u, rt) + k), v(sc[u][k >> 1]), v(acc(u, rt) + k)))
            d = o + (2 * (u - 1) if u else 8)
            for k in range(2): e('v_cvt_pk_bf16_f32 %s, %s, %s' % (v(d + k), v(acc(u, rt) + 2 * k), v(acc(u, rt) + 2 * k + 1)))
        for d in (o, o + 4, o + 8):
            e('v_cmp_eq_u32 vcc, -1, %s' % v(d))
            e('v_cndmask_b32 %s, %s, v106, vcc' % (v(d), v(d)))
        if rt: e('v_add_u32 v5, %d, v5' % (18 * 1024))
        e('global_store_dwordx4 v5, %s, s[14:15] sc1' % v(o, 4))
        e('global_store_dwordx4 v5, %s, s[14:15] offset:1024 sc1' % v(o + 4, 4))
    e('v_add_u32 v107, %d, v104' % (18 * 1024))
    e('s_mov_b32 exec_lo, 0')
    e('global_store_dwordx2 v104, %s, s[14:15] sc1' % v(OUT + 8, 2))
    e('global_store_dwordx2 v107, %s, s[14:15] sc1' % v(OUT + 18, 2))
    e('s_mov_b32 exec_lo, -1')
    stamp(9)
    e('s_lshl_b32 s32, s25, 7')
    e('s_lshl_b32 s33, s24, 5')
    e('s_add_u32 s32, s32, s33')
    e('s_mul_i32 s32, s32, 2304')
    e('s_mul_i32 s33, s26, 144')
    e('s_add_u32 s32, s32, s33')
    e('s_add_u32 s32, s32, 1152')
    for j in range(5):
        e('v_add_u32 v48, %d, v1' % (64 * j))
        div_small(e, 49, 50, 48, 9, 51)
        e('v_mul_u32_u24 v49, 2304, v49')
        e('v_lshl_add_u32 v49, v50, 4, v49')
        e('v_add_u32 %s, s32, v49' % v(64 + j))
    e('s_mul_i32 s33, s24, 4608')
    e('s_add_u32 s33, s33, %d' % SCR)
    e('v_mul_u32_u24 v4, 144, v2')
    e('v_lshl_add_u32 v4, v3, 3, v4')
    e('v_add_u32 v4, s33, v4')
    e('v_lshl_add_u32 v5, v1, 4, s33')
    for k in range(1, 9): e('v_add_u32 %s, %d, v105' % (v(52 + k), 4096 * k))
    e('v_mov_b32 v52, v105')
    e('s_mov_b32 s39, 0')
    e('s_mov_b32 s44, %d' % SPIN)
    e.label('L_b_probe')
    e('s_sub_u32 s44, s44, 1')
    e('s_cbranch_scc1 L_b_retry')
    e('global_load_dwordx4 v[72:75], v60, s[14:15] offset:2048 sc1')
    e('global_load_dwordx4 v[76:79], v60, s[14:15] offset:3072 sc1')
    e('s_waitcnt vmcnt(0)')
    e('v_cmp_eq_u32 vcc, -1, v74')
    e('v_cmp_eq_u32 s[32:33], -1, v78')
    e('s_or_b64 vcc, vcc, s[32:33]')
    e('s_cbranch_vccnz L_b_probe')
    stamp(10)
    e.label('L_b_retry')
    e.nvm = 0
    otok = {}
    for ks in range(18):
        for rt in range(2):
            fi = rt * 18 + ks
            e('global_load_dwordx4 %s, %s, s[14:15] offset:%d sc1' % (a(8 * ks + 4 * rt, 4), v(52 + (fi >> 2)), 1024 * (fi & 3)))
        otok[ks] = e.vm()
    for k in range(40): e('v_mov_b32 %s, 0' % v(ACC + k))
    e('s_cmp_lg_u32 s39, 0')
    e('s_cbranch_scc1 L_b_strict')
    e('s_barrier')
    e.label('L_b_gemm2')
    stamp(11)
    gemm144(lambda ks, rt: 8 * ks + 4 * rt, lambda ks: e.wait_vm(otok[ks]))
    stamp(12)
    e('s_cmp_lg_u32 s39, 0')
    e('s_cbranch_scc1 L_b_store')
    e('v_cmp_u_f32 vcc, %s, %s' % (v(acc(0, 0)), v(acc(0, 1))))
    e('s_cbranch_vccz L_b_store')
    e('s_mov_b32 s39, 1')
    e('s_mov_b32 s44, %d' % SPIN)
    e('s_branch L_b_retry')
    e.label('L_b_strict')
    e('s_waitcnt vmcnt(0)')
    e('s_sub_u32 s44, s44, 1')
    e('s_cbranch_scc1 L_b_gemm2')
    e('s_mov_b64 s[32:33], 0')
    for k in range(72):
        e('v_accvgpr_read_b32 v48, %s' % a(2 * k))
        e('v_cmp_eq_u32 vcc, -1, v48')
        e('s_or_b64 s[32:33], s[32:33], vcc') if (k & 1) == 0 or k >= 64 else e.L.__delitem__(slice(-2, None))
    e('s_cmp_lg_u64 s[32:33], 0')
    e('s_cbranch_scc1 L_b_retry')
    e('s_branch L_b_gemm2')
    e.label('L_b_store')
    for ct in range(5):
        if ct == 4: e('s_mov_b32 exec_hi, 0')
        for rt in range(2):
            d = 80 + 4 * ct + 2 * rt
            for k in range(2): e('v_cvt_pk_bf16_f32 %s, %s, %s' % (v(d + k), v(acc(ct, rt) + 2 * k), v(acc(ct, rt) + 2 * k + 1)))
            e('ds_write_b64 v4, %s offset:%d' % (v(d, 2), 2304 * rt + 32 * ct))
    e('s_mov_b32 exec_hi, -1')
    t0 = e.lg()
    for j in range(5): e('ds_read_b128 %s, v5 offset:%d' % (v(8 + 4 * j, 4), 1024 * j))
    for j in range(5):
        e.wait_lg(t0 + j + 1)
        if j == 4: e('s_mov_b32 exec_hi, 0')
        e('global_store_dwordx4 %s, %s, s[10:11]' % (v(64 + j), v(8 + 4 * j, 4)))
    e('s_mov_b32 exec_hi, -1')
    stamp(13)
    e('s_endpgm')

def loader(e, stamp, opts):
    e.nvm = 0; e.nlg = 0
    e('s_sub_u32 s39, s24, 4')
    e('v_lshrrev_b32 v4, 3, v1')
    e('v_and_b32 v5, 7, v1')
    e('v_xor_b32 v5, v5, v4')
    e('s_lshl_b32 s32, s25, 7')
    e('s_lshl_b32 s33, s39, 5')
    e('s_add_u32 s32, s32, s33')
    e('v_add_u32 v4, s32, v4')
    e('v_mul_u32_u24 v4, 1152, v4')
    e('v_lshl_add_u32 v8, v5, 4, v4')
    e('s_lshr_b32 s32, s39, 1')
    e('s_lshl_b32 s32, s32, 5')
    e('s_and_b32 s33, s39, 1')
    e('s_lshl_b32 s33, s33, 2')
    e('s_add_u32 s32, s32, s33')
    e('s_mul_i32 s40, s26, 144')
    e('s_add_u32 s33, s40, 1152')
    for j in range(5):
        e('v_add_u32 v4, %d, v1' % (64 * j))
        div_small(e, 5, 6, 4, 18, 7)
        e('v_lshrrev_b32 v4, 2, v5')
        e('v_and_b32 v5, 3, v5')
        e('v_lshl_add_u32 v4, v4, 3, v5')
        e('v_add_u32 v4, s32, v4')
        e('v_mul_u32_u24 v4, 3456, v4')
        e('v_cmp_lt_u32 vcc, 8, v6')
        e('v_lshl_add_u32 v4, v6, 4, v4')
        e('v_add_u32 v4, s33, v4')
        e('v_add_u32 v5, 1008, v4')
        e('v_cndmask_b32 %s, v4, v5, vcc' % v(9 + j))
    e('s_lshl_b32 s32, s26, 2')
    e('s_add_u32 s32, s32, s39')
    e('s_mul_i32 s32, s32, 12288')
    e('s_add_u32 s32, s32, %d' % KVP)
    e('v_lshl_add_u32 v15, v1, 4, s32')
    e('s_lshl_b32 s33, s25, 8')
    e('s_add_u32 s32, s32, s33')
    e('v_lshlrev_b32 v14, 4, v2')
    e('v_lshl_add_u32 v14, v3, 12, v14')
    e('v_add_u32 v14, s32, v14')
    e('s_lshl_b32 s32, s25, 3')
    e('s_lshl_b32 s33, s39, 1')
    e('s_add_u32 s32, s32, s33')
    e('s_mul_i32 s32, s32, %d' % (18 * 1024))
    e('s_add_u32 s32, s32, %d' % OB)
    e('s_lshl_b32 s33, s26, 11')
    e('s_add_u32 s33, s33, s32')
    e('v_lshl_add_u32 v16, v1, 4, s33')
    e('s_lshr_b32 s33, s26, 2')
    e('s_lshl_b32 s33, s33, 10')
    e('s_and_b32 s34, s26, 3')
    e('s_lshl_b32 s34, s34, 8')
    e('s_add_u32 s33, s33, s34')
    e('s_add_u32 s33, s33, s32')
    e('s_add_u32 s33, s33, %d' % (16 * 1024))
    e('v_bfe_u32 v4, v1, 4, 1')
    e('v_mul_u32_u24 v4, %d, v4' % (18 * 1024))
    e('v_lshl_add_u32 v4, v2, 4, v4')
    e('v_add_u32 v17, s33, v4')
    e('v_add_u32 v18, %d, v16' % (18 * 1024))
    for k in range(4): e('v_mov_b32 %s, -1' % v(20 + k))
    e('s_lshl_b32 s41, s39, 12')
    e('s_mul_i32 s42, s39, 4608')
    e('s_add_u32 s42, s42, %d' % WOFF)
    e('s_waitcnt lgkmcnt(0)')
    e('s_mov_b32 s16, s4\ns_mov_b32 s17, s5\ns_mov_b32 s18, %d\ns_mov_b32 s19, 0x20000' % (2048 * 1152))
    e('s_mov_b32 s20, s6\ns_mov_b32 s21, s7\ns_mov_b32 s22, %d\ns_mov_b32 s23, 0x20000' % (576 * 3456))
    e('s_mov_b32 s28, s8\ns_mov_b32 s29, s9\ns_mov_b32 s30, %d\ns_mov_b32 s31, 0x20000' % (576 * 1152))
    e('s_mov_b32 s43, s27')
    ctok = {}
    def nxt(reg):
        e('s_add_u32 %s, %s, 1' % (reg, reg))
        e('s_cmp_eq_u32 %s, 9' % reg)
        e('s_cselect_b32 %s, 0, %s' % (reg, reg))
    def chunk(p):
        sl = SLOT * (p % 4)
        e('s_lshl_b32 s32, s43, 7')
        e('s_mul_i32 s33, s43, %d' % (64 * 3456))
        for j in range(4):
            e('s_add_u32 m0, s41, %d' % (sl + 1024 * j))
            if j: e('s_add_u32 s32, s32, 9216')
            e('buffer_load_dwordx4 v8, s[16:19], s32 offen lds')
        for j in range(5):
            e('s_add_u32 m0, s42, %d' % (sl + 1024 * j))
            if j == 4: e('s_mov_b32 exec_hi, 0')
            e('buffer_load_dwordx4 %s, s[20:23], s33 offen lds' % v(9 + j))
        e('s_mov_b32 exec_hi, -1')
        nxt('s43')
        ctok[p] = e.vm()
    chunk(0)
    e('global_store_dwordx4 v16, v[20:23], s[14:15] sc1')
    e('global_store_dwordx4 v16, v[20:23], s[14:15] offset:1024 sc1')
    e('global_store_dwordx4 v18, v[20:23], s[14:15] sc1')
    e('global_store_dwordx4 v18, v[20:23], s[14:15] offset:1024 sc1')
    e('s_mov_b32 exec_hi, 0')
    e('global_store_dwordx4 v17, v[20:23], s[14:15] sc1')
    e('s_mov_b32 exec_hi, 0xffff')
    e('global_store_dwordx4 v14, v[20:23], s[14:15] sc1')
    e('s_mov_b32 exec_hi, -1')
    chunk(1); chunk(2)
    stamp(0)
    for j in range(5):
        e('v_add_u32 v4, %d, v1' % (64 * j))
        div_small(e, 5, 6, 4, 9, 7)
        e('v_lshlrev_b32 v6, 4, v6')
        e('v_add_u32 v6, s40, v6')
        e('v_lshrrev_b32 v4, 3, v5')
        e('v_and_b32 v7, 1, v5')
        e('v_bfe_u32 v5, v5, 1, 2')
        e('v_lshl_add_u32 v19, v7, 2, v5')
        e('v_lshl_add_u32 v39, v4, 3, v19')
        e('v_mul_u32_u24 v39, 3456, v39')
        e('v_add_u32 %s, v39, v6' % v(24 + j))
        e('v_lshl_add_u32 v39, v4, 2, v5')
        e('v_lshl_add_u32 v39, v7, 4, v39')
        e('v_mul_u32_u24 v39, 1152, v39')
        e('v_add_u32 %s, v39, v6' % v(29 + j))
        e('v_mul_u32_u24 v39, 72, v4')
        e('v_add_u32 v39, v39, v19')
        e('v_mul_u32_u24 v39, 1152, v39')
        e('v_add_u32 %s, v39, v6' % v(34 + j))
    e('s_mul_i32 s32, s39, 2304')
    e('s_add_u32 s32, s32, %d' % IMG)
    e('v_lshl_add_u32 v4, v1, 4, s32')
    for k in range(4): e('v_mov_b32 %s, 0' % v(40 + k))
    e('ds_write_b128 v4, v[40:43]')
    e('ds_write_b128 v4, v[40:43] offset:1024')
    e('v_lshl_add_u32 v4, v1, 2, s32')
    e('ds_write_b32 v4, v40 offset:2048')
    e('s_lshr_b32 s45, s39, 1')
    e('s_lshl_b32 s46, s39, 1')
    e('s_lshl_b32 s47, s39, 10')
    e('s_add_u32 s47, s47, %d' % CST)
    e('s_add_u32 s32, s47, 768')
    e('v_lshl_add_u32 v44, v2, 3, s32')
    for i in range(2):
        e('v_add_u32 v4, %d, v3' % (4 * i))
        e('v_subrev_u32 v5, s45, v4')
        e('v_cmp_gt_u32 s[48:49], 5, v5')
        e('v_lshlrev_b32 v4, 2, v4')
        e('v_subrev_u32 v4, s46, v4')
        e('v_cmp_gt_u32 %s, 18, v4' % s(52 + 4 * i, 2))
        e('v_add_u32 v4, 2, v4')
        e('v_cmp_gt_u32 %s, 18, v4' % s(54 + 4 * i, 2))
        for j in range(2):
            e('v_add_u32 v6, %d, v2' % (16 * j - 8))
            e('v_subrev_u32 v6, s46, v6')
            e('v_cmp_gt_u32 vcc, 18, v6')
            e('s_and_b64 vcc, vcc, s[48:49]')
            e('v_mul_u32_u24 v6, 5, v6')
            e('v_add_u32 v6, v6, v5')
            e('v_lshl_add_u32 v6, v6, 3, s47')
            e('v_cndmask_b32 %s, v44, v6, vcc' % v(45 + 2 * i + j))
        e('v_cmp_eq_u32 vcc, 0, v2')
        e('s_and_b64 vcc, vcc, s[48:49]')
        e('v_add_u32 v6, 90, v5')
        e('v_lshl_add_u32 v6, v6, 3, s47')
        e('v_cndmask_b32 %s, v44, v6, vcc' % v(49 + i))
    e('s_mul_i32 s32, s39, 18')
    e('s_add_u32 s32, s32, 8')
    e('s_lshl_b32 s33, s39, 2')
    e('s_add_u32 s33, s33, s45')
    e('v_cmp_gt_u32 s[48:49], 2, v3')
    for b in range(3):
        e('v_lshl_add_u32 v4, v2, 1, v3')
        e('v_add_u32 v4, %d, v4' % (32 * b))
        div_small(e, 5, 6, 4, 5, 7)
        e('v_add_u32 v6, s33, v6')
        e('v_add_u32 v7, s32, v5')
        e('v_lshrrev_b32 v19, 4, v7')
        e('v_and_b32 v7, 15, v7')
        e('v_lshrrev_b32 v39, 2, v6')
        e('v_and_b32 v6, 3, v6')
        e('v_lshl_add_u32 v19, v19, 1, v39')
        if b == 2:
            e('v_cmp_eq_u32 vcc, 18, v5')
            e('v_add_u32 v39, 13, v39')
            e('v_cndmask_b32 v19, v19, v39, vcc')
            e('v_mov_b32 v39, s39')
            e('v_cndmask_b32 v7, v7, v39, vcc')
        e('v_lshl_add_u32 v7, v6, 4, v7')
        e('v_lshlrev_b32 v7, 3, v7')
        e('v_lshl_add_u32 v7, v19, 9, v7')
        e('v_add_u32 v7, %d, v7' % IMG)
        if b == 2:
            e('s_and_b64 vcc, vcc, s[48:49]')
            e('v_cndmask_b32 v54, v44, v7, vcc')
            e('v_cmp_gt_u32 vcc, 19, v5')
            e('s_and_b64 s[48:49], vcc, s[48:49]')
        e('v_cndmask_b32 %s, v44, v7, s[48:49]' % v(51 + b))
    e('v_and_b32 v4, 1, v2')
    e('v_lshlrev_b32 v4, 4, v4')
    e('v_mov_b32 v5, 0x3f80')
    e('v_lshlrev_b32 v4, v4, v5')
    e('v_lshrrev_b32 v5, 1, v2')
    for k in range(4):
        e('v_cmp_eq_u32 vcc, %d, v5' % k)
        e('v_cndmask_b32 %s, 0, v4, vcc' % v(56 + k))
        e('v_mov_b32 %s, 0x3f803f80' % v(60 + k))
    for k, df in enumerate((0, 1, 5, 6)):
        e('s_add_u32 s32, s39, %d' % df)
        e('s_lshl_b32 s33, s32, 10')
        e('s_add_u32 s34, s33, %d' % SCR)
        e('s_sub_u32 s33, s33, 8192')
        e('s_cmp_lt_u32 s32, 8')
        e('s_cselect_b32 s33, s34, s33')
        e('s_movk_i32 s34, 4096')
        e('s_cselect_b32 %s, 8192, s34' % s(48 + k))
        e('v_lshl_add_u32 %s, v1, 4, s33' % v(64 + k))
    stamp(1)
    def tile144(ks, srd, vregs, soff):
        for j in range(5):
            e('s_add_u32 m0, s34, %d' % (1024 * j))
            if j == 4: e('s_mov_b32 exec_hi, 0')
            e('buffer_load_dwordx4 %s, %s, %s offen lds' % (v(vregs + j), srd, soff))
        e('s_mov_b32 exec_hi, -1')
    def wq_step(reg_ks):
        e('s_lshr_b32 s32, %s, 1' % reg_ks)
        e('s_add_u32 s32, s32, s27')
        e('s_sub_u32 s33, s32, 9')
        e('s_cmp_ge_u32 s32, 9')
        e('s_cselect_b32 s32, s33, s32')
        e('s_lshl_b32 s32, s32, 1')
        e('s_and_b32 s33, %s, 1' % reg_ks)
        e('s_add_u32 s32, s32, s33')
        e('s_mul_i32 s32, s32, %d' % (32 * 3456))
        e('s_mul_i32 s34, %s, 4608' % reg_ks)
        e('s_add_u32 s33, s34, %d' % (WQ_HI - 15 * 4608))
        e('s_add_u32 s34, s34, %d' % WQ_LO)
        e('s_cmp_ge_u32 %s, 15' % reg_ks)
        e('s_cselect_b32 s34, s33, s34')
        tile144(None, 's[20:23]', 24, 's32')
    def wq_group(lo, n, tag):
        for rnd in range((n + 3) // 4):
            e('s_add_u32 s35, s39, %d' % (lo + 4 * rnd))
            if 4 * rnd + 4 > n: e('s_min_u32 s35, s35, %d' % (lo + n - 1))
            wq_step('s35')
    for p in range(9):
        e.wait_vm(ctok[p])
        if p == 0: e('s_waitcnt lgkmcnt(0)')
        e('s_barrier')
        if p == 0: stamp(2)
        if p == 0: chunk(3)
        elif p == 1:
            e('s_cmp_lg_u32 s39, 0')
            e('s_cbranch_scc1 L_b_noadd')
            e('s_and_b32 s32, s2, 3')
            e('s_lshl_b32 s32, s32, 6')
            e('v_mov_b32 v4, s32')
            e('v_mov_b32 v5, 1')
            e('s_mov_b64 exec, 1')
            e('global_atomic_add v4, v5, s[12:13] sc1')
            e('s_mov_b64 exec, -1')
            e.nvm -= 1
            e.label('L_b_noadd')
        elif p <= 6: chunk(p + 2)
        if p == 6: wq_group(15, 3, 'a')
        if p == 7: wq_group(0, 7, 'b')
        if p == 8: wq_group(7, 8, 'c')
    stamp(3)
    e('s_waitcnt vmcnt(0)')
    stamp(4)
    e('s_barrier')
    stamp(5)
    e('s_setprio 2')
    FR = 68
    tk = []
    for w in range(4):
        for k in range(4):
            e('ds_read_b128 %s, %s' % (a(16 * w + 4 * k, 4), v(64 + k)))
            if w < 3: e('v_add_u32 %s, %s, %s' % (v(64 + k), s(48 + k), v(64 + k)))
        tk.append(e.lg())
    e('v_mov_b32 v4, s47')
    e('ds_write_b64 v4, v[40:41] offset:760')
    DD = 68
    for w in range(4):
        e.wait_lg(tk[w])
        for i in range(2):
            for j in range(2):
                d = DD + 8 * i + 4 * j
                e('v_mfma_f32_16x16x32_bf16 %s, %s, %s, %s' % (v(d, 4), a(16 * w + 4 * i, 4), a(16 * w + 8 + 4 * j, 4), v(d, 4) if w else '0'))
            d = DD + 16 + 4 * i
            e('v_mfma_f32_16x16x32_bf16 %s, %s, v[60:63], %s' % (v(d, 4), a(16 * w + 4 * i, 4), v(d, 4) if w else '0'))
    for i in range(2):
        for j in range(3):
            d = DD + 8 * i + 4 * j if j < 2 else DD + 16 + 4 * i
            o = 92 + 2 * (3 * i + j)
            for k in range(2): e('v_cvt_pk_bf16_f32 %s, %s, %s' % (v(o + k), v(d + 2 * k), v(d + 2 * k + 1)))
            for k in range(2): e('v_cndmask_b32 %s, 0, %s, %s' % (v(o + k), v(o + k), s(52 + 4 * i + 2 * k, 2)))
            e('ds_write_b64 %s, %s' % (v(45 + 2 * i + j) if j < 2 else v(49 + i), v(o, 2)))
    e('v_lshl_add_u32 v4, v1, 4, s47')
    e('ds_read_b128 v[68:71], v4')
    e('v_mov_b32 v5, 0x7fc07fc0')
    e('s_waitcnt lgkmcnt(0)')
    e('v_cmp_eq_u32 vcc, -1, v68')
    e('v_cndmask_b32 v68, v68, v5, vcc')
    e('s_mov_b32 exec_hi, 0xffff')
    e('global_store_dwordx4 v14, v[68:71], s[14:15] sc1')
    e('s_mov_b32 exec_hi, -1')
    stamp(6)
    e('v_and_b32 v4, 3, v1')
    e('v_lshlrev_b32 v4, 6, v4')
    e('v_add_u32 v16, 4096, v15')
    e('v_add_u32 v17, 8192, v15')
    e('s_mov_b32 s44, %d' % SPIN)
    e.label('L_b_cnt')
    e('s_sub_u32 s44, s44, 1')
    e('s_cbranch_scc1 L_b_cntdone')
    e('global_load_dword v5, v4, s[12:13] sc1')
    e('s_waitcnt vmcnt(0)')
    e('v_cmp_gt_u32 vcc, 32, v5')
    e('s_cbranch_vccnz L_b_cnt')
    e.label('L_b_cntdone')
    e('s_mov_b32 s44, %d' % SPIN)
    stamp(7)
    e.label('L_b_gather')
    X = 64
    for b in range(3):
        for i in range(4): e('global_load_dwordx4 %s, %s, s[14:15] offset:%d sc1' % (v(X + 16 * b + 4 * i, 4), v(15 + b), 1024 * i))
    e('s_mov_b64 s[32:33], 0')
    for k in range(12):
        if k % 4 == 0: e('s_waitcnt vmcnt(%d)' % (8 - k))
        e('v_cmp_eq_u32 vcc, -1, %s' % v(X + 4 * k))
        e('s_or_b64 s[32:33], s[32:33], vcc')
    e('s_sub_u32 s44, s44, 1')
    e('s_cbranch_scc1 L_b_gathered')
    e('s_cmp_lg_u64 s[32:33], 0')
    e('s_cbranch_scc1 L_b_gather')
    e.label('L_b_gathered')
    stamp(8)
    for i in range(4):
        for b in range(3):
            e('v_mfma_f32_16x16x32_bf16 %s, v[56:59], %s, %s' % (v(8 + 4 * b, 4), v(X + 16 * b + 4 * i, 4), v(8 + 4 * b, 4) if i else '0'))
    for b in range(3):
        for k in range(2): e('v_cvt_pk_bf16_f32 %s, %s, %s' % (v(20 + 2 * b + k), v(8 + 4 * b + 2 * k), v(8 + 4 * b + 2 * k + 1)))
        e('ds_write_b64 %s, %s' % (v(51 + b), v(20 + 2 * b, 2)))
    for k in range(1, 4): e('ds_write_b64 v54, v[24:25] offset:%d' % (32 * k))
    e('s_waitcnt lgkmcnt(0)')
    e('s_setprio 0')
    stamp(9)
    e('s_barrier')
    for rnd in range(4):
        e('s_add_u32 s35, s39, %d' % (4 * rnd))
        e('s_lshr_b32 s32, s35, 1')
        e('s_mul_i32 s32, s32, 72')
        e('s_and_b32 s33, s35, 1')
        e('s_lshl_b32 s33, s33, 5')
        e('s_add_u32 s32, s32, s33')
        e('s_add_u32 s32, s32, 8')
        e('s_mul_i32 s32, s32, 1152')
        e('s_mul_i32 s34, s35, 4608')
        e('s_add_u32 s33, s34, %d' % (WQ_HI - 15 * 4608))
        e('s_add_u32 s34, s34, %d' % WQ_LO)
        e('s_cmp_ge_u32 s35, 15')
        e('s_cselect_b32 s34, s33, s34')
        tile144(None, 's[28:31]', 29, 's32')
    e('s_cmp_ge_u32 s39, 2')
    e('s_cbranch_scc1 L_b_wodone')
    e('s_mul_i32 s32, s39, %d' % (288 * 1152))
    e('s_mul_i32 s34, s39, 4608')
    e('s_add_u32 s34, s34, %d' % (WQ_HI + 4608))
    tile144(None, 's[28:31]', 34, 's32')
    e.label('L_b_wodone')
    e('s_waitcnt vmcnt(0)')
    stamp(10)
    e('s_barrier')
    e('s_endpgm')
```

```python
import sys
from asmlib import *
import gen_a
KN = 'concat_heads__ssm_conv_s4__linear_attn_block__prompt_kernel'
HEAD = open('concat_heads__ssm_conv_s4__linear_attn_block__prompt.s.ref').read().split('; Override launch')[0]
LDS = 163840
STAMP_BASE = 64 << 20

def make(stamps=False, roles='AB', opts=None):
    opts = opts or {}
    e = Asm()
    nst = [0]
    def mk_stamp(role):
        if not stamps: return None
        def st(i):
            e('s_memtime %s' % s(64 + 2 * i, 2))
        return st
    e.label(KN)
    if stamps:
        e('s_memrealtime s[60:61]')
        e('s_memtime s[62:63]')
    e('s_cmp_ge_u32 s2, 256')
    e('s_cbranch_scc1 L_exit')
    e('s_cmp_ge_u32 s2, 128')
    e('s_cbranch_scc1 %s' % ('L_roleA' if 'A' in roles else 'L_exit'))
    if 'B' in roles:
        import gen_b
        gen_b.role_b(e, mk_stamp('B'), opts)
    e.label('L_exit')
    e('s_endpgm')
    if 'A' in roles:
        gen_a.role_a(e, mk_stamp('A'))
    lines = e.L
    if stamps:
        out = []
        for k, l in enumerate(lines):
            if l == 's_endpgm' and lines[k - 1] != 'L_exit:': out.append('s_branch L_dump')
            else: out.append(l)
        lines = out
        d = Asm()
        d.label('L_dump')
        d('s_waitcnt vmcnt(0)')
        d('s_memtime s[96:97]')
        d('s_memrealtime s[98:99]')
        d('s_load_dwordx2 s[4:5], s[0:1], 112')
        d('v_mbcnt_lo_u32_b32 v1, -1, 0')
        d('v_mbcnt_hi_u32_b32 v1, -1, v1')
        d('s_waitcnt lgkmcnt(0)')
        d('v_mov_b32 v2, s60')
        for i in range(17):
            d('s_sub_u32 s6, %s, s62' % s(64 + 2 * i))
            d('v_mov_b32 v3, s6')
            d('v_cmp_eq_u32 vcc, %d, v1' % (i + 2))
            d('v_cndmask_b32 v2, v2, v3, vcc')
        d('v_mov_b32 v3, s98')
        d('v_cmp_eq_u32 vcc, 1, v1')
        d('v_cndmask_b32 v2, v2, v3, vcc')
        d('s_lshl_b32 s6, s2, 3')
        d('s_add_u32 s6, s6, s24')
        d('s_lshl_b32 s6, s6, 8')
        d('s_add_u32 s6, s6, %d' % STAMP_BASE)
        d('v_lshl_add_u32 v1, v1, 2, s6')
        d('global_store_dword v1, v2, s[4:5]')
        d('s_endpgm')
        lines += d.L
    lines, added = pad_hazards(lines)
    body = '\n'.join(l if l.endswith(':') else '    ' + l for l in lines)
    txt = HEAD + '; @launch grid=(256,1,1) block=(512,1,1) lds=%d\n' % LDS
    txt += '.amdgcn_target "amdgcn-amd-amdhsa--gfx950"\n.text\n.globl %s\n.p2align 8\n.type %s,@function\n' % (KN, KN)
    txt += body + '\n'
    txt += '''.section .rodata,"a"
.p2align 6
.amdhsa_kernel %s
  .amdhsa_next_free_vgpr 256
  .amdhsa_next_free_sgpr 102
  .amdhsa_accum_offset 112
  .amdhsa_group_segment_fixed_size 0
  .amdhsa_kernarg_size 120
  .amdhsa_user_sgpr_count 2
  .amdhsa_user_sgpr_kernarg_segment_ptr 1
  .amdhsa_system_sgpr_workgroup_id_x 1
.end_amdhsa_kernel
''' % KN
    return txt, added

if __name__ == '__main__':
    out = sys.argv[1]
    stamps = 'stamps' in sys.argv[2:]
    roles = [x for x in sys.argv[2:] if x in ('A', 'B', 'AB')]
    opts = dict(x.split('=') for x in sys.argv[2:] if '=' in x)
    txt, added = make(stamps, roles[0] if roles else 'AB', opts)
    open(out, 'w').write(txt)
    print('wrote', out, len(txt), 'bytes; nop states added', added)
```

```python
from asmlib import *
import math, struct

def f2u(x): return struct.unpack('<I', struct.pack('<f', x))[0]
LOG2E = f2u(math.log2(math.e)); INV2PI = f2u(1.0 / (2 * math.pi))

A_WORK = 64; A_WS = 8704
A_CMP = A_WORK + 8 * A_WS
A_UT = A_CMP + 8 * 3072
A_END = A_UT + 8 * 4608
ROWB = 272
R1OFF = 4160

def cmul(e, dst, x, y, t):
    return [lambda: e('v_pk_mul_f32 %s, %s, %s op_sel_hi:[1,0]' % (v(t, 2), v(x, 2), v(y, 2))),
            lambda: e('v_pk_fma_f32 %s, %s, %s, %s op_sel:[1,1,0] op_sel_hi:[0,1,1] neg_lo:[0,1,0]' % (v(dst, 2), v(x, 2), v(y, 2), v(t, 2)))]

def interleave(*streams):
    streams = [list(x) for x in streams]
    while any(streams):
        for st in streams:
            if st: st.pop(0)()

def role_a(e, stamp=None, opts=None):
    opts = opts or {}
    late = int(opts.get('ulate', 1))
    stamp = stamp or (lambda i: None)
    e.label('L_roleA')
    e('s_sub_u32 s24, s2, 128')
    e('s_and_b32 s25, s24, 7')
    e('s_lshr_b32 s24, s24, 3')
    e('s_lshr_b32 s27, s24, 2')
    e('s_lshl_b32 s27, s27, 3')
    e('s_add_u32 s27, s27, s25')
    e('s_cmp_ge_u32 s27, 18')
    e('s_cbranch_scc1 L_roleH')
    e('s_load_dwordx16 s[4:19], s[0:1], 0')
    e('s_load_dwordx2 s[20:21], s[0:1], 64')
    e('s_load_dwordx2 s[22:23], s[0:1], 96')
    e('s_and_b32 s26, s24, 3')
    e('s_lshl_b32 s27, s25, 2')
    e('s_add_u32 s27, s27, 56')
    e('s_lshl_b32 s25, s25, 3')
    e('s_cmp_lt_u32 s24, 8')
    e('s_cselect_b32 s25, s25, s27')
    e('s_add_u32 s25, s25, s24')
    e('v_lshrrev_b32 v10, 6, v0')
    e('v_and_b32 v1, 63, v0')
    e('v_readfirstlane_b32 s24, v10')
    e('s_mov_b32 s30, 0x05040100')
    e('s_mov_b32 s31, 0x07060302')
    e('s_lshl_b32 s28, s25, 3')
    e('s_add_u32 s28, s28, s24')
    e('s_lshl_b32 s29, s28, 8')
    e('v_lshl_add_u32 v10, v1, 2, s29')
    e('s_lshl_b32 s29, s28, 1')
    e('v_mov_b32 v11, s29')
    e('v_lshlrev_b32 v12, 2, v0')
    e('v_mul_u32_u24 v13, 1152, v12')
    e('s_lshl_b32 s29, s25, 4')
    e('v_add_u32 v13, s29, v13')
    e('v_mul_u32_u24 v14, 2304, v12')
    e('v_add_u32 v14, s29, v14')
    e('s_mul_i32 s27, s24, %d' % A_WS)
    e('s_add_u32 s27, s27, %d' % A_WORK)
    e('s_mov_b32 m0, s27')
    e('s_waitcnt lgkmcnt(0)')
    e('global_load_ushort v8, v11, s[18:19]')
    for k in range(6):
        e('global_load_dword %s, v10, %s' % (v(2 + k), s(6 + 2 * k, 2)))
    e('global_load_ushort v9, v11, s[20:21]')
    t_par = e.vm()
    def uload(slot):
        for sub in range(4):
            if sub < 3:
                e('s_cmp_lg_u32 s26, %d' % sub)
                e('s_cbranch_scc1 L_a_u%d_%d' % (slot, sub + 1))
            i = (slot + sub) & 3
            e('global_load_dwordx4 %s, v13, s[4:5] offset:%d' % (v(16 + 4 * i, 4), 1152 * i))
            if sub < 3:
                e('s_branch L_a_udone%d' % slot)
                e.label('L_a_u%d_%d' % (slot, sub + 1))
                e.nvm -= 1
        e.label('L_a_udone%d' % slot)
    stamp(0)
    e('s_mul_i32 s33, s24, 4608')
    e('s_add_u32 s33, s33, %d' % A_UT)
    e('v_lshl_add_u32 v15, v1, 3, s33')
    e('v_mov_b32 v36, 0')
    e('v_mov_b32 v37, 0')
    e('ds_write_b64 v15, v[36:37]')
    e('v_and_b32 v36, 31, v1')
    e('v_lshrrev_b32 v37, 5, v1')
    e('v_mul_u32_u24 v86, %d, v36' % ROWB)
    e('v_lshl_add_u32 v86, v37, 4, v86')
    e('v_add_u32 v86, s27, v86')
    for i in range(16): e('v_mov_b32 %s, 0' % v(96 + i))
    e.wait_vm(t_par)
    stamp(1)
    e('v_lshlrev_b32 v8, 16, v8')
    e('v_mul_f32 v8, 0x%08x, v8' % LOG2E)
    e('v_exp_f32 v8, v8')
    e('v_lshlrev_b32 v9, 16, v9')
    e('v_cvt_pk_bf16_f32 v8, v8, v8')
    e('v_cmp_eq_u32 vcc, 0, v1')
    e('v_lshlrev_b32 v32, 16, v8')
    e('v_cndmask_b32 v35, 0, v9, vcc')
    e('v_mul_f32 v33, 0x%08x, v32' % LOG2E)
    e('v_mul_f32 v34, 0x%08x, v32' % INV2PI)
    e('s_mov_b32 s32, 2')
    e.label('L_a_pass')
    stamp(8)
    if not late: uload(0)
    stamp(9)
    for k in range(6): e('v_lshlrev_b32 %s, 16, %s' % (v(36 + k), v(2 + k)))
    for k in range(6): e('v_lshrrev_b32 %s, 16, %s' % (v(2 + k), v(2 + k)))
    e('v_mul_f32 v36, v33, v36')
    e('v_mul_f32 v37, v34, v37')
    e('v_mul_f32 v38, v32, v38')
    e('v_mul_f32 v39, v32, v39')
    e('v_mul_f32 v70, 0x43800000, v36')
    e('v_mul_f32 v71, 0x43800000, v37')
    e('v_mul_f32 v72, 0x41000000, v36')
    e('v_mul_f32 v73, 0x41000000, v37')
    e('v_fract_f32 v71, v71')
    e('v_fract_f32 v37, v37')
    e('v_fract_f32 v73, v73')
    e('v_exp_f32 v70, v70')
    e('v_cos_f32 v48, v71')
    e('v_sin_f32 v49, v71')
    e('v_exp_f32 v36, v36')
    e('v_cos_f32 v44, v37')
    e('v_sin_f32 v45, v37')
    e('v_exp_f32 v72, v72')
    e('v_cos_f32 v46, v73')
    e('v_sin_f32 v47, v73')
    for f in cmul(e, 42, 38, 40, 74): f()
    e('v_mul_f32 v48, v70, v48')
    e('v_mul_f32 v49, v70, v49')
    e('v_mul_f32 v44, v36, v44')
    e('v_mul_f32 v45, v36, v45')
    e('v_mul_f32 v46, v72, v46')
    e('v_mul_f32 v47, v72, v47')
    cv = {}
    def put(src, row, neg, ch=0):
        cv[ch] = cv.get(ch, 0) + 1
        r = 78 + 2 * ch + (cv[ch] & 1)
        return [lambda: e('v_cvt_pk_bf16_f32 %s, %s, %s%s' % (v(r), v(src), '-' if neg else '', v(src + 1))),
                lambda: e('ds_write_addtid_b32 %s offset:%d' % (v(r), row * ROWB))]
    chA = put(42, 0, True)
    rowsA = [8, 12, 14, 16, 17, 18, 19, 20]
    src = 42
    for r in rowsA:
        chA += cmul(e, 50, src, 48, 70) + put(50, r, True); src = 50
    putB = lambda x, r, n: put(x, r, n, 1)
    chB = cmul(e, 60, 44, 44, 72) + cmul(e, 68, 42, 44, 74) + putB(68, 1, True)
    chB += cmul(e, 62, 42, 60, 72) + putB(62, 2, True) + cmul(e, 68, 68, 60, 74) + putB(68, 3, True)
    chB += cmul(e, 64, 62, 60, 72) + putB(64, 4, True) + cmul(e, 68, 68, 60, 74) + putB(68, 5, True)
    chB += cmul(e, 66, 64, 60, 72) + putB(66, 6, True) + cmul(e, 68, 68, 60, 74) + putB(68, 7, True)
    chB += cmul(e, 64, 64, 48, 72) + putB(64, 10, True) + cmul(e, 62, 62, 48, 74) + putB(62, 9, True)
    chB += cmul(e, 64, 64, 48, 72) + putB(64, 13, True) + cmul(e, 66, 66, 48, 74) + putB(66, 11, True)
    chB += cmul(e, 64, 64, 48, 72) + putB(64, 15, True)
    chC = cmul(e, 54, 46, 46, 76) + cmul(e, 56, 54, 46, 76) + cmul(e, 58, 54, 54, 76)
    stamp(10)
    interleave(chA, chB, chC)
    stamp(11)
    uload(1)
    stamp(12)
    for k in range(8): e('ds_read_b128 %s, v86 offset:%d' % (a(4 * k, 4), 32 * k))
    e('v_mov_b32 v52, 0x3f80')
    e('ds_write_addtid_b32 v52')
    for f in put(46, 1, False) + put(54, 2, False) + put(56, 3, False) + put(58, 4, False): f()
    regs = {0: (58, 50), 1: (46, 52), 2: (54, 54), 3: (56, 56)}
    chains = []
    for c in (1, 2, 3, 0):
        st = []
        src, run = regs[c]
        for j in range(5, 32):
            if j % 4 != c: continue
            st += cmul(e, run, src, 58, 70 + 2 * c) + put(run, j, False, c); src = run
        chains.append(st)
    interleave(*chains)
    stamp(13)
    if late: uload(0)
    e('s_add_u32 s26, s26, 2')
    e('s_and_b32 s26, s26, 3')
    t0 = e.lg()
    for k in range(8): e('ds_read_b128 %s, v86 offset:%d' % (a(32 + 4 * k, 4), 32 * k))
    for k in range(8):
        e.wait_lg(t0 + k + 1)
        e('v_mfma_f32_32x32x16_bf16 v[96:111], %s, %s, v[96:111]' % (a(4 * k, 4), a(32 + 4 * k, 4)))
    e('s_sub_u32 s32, s32, 1')
    e('s_cmp_lg_u32 s32, 0')
    e('s_cbranch_scc1 L_a_pass')
    stamp(2)
    e('s_mul_i32 s34, s24, 3072')
    e('s_add_u32 s34, s34, %d' % A_CMP)
    e('v_and_b32 v36, 31, v1')
    e('v_lshrrev_b32 v37, 5, v1')
    e('v_cmp_eq_u32 vcc, 0, v37')
    e('v_lshlrev_b32 v38, 5, v36')
    e('v_lshl_add_u32 v38, v37, 4, v38')
    e('v_add_u32 v38, s34, v38')
    e('v_lshlrev_b32 v39, 4, v36')
    e('v_add_u32 v39, 1024, v39')
    e('v_lshlrev_b32 v40, 3, v36')
    e('v_add_u32 v40, 1536, v40')
    e('v_cndmask_b32 v41, v40, v39, vcc')
    e('v_add_u32 v39, 8, v39')
    e('v_add_u32 v40, 256, v40')
    e('v_cndmask_b32 v42, v40, v39, vcc')
    e('v_add_u32 v41, s34, v41')
    e('v_add_u32 v42, s34, v42')
    e('v_lshlrev_b32 v43, 9, v37')
    e('v_lshl_add_u32 v43, v36, 2, v43')
    e('s_add_u32 s35, s34, 2048')
    e('v_add_u32 v43, s35, v43')
    e('v_lshl_add_u32 v44, v1, 3, s34')
    e('v_lshl_add_u32 v45, v1, 4, s34')
    e('v_cmp_eq_u32 vcc, 0, v1')
    e('v_add_u32 v46, 1024, v44')
    e('v_mov_b32 v47, 1020')
    e('v_add_u32 v47, s34, v47')
    e('v_cndmask_b32 v46, v46, v47, vcc')
    e('v_subrev_u32 v47, 4, v45')
    e('v_cndmask_b32 v47, v47, v45, vcc')
    e('v_lshlrev_b32 v48, 5, v1')
    e('v_sub_u32 v48, s27, v48')
    e('v_lshlrev_b32 v49, 4, v1')
    e('v_sub_u32 v49, s27, v49')
    e('v_lshlrev_b32 v50, 3, v1')
    e('v_sub_u32 v50, s27, v50')
    e('v_add_u32 v48, 2016, v48')
    e('v_add_u32 v49, 3056, v49')
    e('v_add_u32 v50, 3576, v50')
    e('ds_write_b128 v38, v[96:99]')
    e('ds_write_b64 v41, v[100:101]')
    e('ds_write_b64 v42, v[102:103]')
    e('ds_write2_b32 v43, v104, v105 offset0:0 offset1:32')
    e('ds_write2_b32 v43, v106, v107 offset0:64 offset1:96')
    t0 = e.lg()
    e('ds_read_b64 v[52:53], v44 offset:2048')
    e('ds_read_b32 v54, v44 offset:2056')
    e('ds_read_b64 v[56:57], v44 offset:1536')
    e('ds_read_b32 v58, v44 offset:1544')
    e('ds_read_b64 v[60:61], v44 offset:1024')
    e('ds_read_b32 v62, v44 offset:1032')
    e('ds_read_b32 v63, v46')
    e('ds_read_b128 v[64:67], v45')
    e('ds_read_b32 v68, v47')
    e('v_and_b32 v36, 3, v1')
    e('v_lshlrev_b32 v36, 3, v36')
    e('v_bfe_u32 v37, v1, 2, 1')
    e('v_mul_u32_u24 v37, %d, v37' % R1OFF)
    e('v_add3_u32 v36, v36, v37, s27')
    e('v_mov_b32 v38, 0')
    e('v_mov_b32 v39, 0')
    e('ds_write_b64 v36, v[38:39] offset:4096')
    def pk(d, x, y): e('v_cvt_pk_bf16_f32 %s, %s, %s' % (v(d), v(x), v(y)))
    def quad(base, pairs):
        for k, (x, y) in enumerate(pairs): pk(base + k, x, y)
    e.wait_lg(t0 + 2)
    A_, B_, C_ = 52, 53, 54
    quad(72, [(C_, C_), (C_, C_), (B_, B_), (B_, B_)]); e('ds_write_b128 v48, v[72:75] offset:%d' % R1OFF)
    quad(76, [(B_, B_), (B_, A_), (A_, A_), (A_, A_)]); e('ds_write_b128 v48, v[76:79] offset:%d' % (R1OFF + 16))
    quad(80, [(C_, C_), (C_, B_), (B_, B_), (B_, B_)]); e('ds_write_b128 v48, v[80:83]')
    quad(88, [(B_, B_), (A_, A_), (A_, A_), (A_, A_)]); e('ds_write_b128 v48, v[88:91] offset:16')
    e.wait_lg(t0 + 9)
    A_, B_, C_ = 56, 57, 58
    quad(72, [(C_, C_), (B_, B_), (B_, A_), (A_, A_)]); e('ds_write_b128 v49, v[72:75] offset:%d' % R1OFF)
    quad(76, [(C_, B_), (B_, B_), (A_, A_), (A_, A_)]); e('ds_write_b128 v49, v[76:79]')
    A_, B_, C_ = 60, 61, 62
    e('v_add_f32 v64, v64, v35')
    e('v_cndmask_b32 v68, v68, v38, vcc')
    quad(80, [(C_, B_), (A_, A_)]); e('ds_write_b64 v50, v[80:81] offset:%d' % R1OFF)
    quad(82, [(B_, A_), (A_, 63)]); e('ds_write_b64 v50, v[82:83]')
    quad(88, [(67, 66), (65, 64)]); e('ds_write_b64 v50, v[88:89] offset:%d' % (R1OFF + 512))
    quad(90, [(66, 65), (64, 68)]); e('ds_write_b64 v50, v[90:91] offset:512')
    stamp(3)
    e('v_lshlrev_b32 v15, 3, v0')
    e('v_add_u32 v15, %d, v15' % (A_UT + 512))
    e('s_waitcnt vmcnt(0)')
    stamp(4)
    for c in range(8):
        sel = 's31' if c & 1 else 's30'
        d = 36 + 2 * (c % 8)
        e('v_perm_b32 %s, %s, %s, %s' % (v(d), v(20 + (c >> 1)), v(16 + (c >> 1)), sel))
        e('v_perm_b32 %s, %s, %s, %s' % (v(d + 1), v(28 + (c >> 1)), v(24 + (c >> 1)), sel))
        e('ds_write_b64 v15, %s offset:%d' % (v(d, 2), c * 4608))
    e('v_and_b32 v2, 15, v1')
    e('v_lshrrev_b32 v3, 4, v1')
    e('v_and_b32 v4, 1, v2')
    e('v_sub_u32 v5, v2, v4')
    e('v_lshlrev_b32 v5, 1, v5')
    e('v_mul_u32_u24 v4, %d, v4' % R1OFF)
    e('v_lshl_add_u32 v4, v3, 4, v4')
    e('v_sub_u32 v4, v4, v5')
    e('s_add_u32 s35, s27, %d' % (4060 - 512))
    e('v_add_u32 v16, s35, v4')
    e('v_subrev_u32 v17, 1024, v16')
    e('v_subrev_u32 v18, 2048, v16')
    e('v_subrev_u32 v19, 3072, v16')
    e('v_lshlrev_b32 v20, 5, v2')
    e('v_lshl_add_u32 v21, v3, 3, v20')
    e('v_lshl_add_u32 v20, v3, 4, v20')
    e('s_add_u32 s35, s33, 480')
    e('v_add_u32 v20, s35, v20')
    e('s_add_u32 s35, s33, 512')
    e('v_add_u32 v21, s35, v21')
    ACC = 64
    for i in range(32): e('v_mov_b32 %s, 0' % v(ACC + i))
    e('s_waitcnt lgkmcnt(0)')
    e('s_barrier')
    stamp(5)
    def reads(bank):
        r = []
        for i in range(8):
            o = 0 if i & 1 else 128
            if i == 0: r.append('ds_read_b128 %s, v20 offset:%d' % (a(bank + 32, 4), 0))
            r.append('ds_read2_b32 %s, %s offset0:%d offset1:%d' % (a(bank + 4 * i, 2), v(16 + (i >> 1)), o, o + 1))
            r.append('ds_read2_b32 %s, %s offset0:%d offset1:%d' % (a(bank + 4 * i + 2, 2), v(16 + (i >> 1)), o + 2, o + 3))
            if i < 7: r.append('ds_read_b128 %s, v20 offset:%d' % (a(bank + 36 + 4 * i, 4), 512 * (i + 1)))
        return r
    step = ['v_subrev_u32 %s, 64, %s' % (v(r), v(r)) for r in range(16, 21)]
    e('\n'.join(reads(0) + step))
    e('s_mov_b32 s32, 4')
    e.label('L_a_conv')
    for bank in (0, 64):
        fill = reads(64 - bank) + step
        e('s_waitcnt lgkmcnt(0)')
        for i in range(8):
            for n in range(i, 8):
                e('v_mfma_f32_16x16x32_bf16 %s, %s, %s, %s' % (v(ACC + 4 * n, 4), a(bank + 4 * i, 4), a(bank + 32 + 4 * (n - i), 4), v(ACC + 4 * n, 4)))
                if fill: e(fill.pop(0))
    e('s_sub_u32 s32, s32, 1')
    e('s_cmp_lg_u32 s32, 0')
    e('s_cbranch_scc1 L_a_conv')
    stamp(6)
    for n in range(8):
        pk(36 + 2 * n, ACC + 4 * n, ACC + 4 * n + 1)
        pk(37 + 2 * n, ACC + 4 * n + 2, ACC + 4 * n + 3)
        e('ds_write_b64 v21, %s offset:%d' % (v(36 + 2 * n, 2), 512 * n))
    e('v_add_u32 v13, 4608, v14')
    e('s_waitcnt lgkmcnt(0)')
    e('s_barrier')
    t0 = e.lg()
    for c in range(8): e('ds_read_b64 %s, v15 offset:%d' % (v(36 + 2 * c, 2), c * 4608))
    e.wait_lg(t0 + 8)
    for i in range(4):
        sel = 's31' if i & 1 else 's30'
        for c2 in range(4):
            e('v_perm_b32 %s, %s, %s, %s' % (v(64 + 4 * i + c2), v(36 + 2 * (2 * c2 + 1) + (i >> 1)), v(36 + 2 * (2 * c2) + (i >> 1)), sel))
        e('global_store_dwordx4 %s, %s, s[22:23] offset:%d' % ('v13' if i >= 2 else 'v14', v(64 + 4 * i, 4), 2304 * (i & 1)))
    stamp(7)
    e('s_endpgm')
```

```python
from asmlib import *
from gen_a import f2u, LOG2E
EPS = f2u(1e-6)
SLOT = 34816; WOFF = 16384
WQ_LO = SLOT; WQ_HI = 4 * SLOT; IMG = WQ_HI + 3 * 4608
SCR = 3 * SLOT
CST = SLOT - 4096
LCNT = IMG + 9216
STG = WQ_LO + 5 * 4608
def wo_base(ks): return 4608 * ks if ks < 6 else SCR + 4608 * (ks - 6) if ks < 13 else WQ_LO + 4608 * (ks - 13)
KVP = 0; OB = 8 * 4 * 12288; HAND = OB + 16 * 8 * 18 * 1024
SPIN = 20000
def wq_base(ks): return WQ_LO + 4608 * ks if ks < 15 else WQ_HI + 4608 * (ks - 15)

def div_small(e, q, r, x, d, t):
    e('v_mul_u32_u24 %s, %d, %s' % (v(q), (1 << 16) // d + 1, v(x)))
    e('v_lshrrev_b32 %s, 16, %s' % (v(q), v(q)))
    e('v_mul_u32_u24 %s, %d, %s' % (v(t), d, v(q)))
    e('v_sub_u32 %s, %s, %s' % (v(r), v(x), v(t)))
for d in (5, 9, 18):
    assert all((x * ((1 << 16) // d + 1)) >> 16 == x // d for x in range(1024))

def phi_pair(e, x, dst, t):
    return [lambda: e('v_pk_mul_f32 %s, %s, s[36:37]' % (v(t, 2), v(x, 2))),
            lambda: e('v_max_f32 %s, s38, %s' % (v(t + 2), v(x))),
            lambda: e('v_max_f32 %s, s38, %s' % (v(t + 3), v(x + 1))),
            lambda: e('v_exp_f32_e64 %s, %s clamp' % (v(t), v(t))),
            lambda: e('v_exp_f32_e64 %s, %s clamp' % (v(t + 1), v(t + 1))),
            lambda: None,
            lambda: e('v_pk_add_f32 %s, %s, %s' % (v(t, 2), v(t, 2), v(t + 2, 2))),
            lambda: e('v_cvt_pk_bf16_f32 %s, %s, %s' % (v(dst), v(t), v(t + 1)))]
def zipper(*streams):
    streams = [list(x) for x in streams]
    while any(streams):
        for st in streams:
            if st: st.pop(0)()

def role_b(e, stamp, opts):
    stamp = stamp or (lambda i: None)
    rot = int(opts.get('rot', 1))
    e('s_load_dwordx8 s[4:11], s[0:1], 72')
    e('s_load_dwordx4 s[12:15], s[0:1], 104')
    e('v_lshrrev_b32 v2, 6, v0')
    e('v_and_b32 v1, 63, v0')
    e('v_readfirstlane_b32 s24, v2')
    e('s_and_b32 s32, s2, 7')
    e('s_lshr_b32 s33, s2, 3')
    e('s_and_b32 s34, s33, 3')
    e('s_lshr_b32 s33, s33, 2')
    e('s_lshr_b32 s25, s32, 1')
    e('s_lshl_b32 s25, s25, 2')
    e('s_add_u32 s25, s25, s34')
    e('s_and_b32 s26, s32, 1')
    e('s_lshl_b32 s26, s26, 2')
    e('s_add_u32 s26, s26, s33')
    if rot:
        e('s_add_u32 s27, s33, s34')
        e('s_and_b32 s27, s27, 3')
        e('s_lshl_b32 s27, s27, 1')
        e('s_lshr_b32 s35, s32, 1')
        e('s_xor_b32 s35, s35, s32')
        e('s_and_b32 s35, s35, 1')
        e('s_add_u32 s27, s27, s35')
    else:
        e('s_mov_b32 s27, 0')
    e('v_and_b32 v2, 15, v1')
    e('v_lshrrev_b32 v3, 4, v1')
    e('s_cmp_ge_u32 s24, 4')
    e('s_cbranch_scc1 L_b_loader')
    compute(e, stamp, opts)
    e.label('L_b_loader')
    loader(e, stamp, opts)

def compute(e, stamp, opts):
    e.nvm = 0; e.nlg = 0
    ACC = 8; RING = 80; NR = 6; D = 4
    acc = lambda ct, rt: ACC + 8 * ct + 4 * rt
    e('s_mov_b32 s36, 0x%08x' % LOG2E)
    e('s_mov_b32 s37, s36')
    e('s_mov_b32 s38, 0x%08x' % EPS)
    e('s_lshl_b32 s32, s24, 12')
    e('v_and_b32 v104, 7, v2')
    e('v_xor_b32 v105, v3, v104')
    e('v_lshlrev_b32 v106, 7, v2')
    e('v_add_u32 v106, s32, v106')
    e('v_lshl_add_u32 v4, v105, 4, v106')
    e('v_xor_b32 v105, 4, v105')
    e('v_lshl_add_u32 v5, v105, 4, v106')
    e('v_lshrrev_b32 v104, 2, v2')
    e('v_and_b32 v105, 3, v2')
    e('v_lshlrev_b32 v105, 3, v105')
    e('v_lshl_add_u32 v106, v3, 2, v104')
    e('v_mul_u32_u24 v106, 288, v106')
    e('v_add_u32 v106, v106, v105')
    e('v_add_u32 v6, %d, v106' % WOFF)
    e('v_lshlrev_b32 v104, 1, v104')
    e('v_lshl_add_u32 v104, v3, 3, v104')
    e('v_mul_u32_u24 v104, 144, v104')
    e('v_add_u32 v104, v104, v105')
    e('v_add_u32 v7, %d, v104' % WQ_LO)
    e('v_cmp_gt_u32 vcc, 8, v2')
    for k in range(4): e('v_mov_b32 %s, s38' % v(108 + k))
    for k in range(4): e('v_cndmask_b32 %s, 0, v108, vcc' % v(104 + k))
    e('v_cmp_gt_u32 s[40:41], 2, v3')
    e('v_cmp_gt_u32 s[42:43], 3, v3')
    e('s_waitcnt lgkmcnt(0)')
    stamp(0)
    F = [(p, s_, ct) for p in range(9) for s_ in range(2) for ct in range(9)]
    tok = {}
    def items(f):
        p, s_, ct = F[f]
        it = []
        if ct == 0 and s_ == 0:
            pre = []
            if p:
                dl = SLOT if p % 4 else -3 * SLOT
                for r in (4, 5, 6): pre.append('v_add_u32 %s, %d, %s' % (v(r), dl, v(r)) if dl > 0 else 'v_subrev_u32 %s, %d, %s' % (v(r), -dl, v(r)))
            if p == 8: pre.append('s_waitcnt lgkmcnt(0)')
            pre.append('s_barrier')
            it.append(lambda: (e('\n'.join(pre)), stamp({0: 1, 4: 2, 8: 3}[p]) if p in (0, 4, 8) else None))
        if ct == 0:
            for rt in range(2): it.append(lambda rt=rt: e('ds_read_b128 %s, %s offset:%d' % (a(16 * p + 8 * s_ + 4 * rt, 4), v(4 + s_), 2048 * rt)))
        r = RING + 4 * (f % NR)
        for h in range(2): it.append(lambda h=h: e('ds_read_b64_tr_b16 %s, v6 offset:%d' % (v(r + 2 * h, 2), 9216 * s_ + 4608 * h + 32 * ct)))
        return it
    for f in range(D):
        for x in items(f): x()
        tok[f] = e.lg()
    for f, (p, s_, ct) in enumerate(F):
        it = items(f + D) if f + D < len(F) else []
        e.wait_lg(tok[f])
        for rt in range(2):
            c = v(acc(ct, rt), 4) if f >= 9 else 'v[108:111]' if ct < 4 else 'v[104:107]' if ct == 4 else '0'
            e('v_mfma_f32_16x16x32_bf16 %s, %s, %s, %s' % (v(acc(ct, rt), 4), a(16 * p + 8 * s_ + 4 * rt, 4), v(RING + 4 * (f % NR), 4), c))
            h = (len(it) + 1) // 2
            for x in (it[:h] if rt == 0 else it[h:]): x()
        tok[f + D] = e.lg()
    stamp(4)
    e('s_lshl_b32 s32, s24, 13')
    e('s_add_u32 s32, s32, %d' % SCR)
    e('v_lshl_add_u32 v4, v1, 4, s32')
    e('s_lshl_b32 s32, s24, 12')
    e('v_lshl_add_u32 v5, v1, 4, s32')
    def put(fi, r):
        if fi < 8: e('ds_write_b128 v4, %s offset:%d' % (v(r, 4), 1024 * fi))
        else: e('ds_write_b128 v5, %s offset:%d' % (v(r, 4), 1024 * (fi - 8)))
    for t in range(5):
        o = 96 + 4 * (t & 1)
        zipper(*[phi_pair(e, acc(t, 0) + 2 * k, o + k, 80 + 4 * k) for k in range(4)])
        put(t, o)
    for t in range(5):
        o = 80 + 4 * t
        for k in range(4): e('v_cvt_pk_bf16_f32 %s, %s, %s' % (v(o + k), v(acc(4 + t, 0) + 2 * k), v(acc(4 + t, 0) + 2 * k + 1)))
        put(5 + t, o)
    e('v_add_u32 v6, %d, v7' % (WQ_HI - WQ_LO))
    e('s_waitcnt lgkmcnt(0)')
    stamp(5)
    e('s_barrier')
    def gemm144(where, c0, hook=None):
        G = [(ks, ct) for ks in range(18) for ct in range(5)]
        RG, NG, DG = (72, 8, 5) if c0 == '0' else (48, 8, 5)
        tk = {}
        def iss(f, h):
            ks, ct = G[f]
            ad, off = where(ks)
            e('ds_read_b64_tr_b16 %s, %s offset:%d' % (v(RG + 4 * (f % NG) + 2 * h, 2), ad, off + 144 * h + 32 * ct))
            tk[f] = e.lg()
        for f in range(DG): iss(f, 0); iss(f, 1)
        for f, (ks, ct) in enumerate(G):
            if hook: hook(ks, ct, 0)
            e.wait_lg(tk[f])
            for rt in range(2):
                e('v_mfma_f32_16x16x32_bf16 %s, %s, %s, %s' % (v(acc(ct, rt), 4), v(RG + 4 * (f % NG), 4), a(8 * ks + 4 * rt, 4), v(acc(ct, rt), 4) if ks else c0))
                if f + DG < len(G): iss(f + DG, rt)
                if hook: hook(ks, ct, 1 + rt)
    gemm144(lambda ks: ('v7', wq_base(ks) - WQ_LO) if ks < 15 else ('v6', wq_base(ks) - WQ_HI), 'v[108:111]')
    stamp(6)
    PQ = 48
    for t in range(5):
        zipper(*[phi_pair(e, acc(t, k >> 1) + 2 * (k & 1), PQ + 10 * (k >> 1) + 2 * t + (k & 1), 80 + 4 * k) for k in range(4)])
    DEN = 68
    e('v_lshlrev_b32 v4, 3, v1')
    e('v_add_u32 v4, %d, v4' % IMG)
    e('s_lshl_b32 s32, s25, 3')
    e('s_lshl_b32 s33, s24, 1')
    e('s_add_u32 s32, s32, s33')
    e('s_mul_i32 s32, s32, %d' % (18 * 1024))
    e('s_add_u32 s32, s32, %d' % OB)
    e('v_lshl_add_u32 v105, v1, 4, s32')
    e('s_lshl_b32 s33, s26, 11')
    e('v_add_u32 v5, s33, v105')
    e('s_lshr_b32 s33, s26, 2')
    e('s_lshl_b32 s33, s33, 10')
    e('s_and_b32 s34, s26, 3')
    e('s_lshl_b32 s34, s34, 8')
    e('s_add_u32 s33, s33, s34')
    e('s_add_u32 s33, s33, s32')
    e('s_add_u32 s33, s33, %d' % (16 * 1024 - 16))
    e('v_lshlrev_b32 v104, 4, v2')
    e('v_lshl_add_u32 v104, v3, 3, v104')
    e('v_add_u32 v104, s33, v104')
    stamp(7)
    e('s_barrier')
    stamp(8)
    t0 = e.lg()
    for pl in list(range(13, 18)) + list(range(13)): e('ds_read_b64 %s, v4 offset:%d' % (a(2 * pl, 2), 512 * pl))
    def mm(d, pl, dt, n, rt, c):
        e('v_mfma_f32_16x16x%d_bf16 %s, %s, %s, %s' % (16 * n, v(d, 4), a(2 * pl, 2 * n), v(PQ + 10 * rt + 2 * dt, 2 * n), c))
    e.wait_lg(t0 + 5)
    for pl, dt, n in ((13, 0, 2), (15, 2, 2), (17, 4, 1)):
        for rt in range(2): mm(DEN + 4 * rt, pl, dt, n, rt, v(DEN + 4 * rt, 4) if dt else 'v[108:111]')
    e.wait_lg(t0 + 18)
    for u, first in enumerate((0, 0, 1, 2, 3)):
        for rt in range(2): mm(acc(u, rt), 2 * u + first, first, 2, rt, '0')
    for u, first in ((1, 0), (2, 1), (3, 2)):
        for rt in range(2): mm(acc(u, rt), 2 * u + first + 2, first + 2, 1, rt, v(acc(u, rt), 4))
    for k in range(8): e('v_rcp_f32 %s, %s' % (v(DEN + k), v(DEN + k)))
    e('v_mov_b32 v106, 0x7fc07fc0')
    OUT = 80
    for rt in range(2):
        i = DEN + 4 * rt; t = 76; o = OUT + 10 * rt
        e('v_cndmask_b32 %s, %s, %s, s[42:43]' % (v(t), v(i + 1), v(i)))
        e('v_cndmask_b32 %s, %s, %s, s[40:41]' % (v(t + 1), v(i + 1), v(i)))
        e('v_cndmask_b32 %s, %s, %s, s[42:43]' % (v(t + 2), v(i + 2), v(i + 1)))
        e('v_cndmask_b32 %s, %s, %s, s[42:43]' % (v(t + 3), v(i + 3), v(i + 2)))
        sc = {0: (i, i), 1: (t, t + 1), 2: (t + 2, t + 2), 3: (i + 2, t + 3), 4: (i + 3, i + 3)}
        for u in (1, 2, 3, 4, 0):
            for k in range(2):
                f_ = sc[u][k]
                e('v_pk_mul_f32 %s, %s, %s op_sel:[0,%d] op_sel_hi:[1,%d]' % (v(acc(u, rt) + 2 * k, 2), v(acc(u, rt) + 2 * k, 2), v(f_ & ~1, 2), f_ & 1, f_ & 1))
            d = o + (2 * (u - 1) if u else 8)
            for k in range(2): e('v_cvt_pk_bf16_f32 %s, %s, %s' % (v(d + k), v(acc(u, rt) + 2 * k), v(acc(u, rt) + 2 * k + 1)))
        for d in (o, o + 4, o + 8):
            e('v_cmp_eq_u32 vcc, -1, %s' % v(d))
            e('v_cndmask_b32 %s, %s, v106, vcc' % (v(d), v(d)))
        if rt: e('v_add_u32 v5, %d, v5' % (18 * 1024))
        e('global_store_dwordx4 v5, %s, s[14:15] sc1' % v(o, 4))
        e('global_store_dwordx4 v5, %s, s[14:15] offset:1024 sc1' % v(o + 4, 4))
    e('v_add_u32 v107, %d, v104' % (18 * 1024))
    e('s_mov_b32 exec_lo, 0')
    e('global_store_dwordx2 v104, %s, s[14:15] sc1' % v(OUT + 8, 2))
    e('global_store_dwordx2 v107, %s, s[14:15] sc1' % v(OUT + 18, 2))
    e('s_mov_b32 exec_lo, -1')
    stamp(9)
    e('s_lshl_b32 s32, s25, 7')
    e('s_lshl_b32 s33, s24, 5')
    e('s_add_u32 s32, s32, s33')
    e('s_mul_i32 s32, s32, 2304')
    e('s_mul_i32 s33, s26, 144')
    e('s_add_u32 s32, s32, s33')
    e('s_add_u32 s32, s32, 1152')
    for j in range(5):
        e('v_add_u32 v48, %d, v1' % (64 * j))
        div_small(e, 49, 50, 48, 9, 51)
        e('v_mul_u32_u24 v49, 2304, v49')
        e('v_lshl_add_u32 v49, v50, 4, v49')
        e('v_add_u32 %s, s32, v49' % v(64 + j))
    e('s_mul_i32 s33, s24, 4608')
    e('s_add_u32 s33, s33, %d' % STG)
    e('v_mul_u32_u24 v4, 144, v2')
    e('v_lshl_add_u32 v4, v3, 3, v4')
    e('v_add_u32 v4, s33, v4')
    e('v_lshl_add_u32 v5, v1, 4, s33')
    for k in range(1, 9): e('v_add_u32 %s, %d, v105' % (v(52 + k), 4096 * k))
    e('v_mov_b32 v52, v105')
    e('v_subrev_u32 v7, %d, v7' % WQ_LO)
    e('v_add_u32 v6, %d, v7' % SCR)
    e('s_mov_b32 s39, 0')
    e('s_mov_b32 s44, %d' % SPIN)
    e('v_lshlrev_b32 v72, 8, v1')
    e('v_lshlrev_b32 v73, 4, v1')
    e('v_sub_u32 v72, v72, v73')
    e('v_add_u32 v72, v72, v60')
    e('s_mov_b64 exec, 0xff')
    e.label('L_b_probe')
    e('global_load_dword v73, v72, s[14:15] offset:2296 sc1')
    e('s_sub_u32 s44, s44, 1')
    e('s_cbranch_scc1 L_b_probed')
    e('s_waitcnt vmcnt(0)')
    e('v_cmp_eq_u32 vcc, -1, v73')
    e('s_cbranch_vccnz L_b_probe')
    e.label('L_b_probed')
    e('s_mov_b64 exec, -1')
    e('s_waitcnt vmcnt(0)')
    stamp(10)
    e.label('L_b_retry')
    e.nvm = 0
    otok = {}
    AHEAD = 8
    def oload(ks, only=None):
        for rt in (range(2) if only is None else (only,)):
            fi = rt * 18 + ks
            e('global_load_dwordx4 %s, %s, s[14:15] offset:%d sc1' % (a(8 * ks + 4 * rt, 4), v(52 + (fi >> 2)), 1024 * (fi & 3)))
        otok[ks] = e.vm()
    e('s_cmp_lg_u32 s39, 0')
    e('s_cbranch_scc1 L_b_strict')
    for ks in range(AHEAD): oload(ks)
    e('s_barrier')
    e.label('L_b_gemm2')
    stamp(11)
    def hook(ks, ct, ph):
        if ct == 0 and ph == 0: e.wait_vm(otok[ks])
        if ct in (1, 3) and ph == 1 and ks + AHEAD < 18:
            e('s_cbranch_scc1 L_b_nold%d_%d' % (ks, ct))
            oload(ks + AHEAD, ct >> 1)
            e.label('L_b_nold%d_%d' % (ks, ct))
    gemm144(lambda ks: ('v6', wo_base(ks) - SCR) if 6 <= ks < 13 else ('v7', wo_base(ks)), '0', hook)
    stamp(12)
    e('s_cmp_lg_u32 s39, 0')
    e('s_cbranch_scc1 L_b_store')
    e('v_cmp_u_f32 vcc, %s, %s' % (v(acc(0, 0)), v(acc(0, 1))))
    e('s_cbranch_vccz L_b_store')
    e('s_mov_b32 s39, 1')
    e('s_mov_b32 s44, %d' % SPIN)
    e.label('L_b_strict')
    for ks in range(18): oload(ks)
    e('s_waitcnt vmcnt(0)')
    e('s_sub_u32 s44, s44, 1')
    e('s_cbranch_scc1 L_b_gemm2')
    e('s_mov_b64 s[32:33], 0')
    for k in range(72):
        e('v_accvgpr_read_b32 v48, %s' % a(2 * k))
        e('v_cmp_eq_u32 vcc, -1, v48')
        e('s_or_b64 s[32:33], s[32:33], vcc') if (k & 1) == 0 or k >= 64 else e.L.__delitem__(slice(-2, None))
    e('s_cmp_lg_u64 s[32:33], 0')
    e('s_cbranch_scc1 L_b_strict')
    e('s_cmp_lg_u32 s39, 0')
    e('s_branch L_b_gemm2')
    e.label('L_b_store')
    for ct in range(5):
        if ct == 4: e('s_mov_b32 exec_hi, 0')
        for rt in range(2):
            d = 80 + 4 * ct + 2 * rt
            for k in range(2): e('v_cvt_pk_bf16_f32 %s, %s, %s' % (v(d + k), v(acc(ct, rt) + 2 * k), v(acc(ct, rt) + 2 * k + 1)))
            e('ds_write_b64 v4, %s offset:%d' % (v(d, 2), 2304 * rt + 32 * ct))
    e('s_mov_b32 exec_hi, -1')
    t0 = e.lg()
    for j in range(5): e('ds_read_b128 %s, v5 offset:%d' % (v(8 + 4 * j, 4), 1024 * j))
    for j in range(5):
        e.wait_lg(t0 + j + 1)
        if j == 4: e('s_mov_b32 exec_hi, 0')
        e('global_store_dwordx4 %s, %s, s[10:11]' % (v(64 + j), v(8 + 4 * j, 4)))
    e('s_mov_b32 exec_hi, -1')
    stamp(13)
    e('s_endpgm')

def loader(e, stamp, opts):
    e.nvm = 0; e.nlg = 0
    e('s_sub_u32 s39, s24, 4')
    e('v_lshrrev_b32 v4, 3, v1')
    e('v_and_b32 v5, 7, v1')
    e('v_xor_b32 v5, v5, v4')
    e('s_lshl_b32 s32, s25, 7')
    e('s_lshl_b32 s33, s39, 5')
    e('s_add_u32 s32, s32, s33')
    e('v_add_u32 v4, s32, v4')
    e('v_mul_u32_u24 v4, 1152, v4')
    e('v_lshl_add_u32 v8, v5, 4, v4')
    e('s_lshr_b32 s32, s39, 1')
    e('s_lshl_b32 s32, s32, 5')
    e('s_and_b32 s33, s39, 1')
    e('s_lshl_b32 s33, s33, 2')
    e('s_add_u32 s32, s32, s33')
    e('s_mul_i32 s40, s26, 144')
    e('s_mul_i32 s32, s32, 3456')
    e('s_add_u32 s32, s32, s40')
    e('s_add_u32 s32, s32, 1152')
    def woff(j):
        e('v_add_u32 v4, %d, v1' % (64 * j))
        div_small(e, 5, 6, 4, 18, 7)
        e('v_and_b32 v4, 12, v5')
        e('v_add_u32 v4, v4, v5')
        e('v_mul_u32_u24 v4, 3456, v4')
        e('v_cmp_lt_u32 vcc, 8, v6')
        e('v_lshl_add_u32 v4, v6, 4, v4')
        e('v_add_u32 v4, s32, v4')
        e('v_add_u32 v5, 1008, v4')
        e('v_cndmask_b32 %s, v4, v5, vcc' % v(9 + j))
    for j in range(5): woff(j)
    e('s_lshl_b32 s41, s39, 12')
    e('s_mul_i32 s42, s39, 4608')
    e('s_add_u32 s42, s42, %d' % WOFF)
    e('s_mov_b32 s43, s27')
    e('s_mov_b32 s18, %d\ns_mov_b32 s19, 0x20000' % (2048 * 1152))
    e('s_mov_b32 s22, %d\ns_mov_b32 s23, 0x20000' % (576 * 3456))
    e('s_mov_b32 s30, %d\ns_mov_b32 s31, 0x20000' % (576 * 1152))
    e('s_waitcnt lgkmcnt(0)')
    e('s_mov_b32 s16, s4\ns_mov_b32 s17, s5\ns_mov_b32 s20, s6\ns_mov_b32 s21, s7\ns_mov_b32 s28, s8\ns_mov_b32 s29, s9')

    main = e; sd = Asm(); e = sd
    marks = {}
    e('s_lshl_b32 s32, s26, 2')
    e('s_add_u32 s32, s32, s39')
    e('s_mul_i32 s32, s32, 12288')
    e('s_add_u32 s32, s32, %d' % KVP)
    e('v_lshl_add_u32 v15, v1, 4, s32')
    e('s_lshl_b32 s33, s25, 8')
    e('s_add_u32 s32, s32, s33')
    e('v_lshlrev_b32 v14, 4, v2')
    e('v_lshl_add_u32 v14, v3, 12, v14')
    e('v_add_u32 v14, s32, v14')
    marks['clear'] = len(sd.L)
    e('s_mul_i32 s32, s39, 2304')
    e('s_add_u32 s32, s32, %d' % IMG)
    e('v_lshl_add_u32 v4, v1, 4, s32')
    for k in range(4): e('v_mov_b32 %s, 0' % v(40 + k))
    e('ds_write_b128 v4, v[40:43]')
    e('ds_write_b128 v4, v[40:43] offset:1024')
    e('v_lshl_add_u32 v4, v1, 2, s32')
    e('ds_write_b32 v4, v40 offset:2048')
    e('v_mov_b32 v55, %d' % LCNT)
    e('ds_write_b32 v55, v40')
    for j in range(5):
        e('v_add_u32 v4, %d, v1' % (64 * j))
        div_small(e, 5, 6, 4, 9, 7)
        e('v_lshlrev_b32 v6, 4, v6')
        e('v_add_u32 v6, s40, v6')
        e('v_lshrrev_b32 v4, 3, v5')
        e('v_and_b32 v7, 1, v5')
        e('v_bfe_u32 v5, v5, 1, 2')
        e('v_lshl_add_u32 v19, v7, 2, v5')
        e('v_lshl_add_u32 v39, v4, 3, v19')
        e('v_mul_u32_u24 v39, 3456, v39')
        e('v_add_u32 %s, v39, v6' % v(24 + j))
        e('v_lshl_add_u32 v39, v4, 2, v5')
        e('v_lshl_add_u32 v39, v7, 4, v39')
        e('v_mul_u32_u24 v39, 1152, v39')
        e('v_add_u32 %s, v39, v6' % v(29 + j))
        e('v_mul_u32_u24 v39, 72, v4')
        e('v_add_u32 v39, v39, v19')
        e('v_mul_u32_u24 v39, 1152, v39')
        e('v_add_u32 %s, v39, v6' % v(34 + j))
    e('s_lshr_b32 s45, s39, 1')
    e('s_lshl_b32 s46, s39, 1')
    e('s_lshl_b32 s47, s39, 10')
    e('s_add_u32 s47, s47, %d' % CST)
    e('s_add_u32 s32, s47, 768')
    e('v_lshl_add_u32 v44, v2, 3, s32')
    for i in range(2):
        e('v_add_u32 v4, %d, v3' % (4 * i))
        e('v_subrev_u32 v5, s45, v4')
        e('v_cmp_gt_u32 s[48:49], 5, v5')
        e('v_lshlrev_b32 v4, 2, v4')
        e('v_subrev_u32 v4, s46, v4')
        e('v_cmp_gt_u32 %s, 18, v4' % s(52 + 4 * i, 2))
        e('v_add_u32 v4, 2, v4')
        e('v_cmp_gt_u32 %s, 18, v4' % s(54 + 4 * i, 2))
        for j in range(2):
            e('v_add_u32 v6, %d, v2' % (16 * j - 8))
            e('v_subrev_u32 v6, s46, v6')
            e('v_cmp_gt_u32 vcc, 18, v6')
            e('v_mul_u32_u24 v6, 5, v6')
            e('v_add_u32 v6, v6, v5')
            e('s_and_b64 vcc, vcc, s[48:49]')
            e('v_lshl_add_u32 v6, v6, 3, s47')
            e('v_cndmask_b32 %s, v44, v6, vcc' % v(45 + 2 * i + j))
        e('v_cmp_eq_u32 vcc, 0, v2')
        e('v_add_u32 v6, 90, v5')
        e('v_lshl_add_u32 v6, v6, 3, s47')
        e('s_and_b64 vcc, vcc, s[48:49]')
        e('v_cndmask_b32 %s, v44, v6, vcc' % v(49 + i))
    e('s_mul_i32 s32, s39, 18')
    e('s_add_u32 s32, s32, 8')
    e('s_lshl_b32 s33, s39, 2')
    e('s_add_u32 s33, s33, s45')
    e('v_cmp_gt_u32 s[48:49], 2, v3')
    for b in range(3):
        e('v_lshl_add_u32 v4, v2, 1, v3')
        e('v_add_u32 v4, %d, v4' % (32 * b))
        div_small(e, 5, 6, 4, 5, 7)
        e('v_add_u32 v6, s33, v6')
        e('v_add_u32 v7, s32, v5')
        e('v_lshrrev_b32 v19, 4, v7')
        e('v_and_b32 v7, 15, v7')
        e('v_lshrrev_b32 v39, 2, v6')
        e('v_and_b32 v6, 3, v6')
        e('v_lshl_add_u32 v19, v19, 1, v39')
        if b == 2:
            e('v_cmp_eq_u32 vcc, 18, v5')
            e('v_add_u32 v39, 13, v39')
            e('v_cndmask_b32 v19, v19, v39, vcc')
            e('v_mov_b32 v39, s39')
            e('v_cndmask_b32 v7, v7, v39, vcc')
        e('v_lshl_add_u32 v7, v6, 4, v7')
        e('v_lshlrev_b32 v7, 3, v7')
        e('v_lshl_add_u32 v7, v19, 9, v7')
        e('v_add_u32 v7, %d, v7' % IMG)
        if b == 2:
            e('s_and_b64 vcc, vcc, s[48:49]')
            e('v_cndmask_b32 v54, v44, v7, vcc')
            e('v_cmp_gt_u32 vcc, 19, v5')
            e('s_and_b64 s[48:49], vcc, s[48:49]')
        e('v_cndmask_b32 %s, v44, v7, s[48:49]' % v(51 + b))
    e('v_and_b32 v4, 1, v2')
    e('v_lshlrev_b32 v4, 4, v4')
    e('v_mov_b32 v5, 0x3f80')
    e('v_lshlrev_b32 v4, v4, v5')
    e('v_lshrrev_b32 v5, 1, v2')
    for k in range(4):
        e('v_cmp_eq_u32 vcc, %d, v5' % k)
        e('v_mov_b32 %s, 0x3f803f80' % v(60 + k))
        e('v_cndmask_b32 %s, 0, v4, vcc' % v(56 + k))
    for k, df in enumerate((0, 1, 5, 6)):
        e('s_add_u32 s32, s39, %d' % df)
        e('s_lshl_b32 s33, s32, 10')
        e('s_add_u32 s34, s33, %d' % SCR)
        e('s_sub_u32 s33, s33, 8192')
        e('s_movk_i32 %s, 4096' % s(48 + k))
        sd.L.append('s_cmp_lt_u32 s32, 8\ns_cselect_b32 s33, s34, s33\ns_cselect_b32 %s, 8192, %s' % (s(48 + k), s(48 + k)))
        e('v_lshl_add_u32 %s, v1, 4, s33' % v(64 + k))
    e('v_and_b32 v19, 3, v1')
    e('v_lshlrev_b32 v19, 6, v19')
    e = main
    side = list(sd.L); done = [0]
    def run_side(n=None, upto=None):
        stop = upto if upto is not None else min(len(side), done[0] + n)
        while done[0] < stop:
            e(side[done[0]]); done[0] += 1

    ctok = {}
    def chunk(p, per):
        sl = SLOT * (p % 4)
        e('s_lshl_b32 s3, s43, 7')
        e('s_mul_i32 s35, s43, %d' % (64 * 3456))
        for j in range(4):
            e('s_add_u32 m0, s41, %d' % (sl + 1024 * j))
            if j: e('s_add_u32 s3, s3, 9216')
            e('buffer_load_dwordx4 v8, s[16:19], s3 offen lds')
            run_side(per)
        for j in range(5):
            e('s_add_u32 m0, s42, %d' % (sl + 1024 * j))
            if j == 4: e('s_mov_b32 exec_hi, 0')
            e('buffer_load_dwordx4 %s, s[20:23], s35 offen lds' % v(9 + j))
            if j < 4: run_side(per)
        e('s_mov_b32 exec_hi, -1')
        e('s_add_u32 s43, s43, 1')
        e('s_cmp_eq_u32 s43, 9')
        e('s_cselect_b32 s43, 0, s43')
        ctok[p] = e.vm()
    chunk(0, 0); chunk(1, 0)
    stamp(0)
    def tile144(srd, vregs, soff):
        for j in range(5):
            e('s_add_u32 m0, s34, %d' % (1024 * j))
            if j == 4: e('s_mov_b32 exec_hi, 0')
            e('buffer_load_dwordx4 %s, %s, %s offen lds' % (v(vregs + j), srd, soff))
        e('s_mov_b32 exec_hi, -1')
    def wq_group(lo, n):
        for rnd in range((n + 3) // 4):
            e('s_add_u32 s35, s39, %d' % (lo + 4 * rnd))
            if 4 * rnd + 4 > n: e('s_min_u32 s35, s35, %d' % (lo + n - 1))
            e('s_lshr_b32 s32, s35, 1')
            e('s_add_u32 s32, s32, s27')
            e('s_sub_u32 s33, s32, 9')
            e('s_cmp_ge_u32 s32, 9')
            e('s_cselect_b32 s32, s33, s32')
            e('s_lshl_b32 s32, s32, 1')
            e('s_and_b32 s33, s35, 1')
            e('s_add_u32 s32, s32, s33')
            e('s_mul_i32 s32, s32, %d' % (32 * 3456))
            e('s_mul_i32 s34, s35, 4608')
            e('s_add_u32 s34, s34, %d' % (WQ_LO if lo < 15 else WQ_HI - 15 * 4608))
            tile144('s[20:23]', 24, 's32')
    for p in range(9):
        e.wait_vm(ctok[p])
        e('s_barrier')
        if p in (1, 2, 3, 5, 6): stamp({1: 11, 2: 12, 3: 13, 5: 14, 6: 15}[p])
        if p == 0:
            stamp(2)
        if 't' in opts.get('horder', '') and p == int(opts.get('trig', 2)):
            e('s_or_b32 s3, s39, s2')
            e('s_cmp_ge_u32 s3, 8')
            e('s_cbranch_scc1 L_b_notrig')
            e('s_cmp_lg_u32 s39, 0')
            e('s_cbranch_scc1 L_b_notrig')
            e('s_lshl_b32 s3, s2, 2')
            e('v_mov_b32 v20, s3')
            e('v_mov_b32 v21, 1')
            e('s_mov_b64 exec, 1')
            e('global_store_dword v20, v21, s[12:13] offset:16 sc1')
            e('s_mov_b64 exec, -1')
            e.nvm -= 1
            e.label('L_b_notrig')
        if p <= 6: chunk(p + 2, 7)
        if p == 6:
            run_side(upto=len(side))
            wq_group(15, 3)
        if p == 7: wq_group(0, 7)
        if p == 8: wq_group(7, 8)
    stamp(3)
    e('s_mov_b32 s44, %d' % SPIN)
    e('s_cmp_lg_u32 s39, 0')
    e('s_cbranch_scc1 L_b_cntdone')
    e('s_mov_b64 exec, 15')
    e.label('L_b_cnt')
    e('global_load_dword v5, v19, s[12:13] sc1')
    e('s_sub_u32 s44, s44, 1')
    e('s_cbranch_scc1 L_b_cntdone')
    e('s_waitcnt vmcnt(0)')
    e('v_cmp_gt_u32 vcc, 14, v5')
    e('s_cbranch_vccnz L_b_cnt')
    e.label('L_b_cntdone')
    e('s_mov_b64 exec, -1')
    e('s_waitcnt vmcnt(0) lgkmcnt(0)')
    stamp(4)
    e('s_barrier')
    stamp(5)
    e('s_setprio 2')
    tk = []
    for w in range(4):
        for k in range(4):
            e('ds_read_b128 %s, %s' % (a(16 * w + 4 * k, 4), v(64 + k)))
            if w < 3: e('v_add_u32 %s, %s, %s' % (v(64 + k), s(48 + k), v(64 + k)))
        tk.append(e.lg())
    e('v_mov_b32 v4, s47')
    e('v_mov_b32 v5, 1')
    e('ds_write_b64 v4, v[40:41] offset:760')
    DD = 68
    for w in range(4):
        e.wait_lg(tk[w])
        if w == 3:
            e('s_mov_b64 exec, 1')
            e('ds_add_u32 v55, v5')
            e('s_mov_b64 exec, -1')
        for i in range(2):
            for j in range(2):
                d = DD + 8 * i + 4 * j
                e('v_mfma_f32_16x16x32_bf16 %s, %s, %s, %s' % (v(d, 4), a(16 * w + 4 * i, 4), a(16 * w + 8 + 4 * j, 4), v(d, 4) if w else '0'))
            d = DD + 16 + 4 * i
            e('v_mfma_f32_16x16x32_bf16 %s, %s, v[60:63], %s' % (v(d, 4), a(16 * w + 4 * i, 4), v(d, 4) if w else '0'))
    e('v_lshl_add_u32 v4, v1, 4, s47')
    e('v_mov_b32 v5, 0x7fc07fc0')
    e('v_add_u32 v16, 4096, v15')
    e('v_add_u32 v17, 8192, v15')
    for i in range(2):
        for j in range(3):
            d = DD + 8 * i + 4 * j if j < 2 else DD + 16 + 4 * i
            o = 92 + 2 * (3 * i + j)
            for k in range(2): e('v_cvt_pk_bf16_f32 %s, %s, %s' % (v(o + k), v(d + 2 * k), v(d + 2 * k + 1)))
            for k in range(2): e('v_cndmask_b32 %s, 0, %s, %s' % (v(o + k), v(o + k), s(52 + 4 * i + 2 * k, 2)))
            e('ds_write_b64 %s, %s' % (v(45 + 2 * i + j) if j < 2 else v(49 + i), v(o, 2)))
    e('ds_read_b128 v[68:71], v4')
    e('s_waitcnt lgkmcnt(0)')
    e('v_cmp_eq_u32 vcc, -1, v68')
    e('s_mov_b32 s44, %d' % SPIN)
    e('v_cndmask_b32 v68, v68, v5, vcc')
    e('s_mov_b32 exec_hi, 0xffff')
    e('global_store_dwordx4 v14, v[68:71], s[14:15] sc1')
    e('s_mov_b32 exec_hi, -1')
    stamp(6)
    def wo_block(first, last):
        e('s_add_u32 s35, s39, %d' % first)
        if first + 3 > last: e('s_min_u32 s35, s35, %d' % last)
        e('s_lshr_b32 s32, s35, 1')
        e('s_mul_i32 s32, s32, 72')
        e('s_and_b32 s33, s35, 1')
        e('s_lshl_b32 s33, s33, 5')
        e('s_add_u32 s32, s32, s33')
        e('s_add_u32 s32, s32, 8')
        e('s_mul_i32 s32, s32, 1152')
        e('s_mul_i32 s34, s35, 4608')
        if last < 13:
            e('s_add_u32 s33, s34, %d' % (SCR - 6 * 4608))
            e('s_cmp_ge_u32 s35, 6')
            e('s_cselect_b32 s34, s33, s34')
        else:
            e('s_add_u32 s34, s34, %d' % (WQ_LO - 13 * 4608))
        tile144('s[28:31]', 29, 's32')
    e('s_mov_b32 s44, %d' % SPIN)
    e.label('L_b_lcnt')
    e('ds_read_b32 v4, v55')
    e('s_sub_u32 s44, s44, 1')
    e('s_cbranch_scc1 L_b_lcntdone')
    e('s_waitcnt lgkmcnt(0)')
    e('v_cmp_gt_u32 vcc, 4, v4')
    e('s_cbranch_vccnz L_b_lcnt')
    e.label('L_b_lcntdone')
    e('s_waitcnt lgkmcnt(0)')
    nearly = int(opts.get('woearly', 3))
    for k in range(nearly): wo_block(4 * k, 12)
    e('v_lshlrev_b32 v4, 8, v2')
    e('v_lshlrev_b32 v6, 4, v1')
    e('v_sub_u32 v5, v17, v6')
    e('v_add_u32 v4, v4, v5')
    e('s_mov_b32 s44, %d' % SPIN)
    stamp(7)
    e.label('L_b_gather')
    X = 64
    for b in range(3):
        for i in range(4): e('global_load_dwordx4 %s, %s, s[14:15] offset:%d sc1' % (v(X + 16 * b + 4 * i, 4), v(15 + b), 1024 * i))
    e('s_mov_b64 s[32:33], 0')
    for k in range(12):
        if k % 4 == 0: e('s_waitcnt vmcnt(%d)' % (8 - k))
        e('v_cmp_eq_u32 vcc, -1, %s' % v(X + 4 * k))
        e('s_or_b64 s[32:33], s[32:33], vcc')
    e('s_cmp_eq_u64 s[32:33], 0')
    e('s_cbranch_scc1 L_b_gathered')
    e('s_mov_b64 exec, 0xffff')
    e.label('L_b_kvprobe')
    e('global_load_dword v5, v4, s[14:15] sc1')
    e('s_sub_u32 s44, s44, 1')
    e('s_cbranch_scc1 L_b_gathered')
    e('s_waitcnt vmcnt(0)')
    e('v_cmp_eq_u32 vcc, -1, v5')
    e('s_cbranch_vccnz L_b_kvprobe')
    e('s_mov_b64 exec, -1')
    e('s_branch L_b_gather')
    e.label('L_b_gathered')
    e('s_mov_b64 exec, -1')
    stamp(8)
    for i in range(4):
        for b in range(3):
            e('v_mfma_f32_16x16x32_bf16 %s, v[56:59], %s, %s' % (v(8 + 4 * b, 4), v(X + 16 * b + 4 * i, 4), v(8 + 4 * b, 4) if i else '0'))
    for b in range(3):
        for k in range(2): e('v_cvt_pk_bf16_f32 %s, %s, %s' % (v(20 + 2 * b + k), v(8 + 4 * b + 2 * k), v(8 + 4 * b + 2 * k + 1)))
        e('ds_write_b64 %s, %s' % (v(51 + b), v(20 + 2 * b, 2)))
    for k in range(1, 4): e('ds_write_b64 v54, v[24:25] offset:%d' % (32 * k))
    e('s_setprio 0')
    e('s_waitcnt lgkmcnt(0)')
    stamp(9)
    e('s_barrier')
    for k in range(nearly, 3): wo_block(4 * k, 12)
    e('s_cmp_lg_u32 s39, 0')
    e('s_cbranch_scc1 L_b_wo13')
    wo_block(12, 12)
    e('s_branch L_b_wo16')
    e.label('L_b_wo13')
    wo_block(12, 15)
    e.label('L_b_wo16')
    e('s_cmp_ge_u32 s39, 2')
    e('s_cbranch_scc1 L_b_wodone')
    e('s_mul_i32 s32, s39, %d' % (288 * 1152))
    e('s_mul_i32 s34, s39, 4608')
    e('s_add_u32 s34, s34, %d' % (WQ_LO + 3 * 4608))
    tile144('s[28:31]', 34, 's32')
    e.label('L_b_wodone')
    e('s_waitcnt vmcnt(0)')
    stamp(10)
    e('s_barrier')
    e('s_endpgm')


def role_h(e, opts):
    e.label('L_roleH')
    e('s_load_dwordx4 s[4:7], s[0:1], 80')
    e('s_load_dwordx4 s[12:15], s[0:1], 104')
    e('s_getpc_b64 s[8:9]')
    e.label('L_h_pc')
    e('s_sub_u32 s8, s8, L_h_pc-KERNEL_START')
    e('s_subb_u32 s9, s9, 0')
    e('v_lshlrev_b32 v1, 7, v0')
    e('v_cmp_gt_u32 vcc, KERNEL_END-KERNEL_START, v1')
    e('s_and_saveexec_b64 s[10:11], vcc')
    e('s_cbranch_execz L_h_nocode')
    if int(opts.get('pfcode', 1)): e('global_load_dword v2, v1, s[8:9]')
    e.label('L_h_nocode')
    e('s_mov_b64 exec, s[10:11]')
    e('s_sub_u32 s26, s2, 224')
    e('s_sub_u32 s27, s24, 8')
    e('s_mul_i32 s27, s27, 6')
    e('s_add_u32 s27, s27, s25')
    e('s_add_u32 s27, s27, 30')
    e('s_cmp_ge_u32 s24, 12')
    e('s_cselect_b32 s26, s26, s27')
    e('s_mul_i32 s27, s26, 49152')
    e('v_lshl_add_u32 v4, v0, 4, s27')
    for k in range(4): e('v_mov_b32 %s, -1' % v(8 + k))
    e('s_and_b32 s24, s24, 3')
    e('s_mul_i32 s24, s24, 144')
    e('s_and_b32 s25, s25, 1')
    e('s_lshl_b32 s25, s25, 9')
    for k in range(2):
        e('v_add_u32 v16, %d, v0' % (512 * k))
        e('v_min_u32 v16, 719, v16')
        div_small(e, 5, 6, 16, 5, 7)
        e('v_add_u32 v5, s24, v5')
        e('v_lshl_add_u32 v6, v6, 7, s25')
        e('v_mul_u32_u24 v7, 3456, v5')
        e('v_mul_u32_u24 v5, 1152, v5')
        e('v_add_u32 %s, v7, v6' % v(14 + k))
        e('v_add_u32 %s, v5, v6' % v(12 + k))
    order = opts.get('horder', 'wqwc')
    e('s_waitcnt lgkmcnt(0)')
    for ch in order:
        if ch == 'w': e('s_waitcnt vmcnt(0)')
        if ch == 't':
            e('s_and_b32 s27, s2, 7')
            e('s_lshl_b32 s27, s27, 2')
            e('v_mov_b32 v5, s27')
            e('s_mov_b32 s28, %d' % SPIN)
            e('v_readfirstlane_b32 s29, v0')
            e('s_cmp_lg_u32 s29, 0')
            e('s_cbranch_scc1 L_h_trigd')
            e('s_mov_b64 exec, 1')
            e.label('L_h_trig')
            e('global_load_dword v6, v5, s[12:13] offset:16 sc1')
            e('s_sub_u32 s28, s28, 1')
            e('s_cbranch_scc1 L_h_trigd')
            e('s_waitcnt vmcnt(0)')
            e('v_cmp_eq_u32 vcc, 0, v6')
            e('s_cbranch_vccnz L_h_trig')
            e.label('L_h_trigd')
            e('s_mov_b64 exec, -1')
            e('s_barrier')
        if ch == 'q':
            for k in range(2): e('global_load_dword %s, %s, s[4:5]' % (v(16 + k), v(14 + k)))
        if ch == 'o':
            for k in range(2): e('global_load_dword %s, %s, s[6:7]' % (v(18 + k), v(12 + k)))
        if ch == 'c':
            for k in range(6):
                e('global_store_dwordx4 v4, v[8:11], s[14:15] sc1')
                if k < 5: e('v_add_u32 v4, 8192, v4')
    e('s_and_b32 s26, s26, 3')
    e('s_lshl_b32 s26, s26, 6')
    e('v_mov_b32 v5, s26')
    e('v_mov_b32 v6, 1')
    e('v_cmp_eq_u32 vcc, 0, v0')
    e('s_waitcnt vmcnt(0)')
    e('s_barrier')
    e('s_and_saveexec_b64 s[10:11], vcc')
    e('s_cbranch_execz L_h_noadd')
    e('global_atomic_add v5, v6, s[12:13] sc1')
    e.label('L_h_noadd')
    e('s_mov_b64 exec, s[10:11]')
    if 'o' not in order:
        for k in range(2): e('global_load_dword %s, %s, s[6:7]' % (v(18 + k), v(12 + k)))
    e('s_endpgm')
```

```python
import sys
from asmlib import *
import gen_a
KN = 'concat_heads__ssm_conv_s4__linear_attn_block__prompt_kernel'
HEAD = open('concat_heads__ssm_conv_s4__linear_attn_block__prompt.s.ref').read().split('; Override launch')[0]
LDS = 163840
STAMP_BASE = 64 << 20

def make(stamps=False, roles='AB', opts=None):
    opts = opts or {}
    e = Asm()
    nst = [0]
    def mk_stamp(role):
        if not stamps: return None
        def st(i):
            e('%s %s' % ('s_memrealtime' if opts.get('rt') else 's_memtime', s(64 + 2 * i, 2)))
        return st
    e.label(KN)
    probe = opts.get('probe')
    if stamps or probe:
        e('s_memrealtime s[60:61]')
        e('s_memrealtime s[62:63]' if opts.get('rt') else 's_memtime s[62:63]')
    e('s_cmp_ge_u32 s2, 256')
    e('s_cbranch_scc1 L_exit')
    e('s_cmp_ge_u32 s2, 128')
    e('s_cbranch_scc1 %s' % 'L_roleA')
    if 'B' in roles:
        import gen_b
        gen_b.role_b(e, mk_stamp('B'), opts)
    e.label('L_exit')
    e('s_endpgm')
    gen_a.role_a(e, mk_stamp('A'), opts)
    import gen_b
    gen_b.role_h(e, opts)
    lines = e.L
    if 'A' not in roles:
        k = lines.index('s_cbranch_scc1 L_roleH')
        lines.insert(k + 1, 's_branch L_exit')
    if probe:
        k = [i for i, l in enumerate(lines) if l == 's_endpgm'][0 if probe[0] == 'b' else 3]
        d = Asm()
        d('s_waitcnt vmcnt(0)')
        d('s_memrealtime s[62:63]' if probe[1:] == 'rt' else 's_memtime s[64:65]')
        d('s_memrealtime s[66:67]')
        d('s_waitcnt lgkmcnt(0)')
        if probe[1:] == 'rt':
            d('s_sub_u32 s6, s62, s60')
            d('s_lshl_b32 s6, s6, 2')
        else:
            d('s_sub_u32 s6, s64, s62')
            d('s_lshr_b32 s6, s6, 3')
        d.label('L_probe')
        d('s_memrealtime s[68:69]')
        d('s_waitcnt lgkmcnt(0)')
        d('s_sub_u32 s7, s68, s66')
        d('s_cmp_lt_u32 s7, s6')
        d('s_cbranch_scc1 L_probe')
        lines = lines[:k] + d.L + lines[k:]
    if stamps:
        out = []
        for k, l in enumerate(lines):
            if l == 's_endpgm' and lines[k - 1] != 'L_exit:' and k != len(lines) - 1: out.append('s_branch L_dump')
            else: out.append(l)
        lines = out
        d = Asm()
        d.label('L_dump')
        d('s_waitcnt vmcnt(0)')
        d('s_memrealtime s[96:97]' if opts.get('rt') else 's_memtime s[96:97]')
        d('s_memrealtime s[98:99]')
        d('s_load_dwordx2 s[4:5], s[0:1], 112')
        d('v_mbcnt_lo_u32_b32 v1, -1, 0')
        d('v_mbcnt_hi_u32_b32 v1, -1, v1')
        d('s_waitcnt lgkmcnt(0)')
        d('v_mov_b32 v2, s60')
        for i in range(17):
            d('s_sub_u32 s6, %s, s62' % s(64 + 2 * i))
            d('v_mov_b32 v3, s6')
            d('v_cmp_eq_u32 vcc, %d, v1' % (i + 2))
            d('v_cndmask_b32 v2, v2, v3, vcc')
        d('v_mov_b32 v3, s98')
        d('v_cmp_eq_u32 vcc, 1, v1')
        d('v_cndmask_b32 v2, v2, v3, vcc')
        d('s_lshl_b32 s6, s2, 3')
        d('s_add_u32 s6, s6, s24')
        d('s_lshl_b32 s6, s6, 8')
        d('s_add_u32 s6, s6, %d' % STAMP_BASE)
        d('v_lshl_add_u32 v1, v1, 2, s6')
        d('global_store_dword v1, v2, s[4:5]')
        d('s_endpgm')
        lines += d.L
    lines, added = pad_hazards(lines)
    lines = [l.replace('KERNEL_START', KN).replace('KERNEL_END', 'L_end') for l in lines] + ['L_end:']
    body = '\n'.join(l if l.endswith(':') else '    ' + l for l in lines)
    txt = HEAD + '; @launch grid=(256,1,1) block=(512,1,1) lds=%d\n' % LDS
    txt += '.amdgcn_target "amdgcn-amd-amdhsa--gfx950"\n.text\n.globl %s\n.p2align 8\n.type %s,@function\n' % (KN, KN)
    txt += body + '\n'
    txt += '''.section .rodata,"a"
.p2align 6
.amdhsa_kernel %s
  .amdhsa_next_free_vgpr 256
  .amdhsa_next_free_sgpr 102
  .amdhsa_accum_offset 112
  .amdhsa_group_segment_fixed_size 0
  .amdhsa_kernarg_size 120
  .amdhsa_user_sgpr_count 2
  .amdhsa_user_sgpr_kernarg_segment_ptr 1
  .amdhsa_system_sgpr_workgroup_id_x 1
.end_amdhsa_kernel
''' % KN
    return txt, added

if __name__ == '__main__':
    out = sys.argv[1]
    stamps = 'stamps' in sys.argv[2:]
    roles = [x for x in sys.argv[2:] if x in ('A', 'B', 'AB')]
    opts = dict(x.split('=') for x in sys.argv[2:] if '=' in x)
    txt, added = make(stamps, roles[0] if roles else 'AB', opts)
    open(out, 'w').write(txt)
    print('wrote', out, len(txt), 'bytes; nop states added', added)
```

```python
from asmlib import *
import math, struct

def f2u(x): return struct.unpack('<I', struct.pack('<f', x))[0]
LOG2E = f2u(math.log2(math.e)); INV2PI = f2u(1.0 / (2 * math.pi))

A_WORK = 64; A_WS = 8960
A_CMP = A_WORK + 8 * A_WS
CMPS = 3584
A_UT = A_CMP + 8 * CMPS
A_Y1 = A_UT + 8 * 4608
A_END = A_Y1 + 8 * 3072
assert A_END <= 163840
ROWB = 272
CS = 2240

def cmul(e, dst, x, y, t):
    return [lambda: e('v_pk_mul_f32 %s, %s, %s op_sel_hi:[1,0]' % (v(t, 2), v(x, 2), v(y, 2))),
            lambda: e('v_pk_fma_f32 %s, %s, %s, %s op_sel:[1,1,0] op_sel_hi:[0,1,1] neg_lo:[0,1,0]' % (v(dst, 2), v(x, 2), v(y, 2), v(t, 2)))]

def interleave(*streams):
    streams = [list(x) for x in streams]
    while any(streams):
        for st in streams:
            if st: st.pop(0)()

def role_a(e, stamp=None, opts=None):
    opts = opts or {}
    late = int(opts.get('ulate', 1))
    stamp = stamp or (lambda i: None)
    e.label('L_roleA')
    e('s_sub_u32 s24, s2, 128')
    e('s_and_b32 s25, s24, 7')
    e('s_lshr_b32 s24, s24, 3')
    e('s_lshr_b32 s27, s24, 2')
    e('s_lshl_b32 s27, s27, 3')
    e('s_add_u32 s27, s27, s25')
    e('s_cmp_ge_u32 s27, 18')
    e('s_cbranch_scc1 L_roleH')
    e('s_load_dwordx16 s[4:19], s[0:1], 0')
    e('s_load_dwordx2 s[20:21], s[0:1], 64')
    e('s_load_dwordx2 s[22:23], s[0:1], 96')
    e('s_and_b32 s26, s24, 3')
    e('s_lshl_b32 s27, s25, 2')
    e('s_add_u32 s27, s27, 56')
    e('s_lshl_b32 s25, s25, 3')
    e('s_cmp_lt_u32 s24, 8')
    e('s_cselect_b32 s25, s25, s27')
    e('s_add_u32 s25, s25, s24')
    e('v_lshrrev_b32 v10, 6, v0')
    e('v_and_b32 v1, 63, v0')
    e('v_readfirstlane_b32 s24, v10')
    e('s_mov_b32 s30, 0x05040100')
    e('s_mov_b32 s31, 0x07060302')
    e('s_lshl_b32 s28, s25, 3')
    e('s_add_u32 s28, s28, s24')
    e('s_lshl_b32 s29, s28, 8')
    e('v_lshl_add_u32 v10, v1, 2, s29')
    e('s_lshl_b32 s29, s28, 1')
    e('v_mov_b32 v11, s29')
    e('v_lshlrev_b32 v12, 2, v0')
    e('v_mul_u32_u24 v13, 1152, v12')
    e('s_lshl_b32 s29, s25, 4')
    e('v_add_u32 v13, s29, v13')
    e('v_mul_u32_u24 v14, 4608, v0')
    e('v_add_u32 v14, s29, v14')
    e('s_mul_i32 s27, s24, %d' % A_WS)
    e('s_add_u32 s27, s27, %d' % A_WORK)
    e('s_mov_b32 m0, s27')
    e('s_waitcnt lgkmcnt(0)')
    e('global_load_ushort v8, v11, s[18:19]')
    for k in range(6):
        e('global_load_dword %s, v10, %s' % (v(2 + k), s(6 + 2 * k, 2)))
    e('global_load_ushort v9, v11, s[20:21]')
    t_par = e.vm()
    def uload(slot):
        for sub in range(4):
            if sub < 3:
                e('s_cmp_lg_u32 s26, %d' % sub)
                e('s_cbranch_scc1 L_a_u%d_%d' % (slot, sub + 1))
            i = (slot + sub) & 3
            e('global_load_dwordx4 %s, v13, s[4:5] offset:%d' % (v(16 + 4 * i, 4), 1152 * i))
            if sub < 3:
                e('s_branch L_a_udone%d' % slot)
                e.label('L_a_u%d_%d' % (slot, sub + 1))
                e.nvm -= 1
        e.label('L_a_udone%d' % slot)
    stamp(0)
    e('s_mul_i32 s33, s24, 4608')
    e('s_add_u32 s33, s33, %d' % A_UT)
    e('v_lshl_add_u32 v15, v1, 3, s33')
    e('v_mov_b32 v36, 0')
    e('v_mov_b32 v37, 0')
    e('ds_write_b64 v15, v[36:37]')
    e('v_and_b32 v36, 31, v1')
    e('v_lshrrev_b32 v37, 5, v1')
    e('v_mul_u32_u24 v86, %d, v36' % ROWB)
    e('v_lshl_add_u32 v86, v37, 4, v86')
    e('v_add_u32 v86, s27, v86')
    for i in range(16): e('v_mov_b32 %s, 0' % v(96 + i))
    e('v_and_b32 v36, 15, v1')
    e('v_lshrrev_b32 v37, 4, v1')
    e('v_lshlrev_b32 v37, 3, v37')
    e('s_movk_i32 s36, 0x3f80')
    for m, (bits, ar) in enumerate(((0x1ff0, 136), (0xfe0, 140))):
        e('v_mov_b32 v38, 0x%x' % bits)
        e('v_lshlrev_b32 v38, v36, v38')
        e('v_lshrrev_b32 v38, v37, v38')
        for k in range(4):
            e('v_bfe_u32 v39, v38, %d, 1' % (2 * k))
            e('v_bfe_u32 v40, v38, %d, 1' % (2 * k + 1))
            e('v_lshl_or_b32 v39, v40, 16, v39')
            e('v_mul_u32_u24 v39, s36, v39')
            e('v_accvgpr_write_b32 %s, v39' % a(ar + k))
    e.wait_vm(t_par)
    stamp(1)
    e('v_lshlrev_b32 v8, 16, v8')
    e('v_mul_f32 v8, 0x%08x, v8' % LOG2E)
    e('v_exp_f32 v8, v8')
    e('v_lshlrev_b32 v9, 16, v9')
    e('v_cvt_pk_bf16_f32 v8, v8, v8')
    e('v_cmp_eq_u32 vcc, 0, v1')
    e('v_lshlrev_b32 v32, 16, v8')
    e('v_cndmask_b32 v35, 0, v9, vcc')
    e('v_mul_f32 v33, 0x%08x, v32' % LOG2E)
    e('v_mul_f32 v34, 0x%08x, v32' % INV2PI)
    e('s_mov_b32 s32, 2')
    e.label('L_a_pass')
    stamp(8)
    if not late: uload(0)
    stamp(9)
    for k in range(6): e('v_lshlrev_b32 %s, 16, %s' % (v(36 + k), v(2 + k)))
    for k in range(6): e('v_lshrrev_b32 %s, 16, %s' % (v(2 + k), v(2 + k)))
    e('v_mul_f32 v36, v33, v36')
    e('v_mul_f32 v37, v34, v37')
    e('v_mul_f32 v38, v32, v38')
    e('v_mul_f32 v39, v32, v39')
    e('v_mul_f32 v70, 0x43800000, v36')
    e('v_mul_f32 v71, 0x43800000, v37')
    e('v_mul_f32 v72, 0x41000000, v36')
    e('v_mul_f32 v73, 0x41000000, v37')
    e('v_fract_f32 v71, v71')
    e('v_fract_f32 v37, v37')
    e('v_fract_f32 v73, v73')
    e('v_exp_f32 v70, v70')
    e('v_cos_f32 v48, v71')
    e('v_sin_f32 v49, v71')
    e('v_exp_f32 v36, v36')
    e('v_cos_f32 v44, v37')
    e('v_sin_f32 v45, v37')
    e('v_exp_f32 v72, v72')
    e('v_cos_f32 v46, v73')
    e('v_sin_f32 v47, v73')
    if int(opts.get('vop2', 0)):
        def cm(d, x, y, ny):
            return [lambda: e('v_mul_f32 %s, %s, %s' % (v(d), v(x), v(y))),
                    lambda: e('v_mul_f32 %s, %s, %s' % (v(d + 1), v(x + 1), v(y))),
                    lambda: e('v_fmac_f32 %s, %s, %s' % (v(d), v(x + 1), v(ny))),
                    lambda: e('v_fmac_f32 %s, %s, %s' % (v(d + 1), v(x), v(y + 1)))]
        neg = lambda d, x: [lambda: e('v_sub_f32 %s, 0, %s' % (v(d), v(x)))]
        e('v_sub_f32 v74, 0, v41')
        for f in cm(42, 38, 40, 74): f()
        e('v_mul_f32 v48, v70, v48')
        e('v_mul_f32 v49, v70, v49')
        e('v_mul_f32 v44, v36, v44')
        e('v_mul_f32 v45, v36, v45')
        e('v_mul_f32 v46, v72, v46')
        e('v_mul_f32 v47, v72, v47')
        e('v_sub_f32 v36, 0, v49')
        e('v_sub_f32 v37, 0, v45')
        e('v_sub_f32 v38, 0, v47')
        cv = {}
        def put(src, row, ng, ch=0):
            cv[ch] = cv.get(ch, 0) + 1
            r = 78 + 2 * ch + (cv[ch] & 1)
            return [lambda: e('v_cvt_pk_bf16_f32 %s, %s, %s%s' % (v(r), v(src), '-' if ng else '', v(src + 1))),
                    lambda: e('ds_write_addtid_b32 %s offset:%d' % (v(r), row * ROWB))]
        chA = put(42, 0, True); src = 42
        for k, r in enumerate([8, 12, 14, 16, 17, 18, 19, 20]):
            d = 50 + 2 * (k & 1)
            chA += cm(d, src, 48, 36) + put(d, r, True); src = d
        pB = lambda x, r: put(x, r, True, 1)
        chB = cm(60, 44, 44, 37) + neg(39, 61) + cm(68, 42, 44, 37) + pB(68, 1)
        chB += cm(62, 42, 60, 39) + pB(62, 2) + cm(70, 68, 60, 39) + pB(70, 3)
        chB += cm(64, 62, 60, 39) + pB(64, 4) + cm(68, 70, 60, 39) + pB(68, 5)
        chB += cm(66, 64, 60, 39) + pB(66, 6) + cm(70, 68, 60, 39) + pB(70, 7)
        chB += cm(68, 64, 48, 36) + pB(68, 10) + cm(70, 62, 48, 36) + pB(70, 9)
        chB += cm(64, 68, 48, 36) + pB(64, 13) + cm(70, 66, 48, 36) + pB(70, 11)
        chB += cm(68, 64, 48, 36) + pB(68, 15)
        chC = cm(54, 46, 46, 38) + cm(56, 54, 46, 38) + neg(40, 55) + cm(58, 54, 54, 40) + neg(41, 59)
        stamp(10)
        interleave(chA, chB, chC)
        stamp(11)
        uload(1)
        stamp(12)
        for k in range(8): e('ds_read_b128 %s, v86 offset:%d' % (a(4 * k, 4), 32 * k))
        e('v_mov_b32 v52, 0x3f80')
        e('ds_write_addtid_b32 v52')
        for f in put(46, 1, False) + put(54, 2, False) + put(56, 3, False) + put(58, 4, False): f()
        regs = {0: (58, 50, 52), 1: (46, 60, 62), 2: (54, 64, 66), 3: (56, 68, 70)}
        chains = []
        for c in (1, 2, 3, 0):
            st = []
            src, r0, r1 = regs[c]
            for j in range(5, 32):
                if j % 4 != c: continue
                st += cm(r0, src, 58, 41) + put(r0, j, False, c); src = r0; r0, r1 = r1, r0
            chains.append(st)
        interleave(*chains)
    else:
        for f in cmul(e, 42, 38, 40, 74): f()
        e('v_mul_f32 v48, v70, v48')
        e('v_mul_f32 v49, v70, v49')
        e('v_mul_f32 v44, v36, v44')
        e('v_mul_f32 v45, v36, v45')
        e('v_mul_f32 v46, v72, v46')
        e('v_mul_f32 v47, v72, v47')
        cv = {}
        def put(src, row, neg, ch=0):
            cv[ch] = cv.get(ch, 0) + 1
            r = 78 + 2 * ch + (cv[ch] & 1)
            return [lambda: e('v_cvt_pk_bf16_f32 %s, %s, %s%s' % (v(r), v(src), '-' if neg else '', v(src + 1))),
                    lambda: e('ds_write_addtid_b32 %s offset:%d' % (v(r), row * ROWB))]
        chA = put(42, 0, True)
        rowsA = [8, 12, 14, 16, 17, 18, 19, 20]
        src = 42
        for r in rowsA:
            chA += cmul(e, 50, src, 48, 70) + put(50, r, True); src = 50
        putB = lambda x, r, n: put(x, r, n, 1)
        chB = cmul(e, 60, 44, 44, 72) + cmul(e, 68, 42, 44, 74) + putB(68, 1, True)
        chB += cmul(e, 62, 42, 60, 72) + putB(62, 2, True) + cmul(e, 68, 68, 60, 74) + putB(68, 3, True)
        chB += cmul(e, 64, 62, 60, 72) + putB(64, 4, True) + cmul(e, 68, 68, 60, 74) + putB(68, 5, True)
        chB += cmul(e, 66, 64, 60, 72) + putB(66, 6, True) + cmul(e, 68, 68, 60, 74) + putB(68, 7, True)
        chB += cmul(e, 64, 64, 48, 72) + putB(64, 10, True) + cmul(e, 62, 62, 48, 74) + putB(62, 9, True)
        chB += cmul(e, 64, 64, 48, 72) + putB(64, 13, True) + cmul(e, 66, 66, 48, 74) + putB(66, 11, True)
        chB += cmul(e, 64, 64, 48, 72) + putB(64, 15, True)
        chC = cmul(e, 54, 46, 46, 76) + cmul(e, 56, 54, 46, 76) + cmul(e, 58, 54, 54, 76)
        stamp(10)
        interleave(chA, chB, chC)
        stamp(11)
        uload(1)
        stamp(12)
        for k in range(8): e('ds_read_b128 %s, v86 offset:%d' % (a(4 * k, 4), 32 * k))
        e('v_mov_b32 v52, 0x3f80')
        e('ds_write_addtid_b32 v52')
        for f in put(46, 1, False) + put(54, 2, False) + put(56, 3, False) + put(58, 4, False): f()
        regs = {0: (58, 50), 1: (46, 52), 2: (54, 54), 3: (56, 56)}
        chains = []
        for c in (1, 2, 3, 0):
            st = []
            src, run = regs[c]
            for j in range(5, 32):
                if j % 4 != c: continue
                st += cmul(e, run, src, 58, 70 + 2 * c) + put(run, j, False, c); src = run
            chains.append(st)
        interleave(*chains)
    stamp(13)
    if late: uload(0)
    e('s_add_u32 s26, s26, 2')
    e('s_and_b32 s26, s26, 3')
    t0 = e.lg()
    for k in range(8): e('ds_read_b128 %s, v86 offset:%d' % (a(32 + 4 * k, 4), 32 * k))
    for k in range(8):
        e.wait_lg(t0 + k + 1)
        e('v_mfma_f32_32x32x16_bf16 v[96:111], %s, %s, v[96:111]' % (a(4 * k, 4), a(32 + 4 * k, 4)))
    e('s_sub_u32 s32, s32, 1')
    e('s_cmp_lg_u32 s32, 0')
    e('s_cbranch_scc1 L_a_pass')
    stamp(2)
    e('s_mul_i32 s34, s24, %d' % CMPS)
    e('s_add_u32 s34, s34, %d' % A_CMP)
    e('v_and_b32 v36, 31, v1')
    e('v_lshrrev_b32 v37, 5, v1')
    e('v_cmp_eq_u32 vcc, 0, v37')
    e('v_lshlrev_b32 v38, 5, v36')
    e('v_lshl_add_u32 v38, v37, 4, v38')
    e('v_add_u32 v38, s34, v38')
    e('v_lshlrev_b32 v39, 4, v36')
    e('v_add_u32 v39, 1024, v39')
    e('v_lshlrev_b32 v40, 3, v36')
    e('v_add_u32 v40, 1536, v40')
    e('v_cndmask_b32 v41, v40, v39, vcc')
    e('v_add_u32 v39, 8, v39')
    e('v_add_u32 v40, 256, v40')
    e('v_cndmask_b32 v42, v40, v39, vcc')
    e('v_add_u32 v41, s34, v41')
    e('v_add_u32 v42, s34, v42')
    e('v_lshlrev_b32 v43, 9, v37')
    e('v_lshl_add_u32 v43, v36, 2, v43')
    e('s_add_u32 s35, s34, 2048')
    e('v_add_u32 v43, s35, v43')
    e('v_lshl_add_u32 v44, v1, 3, s34')
    e('v_lshl_add_u32 v45, v1, 4, s34')
    e('v_cmp_eq_u32 vcc, 0, v1')
    e('v_mov_b32 v51, s34')
    e('v_cndmask_b32 v46, 0, -4, vcc')
    e('v_add_u32 v46, v46, v44')
    e('v_subrev_u32 v47, 16, v45')
    e('v_cndmask_b32 v47, v47, v45, vcc')
    e('v_lshlrev_b32 v49, 4, v1')
    e('v_sub_u32 v49, s27, v49')
    e('v_lshlrev_b32 v50, 3, v1')
    e('v_sub_u32 v50, s27, v50')
    e('v_add_u32 v49, 1072, v49')
    e('v_add_u32 v50, 1592, v50')
    e('v_lshlrev_b32 v48, 2, v1')
    e('v_sub_u32 v48, s34, v48')
    e('v_add_u32 v48, %d, v48' % (3072 + 252))
    e('ds_write_b128 v38, v[96:99]')
    e('ds_write_b64 v41, v[100:101]')
    e('ds_write_b64 v42, v[102:103]')
    e('ds_write2_b32 v43, v104, v105 offset0:0 offset1:32')
    e('ds_write2_b32 v43, v106, v107 offset0:64 offset1:96')
    t0 = e.lg()
    e('ds_read_b64 v[56:57], v44 offset:1536')
    e('ds_read_b32 v58, v44 offset:1544')
    e('ds_read_b32 v59, v46 offset:1536')
    e('ds_read_b32 v55, v46 offset:1532')
    e('ds_read_b64 v[60:61], v44 offset:1024')
    e('ds_read_b32 v62, v44 offset:1032')
    e('ds_read_b32 v63, v46 offset:1024')
    e('ds_read2_b32 v[68:69], v46 offset0:254 offset1:255')
    e('ds_read_b128 v[64:67], v45')
    e('ds_read_b128 v[72:75], v47')
    e('ds_read_b32 v52, v44 offset:2052')
    e('ds_read_b32 v53, v44 offset:2056')
    e('ds_read_b32 v70, v51 offset:2044')
    e('ds_read_b32 v71, v51 offset:2048')
    e('v_and_b32 v36, 7, v1')
    e('v_bfe_u32 v37, v1, 3, 2')
    e('v_mul_u32_u24 v37, %d, v37' % CS)
    e('v_min_u32 v36, 4, v36')
    e('v_lshlrev_b32 v38, 4, v36')
    e('v_cmp_lt_u32 s[36:37], 2, v36')
    e('v_add_u32 v39, %d, v38' % (2112 - 48))
    e('v_cndmask_b32 v38, v38, v39, s[36:37]')
    e('v_add3_u32 v36, v38, v37, s27')
    for k in range(4): e('v_mov_b32 %s, 0' % v(76 + k))
    e('ds_write_b128 v36, v[76:79]')
    e('v_and_b32 v36, 3, v1')
    e('v_lshl_add_u32 v37, v36, 4, s34')
    e('ds_write_b128 v37, v[76:79] offset:%d' % (3072 + 256))
    e('v_bfe_u32 v37, v1, 2, 2')
    e('v_lshlrev_b32 v38, 1, v36')
    e('v_sub_u32 v38, v37, v38')
    e('v_mul_u32_u24 v37, %d, v37' % CS)
    e('v_lshl_add_u32 v37, v36, 2, v37')
    e('v_add_u32 v37, s27, v37')
    e('v_cmp_lt_i32 s[36:37], 0, v38')
    e('v_cmp_lt_i32 s[38:39], 1, v38')
    e('v_cmp_eq_i32 s[40:41], -6, v38')
    def pk(d, x, y): e('v_cvt_pk_bf16_f32 %s, %s, %s' % (v(d), v(x), v(y)))
    def quad(base, pairs):
        for k, (x, y) in enumerate(pairs): pk(base + k, x, y)
    e.wait_lg(t0 + 4)
    A_, B_, C_, A2, D_ = 56, 57, 58, 59, 55
    quad(80, [(C_, C_), (B_, B_), (B_, A_), (A_, A_)]); e('ds_write_b128 v49, v[80:83] offset:%d' % (3 * CS))
    quad(84, [(C_, B_), (B_, B_), (A_, A_), (A_, A_)]); e('ds_write_b128 v49, v[84:87] offset:%d' % (2 * CS))
    quad(88, [(B_, B_), (B_, A_), (A_, A_), (A_, A2)]); e('ds_write_b128 v49, v[88:91] offset:%d' % CS)
    quad(92, [(B_, B_), (A_, A_), (A_, A_), (A2, D_)]); e('ds_write_b128 v49, v[92:95]')
    e.wait_lg(t0 + 14)
    A_, B_, C_, A1, E_, F_ = 60, 61, 62, 63, 69, 68
    e('v_add_f32 v64, v64, v35')
    for k in (73, 74, 75): e('v_cndmask_b32 %s, %s, v76, vcc' % (v(k), v(k)))
    quad(80, [(C_, B_), (A_, A_)]); e('ds_write_b64 v50, v[80:81] offset:%d' % (3 * CS))
    quad(82, [(B_, A_), (A_, A1)]); e('ds_write_b64 v50, v[82:83] offset:%d' % (2 * CS))
    quad(84, [(A_, A_), (A1, E_)]); e('ds_write_b64 v50, v[84:85] offset:%d' % CS)
    quad(86, [(A_, A1), (E_, F_)]); e('ds_write_b64 v50, v[86:87]')
    quad(88, [(67, 66), (65, 64)]); e('ds_write_b64 v50, v[88:89] offset:%d' % (3 * CS + 512))
    quad(90, [(66, 65), (64, 75)]); e('ds_write_b64 v50, v[90:91] offset:%d' % (2 * CS + 512))
    quad(92, [(65, 64), (75, 74)]); e('ds_write_b64 v50, v[92:93] offset:%d' % (CS + 512))
    quad(94, [(64, 75), (74, 73)]); e('ds_write_b64 v50, v[94:95] offset:512')
    pk(54, 53, 52); e('ds_write_b32 v48, v54')
    e('v_cndmask_b32 v39, v71, v76, s[36:37]')
    e('v_cndmask_b32 v40, v71, v76, s[38:39]')
    e('v_cndmask_b32 v40, v40, v70, s[40:41]')
    pk(39, 39, 40); e('ds_write_b32 v37, v39 offset:48')
    stamp(3)
    e('v_lshlrev_b32 v15, 3, v0')
    e('v_add_u32 v15, %d, v15' % (A_UT + 512))
    e('s_waitcnt vmcnt(0)')
    stamp(4)
    for c in range(8):
        sel = 's31' if c & 1 else 's30'
        d = 36 + 2 * (c % 8)
        e('v_perm_b32 %s, %s, %s, %s' % (v(d), v(20 + (c >> 1)), v(16 + (c >> 1)), sel))
        e('v_perm_b32 %s, %s, %s, %s' % (v(d + 1), v(28 + (c >> 1)), v(24 + (c >> 1)), sel))
        e('ds_write_b64 v15, %s offset:%d' % (v(d, 2), c * 4608))
    e('v_and_b32 v2, 15, v1')
    e('v_lshrrev_b32 v3, 4, v1')
    e('v_and_b32 v4, 3, v2')
    e('v_sub_u32 v5, v2, v4')
    e('v_lshlrev_b32 v5, 1, v5')
    e('v_mul_u32_u24 v4, %d, v4' % CS)
    e('v_lshl_add_u32 v4, v3, 4, v4')
    e('v_sub_u32 v4, v4, v5')
    e('s_add_u32 s35, s27, 24')
    e('v_add_u32 v16, s35, v4')
    e('v_lshlrev_b32 v17, 4, v3')
    e('v_lshlrev_b32 v18, 2, v2')
    e('v_sub_u32 v17, v17, v18')
    e('s_add_u32 s35, s34, %d' % (3072 + 60))
    e('v_add_u32 v17, s35, v17')
    e('v_lshlrev_b32 v20, 5, v2')
    e('v_lshl_add_u32 v21, v3, 3, v20')
    e('v_lshl_add_u32 v20, v3, 4, v20')
    e('s_add_u32 s35, s33, 464')
    e('v_add_u32 v19, s35, v20')
    e('v_add_u32 v20, 16, v19')
    e('s_mul_i32 s35, s24, 3072')
    e('s_add_u32 s35, s35, %d' % A_Y1)
    e('v_add_u32 v22, s35, v21')
    e('s_add_u32 s35, s33, 512')
    e('v_add_u32 v21, s35, v21')
    ACC = 64
    for i in range(16): e('v_mov_b32 %s, 0' % v(ACC + i))
    t0 = e.lg()
    for d in range(4, 8):
        o = 16 * (7 - d)
        e('ds_read2_b32 %s, v17 offset0:%d offset1:%d' % (a(96 + 4 * (d - 4), 2), o, o + 1))
        e('ds_read2_b32 %s, v17 offset0:%d offset1:%d' % (a(98 + 4 * (d - 4), 2), o + 2, o + 3))
    e('ds_read_b64 a[128:129], v16')
    e('ds_read_b64 a[130:131], v16 offset:8')
    e('s_waitcnt lgkmcnt(0)')
    e('s_barrier')
    stamp(5)
    mf = lambda d, x, y, c: e('v_mfma_f32_16x16x32_bf16 %s, %s, %s, %s' % (d, x, y, c))
    G1 = int(opts.get('g1', 5))
    T1 = list(range(G1)); T2 = list(range(G1, 8))
    tok = {}
    wgrp = int(opts.get('wgrp', 2))
    def reads(bank, tiles):
        low = max(0, min(tiles) - 3)
        out = []; seen = set()
        def rd(key, txt): out.append(lambda: (e(txt), tok.__setitem__(key, e.lg())))
        for i in range(4):
            for h in range(2): rd(('A', bank, i), 'ds_read_b64 %s, v16 offset:%d' % (a(bank + 4 * i + 2 * h, 2), 2048 - 512 * i + 8 * h))
            for n in tiles:
                m = n - i
                if m >= 0 and m not in seen:
                    seen.add(m); rd(('B', bank, m), 'ds_read_b128 %s, v20 offset:%d' % (a(bank + 16 + 4 * (m - low), 4), 512 * m))
        out.append(lambda: e('v_subrev_u32 v16, 64, v16'))
        out.append(lambda: e('v_subrev_u32 v20, 64, v20'))
        return out
    def spread(nslots, fill):
        per = [len(fill) // nslots + (1 if k < len(fill) % nslots else 0) for k in range(nslots)]
        res = []; k = 0
        for p_ in per: res.append(fill[k:k + p_]); k += p_
        return res
    def half(bank, tiles, more=(), lead=0):
        low = max(0, min(tiles) - 3)
        ops = [(i, n) for i in range(4) for n in tiles if n >= i]
        rd_ = reads(48 - bank, tiles); more = list(more)
        fill = []
        while rd_ or more:
            fill += rd_[:1] + more[:lead or 1]; rd_ = rd_[1:]; more = more[lead or 1:]
        gaps = spread(len(ops), fill)
        have = -1
        for (i, n), gp in zip(ops, gaps):
            need_ = max(max(tok[('A', bank, i2)], tok[('B', bank, n2 - i2)]) for i2, n2 in ops if i2 // wgrp == i // wgrp)
            if need_ > have: e.wait_lg(need_); have = need_
            mf(v(ACC + 4 * n, 4), a(bank + 4 * i, 4), a(bank + 16 + 4 * (n - i - low), 4), v(ACC + 4 * n, 4))
            for f in gp: f()
    t0 = e.lg()
    for c in range(4):
        e('ds_read_b128 %s, v19 offset:%d' % (a(64 + 8 * c, 4), 512 * c))
        e('ds_read_b128 %s, v20 offset:%d' % (a(68 + 8 * c, 4), 512 * c))
    BX = 24
    for c in range(4):
        e.wait_lg(t0 + 2 * c + 2)
        mf(v(BX + 8 * c, 4), a(64 + 8 * c, 4), 'a[136:139]', '0')
        mf(v(BX + 8 * c + 4, 4), a(68 + 8 * c, 4), 'a[140:143]', '0')
        mf(v(ACC + 16 + 4 * c, 4), 'a[128:131]', a(68 + 8 * c, 4), '0')
        if c:
            for r in range(4): pk(BX + 8 * c - 8 + r, BX + 8 * c - 8 + r, BX + 8 * c - 4 + r)
    first = reads(0, T1)
    for c in range(4):
        if c == 1:
            for r in range(4): pk(BX + 24 + r, BX + 24 + r, BX + 28 + r)
        for n in range(4 + c, 8):
            mf(v(ACC + 4 * n, 4), v(BX + 8 * c, 4), a(96 + 4 * (n - c - 4), 4), v(ACC + 4 * n, 4))
            for f in first[:2]: f()
            first = first[2:]
    assert not first
    def loop(tiles, tag, trips, extra=None):
        e('s_mov_b32 s32, %d' % trips)
        e.label('L_a_conv%s' % tag)
        half(0, tiles)
        if extra: extra()
        half(48, tiles)
        e('s_sub_u32 s32, s32, 1')
        e('s_cmp_lg_u32 s32, 0')
        e('s_cbranch_scc1 L_a_conv%s' % tag)
    def put_y(tiles, addr):
        r = []
        for n in tiles:
            r.append(lambda n=n: pk(36 + 2 * n, ACC + 4 * n, ACC + 4 * n + 1))
            r.append(lambda n=n: pk(37 + 2 * n, ACC + 4 * n + 2, ACC + 4 * n + 3))
            r.append(lambda n=n: e('ds_write_b64 %s, %s offset:%d' % (addr, v(36 + 2 * n, 2), 512 * n)))
        return r
    def gather(rows0, rnd, base, stride):
        src = 24 + 8 * rnd if rows0 == 0 else 24
        rd_ = [lambda c=c: (e('ds_read_b32 %s, v23 offset:%d' % (v(src + c), base + c * stride + 2048 * rnd)), tok.__setitem__('y', e.lg())) for c in range(8)]
        ad = v(12 + rnd)
        rd_.append(lambda: e('s_mov_b32 s35, %d\nv_add_u32 %s, s35, v14' % ((rows0 + 1024 * rnd) * 2304, ad)))
        sh = []; st = []
        for i in range(2):
            d = 44 + 8 * rnd + 4 * i
            for c2 in range(4): sh.append(lambda d=d, c2=c2, i=i: e('v_perm_b32 %s, %s, %s, %s' % (v(d + c2), v(src + 1 + 2 * c2), v(src + 2 * c2), 's31' if i else 's30')))
            st.append('global_store_dwordx4 %s, %s, s[22:23] offset:%d' % (ad, v(d, 4), 2304 * i))
        return rd_, sh, st
    loop(T1, 'a', 4)
    stamp(14)
    e('v_add_u32 v16, 576, v16')
    e('v_add_u32 v20, 576, v20')
    for f in reads(0, T2): f()
    e('v_lshlrev_b32 v23, 2, v0')
    e('v_add_u32 v23, %d, v23' % A_UT)
    half(0, T2, put_y(T1, 'v22'))
    e('s_waitcnt lgkmcnt(0)')
    e('s_barrier')
    nr = (256 * G1 + 1023) // 1024
    gs = [gather(0, r, A_Y1 - A_UT, 3072) for r in range(nr)]
    half(48, T2, sum([g[0] for g in gs], []), lead=2)
    stamp(15)
    e.wait_lg(tok['y'])
    half(0, T2, sum([g[1] for g in gs], []))
    held = [(st, 8 if r == 0 else (256 * G1 - 1024) // 128) for r, g in enumerate(gs) for st in g[2]]
    e(held.pop(0)[0])
    half(48, T2)
    def trickle():
        e('s_cmp_lg_u32 s32, 2')
        e('s_cbranch_scc1 L_a_tr1')
        e(held[0][0])
        e('s_branch L_a_trdone')
        e.label('L_a_tr1')
        if len(held) > 1:
            e('s_cmp_ge_u32 s24, %d' % held[1][1])
            e('s_cbranch_scc1 L_a_trdone')
            for st, _ in held[1:]: e(st)
        e.label('L_a_trdone')
    loop(T2, 'b', 2, trickle)
    stamp(6)
    for f in put_y(T2, 'v21'): f()
    e('s_waitcnt lgkmcnt(0)')
    e('s_barrier')
    n2 = 2048 - 256 * G1
    if n2 < 1024:
        e('s_cmp_ge_u32 s24, %d' % (n2 // 128))
        e('s_cbranch_scc1 L_a_done')
    rd_, sh, st = gather(256 * G1, 0, 512 + 512 * G1, 4608)
    for f in rd_: f()
    e.wait_lg(tok['y'])
    for i in range(2):
        for f in sh[4 * i:4 * i + 4]: f()
        e(st[i])
    e.label('L_a_done')
    stamp(7)
    e('s_endpgm')
```

```python
from asmlib import *
from gen_a import f2u, LOG2E
EPS = f2u(1e-6)
SLOT = 34816; WOFF = 16384
WQ_LO = SLOT; WQ_HI = 4 * SLOT; IMG = WQ_HI + 3 * 4608
SCR = 3 * SLOT
CST = SLOT - 4096
LCNT = IMG + 9216
STG = WQ_LO + 5 * 4608
def wo_base(ks): return 4608 * ks if ks < 6 else SCR + 4608 * (ks - 6) if ks < 13 else WQ_LO + 4608 * (ks - 13)
KVP = 0; OB = 8 * 4 * 12288; HAND = OB + 16 * 8 * 18 * 1024
SPIN = 20000
def wq_base(ks): return WQ_LO + 4608 * ks if ks < 15 else WQ_HI + 4608 * (ks - 15)

def div_small(e, q, r, x, d, t):
    e('v_mul_u32_u24 %s, %d, %s' % (v(q), (1 << 16) // d + 1, v(x)))
    e('v_lshrrev_b32 %s, 16, %s' % (v(q), v(q)))
    e('v_mul_u32_u24 %s, %d, %s' % (v(t), d, v(q)))
    e('v_sub_u32 %s, %s, %s' % (v(r), v(x), v(t)))
for d in (5, 9, 18):
    assert all((x * ((1 << 16) // d + 1)) >> 16 == x // d for x in range(1024))

def phi_pair(e, x, dst, t, plain=False):
    if plain:
        return [lambda: e('v_mul_f32 %s, s36, %s' % (v(t), v(x))),
                lambda: e('v_mul_f32 %s, s36, %s' % (v(t + 1), v(x + 1))),
                lambda: e('v_max_f32 %s, s38, %s' % (v(t + 2), v(x))),
                lambda: e('v_exp_f32_e64 %s, %s clamp' % (v(t), v(t))),
                lambda: e('v_max_f32 %s, s38, %s' % (v(t + 3), v(x + 1))),
                lambda: e('v_exp_f32_e64 %s, %s clamp' % (v(t + 1), v(t + 1))),
                lambda: e('v_add_f32 %s, %s, %s' % (v(t), v(t), v(t + 2))),
                lambda: e('v_add_f32 %s, %s, %s' % (v(t + 1), v(t + 1), v(t + 3))),
                lambda: e('v_cvt_pk_bf16_f32 %s, %s, %s' % (v(dst), v(t), v(t + 1)))]
    return [lambda: e('v_pk_mul_f32 %s, %s, s[36:37]' % (v(t, 2), v(x, 2))),
            lambda: e('v_max_f32 %s, s38, %s' % (v(t + 2), v(x))),
            lambda: e('v_exp_f32_e64 %s, %s clamp' % (v(t), v(t))),
            lambda: e('v_exp_f32_e64 %s, %s clamp' % (v(t + 1), v(t + 1))),
            lambda: e('v_max_f32 %s, s38, %s' % (v(t + 3), v(x + 1))),
            lambda: e('v_pk_add_f32 %s, %s, %s' % (v(t, 2), v(t, 2), v(t + 2, 2))),
            lambda: e('v_cvt_pk_bf16_f32 %s, %s, %s' % (v(dst), v(t), v(t + 1)))]
def zipper(*streams):
    streams = [list(x) for x in streams]
    while any(streams):
        for st in streams:
            if st: st.pop(0)()

def role_b(e, stamp, opts):
    stamp = stamp or (lambda i: None)
    rot = int(opts.get('rot', 1))
    e('s_load_dwordx8 s[4:11], s[0:1], 72')
    e('s_load_dwordx4 s[12:15], s[0:1], 104')
    e('v_lshrrev_b32 v2, 6, v0')
    e('v_and_b32 v1, 63, v0')
    e('v_readfirstlane_b32 s24, v2')
    e('s_and_b32 s32, s2, 7')
    e('s_lshr_b32 s33, s2, 3')
    e('s_and_b32 s34, s33, 3')
    e('s_lshr_b32 s33, s33, 2')
    e('s_lshr_b32 s25, s32, 1')
    e('s_lshl_b32 s25, s25, 2')
    e('s_add_u32 s25, s25, s34')
    e('s_and_b32 s26, s32, 1')
    e('s_lshl_b32 s26, s26, 2')
    e('s_add_u32 s26, s26, s33')
    if rot:
        e('s_add_u32 s27, s33, s34')
        e('s_and_b32 s27, s27, 3')
        e('s_lshl_b32 s27, s27, 1')
        e('s_lshr_b32 s35, s32, 1')
        e('s_xor_b32 s35, s35, s32')
        e('s_and_b32 s35, s35, 1')
        e('s_add_u32 s27, s27, s35')
    else:
        e('s_mov_b32 s27, 0')
    e('v_and_b32 v2, 15, v1')
    e('v_lshrrev_b32 v3, 4, v1')
    e('s_cmp_ge_u32 s24, 4')
    e('s_cbranch_scc1 L_b_loader')
    compute(e, stamp, opts)
    e.label('L_b_loader')
    loader(e, stamp, opts)

def compute(e, stamp, opts):
    e.nvm = 0; e.nlg = 0
    ACC = 8; RING = 80; NR = 6; D = 4
    acc = lambda ct, rt: ACC + 8 * ct + 4 * rt
    e('s_mov_b32 s36, 0x%08x' % LOG2E)
    e('s_mov_b32 s37, s36')
    e('s_mov_b32 s38, 0x%08x' % EPS)
    e('s_lshl_b32 s32, s24, 12')
    e('v_and_b32 v104, 7, v2')
    e('v_xor_b32 v105, v3, v104')
    e('v_lshlrev_b32 v106, 7, v2')
    e('v_add_u32 v106, s32, v106')
    e('v_lshl_add_u32 v4, v105, 4, v106')
    e('v_xor_b32 v105, 4, v105')
    e('v_lshl_add_u32 v5, v105, 4, v106')
    e('v_lshrrev_b32 v104, 2, v2')
    e('v_and_b32 v105, 3, v2')
    e('v_lshlrev_b32 v105, 3, v105')
    e('v_lshl_add_u32 v106, v3, 2, v104')
    e('v_mul_u32_u24 v106, 288, v106')
    e('v_add_u32 v106, v106, v105')
    e('v_add_u32 v6, %d, v106' % WOFF)
    e('v_lshlrev_b32 v104, 1, v104')
    e('v_lshl_add_u32 v104, v3, 3, v104')
    e('v_mul_u32_u24 v104, 144, v104')
    e('v_add_u32 v104, v104, v105')
    e('v_add_u32 v7, %d, v104' % WQ_LO)
    e('v_cmp_gt_u32 vcc, 8, v2')
    for k in range(4): e('v_mov_b32 %s, s38' % v(108 + k))
    for k in range(4): e('v_cndmask_b32 %s, 0, v108, vcc' % v(104 + k))
    e('v_cmp_gt_u32 s[40:41], 2, v3')
    e('v_cmp_gt_u32 s[42:43], 3, v3')
    e('s_waitcnt lgkmcnt(0)')
    stamp(0)
    F = [(p, s_, ct) for p in range(8) for s_ in range(2) for ct in range(9)]
    F += [(8, s_, ct) for s_ in range(2) for ct in range(5)] + [(8, s_, ct) for s_ in range(2) for ct in range(5, 9)]
    tok = {}
    def items(f):
        p, s_, ct = F[f]
        it = []
        if ct == 0 and s_ == 0:
            pre = []
            if p:
                dl = SLOT if p % 4 else -3 * SLOT
                for r in (4, 5, 6): pre.append('v_add_u32 %s, %d, %s' % (v(r), dl, v(r)) if dl > 0 else 'v_subrev_u32 %s, %d, %s' % (v(r), -dl, v(r)))
            if p == 8: pre.append('s_waitcnt lgkmcnt(0)')
            pre.append('s_barrier')
            it.append(lambda: (e('\n'.join(pre)), stamp({0: 1, 4: 2, 8: 3}[p]) if p in (0, 4, 8) else None))
        if ct == 0:
            for rt in range(2): it.append(lambda rt=rt: e('ds_read_b128 %s, %s offset:%d' % (a(16 * p + 8 * s_ + 4 * rt, 4), v(4 + s_), 2048 * rt)))
        r = RING + 4 * (f % NR)
        for h in range(2): it.append(lambda h=h: e('ds_read_b64_tr_b16 %s, v6 offset:%d' % (v(r + 2 * h, 2), 9216 * s_ + 4608 * h + 32 * ct)))
        return it
    for f in range(D):
        for x in items(f): x()
        tok[f] = e.lg()
    def put(fi, r):
        if fi < 8: e('ds_write_b128 v4, %s offset:%d' % (v(r, 4), 1024 * fi))
        else: e('ds_write_b128 v5, %s offset:%d' % (v(r, 4), 1024 * (fi - 8)))
    def phi_tile(x, dst, t, plain):
        zz = [phi_pair(e, x[k], dst[k], t + 4 * k, plain=plain) for k in range(4)]
        return [z[k] for k in range(len(zz[0])) for z in zz]
    late = []
    for f, (p, s_, ct) in enumerate(F):
        it = items(f + D) if f + D < len(F) else []
        e.wait_lg(tok[f])
        for rt in range(2):
            c = v(acc(ct, rt), 4) if f >= 9 else 'v[108:111]' if ct < 4 else 'v[104:107]' if ct == 4 else '0'
            e('v_mfma_f32_16x16x32_bf16 %s, %s, %s, %s' % (v(acc(ct, rt), 4), a(16 * p + 8 * s_ + 4 * rt, 4), v(RING + 4 * (f % NR), 4), c))
            h = (len(it) + 1) // 2
            for x in (it[:h] if rt == 0 else it[h:]): x()
        tok[f + D] = e.lg()
    stamp(4)
    e('s_lshl_b32 s32, s24, 13\ns_add_u32 s32, s32, %d\nv_lshl_add_u32 v4, v1, 4, s32' % SCR)
    e('s_lshl_b32 s32, s24, 12\nv_lshl_add_u32 v5, v1, 4, s32')
    for t in range(5):
        o = acc(t, 0) if t < 4 else 96
        for x in phi_tile([acc(t, 0) + 2 * k for k in range(4)], [o + k for k in range(4)], 80, False): x()
        put(t, o)
        o = acc(4 + t, 0) if t else 100
        for k in range(4): e('v_cvt_pk_bf16_f32 %s, %s, %s' % (v(o + k), v(acc(4 + t, 0) + 2 * k), v(acc(4 + t, 0) + 2 * k + 1)))
        put(5 + t, o)
    e('v_add_u32 v6, %d, v7' % (WQ_HI - WQ_LO))
    e('s_waitcnt lgkmcnt(0)')
    stamp(5)
    e('s_barrier')
    def gemm144(where, c0, G, ring, hook=None):
        RG, NG, DG = ring
        tk = {}
        def iss(f, h):
            ks, ct = G[f]
            ad, off = where(ks)
            e('ds_read_b64_tr_b16 %s, %s offset:%d' % (v(RG + 4 * (f % NG) + 2 * h, 2), ad, off + 144 * h + 32 * ct))
            tk[f] = e.lg()
        for f in range(DG): iss(f, 0); iss(f, 1)
        for f, (ks, ct) in enumerate(G):
            if hook: hook(f, ks, ct, 0)
            e.wait_lg(tk[f])
            for rt in range(2):
                e('v_mfma_f32_16x16x32_bf16 %s, %s, %s, %s' % (v(acc(ct, rt), 4), v(RG + 4 * (f % NG), 4), a(8 * ks + 4 * rt, 4), v(acc(ct, rt), 4) if ks else c0))
                if f + DG < len(G): iss(f + DG, rt)
                if hook: hook(f, ks, ct, 1 + rt)
    PQ = 48
    def phi_q(t, plain): return phi_tile([acc(t, k >> 1) + 2 * (k & 1) for k in range(4)], [PQ + 10 * (k >> 1) + 2 * t + (k & 1) for k in range(4)], 92 if plain else 68, plain)
    NQ = int(opts.get('nq', 5))
    rest = []
    def qhook(f, ks, ct, ph):
        if f == 18 * NQ + 1 and ph == 0:
            for t in range(NQ): rest.extend(phi_q(t, True))
        if ph and rest: rest.pop(0)()
    gemm144(lambda ks: ('v7', wq_base(ks) - WQ_LO) if ks < 15 else ('v6', wq_base(ks) - WQ_HI), 'v[108:111]',
            [(ks, ct) for ks in range(18) for ct in range(NQ)] + [(ks, ct) for ks in range(18) for ct in range(NQ, 5)], (68, 6, 4), qhook)
    stamp(6)
    for x in rest: x()
    for t in range(NQ if NQ < 5 else 0, 5):
        for x in phi_q(t, False): x()
    DEN = 68
    e('v_lshlrev_b32 v4, 3, v1')
    e('v_add_u32 v4, %d, v4' % IMG)
    e('s_lshl_b32 s32, s25, 3')
    e('s_lshl_b32 s33, s24, 1')
    e('s_add_u32 s32, s32, s33')
    e('s_mul_i32 s32, s32, %d' % (18 * 1024))
    e('s_add_u32 s32, s32, %d' % OB)
    e('v_lshl_add_u32 v105, v1, 4, s32')
    e('s_lshl_b32 s33, s26, 11')
    e('v_add_u32 v5, s33, v105')
    e('s_lshr_b32 s33, s26, 2')
    e('s_lshl_b32 s33, s33, 10')
    e('s_and_b32 s34, s26, 3')
    e('s_lshl_b32 s34, s34, 8')
    e('s_add_u32 s33, s33, s34')
    e('s_add_u32 s33, s33, s32')
    e('s_add_u32 s33, s33, %d' % (16 * 1024 - 16))
    e('v_lshlrev_b32 v104, 4, v2')
    e('v_lshl_add_u32 v104, v3, 3, v104')
    e('v_add_u32 v104, s33, v104')
    stamp(7)
    e('s_barrier')
    stamp(8)
    t0 = e.lg()
    for pl in list(range(13, 18)) + list(range(13)): e('ds_read_b64 %s, v4 offset:%d' % (a(2 * pl, 2), 512 * pl))
    def mm(d, pl, dt, n, rt, c):
        e('v_mfma_f32_16x16x%d_bf16 %s, %s, %s, %s' % (16 * n, v(d, 4), a(2 * pl, 2 * n), v(PQ + 10 * rt + 2 * dt, 2 * n), c))
    e.wait_lg(t0 + 5)
    for pl, dt, n in ((13, 0, 2), (15, 2, 2), (17, 4, 1)):
        for rt in range(2): mm(DEN + 4 * rt, pl, dt, n, rt, v(DEN + 4 * rt, 4) if dt else 'v[108:111]')
    e.wait_lg(t0 + 18)
    for u, first in enumerate((0, 0, 1, 2, 3)):
        for rt in range(2): mm(acc(u, rt), 2 * u + first, first, 2, rt, '0')
    for u, first in ((1, 0), (2, 1), (3, 2)):
        for rt in range(2): mm(acc(u, rt), 2 * u + first + 2, first + 2, 1, rt, v(acc(u, rt), 4))
    for k in range(8): e('v_rcp_f32 %s, %s' % (v(DEN + k), v(DEN + k)))
    e('v_mov_b32 v106, 0x7fc07fc0')
    OUT = 80
    for rt in range(2):
        i = DEN + 4 * rt; t = 76; o = OUT + 10 * rt
        e('v_cndmask_b32 %s, %s, %s, s[42:43]' % (v(t), v(i + 1), v(i)))
        e('v_cndmask_b32 %s, %s, %s, s[40:41]' % (v(t + 1), v(i + 1), v(i)))
        e('v_cndmask_b32 %s, %s, %s, s[42:43]' % (v(t + 2), v(i + 2), v(i + 1)))
        e('v_cndmask_b32 %s, %s, %s, s[42:43]' % (v(t + 3), v(i + 3), v(i + 2)))
        sc = {0: (i, i), 1: (t, t + 1), 2: (t + 2, t + 2), 3: (i + 2, t + 3), 4: (i + 3, i + 3)}
        for u in (1, 2, 3, 4, 0):
            for k in range(2):
                f_ = sc[u][k]
                e('v_pk_mul_f32 %s, %s, %s op_sel:[0,%d] op_sel_hi:[1,%d]' % (v(acc(u, rt) + 2 * k, 2), v(acc(u, rt) + 2 * k, 2), v(f_ & ~1, 2), f_ & 1, f_ & 1))
            d = o + (2 * (u - 1) if u else 8)
            for k in range(2): e('v_cvt_pk_bf16_f32 %s, %s, %s' % (v(d + k), v(acc(u, rt) + 2 * k), v(acc(u, rt) + 2 * k + 1)))
        for d in (o, o + 4, o + 8):
            e('v_cmp_eq_u32 vcc, -1, %s' % v(d))
            e('v_cndmask_b32 %s, %s, v106, vcc' % (v(d), v(d)))
        if rt: e('v_add_u32 v5, %d, v5' % (18 * 1024))
        e('global_store_dwordx4 v5, %s, s[14:15] sc1' % v(o, 4))
        e('global_store_dwordx4 v5, %s, s[14:15] offset:1024 sc1' % v(o + 4, 4))
    e('v_add_u32 v107, %d, v104' % (18 * 1024))
    e('s_mov_b32 exec_lo, 0')
    e('global_store_dwordx2 v104, %s, s[14:15] sc1' % v(OUT + 8, 2))
    e('global_store_dwordx2 v107, %s, s[14:15] sc1' % v(OUT + 18, 2))
    e('s_mov_b32 exec_lo, -1')
    stamp(9)
    e('s_lshl_b32 s32, s25, 7')
    e('s_lshl_b32 s33, s24, 5')
    e('s_add_u32 s32, s32, s33')
    e('s_mul_i32 s32, s32, 2304')
    e('s_mul_i32 s33, s26, 144')
    e('s_add_u32 s32, s32, s33')
    e('s_add_u32 s32, s32, 1152')
    for j in range(5):
        e('v_add_u32 v48, %d, v1' % (64 * j))
        div_small(e, 49, 50, 48, 9, 51)
        e('v_mul_u32_u24 v49, 2304, v49')
        e('v_lshl_add_u32 v49, v50, 4, v49')
        e('v_add_u32 %s, s32, v49' % v(64 + j))
    e('s_mul_i32 s33, s24, 4608')
    e('s_add_u32 s33, s33, %d' % STG)
    e('v_mul_u32_u24 v4, 144, v2')
    e('v_lshl_add_u32 v4, v3, 3, v4')
    e('v_add_u32 v4, s33, v4')
    e('v_lshl_add_u32 v5, v1, 4, s33')
    for k in range(1, 9): e('v_add_u32 %s, %d, v105' % (v(52 + k), 4096 * k))
    e('v_mov_b32 v52, v105')
    e('v_subrev_u32 v7, %d, v7' % WQ_LO)
    e('v_add_u32 v6, %d, v7' % SCR)
    e('s_mov_b32 s39, 0')
    e('s_mov_b32 s44, %d' % SPIN)
    e('v_lshlrev_b32 v72, 8, v1')
    e('v_lshlrev_b32 v73, 4, v1')
    e('v_sub_u32 v72, v72, v73')
    e('v_add_u32 v72, v72, v60')
    e('s_mov_b64 exec, 0xff')
    e.label('L_b_probe')
    e('global_load_dword v73, v72, s[14:15] offset:2296 sc1')
    e('s_sub_u32 s44, s44, 1')
    e('s_cbranch_scc1 L_b_probed')
    e('s_waitcnt vmcnt(0)')
    e('v_cmp_eq_u32 vcc, -1, v73')
    e('s_cbranch_vccnz L_b_probe')
    e.label('L_b_probed')
    e('s_mov_b64 exec, -1')
    e('s_waitcnt vmcnt(0)')
    stamp(10)
    otok = {}
    AHEAD = int(opts.get('ahead', 4))
    def oload(ks, only=None):
        for rt in (range(2) if only is None else (only,)):
            fi = rt * 18 + ks
            e('global_load_dwordx4 %s, %s, s[14:15] offset:%d sc1' % (a(8 * ks + 4 * rt, 4), v(52 + (fi >> 2)), 1024 * (fi & 3)))
        otok[ks] = e.vm()
    e('s_barrier')
    e.label('L_b_gemm2')
    e.nvm = 0
    for ks in range(AHEAD): oload(ks)
    stamp(11)
    pend = [(ks, rt) for ks in range(AHEAD, 18) for rt in range(2)]
    def hook(f, ks, ct, ph):
        if ct == 0 and ph == 0: e.wait_vm(otok[ks])
        if ph == 1 and pend and ct in ((0, 1, 2, 3) if ks < 3 else (1, 3)): oload(*pend.pop(0))
    gemm144(lambda ks: ('v6', wo_base(ks) - SCR) if 6 <= ks < 13 else ('v7', wo_base(ks)), '0',
            [(ks, ct) for ks in range(18) for ct in range(5)], (72, 8, 5), hook)
    stamp(12)
    e('s_cmp_lg_u32 s39, 0')
    e('s_cbranch_scc1 L_b_store')
    e('v_cmp_u_f32 vcc, %s, %s' % (v(acc(0, 0)), v(acc(0, 1))))
    e('s_cbranch_vccz L_b_store')
    e('s_mov_b32 s39, 1')
    e('s_mov_b32 s44, %d' % SPIN)
    e.label('L_b_strict')
    for ks in range(18): oload(ks)
    e('s_waitcnt vmcnt(0)')
    e('s_sub_u32 s44, s44, 1')
    e('s_cbranch_scc1 L_b_gemm2')
    e('s_mov_b64 s[32:33], 0')
    for k in range(72):
        if (k & 1) == 0 or k >= 64:
            e('v_accvgpr_read_b32 v48, %s' % a(2 * k))
            e('v_cmp_eq_u32 vcc, -1, v48')
            e('s_or_b64 s[32:33], s[32:33], vcc')
    e('s_cmp_lg_u64 s[32:33], 0')
    e('s_cbranch_scc1 L_b_strict')
    e('s_branch L_b_gemm2')
    e.label('L_b_store')
    for ct in range(5):
        if ct == 4: e('s_mov_b32 exec_hi, 0')
        for rt in range(2):
            d = 80 + 4 * ct + 2 * rt
            for k in range(2): e('v_cvt_pk_bf16_f32 %s, %s, %s' % (v(d + k), v(acc(ct, rt) + 2 * k), v(acc(ct, rt) + 2 * k + 1)))
            e('ds_write_b64 v4, %s offset:%d' % (v(d, 2), 2304 * rt + 32 * ct))
    e('s_mov_b32 exec_hi, -1')
    t0 = e.lg()
    for j in range(5): e('ds_read_b128 %s, v5 offset:%d' % (v(8 + 4 * j, 4), 1024 * j))
    for j in range(5):
        e.wait_lg(t0 + j + 1)
        if j == 4: e('s_mov_b32 exec_hi, 0')
        e('global_store_dwordx4 %s, %s, s[10:11]' % (v(64 + j), v(8 + 4 * j, 4)))
    e('s_mov_b32 exec_hi, -1')
    stamp(13)
    e('s_endpgm')

def loader(e, stamp, opts):
    e.nvm = 0; e.nlg = 0
    e('s_sub_u32 s39, s24, 4')
    e('v_lshrrev_b32 v4, 3, v1')
    e('v_and_b32 v5, 7, v1')
    e('v_xor_b32 v5, v5, v4')
    e('s_lshl_b32 s32, s25, 7')
    e('s_lshl_b32 s33, s39, 5')
    e('s_add_u32 s32, s32, s33')
    e('v_add_u32 v4, s32, v4')
    e('v_mul_u32_u24 v4, 1152, v4')
    e('v_lshl_add_u32 v8, v5, 4, v4')
    e('s_lshr_b32 s32, s39, 1')
    e('s_lshl_b32 s32, s32, 5')
    e('s_and_b32 s33, s39, 1')
    e('s_lshl_b32 s33, s33, 2')
    e('s_add_u32 s32, s32, s33')
    e('s_mul_i32 s40, s26, 144')
    e('s_mul_i32 s32, s32, 3456')
    e('s_add_u32 s32, s32, s40')
    e('s_add_u32 s32, s32, 1152')
    def woff(j):
        e('v_add_u32 v4, %d, v1' % (64 * j))
        div_small(e, 5, 6, 4, 18, 7)
        e('v_and_b32 v4, 12, v5')
        e('v_add_u32 v4, v4, v5')
        e('v_mul_u32_u24 v4, 3456, v4')
        e('v_cmp_lt_u32 vcc, 8, v6')
        e('v_lshl_add_u32 v4, v6, 4, v4')
        e('v_add_u32 v4, s32, v4')
        e('v_add_u32 v5, 1008, v4')
        e('v_cndmask_b32 %s, v4, v5, vcc' % v(9 + j))
    for j in range(5): woff(j)
    e('s_lshl_b32 s41, s39, 12')
    e('s_mul_i32 s42, s39, 4608')
    e('s_add_u32 s42, s42, %d' % WOFF)
    e('s_mov_b32 s43, s27')
    e('s_mov_b32 s18, %d\ns_mov_b32 s19, 0x20000' % (2048 * 1152))
    e('s_mov_b32 s22, %d\ns_mov_b32 s23, 0x20000' % (576 * 3456))
    e('s_mov_b32 s30, %d\ns_mov_b32 s31, 0x20000' % (576 * 1152))
    e('s_waitcnt lgkmcnt(0)')
    e('s_mov_b32 s16, s4\ns_mov_b32 s17, s5\ns_mov_b32 s20, s6\ns_mov_b32 s21, s7\ns_mov_b32 s28, s8\ns_mov_b32 s29, s9')

    main = e; sd = Asm(); e = sd
    marks = {}
    e('s_lshl_b32 s32, s26, 2')
    e('s_add_u32 s32, s32, s39')
    e('s_mul_i32 s32, s32, 12288')
    e('s_add_u32 s32, s32, %d' % KVP)
    e('v_lshl_add_u32 v15, v1, 4, s32')
    e('s_lshl_b32 s33, s25, 8')
    e('s_add_u32 s32, s32, s33')
    e('v_lshlrev_b32 v14, 4, v2')
    e('v_lshl_add_u32 v14, v3, 12, v14')
    e('v_add_u32 v14, s32, v14')
    marks['clear'] = len(sd.L)
    e('s_mul_i32 s32, s39, 2304')
    e('s_add_u32 s32, s32, %d' % IMG)
    e('v_lshl_add_u32 v4, v1, 4, s32')
    for k in range(4): e('v_mov_b32 %s, 0' % v(40 + k))
    e('ds_write_b128 v4, v[40:43]')
    e('ds_write_b128 v4, v[40:43] offset:1024')
    e('v_lshl_add_u32 v4, v1, 2, s32')
    e('ds_write_b32 v4, v40 offset:2048')
    e('v_mov_b32 v55, %d' % LCNT)
    e('ds_write_b32 v55, v40')
    for j in range(5):
        e('v_add_u32 v4, %d, v1' % (64 * j))
        div_small(e, 5, 6, 4, 9, 7)
        e('v_lshlrev_b32 v6, 4, v6')
        e('v_add_u32 v6, s40, v6')
        e('v_lshrrev_b32 v4, 3, v5')
        e('v_and_b32 v7, 1, v5')
        e('v_bfe_u32 v5, v5, 1, 2')
        e('v_lshl_add_u32 v19, v7, 2, v5')
        e('v_lshl_add_u32 v39, v4, 3, v19')
        e('v_mul_u32_u24 v39, 3456, v39')
        e('v_add_u32 %s, v39, v6' % v(24 + j))
        e('v_lshl_add_u32 v39, v4, 2, v5')
        e('v_lshl_add_u32 v39, v7, 4, v39')
        e('v_mul_u32_u24 v39, 1152, v39')
        e('v_add_u32 %s, v39, v6' % v(29 + j))
        e('v_mul_u32_u24 v39, 72, v4')
        e('v_add_u32 v39, v39, v19')
        e('v_mul_u32_u24 v39, 1152, v39')
        e('v_add_u32 %s, v39, v6' % v(34 + j))
    e('s_lshr_b32 s45, s39, 1')
    e('s_lshl_b32 s46, s39, 1')
    e('s_lshl_b32 s47, s39, 10')
    e('s_add_u32 s47, s47, %d' % CST)
    e('s_add_u32 s32, s47, 768')
    e('v_lshl_add_u32 v44, v2, 3, s32')
    for i in range(2):
        e('v_add_u32 v4, %d, v3' % (4 * i))
        e('v_subrev_u32 v5, s45, v4')
        e('v_cmp_gt_u32 s[48:49], 5, v5')
        e('v_lshlrev_b32 v4, 2, v4')
        e('v_subrev_u32 v4, s46, v4')
        e('v_cmp_gt_u32 %s, 18, v4' % s(52 + 4 * i, 2))
        e('v_add_u32 v4, 2, v4')
        e('v_cmp_gt_u32 %s, 18, v4' % s(54 + 4 * i, 2))
        for j in range(2):
            e('v_add_u32 v6, %d, v2' % (16 * j - 8))
            e('v_subrev_u32 v6, s46, v6')
            e('v_cmp_gt_u32 vcc, 18, v6')
            e('v_mul_u32_u24 v6, 5, v6')
            e('v_add_u32 v6, v6, v5')
            e('s_and_b64 vcc, vcc, s[48:49]')
            e('v_lshl_add_u32 v6, v6, 3, s47')
            e('v_cndmask_b32 %s, v44, v6, vcc' % v(45 + 2 * i + j))
        e('v_cmp_eq_u32 vcc, 0, v2')
        e('v_add_u32 v6, 90, v5')
        e('v_lshl_add_u32 v6, v6, 3, s47')
        e('s_and_b64 vcc, vcc, s[48:49]')
        e('v_cndmask_b32 %s, v44, v6, vcc' % v(49 + i))
    e('s_mul_i32 s32, s39, 18')
    e('s_add_u32 s32, s32, 8')
    e('s_lshl_b32 s33, s39, 2')
    e('s_add_u32 s33, s33, s45')
    e('v_cmp_gt_u32 s[48:49], 2, v3')
    for b in range(3):
        e('v_lshl_add_u32 v4, v2, 1, v3')
        e('v_add_u32 v4, %d, v4' % (32 * b))
        div_small(e, 5, 6, 4, 5, 7)
        e('v_add_u32 v6, s33, v6')
        e('v_add_u32 v7, s32, v5')
        e('v_lshrrev_b32 v19, 4, v7')
        e('v_and_b32 v7, 15, v7')
        e('v_lshrrev_b32 v39, 2, v6')
        e('v_and_b32 v6, 3, v6')
        e('v_lshl_add_u32 v19, v19, 1, v39')
        if b == 2:
            e('v_cmp_eq_u32 vcc, 18, v5')
            e('v_add_u32 v39, 13, v39')
            e('v_cndmask_b32 v19, v19, v39, vcc')
            e('v_mov_b32 v39, s39')
            e('v_cndmask_b32 v7, v7, v39, vcc')
        e('v_lshl_add_u32 v7, v6, 4, v7')
        e('v_lshlrev_b32 v7, 3, v7')
        e('v_lshl_add_u32 v7, v19, 9, v7')
        e('v_add_u32 v7, %d, v7' % IMG)
        if b == 2:
            e('s_and_b64 vcc, vcc, s[48:49]')
            e('v_cndmask_b32 v54, v44, v7, vcc')
            e('v_cmp_gt_u32 vcc, 19, v5')
            e('s_and_b64 s[48:49], vcc, s[48:49]')
        e('v_cndmask_b32 %s, v44, v7, s[48:49]' % v(51 + b))
    e('v_and_b32 v4, 1, v2')
    e('v_lshlrev_b32 v4, 4, v4')
    e('v_mov_b32 v5, 0x3f80')
    e('v_lshlrev_b32 v4, v4, v5')
    e('v_lshrrev_b32 v5, 1, v2')
    for k in range(4):
        e('v_cmp_eq_u32 vcc, %d, v5' % k)
        e('v_mov_b32 %s, 0x3f803f80' % v(60 + k))
        e('v_cndmask_b32 %s, 0, v4, vcc' % v(56 + k))
    for k, df in enumerate((0, 1, 5, 6)):
        e('s_add_u32 s32, s39, %d' % df)
        e('s_lshl_b32 s33, s32, 10')
        e('s_add_u32 s34, s33, %d' % SCR)
        e('s_sub_u32 s33, s33, 8192')
        e('s_movk_i32 %s, 4096' % s(48 + k))
        sd.L.append('s_cmp_lt_u32 s32, 8\ns_cselect_b32 s33, s34, s33\ns_cselect_b32 %s, 8192, %s' % (s(48 + k), s(48 + k)))
        e('v_lshl_add_u32 %s, v1, 4, s33' % v(64 + k))
    e('v_and_b32 v19, 3, v1')
    e('v_lshlrev_b32 v19, 6, v19')
    e = main
    side = list(sd.L); done = [0]
    def run_side(n=None, upto=None):
        stop = upto if upto is not None else min(len(side), done[0] + n)
        while done[0] < stop:
            e(side[done[0]]); done[0] += 1

    ctok = {}
    def chunk(p, per):
        sl = SLOT * (p % 4)
        e('s_lshl_b32 s3, s43, 7')
        e('s_mul_i32 s35, s43, %d' % (64 * 3456))
        for j in range(4):
            e('s_add_u32 m0, s41, %d' % (sl + 1024 * j))
            if j: e('s_add_u32 s3, s3, 9216')
            e('buffer_load_dwordx4 v8, s[16:19], s3 offen lds')
            run_side(per)
        for j in range(5):
            e('s_add_u32 m0, s42, %d' % (sl + 1024 * j))
            if j == 4: e('s_mov_b32 exec_hi, 0')
            e('buffer_load_dwordx4 %s, s[20:23], s35 offen lds' % v(9 + j))
            if j < 4: run_side(per)
        e('s_mov_b32 exec_hi, -1')
        e('s_add_u32 s43, s43, 1')
        e('s_cmp_eq_u32 s43, 9')
        e('s_cselect_b32 s43, 0, s43')
        ctok[p] = e.vm()
    chunk(0, 0); chunk(1, 0)
    stamp(0)
    def tile144(srd, vregs, soff):
        for j in range(5):
            e('s_add_u32 m0, s34, %d' % (1024 * j))
            if j == 4: e('s_mov_b32 exec_hi, 0')
            e('buffer_load_dwordx4 %s, %s, %s offen lds' % (v(vregs + j), srd, soff))
        e('s_mov_b32 exec_hi, -1')
    def wq_group(lo, n):
        for rnd in range((n + 3) // 4):
            e('s_add_u32 s35, s39, %d' % (lo + 4 * rnd))
            if 4 * rnd + 4 > n: e('s_min_u32 s35, s35, %d' % (lo + n - 1))
            e('s_lshr_b32 s32, s35, 1')
            e('s_add_u32 s32, s32, s27')
            e('s_sub_u32 s33, s32, 9')
            e('s_cmp_ge_u32 s32, 9')
            e('s_cselect_b32 s32, s33, s32')
            e('s_lshl_b32 s32, s32, 1')
            e('s_and_b32 s33, s35, 1')
            e('s_add_u32 s32, s32, s33')
            e('s_mul_i32 s32, s32, %d' % (32 * 3456))
            e('s_mul_i32 s34, s35, 4608')
            e('s_add_u32 s34, s34, %d' % (WQ_LO if lo < 15 else WQ_HI - 15 * 4608))
            tile144('s[20:23]', 24, 's32')
    for p in range(9):
        e.wait_vm(ctok[p])
        e('s_barrier')
        if p in (1, 2, 3, 5, 6): stamp({1: 11, 2: 12, 3: 13, 5: 14, 6: 15}[p])
        if p == 0:
            stamp(2)
        if 't' in opts.get('horder', '') and p == int(opts.get('trig', 2)):
            e('s_or_b32 s3, s39, s2')
            e('s_cmp_ge_u32 s3, 8')
            e('s_cbranch_scc1 L_b_notrig')
            e('s_cmp_lg_u32 s39, 0')
            e('s_cbranch_scc1 L_b_notrig')
            e('s_lshl_b32 s3, s2, 2')
            e('v_mov_b32 v20, s3')
            e('v_mov_b32 v21, 1')
            e('s_mov_b64 exec, 1')
            e('global_store_dword v20, v21, s[12:13] offset:16 sc1')
            e('s_mov_b64 exec, -1')
            e.nvm -= 1
            e.label('L_b_notrig')
        if p <= 6: chunk(p + 2, 7)
        if p == 6:
            run_side(upto=len(side))
            wq_group(15, 3)
        if p == 7: wq_group(0, 7)
        if p == 8: wq_group(7, 8)
    stamp(3)
    e('s_mov_b32 s44, %d' % SPIN)
    e('s_cmp_lg_u32 s39, 0')
    e('s_cbranch_scc1 L_b_cntdone')
    e('s_mov_b64 exec, 15')
    e.label('L_b_cnt')
    e('global_load_dword v5, v19, s[12:13] sc1')
    e('s_sub_u32 s44, s44, 1')
    e('s_cbranch_scc1 L_b_cntdone')
    e('s_waitcnt vmcnt(0)')
    e('v_cmp_gt_u32 vcc, 14, v5')
    e('s_cbranch_vccnz L_b_cnt')
    e.label('L_b_cntdone')
    e('s_mov_b64 exec, -1')
    e('s_waitcnt vmcnt(0) lgkmcnt(0)')
    stamp(4)
    e('s_barrier')
    stamp(5)
    e('s_setprio 2')
    tk = []
    for w in range(4):
        for k in range(4):
            e('ds_read_b128 %s, %s' % (a(16 * w + 4 * k, 4), v(64 + k)))
            if w < 3: e('v_add_u32 %s, %s, %s' % (v(64 + k), s(48 + k), v(64 + k)))
        tk.append(e.lg())
    e('v_mov_b32 v4, s47')
    e('v_mov_b32 v5, 1')
    e('ds_write_b64 v4, v[40:41] offset:760')
    DD = 68
    for w in range(4):
        e.wait_lg(tk[w])
        if w == 3:
            e('s_mov_b64 exec, 1')
            e('ds_add_u32 v55, v5')
            e('s_mov_b64 exec, -1')
        for i in range(2):
            for j in range(2):
                d = DD + 8 * i + 4 * j
                e('v_mfma_f32_16x16x32_bf16 %s, %s, %s, %s' % (v(d, 4), a(16 * w + 4 * i, 4), a(16 * w + 8 + 4 * j, 4), v(d, 4) if w else '0'))
            d = DD + 16 + 4 * i
            e('v_mfma_f32_16x16x32_bf16 %s, %s, v[60:63], %s' % (v(d, 4), a(16 * w + 4 * i, 4), v(d, 4) if w else '0'))
    e('v_lshl_add_u32 v4, v1, 4, s47')
    e('v_mov_b32 v5, 0x7fc07fc0')
    e('v_add_u32 v16, 4096, v15')
    e('v_add_u32 v17, 8192, v15')
    for i in range(2):
        for j in range(3):
            d = DD + 8 * i + 4 * j if j < 2 else DD + 16 + 4 * i
            o = 92 + 2 * (3 * i + j)
            for k in range(2): e('v_cvt_pk_bf16_f32 %s, %s, %s' % (v(o + k), v(d + 2 * k), v(d + 2 * k + 1)))
            for k in range(2): e('v_cndmask_b32 %s, 0, %s, %s' % (v(o + k), v(o + k), s(52 + 4 * i + 2 * k, 2)))
            e('ds_write_b64 %s, %s' % (v(45 + 2 * i + j) if j < 2 else v(49 + i), v(o, 2)))
    e('ds_read_b128 v[68:71], v4')
    e('s_waitcnt lgkmcnt(0)')
    e('v_cmp_eq_u32 vcc, -1, v68')
    e('s_mov_b32 s44, %d' % SPIN)
    e('v_cndmask_b32 v68, v68, v5, vcc')
    e('s_mov_b32 exec_hi, 0xffff')
    e('global_store_dwordx4 v14, v[68:71], s[14:15] sc1')
    e('s_mov_b32 exec_hi, -1')
    stamp(6)
    def wo_block(first, last):
        e('s_add_u32 s35, s39, %d' % first)
        if first + 3 > last: e('s_min_u32 s35, s35, %d' % last)
        e('s_lshr_b32 s32, s35, 1')
        e('s_mul_i32 s32, s32, 72')
        e('s_and_b32 s33, s35, 1')
        e('s_lshl_b32 s33, s33, 5')
        e('s_add_u32 s32, s32, s33')
        e('s_add_u32 s32, s32, 8')
        e('s_mul_i32 s32, s32, 1152')
        e('s_mul_i32 s34, s35, 4608')
        if last < 13:
            e('s_add_u32 s33, s34, %d' % (SCR - 6 * 4608))
            e('s_cmp_ge_u32 s35, 6')
            e('s_cselect_b32 s34, s33, s34')
        else:
            e('s_add_u32 s34, s34, %d' % (WQ_LO - 13 * 4608))
        tile144('s[28:31]', 29, 's32')
    e('s_mov_b32 s44, %d' % SPIN)
    e.label('L_b_lcnt')
    e('ds_read_b32 v4, v55')
    e('s_sub_u32 s44, s44, 1')
    e('s_cbranch_scc1 L_b_lcntdone')
    e('s_waitcnt lgkmcnt(0)')
    e('v_cmp_gt_u32 vcc, 4, v4')
    e('s_cbranch_vccnz L_b_lcnt')
    e.label('L_b_lcntdone')
    e('s_waitcnt lgkmcnt(0)')
    nearly = int(opts.get('woearly', 3))
    for k in range(nearly): wo_block(4 * k, 12)
    e('v_lshlrev_b32 v4, 8, v2')
    e('v_lshlrev_b32 v6, 4, v1')
    e('v_sub_u32 v5, v17, v6')
    e('v_add_u32 v4, v4, v5')
    e('s_mov_b32 s44, %d' % SPIN)
    stamp(7)
    e.label('L_b_gather')
    X = 64
    for b in range(3):
        for i in range(4): e('global_load_dwordx4 %s, %s, s[14:15] offset:%d sc1' % (v(X + 16 * b + 4 * i, 4), v(15 + b), 1024 * i))
    e('s_mov_b64 s[32:33], 0')
    for k in range(12):
        if k % 4 == 0: e('s_waitcnt vmcnt(%d)' % (8 - k))
        e('v_cmp_eq_u32 vcc, -1, %s' % v(X + 4 * k))
        e('s_or_b64 s[32:33], s[32:33], vcc')
    e('s_cmp_eq_u64 s[32:33], 0')
    e('s_cbranch_scc1 L_b_gathered')
    e('s_mov_b64 exec, 0xffff')
    e.label('L_b_kvprobe')
    e('global_load_dword v5, v4, s[14:15] sc1')
    e('s_sub_u32 s44, s44, 1')
    e('s_cbranch_scc1 L_b_gathered')
    e('s_waitcnt vmcnt(0)')
    e('v_cmp_eq_u32 vcc, -1, v5')
    e('s_cbranch_vccnz L_b_kvprobe')
    e('s_mov_b64 exec, -1')
    e('s_branch L_b_gather')
    e.label('L_b_gathered')
    e('s_mov_b64 exec, -1')
    stamp(8)
    for i in range(4):
        for b in range(3):
            e('v_mfma_f32_16x16x32_bf16 %s, v[56:59], %s, %s' % (v(8 + 4 * b, 4), v(X + 16 * b + 4 * i, 4), v(8 + 4 * b, 4) if i else '0'))
    for b in range(3):
        for k in range(2): e('v_cvt_pk_bf16_f32 %s, %s, %s' % (v(20 + 2 * b + k), v(8 + 4 * b + 2 * k), v(8 + 4 * b + 2 * k + 1)))
        e('ds_write_b64 %s, %s' % (v(51 + b), v(20 + 2 * b, 2)))
    for k in range(1, 4): e('ds_write_b64 v54, v[24:25] offset:%d' % (32 * k))
    e('s_setprio 0')
    e('s_waitcnt lgkmcnt(0)')
    stamp(9)
    e('s_barrier')
    for k in range(nearly, 3): wo_block(4 * k, 12)
    e('s_cmp_lg_u32 s39, 0')
    e('s_cbranch_scc1 L_b_wo13')
    wo_block(12, 12)
    e('s_branch L_b_wo16')
    e.label('L_b_wo13')
    wo_block(12, 15)
    e.label('L_b_wo16')
    e('s_cmp_ge_u32 s39, 2')
    e('s_cbranch_scc1 L_b_wodone')
    e('s_mul_i32 s32, s39, %d' % (288 * 1152))
    e('s_mul_i32 s34, s39, 4608')
    e('s_add_u32 s34, s34, %d' % (WQ_LO + 3 * 4608))
    tile144('s[28:31]', 34, 's32')
    e.label('L_b_wodone')
    e('s_waitcnt vmcnt(0)')
    stamp(10)
    e('s_barrier')
    e('s_endpgm')


def role_h(e, opts):
    e.label('L_roleH')
    e('s_load_dwordx4 s[4:7], s[0:1], 80')
    e('s_load_dwordx4 s[12:15], s[0:1], 104')
    e('s_getpc_b64 s[8:9]')
    e.label('L_h_pc')
    e('s_sub_u32 s8, s8, L_h_pc-KERNEL_START')
    e('s_subb_u32 s9, s9, 0')
    e('v_lshlrev_b32 v1, 7, v0')
    e('v_cmp_gt_u32 vcc, KERNEL_END-KERNEL_START, v1')
    e('s_and_saveexec_b64 s[10:11], vcc')
    e('s_cbranch_execz L_h_nocode')
    if int(opts.get('pfcode', 1)): e('global_load_dword v2, v1, s[8:9]')
    e.label('L_h_nocode')
    e('s_mov_b64 exec, s[10:11]')
    e('s_sub_u32 s26, s2, 224')
    e('s_sub_u32 s27, s24, 8')
    e('s_mul_i32 s27, s27, 6')
    e('s_add_u32 s27, s27, s25')
    e('s_add_u32 s27, s27, 30')
    e('s_cmp_ge_u32 s24, 12')
    e('s_cselect_b32 s26, s26, s27')
    e('s_mul_i32 s27, s26, 49152')
    e('v_lshl_add_u32 v4, v0, 4, s27')
    for k in range(4): e('v_mov_b32 %s, -1' % v(8 + k))
    e('s_and_b32 s24, s24, 3')
    e('s_mul_i32 s24, s24, 144')
    e('s_and_b32 s25, s25, 1')
    e('s_lshl_b32 s25, s25, 9')
    for k in range(2):
        e('v_add_u32 v16, %d, v0' % (512 * k))
        e('v_min_u32 v16, 719, v16')
        div_small(e, 5, 6, 16, 5, 7)
        e('v_add_u32 v5, s24, v5')
        e('v_lshl_add_u32 v6, v6, 7, s25')
        e('v_mul_u32_u24 v7, 3456, v5')
        e('v_mul_u32_u24 v5, 1152, v5')
        e('v_add_u32 %s, v7, v6' % v(14 + k))
        e('v_add_u32 %s, v5, v6' % v(12 + k))
    order = opts.get('horder', 'wqwc')
    e('s_waitcnt lgkmcnt(0)')
    for ch in order:
        if ch == 'w': e('s_waitcnt vmcnt(0)')
        if ch == 's':
            e('s_mov_b32 s28, %d' % int(opts.get('hspin', 100)))
            e.label('L_h_spin')
            e('s_sleep 1')
            e('s_sub_u32 s28, s28, 1')
            e('s_cbranch_scc0 L_h_spin')
        if ch == 't':
            e('s_and_b32 s27, s2, 7')
            e('s_lshl_b32 s27, s27, 2')
            e('v_mov_b32 v5, s27')
            e('s_mov_b32 s28, %d' % SPIN)
            e('v_readfirstlane_b32 s29, v0')
            e('s_cmp_lg_u32 s29, 0')
            e('s_cbranch_scc1 L_h_trigd')
            e('s_mov_b64 exec, 1')
            e.label('L_h_trig')
            e('global_load_dword v6, v5, s[12:13] offset:16 sc1')
            e('s_sub_u32 s28, s28, 1')
            e('s_cbranch_scc1 L_h_trigd')
            e('s_waitcnt vmcnt(0)')
            e('v_cmp_eq_u32 vcc, 0, v6')
            e('s_cbranch_vccnz L_h_trig')
            e.label('L_h_trigd')
            e('s_mov_b64 exec, -1')
            e('s_barrier')
        if ch == 'q':
            for k in range(2): e('global_load_dword %s, %s, s[4:5]' % (v(16 + k), v(14 + k)))
        if ch == 'o':
            for k in range(2): e('global_load_dword %s, %s, s[6:7]' % (v(18 + k), v(12 + k)))
        if ch == 'c':
            for k in range(6):
                e('global_store_dwordx4 v4, v[8:11], s[14:15] sc1')
                if k < 5: e('v_add_u32 v4, 8192, v4')
    e('s_and_b32 s26, s26, 3')
    e('s_lshl_b32 s26, s26, 6')
    e('v_mov_b32 v5, s26')
    e('v_mov_b32 v6, 1')
    e('v_cmp_eq_u32 vcc, 0, v0')
    e('s_waitcnt vmcnt(0)')
    e('s_barrier')
    e('s_and_saveexec_b64 s[10:11], vcc')
    e('s_cbranch_execz L_h_noadd')
    e('global_atomic_add v5, v6, s[12:13] sc1')
    e.label('L_h_noadd')
    e('s_mov_b64 exec, s[10:11]')
    if 'o' not in order:
        for k in range(2): e('global_load_dword %s, %s, s[6:7]' % (v(18 + k), v(12 + k)))
    e('s_endpgm')
```

```python
import re

TRANS = ('v_exp_f32', 'v_log_f32', 'v_rcp_f32', 'v_rsq_f32', 'v_sqrt_f32', 'v_sin_f32', 'v_cos_f32', 'v_rcp_iflag_f32')

def regs_of(tok):
    tok = tok.strip()
    neg = tok.lstrip('-')
    if neg.startswith('abs(') or neg.startswith('|'):
        neg = neg.replace('abs(', '').replace(')', '').replace('|', '')
    m = re.fullmatch(r'([vas])(\d+)', neg)
    if m: return {(m.group(1), int(m.group(2)))}
    m = re.fullmatch(r'([vas])\[(\d+):(\d+)\]', neg)
    if m: return {(m.group(1), i) for i in range(int(m.group(2)), int(m.group(3)) + 1)}
    if neg == 'vcc': return {('s', 'vcc_lo'), ('s', 'vcc_hi')}
    if neg in ('vcc_lo', 'vcc_hi'): return {('s', neg)}
    if neg == 'exec': return {('s', 'exec_lo'), ('s', 'exec_hi')}
    if neg in ('exec_lo', 'exec_hi'): return {('s', neg)}
    if neg == 'm0': return {('s', 'm0')}
    return set()

class Ins:
    def __init__(self, text):
        self.text = text
        t = text.split(';')[0].strip()
        self.label = t.endswith(':')
        self.op = t.split()[0] if t else ''
        rest = t[len(self.op):].strip()
        ops = [x.strip() for x in re.split(r',(?![^\[]*\])', rest)] if rest else []
        if ops:
            last = ops[-1].split()
            ops[-1] = last[0] if last else ''
            self.mods = ' '.join(last[1:])
        else:
            self.mods = ''
        self.ops = ops
        op = self.op
        base = re.sub(r'_(e32|e64|dpp|sdwa)$', '', op)
        self.base = base
        self.is_mfma = op.startswith('v_mfma')
        self.is_valu = op.startswith('v_') and not self.is_mfma
        self.is_trans = base in TRANS
        self.is_ds = op.startswith('ds_')
        self.is_vmem = op.startswith(('buffer_', 'global_', 'flat_'))
        self.is_salu = op.startswith('s_')
        self.w = set(); self.r = set()
        R = [regs_of(x) for x in ops]
        if self.label or not op or op.startswith('.'):
            pass
        elif self.is_mfma:
            self.w = R[0]; self.a = R[1]; self.b = R[2]; self.c = R[3]; self.r = R[1] | R[2] | R[3]
            self.passes = 8 if '32x32' in op else 4
        elif self.is_valu:
            if base.startswith('v_cmp'):
                self.w = R[0]; self.r = set().union(*R[1:])
            elif base in ('v_add_co_u32', 'v_sub_co_u32', 'v_addc_co_u32', 'v_subb_co_u32', 'v_mad_u64_u32', 'v_div_scale_f32'):
                self.w = R[0] | R[1]; self.r = set().union(*R[2:])
            elif base in ('v_permlane32_swap_b32', 'v_permlane16_swap_b32', 'v_swap_b32'):
                self.w = R[0] | R[1]; self.r = R[0] | R[1]
            elif base == 'v_nop':
                pass
            else:
                self.w = R[0]; self.r = set().union(*R[1:]) if len(R) > 1 else set()
                if base in ('v_fmac_f32', 'v_writelane_b32', 'v_dot2c_f32_bf16', 'v_pk_fmac_f16'): self.r |= R[0]
        elif self.is_ds:
            if base.startswith(('ds_read', 'ds_bpermute', 'ds_permute', 'ds_swizzle')) or '_rtn' in base:
                self.w = R[0]; self.r = set().union(*R[1:]) if len(R) > 1 else set()
            else:
                self.r = set().union(*R)
            if 'addtid' in base: self.r |= {('s', 'm0')}
        elif self.is_vmem:
            if ' lds' in (' ' + self.mods + ' ').replace(' lds ', ' lds '):
                pass
            mods = self.mods.split()
            self.lds = 'lds' in mods or 'load_lds' in base
            if self.lds:
                self.r = set().union(*R) | {('s', 'm0')}
            elif '_load' in base or ('atomic' in base and 'sc0' in mods):
                self.w = R[0]; self.r = set().union(*R[1:])
                if 'atomic' in base and base.startswith('buffer'): self.r |= R[0]
            elif base in ('buffer_wbl2', 'buffer_inv'):
                pass
            else:
                self.r = set().union(*R)
            self.wide_store = ('store' in base and ('x3' in base or 'x4' in base))
            if self.wide_store:
                self.data = R[0] if base.startswith('buffer') else R[1]
        elif self.is_salu:
            if base in ('s_waitcnt', 's_barrier', 's_nop', 's_endpgm', 's_branch', 's_setprio', 's_sleep') or base.startswith('s_cbranch'):
                pass
            elif base.startswith('s_cmp') or base.startswith('s_bitcmp'):
                self.r = set().union(*R)
            elif 'saveexec' in base:
                self.w = R[0] | regs_of('exec'); self.r = set().union(*R[1:]) | regs_of('exec')
            else:
                self.w = R[0]; self.r = set().union(*R[1:]) if len(R) > 1 else set()
        self.states = 0 if (self.label or not op or op.startswith('.')) else 1
        if base == 's_nop': self.states = int(ops[0], 0) + 1

def vec(s): return {x for x in s if x[0] in 'va'}
def sca(s): return {x for x in s if x[0] == 's'}

def need(p, c):
    n = 0
    if p.is_valu:
        wv = vec(p.w); ws = sca(p.w)
        if p.is_trans and c.is_valu and not c.is_trans and (wv & c.r): n = max(n, 1)
        if c.is_mfma and (wv & c.r): n = max(n, 2)
        if c.base in ('v_readfirstlane_b32', 'v_readlane_b32') and (wv & c.r): n = max(n, 1)
        if c.base.startswith('v_permlane') and (wv & c.r): n = max(n, 2)
        if c.is_valu and 'dpp' in (c.op + c.mods) or (c.is_valu and ('row_' in c.mods or 'quad_perm' in c.mods)):
            if wv & c.r: n = max(n, 2)
        if ws:
            if c.is_vmem and (ws & c.r): n = max(n, 5)
            if c.is_valu and (ws & c.r):
                n = max(n, 4 if c.base in ('v_readlane_b32', 'v_writelane_b32') else 2)
            if c.is_salu and (ws & c.r): n = max(n, 1)
            if c.base.startswith('s_cbranch_vcc') and (ws & regs_of('vcc')): n = max(n, 1)
    if p.is_salu and ('s', 'm0') in p.w and (c.is_vmem or c.is_ds) and ('s', 'm0') in c.r: n = max(n, 1)
    if p.is_mfma:
        big = 12 if p.passes == 8 else 8
        if c.is_mfma:
            if p.w & (c.a | c.b): n = max(n, big)
            if p.w & c.c:
                if not (p.w == c.c and p.passes == c.passes): n = max(n, 10 if p.passes == 8 else 6)
            elif p.w & c.w: n = max(n, 10 if p.passes == 8 else 6)
        elif c.is_valu or c.is_ds or c.is_vmem:
            if p.w & (c.r | c.w): n = max(n, big)
            if c.is_valu and (p.c & c.w): n = max(n, 7 if p.passes == 8 else 3)
    if p.is_vmem and getattr(p, 'wide_store', False) and (p.data & c.w):
        n = max(n, 2 if c.is_valu else 1)
    return n

def pad_hazards(lines, window=24):
    ins = [Ins(l) for l in lines]
    labels = {i.op[:-1]: k for k, i in enumerate(ins) if i.label}
    out = []
    def required(hist, c):
        d = 0; req = 0
        for p in reversed(hist[-window:]):
            n = need(p, c)
            if n > d: req = max(req, n - d)
            d += p.states
            if d >= 20: break
        return req
    added = 0
    for k, c in enumerate(ins):
        if c.states:
            r = required(out, c)
            if r:
                out.append(Ins('s_nop %d' % (r - 1))); added += r
        if c.base == 's_branch' or c.base.startswith('s_cbranch'):
            tgt = labels.get(c.ops[0])
            if tgt is not None:
                hist = list(out) + [c]
                extra = 0; d = 0
                sim = list(hist)
                for t in ins[tgt:tgt + window]:
                    if t.states:
                        r = required(sim, t)
                        if r: extra = max(extra, r)
                    sim.append(t)
                    if t.base == 's_branch' or t.base == 's_endpgm': break
                if extra:
                    out.append(Ins('s_nop %d' % (extra - 1))); added += extra
        out.append(c)
    return [i.text for i in out], added

class Asm:
    def __init__(self):
        self.L = []; self.nvm = 0; self.nlg = 0
    def __call__(self, s):
        for l in s.split('\n'):
            l = l.strip()
            if not l: continue
            self.L.append(l)
            op = l.split()[0]
            if op.startswith(('buffer_', 'global_')) and op not in ('buffer_wbl2', 'buffer_inv'): self.nvm += 1
            elif op.startswith('ds_'): self.nlg += 1
        return self
    def vm(self):  return self.nvm
    def lg(self):  return self.nlg
    def wait_vm(self, tok):
        n = self.nvm - tok
        assert n >= 0
        self('s_waitcnt vmcnt(%d)' % min(n, 63))
    def wait_lg(self, tok):
        n = self.nlg - tok
        assert n >= 0
        self('s_waitcnt lgkmcnt(%d)' % min(n, 15))
    def label(self, n): self.L.append(n + ':')
    def section(self, name, jump=True):
        if not hasattr(self, 'secs'): self.secs = {'head': self.L}
        if jump: self.L.append('s_branch L_sec_%s' % name)
        self.L = self.secs.setdefault(name, [])
        if jump: self.L.append('L_sec_%s:' % name)

def v(i, n=1): return 'v%d' % i if n == 1 else 'v[%d:%d]' % (i, i + n - 1)
def a(i, n=1): return 'a%d' % i if n == 1 else 'a[%d:%d]' % (i, i + n - 1)
def s(i, n=1): return 's%d' % i if n == 1 else 's[%d:%d]' % (i, i + n - 1)
```

```python
from asmlib import *
import math, struct

def f2u(x): return struct.unpack('<I', struct.pack('<f', x))[0]
LOG2E = f2u(math.log2(math.e)); INV2PI = f2u(1.0 / (2 * math.pi))

A_WORK = 64; A_WS = 8960
A_CMP = A_WORK + 8 * A_WS
CMPS = 3584
A_UT = A_CMP + 8 * CMPS
A_Y1 = A_UT + 8 * 4608
A_END = A_Y1 + 8 * 3072
assert A_END <= 163840
ROWB = 272
CS = 2240

def cmul(e, dst, x, y, t):
    return [lambda: e('v_pk_mul_f32 %s, %s, %s op_sel_hi:[1,0]' % (v(t, 2), v(x, 2), v(y, 2))),
            lambda: e('v_pk_fma_f32 %s, %s, %s, %s op_sel:[1,1,0] op_sel_hi:[0,1,1] neg_lo:[0,1,0]' % (v(dst, 2), v(x, 2), v(y, 2), v(t, 2)))]

def interleave(*streams):
    streams = [list(x) for x in streams]
    while any(streams):
        for st in streams:
            if st: st.pop(0)()

def role_a(e, stamp=None, opts=None):
    opts = opts or {}
    late = int(opts.get('ulate', 1))
    stamp = stamp or (lambda i: None)
    e.label('L_roleA')
    e('s_cmp_ge_u32 s2, 256')
    e('s_cbranch_scc1 L_exit')
    e('s_sub_u32 s24, s2, 128')
    e('s_and_b32 s25, s24, 7')
    e('s_lshr_b32 s24, s24, 3')
    e('s_lshr_b32 s27, s24, 2')
    e('s_lshl_b32 s27, s27, 3')
    e('s_add_u32 s27, s27, s25')
    e('s_cmp_ge_u32 s27, 18')
    e('s_cbranch_scc1 L_roleH')
    e('s_mov_b32 s41, s24')
    e('s_mov_b32 s42, s25')
    e('s_and_b32 s26, s24, 3')
    e('s_lshl_b32 s27, s25, 2')
    e('s_add_u32 s27, s27, 56')
    e('s_lshl_b32 s25, s25, 3')
    e('s_cmp_lt_u32 s24, 8')
    e('s_cselect_b32 s25, s25, s27')
    e('s_add_u32 s25, s25, s24')
    e('v_lshrrev_b32 v10, 6, v0')
    e('v_and_b32 v1, 63, v0')
    e('v_readfirstlane_b32 s24, v10')
    e('s_mov_b32 s30, 0x05040100')
    e('s_mov_b32 s31, 0x07060302')
    e('s_lshl_b32 s28, s25, 3')
    e('s_add_u32 s28, s28, s24')
    e('s_lshl_b32 s29, s28, 8')
    e('v_lshl_add_u32 v10, v1, 2, s29')
    e('s_lshl_b32 s29, s28, 1')
    e('v_mov_b32 v11, s29')
    e('v_lshlrev_b32 v12, 2, v0')
    e('v_mul_u32_u24 v13, 1152, v12')
    e('s_lshl_b32 s29, s25, 4')
    e('v_add_u32 v13, s29, v13')
    e('v_mul_u32_u24 v14, 4608, v0')
    e('v_add_u32 v14, s29, v14')
    e('s_mul_i32 s27, s24, %d' % A_WS)
    e('s_add_u32 s27, s27, %d' % A_WORK)
    e('s_mov_b32 m0, s27')
    e('s_waitcnt lgkmcnt(0)')
    e('global_load_ushort v8, v11, s[18:19]')
    for k in range(6):
        e('global_load_dword %s, v10, %s' % (v(2 + k), s(6 + 2 * k, 2)))
    e('global_load_ushort v9, v11, s[44:45]')
    t_par = e.vm()
    if int(opts.get('atouch', 2)):
        import gen_b
        gen_b.first_touch(e, 's41', 's42', 36, 10)
    def uload(slot):
        for sub in range(4):
            if sub < 3:
                e('s_cmp_lg_u32 s26, %d' % sub)
                e('s_cbranch_scc1 L_a_u%d_%d' % (slot, sub + 1))
            i = (slot + sub) & 3
            e('global_load_dwordx4 %s, v13, s[4:5] offset:%d' % (v(16 + 4 * i, 4), 1152 * i))
            if sub < 3:
                e('s_branch L_a_udone%d' % slot)
                e.label('L_a_u%d_%d' % (slot, sub + 1))
                e.nvm -= 1
        e.label('L_a_udone%d' % slot)
    stamp(0)
    e.section('amain')
    e('s_mul_i32 s33, s24, 4608')
    e('s_add_u32 s33, s33, %d' % A_UT)
    e('v_lshl_add_u32 v38, v1, 3, s33')
    e('v_mov_b32 v36, 0')
    e('v_mov_b32 v37, 0')
    e('ds_write_b64 v38, v[36:37]')
    e('v_and_b32 v36, 31, v1')
    e('v_lshrrev_b32 v37, 5, v1')
    e('v_mul_u32_u24 v86, %d, v36' % ROWB)
    e('v_lshl_add_u32 v86, v37, 4, v86')
    e('v_add_u32 v86, s27, v86')
    for i in range(16): e('v_mov_b32 %s, 0' % v(96 + i))
    e('v_and_b32 v36, 15, v1')
    e('v_lshrrev_b32 v37, 4, v1')
    e('v_lshlrev_b32 v37, 3, v37')
    e('s_movk_i32 s36, 0x3f80')
    for m, (bits, ar) in enumerate(((0x1ff0, 136), (0xfe0, 140))):
        e('v_mov_b32 v38, 0x%x' % bits)
        e('v_lshlrev_b32 v38, v36, v38')
        e('v_lshrrev_b32 v38, v37, v38')
        for k in range(4):
            e('v_bfe_u32 v39, v38, %d, 1' % (2 * k))
            e('v_bfe_u32 v40, v38, %d, 1' % (2 * k + 1))
            e('v_lshl_or_b32 v39, v40, 16, v39')
            e('v_mul_u32_u24 v39, s36, v39')
            e('v_accvgpr_write_b32 %s, v39' % a(ar + k))
    e.wait_vm(t_par)
    stamp(1)
    if int(opts.get('atouch', 2)) > 1: gen_b.first_touch(e, 's41', 's42', 36, 11, 5)
    e('v_lshlrev_b32 v8, 16, v8')
    e('v_mul_f32 v8, 0x%08x, v8' % LOG2E)
    e('v_exp_f32 v8, v8')
    e('v_lshlrev_b32 v9, 16, v9')
    e('v_cvt_pk_bf16_f32 v8, v8, v8')
    e('v_cmp_eq_u32 vcc, 0, v1')
    e('v_lshlrev_b32 v32, 16, v8')
    e('v_cndmask_b32 v35, 0, v9, vcc')
    e('v_mul_f32 v33, 0x%08x, v32' % LOG2E)
    e('v_mul_f32 v34, 0x%08x, v32' % INV2PI)
    e('s_mov_b32 s32, 2')
    e.label('L_a_pass')
    stamp(8)
    if not late: uload(0)
    stamp(9)
    for k in range(6): e('v_lshlrev_b32 %s, 16, %s' % (v(36 + k), v(2 + k)))
    for k in range(6): e('v_lshrrev_b32 %s, 16, %s' % (v(2 + k), v(2 + k)))
    e('v_mul_f32 v36, v33, v36')
    e('v_mul_f32 v37, v34, v37')
    e('v_mul_f32 v38, v32, v38')
    e('v_mul_f32 v39, v32, v39')
    e('v_mul_f32 v70, 0x43800000, v36')
    e('v_mul_f32 v71, 0x43800000, v37')
    e('v_mul_f32 v72, 0x41000000, v36')
    e('v_mul_f32 v73, 0x41000000, v37')
    e('v_fract_f32 v71, v71')
    e('v_fract_f32 v37, v37')
    e('v_fract_f32 v73, v73')
    e('v_exp_f32 v70, v70')
    e('v_cos_f32 v48, v71')
    e('v_sin_f32 v49, v71')
    e('v_exp_f32 v36, v36')
    e('v_cos_f32 v44, v37')
    e('v_sin_f32 v45, v37')
    e('v_exp_f32 v72, v72')
    e('v_cos_f32 v46, v73')
    e('v_sin_f32 v47, v73')
    if int(opts.get('vop2', 0)):
        def cm(d, x, y, ny):
            return [lambda: e('v_mul_f32 %s, %s, %s' % (v(d), v(x), v(y))),
                    lambda: e('v_mul_f32 %s, %s, %s' % (v(d + 1), v(x + 1), v(y))),
                    lambda: e('v_fmac_f32 %s, %s, %s' % (v(d), v(x + 1), v(ny))),
                    lambda: e('v_fmac_f32 %s, %s, %s' % (v(d + 1), v(x), v(y + 1)))]
        neg = lambda d, x: [lambda: e('v_sub_f32 %s, 0, %s' % (v(d), v(x)))]
        e('v_sub_f32 v74, 0, v41')
        for f in cm(42, 38, 40, 74): f()
        e('v_mul_f32 v48, v70, v48')
        e('v_mul_f32 v49, v70, v49')
        e('v_mul_f32 v44, v36, v44')
        e('v_mul_f32 v45, v36, v45')
        e('v_mul_f32 v46, v72, v46')
        e('v_mul_f32 v47, v72, v47')
        e('v_sub_f32 v36, 0, v49')
        e('v_sub_f32 v37, 0, v45')
        e('v_sub_f32 v38, 0, v47')
        cv = {}
        def put(src, row, ng, ch=0):
            cv[ch] = cv.get(ch, 0) + 1
            r = 78 + 2 * ch + (cv[ch] & 1)
            return [lambda: e('v_cvt_pk_bf16_f32 %s, %s, %s%s' % (v(r), v(src), '-' if ng else '', v(src + 1))),
                    lambda: e('ds_write_addtid_b32 %s offset:%d' % (v(r), row * ROWB))]
        chA = put(42, 0, True); src = 42
        for k, r in enumerate([8, 12, 14, 16, 17, 18, 19, 20]):
            d = 50 + 2 * (k & 1)
            chA += cm(d, src, 48, 36) + put(d, r, True); src = d
        pB = lambda x, r: put(x, r, True, 1)
        chB = cm(60, 44, 44, 37) + neg(39, 61) + cm(68, 42, 44, 37) + pB(68, 1)
        chB += cm(62, 42, 60, 39) + pB(62, 2) + cm(70, 68, 60, 39) + pB(70, 3)
        chB += cm(64, 62, 60, 39) + pB(64, 4) + cm(68, 70, 60, 39) + pB(68, 5)
        chB += cm(66, 64, 60, 39) + pB(66, 6) + cm(70, 68, 60, 39) + pB(70, 7)
        chB += cm(68, 64, 48, 36) + pB(68, 10) + cm(70, 62, 48, 36) + pB(70, 9)
        chB += cm(64, 68, 48, 36) + pB(64, 13) + cm(70, 66, 48, 36) + pB(70, 11)
        chB += cm(68, 64, 48, 36) + pB(68, 15)
        chC = cm(54, 46, 46, 38) + cm(56, 54, 46, 38) + neg(40, 55) + cm(58, 54, 54, 40) + neg(41, 59)
        stamp(10)
        interleave(chA, chB, chC)
        stamp(11)
        uload(1)
        stamp(12)
        for k in range(8): e('ds_read_b128 %s, v86 offset:%d' % (a(4 * k, 4), 32 * k))
        e('v_mov_b32 v52, 0x3f80')
        e('ds_write_addtid_b32 v52')
        for f in put(46, 1, False) + put(54, 2, False) + put(56, 3, False) + put(58, 4, False): f()
        regs = {0: (58, 50, 52), 1: (46, 60, 62), 2: (54, 64, 66), 3: (56, 68, 70)}
        chains = []
        for c in (1, 2, 3, 0):
            st = []
            src, r0, r1 = regs[c]
            for j in range(5, 32):
                if j % 4 != c: continue
                st += cm(r0, src, 58, 41) + put(r0, j, False, c); src = r0; r0, r1 = r1, r0
            chains.append(st)
        interleave(*chains)
    else:
        for f in cmul(e, 42, 38, 40, 74): f()
        e('v_mul_f32 v48, v70, v48')
        e('v_mul_f32 v49, v70, v49')
        e('v_mul_f32 v44, v36, v44')
        e('v_mul_f32 v45, v36, v45')
        e('v_mul_f32 v46, v72, v46')
        e('v_mul_f32 v47, v72, v47')
        cv = {}
        def put(src, row, neg, ch=0):
            cv[ch] = cv.get(ch, 0) + 1
            r = 78 + 2 * ch + (cv[ch] & 1)
            return [lambda: e('v_cvt_pk_bf16_f32 %s, %s, %s%s' % (v(r), v(src), '-' if neg else '', v(src + 1))),
                    lambda: e('ds_write_addtid_b32 %s offset:%d' % (v(r), row * ROWB))]
        chA = put(42, 0, True)
        rowsA = [8, 12, 14, 16, 17, 18, 19, 20]
        src = 42
        for r in rowsA:
            chA += cmul(e, 50, src, 48, 70) + put(50, r, True); src = 50
        putB = lambda x, r, n: put(x, r, n, 1)
        chB = cmul(e, 60, 44, 44, 72) + cmul(e, 68, 42, 44, 74) + putB(68, 1, True)
        chB += cmul(e, 62, 42, 60, 72) + putB(62, 2, True) + cmul(e, 68, 68, 60, 74) + putB(68, 3, True)
        chB += cmul(e, 64, 62, 60, 72) + putB(64, 4, True) + cmul(e, 68, 68, 60, 74) + putB(68, 5, True)
        chB += cmul(e, 66, 64, 60, 72) + putB(66, 6, True) + cmul(e, 68, 68, 60, 74) + putB(68, 7, True)
        chB += cmul(e, 64, 64, 48, 72) + putB(64, 10, True) + cmul(e, 62, 62, 48, 74) + putB(62, 9, True)
        chB += cmul(e, 64, 64, 48, 72) + putB(64, 13, True) + cmul(e, 66, 66, 48, 74) + putB(66, 11, True)
        chB += cmul(e, 64, 64, 48, 72) + putB(64, 15, True)
        chC = cmul(e, 54, 46, 46, 76) + cmul(e, 56, 54, 46, 76) + cmul(e, 58, 54, 54, 76)
        stamp(10)
        interleave(chA, chB, chC)
        stamp(11)
        uload(1)
        stamp(12)
        for k in range(8): e('ds_read_b128 %s, v86 offset:%d' % (a(4 * k, 4), 32 * k))
        e('v_mov_b32 v52, 0x3f80')
        e('ds_write_addtid_b32 v52')
        for f in put(46, 1, False) + put(54, 2, False) + put(56, 3, False) + put(58, 4, False): f()
        regs = {0: (58, 50), 1: (46, 52), 2: (54, 54), 3: (56, 56)}
        chains = []
        for c in (1, 2, 3, 0):
            st = []
            src, run = regs[c]
            for j in range(5, 32):
                if j % 4 != c: continue
                st += cmul(e, run, src, 58, 70 + 2 * c) + put(run, j, False, c); src = run
            chains.append(st)
        interleave(*chains)
    stamp(13)
    if late: uload(0)
    e('s_add_u32 s26, s26, 2')
    e('s_and_b32 s26, s26, 3')
    t0 = e.lg()
    for k in range(8): e('ds_read_b128 %s, v86 offset:%d' % (a(32 + 4 * k, 4), 32 * k))
    for k in range(8):
        e.wait_lg(t0 + k + 1)
        e('v_mfma_f32_32x32x16_bf16 v[96:111], %s, %s, v[96:111]' % (a(4 * k, 4), a(32 + 4 * k, 4)))
    e('s_sub_u32 s32, s32, 1')
    e('s_cmp_lg_u32 s32, 0')
    e('s_cbranch_scc1 L_a_pass')
    stamp(2)
    e('s_mul_i32 s34, s24, %d' % CMPS)
    e('s_add_u32 s34, s34, %d' % A_CMP)
    e('v_and_b32 v36, 31, v1')
    e('v_lshrrev_b32 v37, 5, v1')
    e('v_cmp_eq_u32 vcc, 0, v37')
    e('v_lshlrev_b32 v38, 5, v36')
    e('v_lshl_add_u32 v38, v37, 4, v38')
    e('v_add_u32 v38, s34, v38')
    e('v_lshlrev_b32 v39, 4, v36')
    e('v_add_u32 v39, 1024, v39')
    e('v_lshlrev_b32 v40, 3, v36')
    e('v_add_u32 v40, 1536, v40')
    e('v_cndmask_b32 v41, v40, v39, vcc')
    e('v_add_u32 v39, 8, v39')
    e('v_add_u32 v40, 256, v40')
    e('v_cndmask_b32 v42, v40, v39, vcc')
    e('v_add_u32 v41, s34, v41')
    e('v_add_u32 v42, s34, v42')
    e('v_lshlrev_b32 v43, 9, v37')
    e('v_lshl_add_u32 v43, v36, 2, v43')
    e('s_add_u32 s35, s34, 2048')
    e('v_add_u32 v43, s35, v43')
    e('v_lshl_add_u32 v44, v1, 3, s34')
    e('v_lshl_add_u32 v45, v1, 4, s34')
    e('v_cmp_eq_u32 vcc, 0, v1')
    e('v_mov_b32 v51, s34')
    e('v_cndmask_b32 v46, 0, -4, vcc')
    e('v_add_u32 v46, v46, v44')
    e('v_subrev_u32 v47, 16, v45')
    e('v_cndmask_b32 v47, v47, v45, vcc')
    e('v_lshlrev_b32 v49, 4, v1')
    e('v_sub_u32 v49, s27, v49')
    e('v_lshlrev_b32 v50, 3, v1')
    e('v_sub_u32 v50, s27, v50')
    e('v_add_u32 v49, 1072, v49')
    e('v_add_u32 v50, 1592, v50')
    e('v_lshlrev_b32 v48, 2, v1')
    e('v_sub_u32 v48, s34, v48')
    e('v_add_u32 v48, %d, v48' % (3072 + 252))
    e('ds_write_b128 v38, v[96:99]')
    e('ds_write_b64 v41, v[100:101]')
    e('ds_write_b64 v42, v[102:103]')
    e('ds_write2_b32 v43, v104, v105 offset0:0 offset1:32')
    e('ds_write2_b32 v43, v106, v107 offset0:64 offset1:96')
    t0 = e.lg()
    e('ds_read_b64 v[56:57], v44 offset:1536')
    e('ds_read_b32 v58, v44 offset:1544')
    e('ds_read_b32 v59, v46 offset:1536')
    e('ds_read_b32 v55, v46 offset:1532')
    e('ds_read_b64 v[60:61], v44 offset:1024')
    e('ds_read_b32 v62, v44 offset:1032')
    e('ds_read_b32 v63, v46 offset:1024')
    e('ds_read2_b32 v[68:69], v46 offset0:254 offset1:255')
    e('ds_read_b128 v[64:67], v45')
    e('ds_read_b128 v[72:75], v47')
    e('ds_read_b32 v52, v44 offset:2052')
    e('ds_read_b32 v53, v44 offset:2056')
    e('ds_read_b32 v70, v51 offset:2044')
    e('ds_read_b32 v71, v51 offset:2048')
    e('v_and_b32 v36, 7, v1')
    e('v_bfe_u32 v37, v1, 3, 2')
    e('v_mul_u32_u24 v37, %d, v37' % CS)
    e('v_min_u32 v36, 4, v36')
    e('v_lshlrev_b32 v38, 4, v36')
    e('v_cmp_lt_u32 s[36:37], 2, v36')
    e('v_add_u32 v39, %d, v38' % (2112 - 48))
    e('v_cndmask_b32 v38, v38, v39, s[36:37]')
    e('v_add3_u32 v36, v38, v37, s27')
    for k in range(4): e('v_mov_b32 %s, 0' % v(76 + k))
    e('ds_write_b128 v36, v[76:79]')
    e('v_and_b32 v36, 3, v1')
    e('v_lshl_add_u32 v37, v36, 4, s34')
    e('ds_write_b128 v37, v[76:79] offset:%d' % (3072 + 256))
    e('v_bfe_u32 v37, v1, 2, 2')
    e('v_lshlrev_b32 v38, 1, v36')
    e('v_sub_u32 v38, v37, v38')
    e('v_mul_u32_u24 v37, %d, v37' % CS)
    e('v_lshl_add_u32 v37, v36, 2, v37')
    e('v_add_u32 v37, s27, v37')
    e('v_cmp_lt_i32 s[36:37], 0, v38')
    e('v_cmp_lt_i32 s[38:39], 1, v38')
    e('v_cmp_eq_i32 s[40:41], -6, v38')
    def pk(d, x, y): e('v_cvt_pk_bf16_f32 %s, %s, %s' % (v(d), v(x), v(y)))
    def quad(base, pairs):
        for k, (x, y) in enumerate(pairs): pk(base + k, x, y)
    e.wait_lg(t0 + 4)
    A_, B_, C_, A2, D_ = 56, 57, 58, 59, 55
    quad(80, [(C_, C_), (B_, B_), (B_, A_), (A_, A_)]); e('ds_write_b128 v49, v[80:83] offset:%d' % (3 * CS))
    quad(84, [(C_, B_), (B_, B_), (A_, A_), (A_, A_)]); e('ds_write_b128 v49, v[84:87] offset:%d' % (2 * CS))
    quad(88, [(B_, B_), (B_, A_), (A_, A_), (A_, A2)]); e('ds_write_b128 v49, v[88:91] offset:%d' % CS)
    quad(92, [(B_, B_), (A_, A_), (A_, A_), (A2, D_)]); e('ds_write_b128 v49, v[92:95]')
    e.wait_lg(t0 + 14)
    A_, B_, C_, A1, E_, F_ = 60, 61, 62, 63, 69, 68
    e('v_add_f32 v64, v64, v35')
    for k in (73, 74, 75): e('v_cndmask_b32 %s, %s, v76, vcc' % (v(k), v(k)))
    quad(80, [(C_, B_), (A_, A_)]); e('ds_write_b64 v50, v[80:81] offset:%d' % (3 * CS))
    quad(82, [(B_, A_), (A_, A1)]); e('ds_write_b64 v50, v[82:83] offset:%d' % (2 * CS))
    quad(84, [(A_, A_), (A1, E_)]); e('ds_write_b64 v50, v[84:85] offset:%d' % CS)
    quad(86, [(A_, A1), (E_, F_)]); e('ds_write_b64 v50, v[86:87]')
    quad(88, [(67, 66), (65, 64)]); e('ds_write_b64 v50, v[88:89] offset:%d' % (3 * CS + 512))
    quad(90, [(66, 65), (64, 75)]); e('ds_write_b64 v50, v[90:91] offset:%d' % (2 * CS + 512))
    quad(92, [(65, 64), (75, 74)]); e('ds_write_b64 v50, v[92:93] offset:%d' % (CS + 512))
    quad(94, [(64, 75), (74, 73)]); e('ds_write_b64 v50, v[94:95] offset:512')
    pk(54, 53, 52); e('ds_write_b32 v48, v54')
    e('v_cndmask_b32 v39, v71, v76, s[36:37]')
    e('v_cndmask_b32 v40, v71, v76, s[38:39]')
    e('v_cndmask_b32 v40, v40, v70, s[40:41]')
    pk(39, 39, 40); e('ds_write_b32 v37, v39 offset:48')
    stamp(3)
    e('v_lshlrev_b32 v15, 3, v0')
    e('v_add_u32 v15, %d, v15' % (A_UT + 512))
    e('s_waitcnt vmcnt(0)')
    stamp(4)
    for c in range(8):
        sel = 's31' if c & 1 else 's30'
        d = 36 + 2 * (c % 8)
        e('v_perm_b32 %s, %s, %s, %s' % (v(d), v(20 + (c >> 1)), v(16 + (c >> 1)), sel))
        e('v_perm_b32 %s, %s, %s, %s' % (v(d + 1), v(28 + (c >> 1)), v(24 + (c >> 1)), sel))
        e('ds_write_b64 v15, %s offset:%d' % (v(d, 2), c * 4608))
    e('v_and_b32 v2, 15, v1')
    e('v_lshrrev_b32 v3, 4, v1')
    e('v_and_b32 v4, 3, v2')
    e('v_sub_u32 v5, v2, v4')
    e('v_lshlrev_b32 v5, 1, v5')
    e('v_mul_u32_u24 v4, %d, v4' % CS)
    e('v_lshl_add_u32 v4, v3, 4, v4')
    e('v_sub_u32 v4, v4, v5')
    e('s_add_u32 s35, s27, 24')
    e('v_add_u32 v16, s35, v4')
    e('v_lshlrev_b32 v17, 4, v3')
    e('v_lshlrev_b32 v18, 2, v2')
    e('v_sub_u32 v17, v17, v18')
    e('s_add_u32 s35, s34, %d' % (3072 + 60))
    e('v_add_u32 v17, s35, v17')
    e('v_lshlrev_b32 v20, 5, v2')
    e('v_lshl_add_u32 v21, v3, 3, v20')
    e('v_lshl_add_u32 v20, v3, 4, v20')
    e('s_add_u32 s35, s33, 464')
    e('v_add_u32 v19, s35, v20')
    e('v_add_u32 v20, 16, v19')
    e('s_mul_i32 s35, s24, 3072')
    e('s_add_u32 s35, s35, %d' % A_Y1)
    e('v_add_u32 v22, s35, v21')
    e('s_add_u32 s35, s33, 512')
    e('v_add_u32 v21, s35, v21')
    ACC = 64
    for i in range(16): e('v_mov_b32 %s, 0' % v(ACC + i))
    t0 = e.lg()
    for d in range(4, 8):
        o = 16 * (7 - d)
        e('ds_read2_b32 %s, v17 offset0:%d offset1:%d' % (a(96 + 4 * (d - 4), 2), o, o + 1))
        e('ds_read2_b32 %s, v17 offset0:%d offset1:%d' % (a(98 + 4 * (d - 4), 2), o + 2, o + 3))
    e('ds_read_b64 a[128:129], v16')
    e('ds_read_b64 a[130:131], v16 offset:8')
    e('s_waitcnt lgkmcnt(0)')
    e('s_barrier')
    stamp(5)
    mf = lambda d, x, y, c: e('v_mfma_f32_16x16x32_bf16 %s, %s, %s, %s' % (d, x, y, c))
    G1 = int(opts.get('g1', 5))
    T1 = list(range(G1)); T2 = list(range(G1, 8))
    tok = {}
    wgrp = int(opts.get('wgrp', 2))
    def reads(bank, tiles):
        low = max(0, min(tiles) - 3)
        out = []; seen = set()
        def rd(key, txt): out.append(lambda: (e(txt), tok.__setitem__(key, e.lg())))
        for i in range(4):
            for h in range(2): rd(('A', bank, i), 'ds_read_b64 %s, v16 offset:%d' % (a(bank + 4 * i + 2 * h, 2), 2048 - 512 * i + 8 * h))
            for n in tiles:
                m = n - i
                if m >= 0 and m not in seen:
                    seen.add(m); rd(('B', bank, m), 'ds_read_b128 %s, v20 offset:%d' % (a(bank + 16 + 4 * (m - low), 4), 512 * m))
        out.append(lambda: e('v_subrev_u32 v16, 64, v16'))
        out.append(lambda: e('v_subrev_u32 v20, 64, v20'))
        return out
    def spread(nslots, fill):
        per = [len(fill) // nslots + (1 if k < len(fill) % nslots else 0) for k in range(nslots)]
        res = []; k = 0
        for p_ in per: res.append(fill[k:k + p_]); k += p_
        return res
    def half(bank, tiles, more=(), lead=0):
        low = max(0, min(tiles) - 3)
        ops = [(i, n) for i in range(4) for n in tiles if n >= i]
        rd_ = reads(48 - bank, tiles); more = list(more)
        fill = []
        while rd_ or more:
            fill += rd_[:1] + more[:lead or 1]; rd_ = rd_[1:]; more = more[lead or 1:]
        gaps = spread(len(ops), fill)
        have = -1
        for (i, n), gp in zip(ops, gaps):
            need_ = max(max(tok[('A', bank, i2)], tok[('B', bank, n2 - i2)]) for i2, n2 in ops if i2 // wgrp == i // wgrp)
            if need_ > have: e.wait_lg(need_); have = need_
            mf(v(ACC + 4 * n, 4), a(bank + 4 * i, 4), a(bank + 16 + 4 * (n - i - low), 4), v(ACC + 4 * n, 4))
            for f in gp: f()
    t0 = e.lg()
    for c in range(4):
        e('ds_read_b128 %s, v19 offset:%d' % (a(64 + 8 * c, 4), 512 * c))
        e('ds_read_b128 %s, v20 offset:%d' % (a(68 + 8 * c, 4), 512 * c))
    BX = 24
    for c in range(4):
        e.wait_lg(t0 + 2 * c + 2)
        mf(v(BX + 8 * c, 4), a(64 + 8 * c, 4), 'a[136:139]', '0')
        mf(v(BX + 8 * c + 4, 4), a(68 + 8 * c, 4), 'a[140:143]', '0')
        mf(v(ACC + 16 + 4 * c, 4), 'a[128:131]', a(68 + 8 * c, 4), '0')
        if c:
            for r in range(4): pk(BX + 8 * c - 8 + r, BX + 8 * c - 8 + r, BX + 8 * c - 4 + r)
    first = reads(0, T1)
    for c in range(4):
        if c == 1:
            for r in range(4): pk(BX + 24 + r, BX + 24 + r, BX + 28 + r)
        for n in range(4 + c, 8):
            mf(v(ACC + 4 * n, 4), v(BX + 8 * c, 4), a(96 + 4 * (n - c - 4), 4), v(ACC + 4 * n, 4))
            for f in first[:2]: f()
            first = first[2:]
    assert not first
    def loop(tiles, tag, trips, extra=None):
        e('s_mov_b32 s32, %d' % trips)
        e.label('L_a_conv%s' % tag)
        half(0, tiles)
        if extra: extra()
        half(48, tiles)
        e('s_sub_u32 s32, s32, 1')
        e('s_cmp_lg_u32 s32, 0')
        e('s_cbranch_scc1 L_a_conv%s' % tag)
    def put_y(tiles, addr):
        r = []
        for n in tiles:
            r.append(lambda n=n: pk(36 + 2 * n, ACC + 4 * n, ACC + 4 * n + 1))
            r.append(lambda n=n: pk(37 + 2 * n, ACC + 4 * n + 2, ACC + 4 * n + 3))
            r.append(lambda n=n: e('ds_write_b64 %s, %s offset:%d' % (addr, v(36 + 2 * n, 2), 512 * n)))
        return r
    def gather(rows0, rnd, base, stride):
        src = 24 + 8 * rnd if rows0 == 0 else 24
        rd_ = [lambda c=c: (e('ds_read_b32 %s, v23 offset:%d' % (v(src + c), base + c * stride + 2048 * rnd)), tok.__setitem__('y', e.lg())) for c in range(8)]
        ad = v(12 + rnd)
        rd_.append(lambda: e('s_mov_b32 s35, %d\nv_add_u32 %s, s35, v14' % ((rows0 + 1024 * rnd) * 2304, ad)))
        sh = []; st = []
        for i in range(2):
            d = 44 + 8 * rnd + 4 * i
            for c2 in range(4): sh.append(lambda d=d, c2=c2, i=i: e('v_perm_b32 %s, %s, %s, %s' % (v(d + c2), v(src + 1 + 2 * c2), v(src + 2 * c2), 's31' if i else 's30')))
            st.append('global_store_dwordx4 %s, %s, s[52:53] offset:%d' % (ad, v(d, 4), 2304 * i))
        return rd_, sh, st
    loop(T1, 'a', 4)
    stamp(14)
    e('v_add_u32 v16, 576, v16')
    e('v_add_u32 v20, 576, v20')
    for f in reads(0, T2): f()
    e('v_lshlrev_b32 v23, 2, v0')
    e('v_add_u32 v23, %d, v23' % A_UT)
    half(0, T2, put_y(T1, 'v22'))
    e('s_waitcnt lgkmcnt(0)')
    e('s_barrier')
    nr = (256 * G1 + 1023) // 1024
    gs = [gather(0, r, A_Y1 - A_UT, 3072) for r in range(nr)]
    half(48, T2, sum([g[0] for g in gs], []), lead=2)
    stamp(15)
    e.wait_lg(tok['y'])
    half(0, T2, sum([g[1] for g in gs], []))
    held = [(st, 8 if r == 0 else (256 * G1 - 1024) // 128) for r, g in enumerate(gs) for st in g[2]]
    e(held.pop(0)[0])
    half(48, T2)
    def trickle():
        e('s_cmp_lg_u32 s32, 2')
        e('s_cbranch_scc1 L_a_tr1')
        e(held[0][0])
        e('s_branch L_a_trdone')
        e.label('L_a_tr1')
        if len(held) > 1:
            e('s_cmp_ge_u32 s24, %d' % held[1][1])
            e('s_cbranch_scc1 L_a_trdone')
            for st, _ in held[1:]: e(st)
        e.label('L_a_trdone')
    loop(T2, 'b', 2, trickle)
    stamp(6)
    for f in put_y(T2, 'v21'): f()
    e('s_waitcnt lgkmcnt(0)')
    e('s_barrier')
    n2 = 2048 - 256 * G1
    if n2 < 1024:
        e('s_cmp_ge_u32 s24, %d' % (n2 // 128))
        e('s_cbranch_scc1 L_a_done')
    rd_, sh, st = gather(256 * G1, 0, 512 + 512 * G1, 4608)
    for f in rd_: f()
    e.wait_lg(tok['y'])
    for i in range(2):
        for f in sh[4 * i:4 * i + 4]: f()
        e(st[i])
    e.label('L_a_done')
    stamp(7)
    e('s_endpgm')
```

```python
from asmlib import *
from gen_a import f2u, LOG2E
EPS = f2u(1e-6)
SLOT = 34816; WOFF = 16384
WQ_LO = SLOT; WQ_HI = 4 * SLOT; IMG = WQ_HI + 3 * 4608
SCR = 3 * SLOT
CST = SLOT - 4096
LCNT = IMG + 9216
STG = WQ_LO + 5 * 4608
def wo_base(ks): return 4608 * ks if ks < 6 else SCR + 4608 * (ks - 6) if ks < 13 else WQ_LO + 4608 * (ks - 13)
KVP = 0; OB = 8 * 4 * 12288; HAND = OB + 16 * 8 * 18 * 1024
SPIN = 20000
def wq_base(ks): return WQ_LO + 4608 * ks if ks < 15 else WQ_HI + 4608 * (ks - 15)

def div_small(e, q, r, x, d, t):
    e('v_mul_u32_u24 %s, %d, %s' % (v(q), (1 << 16) // d + 1, v(x)))
    e('v_lshrrev_b32 %s, 16, %s' % (v(q), v(q)))
    e('v_mul_u32_u24 %s, %d, %s' % (v(t), d, v(q)))
    e('v_sub_u32 %s, %s, %s' % (v(r), v(x), v(t)))
for d in (5, 9, 18):
    assert all((x * ((1 << 16) // d + 1)) >> 16 == x // d for x in range(1024))

def phi_pair(e, x, dst, t, plain=False):
    if plain:
        return [lambda: e('v_mul_f32 %s, s36, %s' % (v(t), v(x))),
                lambda: e('v_mul_f32 %s, s36, %s' % (v(t + 1), v(x + 1))),
                lambda: e('v_max_f32 %s, s38, %s' % (v(t + 2), v(x))),
                lambda: e('v_exp_f32_e64 %s, %s clamp' % (v(t), v(t))),
                lambda: e('v_max_f32 %s, s38, %s' % (v(t + 3), v(x + 1))),
                lambda: e('v_exp_f32_e64 %s, %s clamp' % (v(t + 1), v(t + 1))),
                lambda: e('v_add_f32 %s, %s, %s' % (v(t), v(t), v(t + 2))),
                lambda: e('v_add_f32 %s, %s, %s' % (v(t + 1), v(t + 1), v(t + 3))),
                lambda: e('v_cvt_pk_bf16_f32 %s, %s, %s' % (v(dst), v(t), v(t + 1)))]
    return [lambda: e('v_pk_mul_f32 %s, %s, s[36:37]' % (v(t, 2), v(x, 2))),
            lambda: e('v_max_f32 %s, s38, %s' % (v(t + 2), v(x))),
            lambda: e('v_exp_f32_e64 %s, %s clamp' % (v(t), v(t))),
            lambda: e('v_exp_f32_e64 %s, %s clamp' % (v(t + 1), v(t + 1))),
            lambda: e('v_max_f32 %s, s38, %s' % (v(t + 3), v(x + 1))),
            lambda: e('v_pk_add_f32 %s, %s, %s' % (v(t, 2), v(t, 2), v(t + 2, 2))),
            lambda: e('v_cvt_pk_bf16_f32 %s, %s, %s' % (v(dst), v(t), v(t + 1)))]
def zipper(*streams):
    streams = [list(x) for x in streams]
    while any(streams):
        for st in streams:
            if st: st.pop(0)()

def touch_tiles(e, idx, chunk, lo, n, x_, tmp, dst):
    t0, t1, t2, t3 = tmp, tmp + 1, tmp + 2, tmp + 3
    e('v_min_u32 %s, %d, %s' % (v(t0), n - 1, v(idx)))
    e('v_add_u32 %s, %s, %s' % (v(t0), lo, v(t0)))
    e('s_lshr_b32 s36, %s, 1' % x_)
    e('s_mul_i32 s36, s36, %d' % (512 * 1152))
    e('s_lshl_b32 s37, %s, 7' % chunk)
    e('s_add_u32 s36, s36, s37')
    e('s_and_b32 s37, %s, 1' % x_)
    e('s_lshl_b32 s37, s37, 9')
    e('s_mul_i32 s38, %s, %d' % (chunk, 64 * 3456))
    e('s_add_u32 s37, s37, s38')
    e('s_add_u32 s37, s37, 1152')
    e('v_cmp_gt_u32 vcc, 512, %s' % v(t0))
    e('v_mul_u32_u24 %s, 1152, %s' % (v(t1), v(t0)))
    e('v_add_u32 %s, s36, %s' % (v(t1), v(t1)))
    e('v_subrev_u32 %s, 512, %s' % (v(t0), v(t0)))
    e('v_max_i32 %s, 0, %s' % (v(t0), v(t0)))
    div_small(e, t2, t3, t0, 5, t0 + 4)
    e('v_and_b32 %s, 1, %s' % (v(t0), v(t2)))
    e('v_lshrrev_b32 %s, 1, %s' % (v(t2), v(t2)))
    e('v_mul_u32_u24 %s, 3456, %s' % (v(t2), v(t2)))
    e('v_mul_u32_u24 %s, 1152, %s' % (v(t0), v(t0)))
    e('v_lshl_add_u32 %s, %s, 7, s37' % (v(t3), v(t3)))
    e('v_add3_u32 %s, %s, %s, %s' % (v(t2), v(t2), v(t0), v(t3)))
    e('v_mov_b32 %s, s46' % v(t0))
    e('v_mov_b32 %s, s48' % v(t3))
    e('v_cndmask_b32 %s, %s, %s, vcc' % (v(t1), v(t2), v(t1)))
    e('v_cndmask_b32 %s, %s, %s, vcc' % (v(t2), v(t3), v(t0)))
    e('v_mov_b32 %s, s47' % v(t0))
    e('v_mov_b32 %s, s49' % v(t3))
    e('v_cndmask_b32 %s, %s, %s, vcc' % (v(t3), v(t3), v(t0)))
    e('v_add_co_u32 %s, vcc, %s, %s' % (v(t2), v(t2), v(t1)))
    e('v_addc_co_u32 %s, vcc, 0, %s, vcc' % (v(t3), v(t3)))
    e('global_load_dword %s, %s, off' % (v(dst), v(t2, 2)))

def first_touch(e, j_, x_, tmp, dst, first=1):
    e('s_and_b32 s39, %s, 3' % j_)
    e('s_add_u32 s39, s39, %d' % first)
    e('s_lshr_b32 s40, %s, 2' % j_)
    e('s_mul_i32 s40, s40, 288')
    touch_tiles(e, 0, 's39', 's40', 288, x_, tmp, dst)

def role_b(e, stamp, opts):
    stamp = stamp or (lambda i: None)
    rot = int(opts.get('rot', 1))
    e('v_lshrrev_b32 v2, 6, v0')
    e('v_and_b32 v1, 63, v0')
    e('v_readfirstlane_b32 s24, v2')
    e('s_and_b32 s32, s2, 7')
    e('s_lshr_b32 s33, s2, 3')
    e('s_and_b32 s34, s33, 3')
    e('s_lshr_b32 s33, s33, 2')
    e('s_lshr_b32 s25, s32, 1')
    e('s_lshl_b32 s25, s25, 2')
    e('s_add_u32 s25, s25, s34')
    e('s_and_b32 s26, s32, 1')
    e('s_lshl_b32 s26, s26, 2')
    e('s_add_u32 s26, s26, s33')
    if rot:
        e('s_add_u32 s27, s33, s34')
        e('s_and_b32 s27, s27, 3')
        e('s_lshl_b32 s27, s27, 1')
        e('s_lshr_b32 s35, s32, 1')
        e('s_xor_b32 s35, s35, s32')
        e('s_and_b32 s35, s35, 1')
        e('s_add_u32 s27, s27, s35')
    else:
        e('s_mov_b32 s27, 0')
    e('v_and_b32 v2, 15, v1')
    e('v_lshrrev_b32 v3, 4, v1')
    e('s_cmp_lt_u32 s24, 4')
    e('s_cbranch_scc1 L_b_compute')
    loader(e, stamp, opts)
    e.section('compute', False)
    e.label('L_b_compute')
    compute(e, stamp, opts)

def compute(e, stamp, opts):
    e.nvm = 0; e.nlg = 0
    ACC = 8; RING = 80; NR = 6; D = 4
    acc = lambda ct, rt: ACC + 8 * ct + 4 * rt
    e('s_mov_b32 s36, 0x%08x' % LOG2E)
    e('s_mov_b32 s37, s36')
    e('s_mov_b32 s38, 0x%08x' % EPS)
    e('s_lshl_b32 s32, s24, 12')
    e('v_and_b32 v104, 7, v2')
    e('v_xor_b32 v105, v3, v104')
    e('v_lshlrev_b32 v106, 7, v2')
    e('v_add_u32 v106, s32, v106')
    e('v_lshl_add_u32 v4, v105, 4, v106')
    e('v_xor_b32 v105, 4, v105')
    e('v_lshl_add_u32 v5, v105, 4, v106')
    e('v_lshrrev_b32 v104, 2, v2')
    e('v_and_b32 v105, 3, v2')
    e('v_lshlrev_b32 v105, 3, v105')
    e('v_lshl_add_u32 v106, v3, 2, v104')
    e('v_mul_u32_u24 v106, 288, v106')
    e('v_add_u32 v106, v106, v105')
    e('v_add_u32 v6, %d, v106' % WOFF)
    e('v_lshlrev_b32 v104, 1, v104')
    e('v_lshl_add_u32 v104, v3, 3, v104')
    e('v_mul_u32_u24 v104, 144, v104')
    e('v_add_u32 v104, v104, v105')
    e('v_add_u32 v7, %d, v104' % WQ_LO)
    e('v_cmp_gt_u32 vcc, 8, v2')
    for k in range(4): e('v_mov_b32 %s, s38' % v(108 + k))
    for k in range(4): e('v_cndmask_b32 %s, 0, v108, vcc' % v(104 + k))
    e('v_cmp_gt_u32 s[40:41], 2, v3')
    e('v_cmp_gt_u32 s[42:43], 3, v3')
    e('s_waitcnt lgkmcnt(0)')
    e('s_mov_b64 s[10:11], s[52:53]')
    e('s_mov_b64 s[14:15], s[56:57]')
    stamp(0)
    F = [(p, s_, ct) for p in range(8) for s_ in range(2) for ct in range(9)]
    F += [(8, s_, ct) for s_ in range(2) for ct in range(5)] + [(8, s_, ct) for s_ in range(2) for ct in range(5, 9)]
    tok = {}
    def items(f):
        p, s_, ct = F[f]
        it = []
        if ct == 0 and s_ == 0:
            pre = []
            if p:
                dl = SLOT if p % 4 else -3 * SLOT
                for r in (4, 5, 6): pre.append('v_add_u32 %s, %d, %s' % (v(r), dl, v(r)) if dl > 0 else 'v_subrev_u32 %s, %d, %s' % (v(r), -dl, v(r)))
            if p == 8: pre.append('s_waitcnt lgkmcnt(0)')
            pre.append('s_barrier')
            it.append(lambda: (e('\n'.join(pre)), stamp({0: 1, 4: 2, 8: 3}[p]) if p in (0, 4, 8) else None))
        if ct == 0:
            for rt in range(2): it.append(lambda rt=rt: e('ds_read_b128 %s, %s offset:%d' % (a(16 * p + 8 * s_ + 4 * rt, 4), v(4 + s_), 2048 * rt)))
        r = RING + 4 * (f % NR)
        for h in range(2): it.append(lambda h=h: e('ds_read_b64_tr_b16 %s, v6 offset:%d' % (v(r + 2 * h, 2), 9216 * s_ + 4608 * h + 32 * ct)))
        return it
    for f in range(D):
        for x in items(f): x()
        tok[f] = e.lg()
    def put(fi, r):
        if fi < 8: e('ds_write_b128 v4, %s offset:%d' % (v(r, 4), 1024 * fi))
        else: e('ds_write_b128 v5, %s offset:%d' % (v(r, 4), 1024 * (fi - 8)))
    def phi_tile(x, dst, t, plain):
        zz = [phi_pair(e, x[k], dst[k], t + 4 * k, plain=plain) for k in range(4)]
        return [z[k] for k in range(len(zz[0])) for z in zz]
    late = []
    for f, (p, s_, ct) in enumerate(F):
        it = items(f + D) if f + D < len(F) else []
        e.wait_lg(tok[f])
        for rt in range(2):
            c = v(acc(ct, rt), 4) if f >= 9 else 'v[108:111]' if ct < 4 else 'v[104:107]' if ct == 4 else '0'
            e('v_mfma_f32_16x16x32_bf16 %s, %s, %s, %s' % (v(acc(ct, rt), 4), a(16 * p + 8 * s_ + 4 * rt, 4), v(RING + 4 * (f % NR), 4), c))
            h = (len(it) + 1) // 2
            for x in (it[:h] if rt == 0 else it[h:]): x()
        tok[f + D] = e.lg()
    stamp(4)
    e('s_lshl_b32 s32, s24, 13\ns_add_u32 s32, s32, %d\nv_lshl_add_u32 v4, v1, 4, s32' % SCR)
    e('s_lshl_b32 s32, s24, 12\nv_lshl_add_u32 v5, v1, 4, s32')
    for t in range(5):
        o = acc(t, 0) if t < 4 else 96
        for x in phi_tile([acc(t, 0) + 2 * k for k in range(4)], [o + k for k in range(4)], 80, False): x()
        put(t, o)
        o = acc(4 + t, 0) if t else 100
        for k in range(4): e('v_cvt_pk_bf16_f32 %s, %s, %s' % (v(o + k), v(acc(4 + t, 0) + 2 * k), v(acc(4 + t, 0) + 2 * k + 1)))
        put(5 + t, o)
    e('v_add_u32 v6, %d, v7' % (WQ_HI - WQ_LO))
    e('s_waitcnt lgkmcnt(0)')
    stamp(5)
    e('s_barrier')
    def gemm144(where, c0, G, ring, hook=None):
        RG, NG, DG = ring
        tk = {}
        def iss(f, h):
            ks, ct = G[f]
            ad, off = where(ks)
            e('ds_read_b64_tr_b16 %s, %s offset:%d' % (v(RG + 4 * (f % NG) + 2 * h, 2), ad, off + 144 * h + 32 * ct))
            tk[f] = e.lg()
        for f in range(DG): iss(f, 0); iss(f, 1)
        for f, (ks, ct) in enumerate(G):
            if hook: hook(f, ks, ct, 0)
            e.wait_lg(tk[f])
            for rt in range(2):
                e('v_mfma_f32_16x16x32_bf16 %s, %s, %s, %s' % (v(acc(ct, rt), 4), v(RG + 4 * (f % NG), 4), a(8 * ks + 4 * rt, 4), v(acc(ct, rt), 4) if ks else c0))
                if f + DG < len(G): iss(f + DG, rt)
                if hook: hook(f, ks, ct, 1 + rt)
    PQ = 48
    def phi_q(t, plain): return phi_tile([acc(t, k >> 1) + 2 * (k & 1) for k in range(4)], [PQ + 10 * (k >> 1) + 2 * t + (k & 1) for k in range(4)], 92 if plain else 68, plain)
    NQ = int(opts.get('nq', 5))
    rest = []
    def qhook(f, ks, ct, ph):
        if f == 18 * NQ + 1 and ph == 0:
            for t in range(NQ): rest.extend(phi_q(t, True))
        if ph and rest: rest.pop(0)()
    gemm144(lambda ks: ('v7', wq_base(ks) - WQ_LO) if ks < 15 else ('v6', wq_base(ks) - WQ_HI), 'v[108:111]',
            [(ks, ct) for ks in range(18) for ct in range(NQ)] + [(ks, ct) for ks in range(18) for ct in range(NQ, 5)], (68, 6, 4), qhook)
    stamp(6)
    for x in rest: x()
    for t in range(NQ if NQ < 5 else 0, 5):
        for x in phi_q(t, False): x()
    DEN = 68
    e('v_lshlrev_b32 v4, 3, v1')
    e('v_add_u32 v4, %d, v4' % IMG)
    e('s_lshl_b32 s32, s25, 3')
    e('s_lshl_b32 s33, s24, 1')
    e('s_add_u32 s32, s32, s33')
    e('s_mul_i32 s32, s32, %d' % (18 * 1024))
    e('s_add_u32 s32, s32, %d' % OB)
    e('v_lshl_add_u32 v105, v1, 4, s32')
    e('s_lshl_b32 s33, s26, 11')
    e('v_add_u32 v5, s33, v105')
    e('s_lshr_b32 s33, s26, 2')
    e('s_lshl_b32 s33, s33, 10')
    e('s_and_b32 s34, s26, 3')
    e('s_lshl_b32 s34, s34, 8')
    e('s_add_u32 s33, s33, s34')
    e('s_add_u32 s33, s33, s32')
    e('s_add_u32 s33, s33, %d' % (16 * 1024 - 16))
    e('v_lshlrev_b32 v104, 4, v2')
    e('v_lshl_add_u32 v104, v3, 3, v104')
    e('v_add_u32 v104, s33, v104')
    stamp(7)
    e('s_barrier')
    stamp(8)
    t0 = e.lg()
    for pl in list(range(13, 18)) + list(range(13)): e('ds_read_b64 %s, v4 offset:%d' % (a(2 * pl, 2), 512 * pl))
    def mm(d, pl, dt, n, rt, c):
        e('v_mfma_f32_16x16x%d_bf16 %s, %s, %s, %s' % (16 * n, v(d, 4), a(2 * pl, 2 * n), v(PQ + 10 * rt + 2 * dt, 2 * n), c))
    e.wait_lg(t0 + 5)
    for pl, dt, n in ((13, 0, 2), (15, 2, 2), (17, 4, 1)):
        for rt in range(2): mm(DEN + 4 * rt, pl, dt, n, rt, v(DEN + 4 * rt, 4) if dt else 'v[108:111]')
    e.wait_lg(t0 + 18)
    for u, first in enumerate((0, 0, 1, 2, 3)):
        for rt in range(2): mm(acc(u, rt), 2 * u + first, first, 2, rt, '0')
    for u, first in ((1, 0), (2, 1), (3, 2)):
        for rt in range(2): mm(acc(u, rt), 2 * u + first + 2, first + 2, 1, rt, v(acc(u, rt), 4))
    for k in range(8): e('v_rcp_f32 %s, %s' % (v(DEN + k), v(DEN + k)))
    e('v_mov_b32 v106, 0x7fc07fc0')
    OUT = 80
    for rt in range(2):
        i = DEN + 4 * rt; t = 76; o = OUT + 10 * rt
        e('v_cndmask_b32 %s, %s, %s, s[42:43]' % (v(t), v(i + 1), v(i)))
        e('v_cndmask_b32 %s, %s, %s, s[40:41]' % (v(t + 1), v(i + 1), v(i)))
        e('v_cndmask_b32 %s, %s, %s, s[42:43]' % (v(t + 2), v(i + 2), v(i + 1)))
        e('v_cndmask_b32 %s, %s, %s, s[42:43]' % (v(t + 3), v(i + 3), v(i + 2)))
        sc = {0: (i, i), 1: (t, t + 1), 2: (t + 2, t + 2), 3: (i + 2, t + 3), 4: (i + 3, i + 3)}
        for u in (1, 2, 3, 4, 0):
            for k in range(2):
                f_ = sc[u][k]
                e('v_pk_mul_f32 %s, %s, %s op_sel:[0,%d] op_sel_hi:[1,%d]' % (v(acc(u, rt) + 2 * k, 2), v(acc(u, rt) + 2 * k, 2), v(f_ & ~1, 2), f_ & 1, f_ & 1))
            d = o + (2 * (u - 1) if u else 8)
            for k in range(2): e('v_cvt_pk_bf16_f32 %s, %s, %s' % (v(d + k), v(acc(u, rt) + 2 * k), v(acc(u, rt) + 2 * k + 1)))
        for d in (o, o + 4, o + 8):
            e('v_cmp_eq_u32 vcc, -1, %s' % v(d))
            e('v_cndmask_b32 %s, %s, v106, vcc' % (v(d), v(d)))
        if rt: e('v_add_u32 v5, %d, v5' % (18 * 1024))
        e('global_store_dwordx4 v5, %s, s[14:15] sc1' % v(o, 4))
        e('global_store_dwordx4 v5, %s, s[14:15] offset:1024 sc1' % v(o + 4, 4))
    e('v_add_u32 v107, %d, v104' % (18 * 1024))
    e('s_mov_b32 exec_lo, 0')
    e('global_store_dwordx2 v104, %s, s[14:15] sc1' % v(OUT + 8, 2))
    e('global_store_dwordx2 v107, %s, s[14:15] sc1' % v(OUT + 18, 2))
    e('s_mov_b32 exec_lo, -1')
    stamp(9)
    e('s_lshl_b32 s32, s25, 7')
    e('s_lshl_b32 s33, s24, 5')
    e('s_add_u32 s32, s32, s33')
    e('s_mul_i32 s32, s32, 2304')
    e('s_mul_i32 s33, s26, 144')
    e('s_add_u32 s32, s32, s33')
    e('s_add_u32 s32, s32, 1152')
    for j in range(5):
        e('v_add_u32 v48, %d, v1' % (64 * j))
        div_small(e, 49, 50, 48, 9, 51)
        e('v_mul_u32_u24 v49, 2304, v49')
        e('v_lshl_add_u32 v49, v50, 4, v49')
        e('v_add_u32 %s, s32, v49' % v(64 + j))
    e('s_mul_i32 s33, s24, 4608')
    e('s_add_u32 s33, s33, %d' % STG)
    e('v_mul_u32_u24 v4, 144, v2')
    e('v_lshl_add_u32 v4, v3, 3, v4')
    e('v_add_u32 v4, s33, v4')
    e('v_lshl_add_u32 v5, v1, 4, s33')
    for k in range(1, 9): e('v_add_u32 %s, %d, v105' % (v(52 + k), 4096 * k))
    e('v_mov_b32 v52, v105')
    e('v_subrev_u32 v7, %d, v7' % WQ_LO)
    e('v_add_u32 v6, %d, v7' % SCR)
    e('s_mov_b32 s39, 0')
    e('s_mov_b32 s44, %d' % SPIN)
    e('v_lshlrev_b32 v72, 8, v1')
    e('v_lshlrev_b32 v73, 4, v1')
    e('v_sub_u32 v72, v72, v73')
    e('v_add_u32 v72, v72, v60')
    e('s_mov_b64 exec, 0xff')
    e.label('L_b_probe')
    e('global_load_dword v73, v72, s[14:15] offset:2296 sc1')
    e('s_sub_u32 s44, s44, 1')
    e('s_cbranch_scc1 L_b_probed')
    e('s_waitcnt vmcnt(0)')
    e('v_cmp_eq_u32 vcc, -1, v73')
    e('s_cbranch_vccnz L_b_probe')
    e.label('L_b_probed')
    e('s_mov_b64 exec, -1')
    e('s_waitcnt vmcnt(0)')
    stamp(10)
    otok = {}
    AHEAD = int(opts.get('ahead', 4))
    def oload(ks, only=None):
        for rt in (range(2) if only is None else (only,)):
            fi = rt * 18 + ks
            e('global_load_dwordx4 %s, %s, s[14:15] offset:%d sc1' % (a(8 * ks + 4 * rt, 4), v(52 + (fi >> 2)), 1024 * (fi & 3)))
        otok[ks] = e.vm()
    e('s_barrier')
    e.label('L_b_gemm2')
    e.nvm = 0
    for ks in range(AHEAD): oload(ks)
    stamp(11)
    pend = [(ks, rt) for ks in range(AHEAD, 18) for rt in range(2)]
    def hook(f, ks, ct, ph):
        if ct == 0 and ph == 0: e.wait_vm(otok[ks])
        if ph == 1 and pend and ct in ((0, 1, 2, 3) if ks < 3 else (1, 3)): oload(*pend.pop(0))
    gemm144(lambda ks: ('v6', wo_base(ks) - SCR) if 6 <= ks < 13 else ('v7', wo_base(ks)), '0',
            [(ks, ct) for ks in range(18) for ct in range(5)], (72, 8, 5), hook)
    stamp(12)
    e('s_cmp_lg_u32 s39, 0')
    e('s_cbranch_scc1 L_b_store')
    e('v_cmp_u_f32 vcc, %s, %s' % (v(acc(0, 0)), v(acc(0, 1))))
    e('s_cbranch_vccz L_b_store')
    e('s_mov_b32 s39, 1')
    e('s_mov_b32 s44, %d' % SPIN)
    e.label('L_b_strict')
    for ks in range(18): oload(ks)
    e('s_waitcnt vmcnt(0)')
    e('s_sub_u32 s44, s44, 1')
    e('s_cbranch_scc1 L_b_gemm2')
    e('s_mov_b64 s[32:33], 0')
    for k in range(72):
        if (k & 1) == 0 or k >= 64:
            e('v_accvgpr_read_b32 v48, %s' % a(2 * k))
            e('v_cmp_eq_u32 vcc, -1, v48')
            e('s_or_b64 s[32:33], s[32:33], vcc')
    e('s_cmp_lg_u64 s[32:33], 0')
    e('s_cbranch_scc1 L_b_strict')
    e('s_branch L_b_gemm2')
    e.label('L_b_store')
    for ct in range(5):
        if ct == 4: e('s_mov_b32 exec_hi, 0')
        for rt in range(2):
            d = 80 + 4 * ct + 2 * rt
            for k in range(2): e('v_cvt_pk_bf16_f32 %s, %s, %s' % (v(d + k), v(acc(ct, rt) + 2 * k), v(acc(ct, rt) + 2 * k + 1)))
            e('ds_write_b64 v4, %s offset:%d' % (v(d, 2), 2304 * rt + 32 * ct))
    e('s_mov_b32 exec_hi, -1')
    t0 = e.lg()
    for j in range(5): e('ds_read_b128 %s, v5 offset:%d' % (v(8 + 4 * j, 4), 1024 * j))
    for j in range(5):
        e.wait_lg(t0 + j + 1)
        if j == 4: e('s_mov_b32 exec_hi, 0')
        e('global_store_dwordx4 %s, %s, s[10:11]' % (v(64 + j), v(8 + 4 * j, 4)))
    e('s_mov_b32 exec_hi, -1')
    stamp(13)
    e('s_endpgm')

def loader(e, stamp, opts):
    e.nvm = 0; e.nlg = 0
    e('s_sub_u32 s39, s24, 4')
    e('v_lshrrev_b32 v4, 3, v1')
    e('v_and_b32 v5, 7, v1')
    e('v_xor_b32 v5, v5, v4')
    e('s_lshl_b32 s32, s25, 7')
    e('s_lshl_b32 s33, s39, 5')
    e('s_add_u32 s32, s32, s33')
    e('v_add_u32 v4, s32, v4')
    e('v_mul_u32_u24 v4, 1152, v4')
    e('v_lshl_add_u32 v8, v5, 4, v4')
    e('s_lshr_b32 s32, s39, 1')
    e('s_lshl_b32 s32, s32, 5')
    e('s_and_b32 s33, s39, 1')
    e('s_lshl_b32 s33, s33, 2')
    e('s_add_u32 s32, s32, s33')
    e('s_mul_i32 s40, s26, 144')
    e('s_mul_i32 s32, s32, 3456')
    e('s_add_u32 s32, s32, s40')
    e('s_add_u32 s32, s32, 1152')
    def woff(j):
        e('v_add_u32 v4, %d, v1' % (64 * j))
        div_small(e, 5, 6, 4, 18, 7)
        e('v_and_b32 v4, 12, v5')
        e('v_add_u32 v4, v4, v5')
        e('v_mul_u32_u24 v4, 3456, v4')
        e('v_cmp_lt_u32 vcc, 8, v6')
        e('v_lshl_add_u32 v4, v6, 4, v4')
        e('v_add_u32 v4, s32, v4')
        e('v_add_u32 v5, 1008, v4')
        e('v_cndmask_b32 %s, v4, v5, vcc' % v(9 + j))
    e('s_lshl_b32 s41, s39, 12')
    e('s_mul_i32 s42, s39, 4608')
    e('s_add_u32 s42, s42, %d' % WOFF)
    e('s_mov_b32 s43, s27')
    e('s_mov_b32 s22, %d\ns_mov_b32 s23, 0x20000' % (576 * 3456))
    e('s_mov_b32 s30, %d\ns_mov_b32 s31, 0x20000' % (576 * 1152))
    e('s_waitcnt lgkmcnt(0)')
    e('s_mov_b64 s[16:17], s[46:47]\ns_mov_b32 s18, %d\ns_mov_b32 s19, 0x20000' % (2048 * 1152))
    e('s_mov_b64 s[20:21], s[48:49]\ns_mov_b64 s[28:29], s[50:51]\ns_mov_b64 s[12:13], s[54:55]\ns_mov_b64 s[14:15], s[56:57]')

    main = e; sd = Asm(); e = sd
    marks = {}
    e('s_lshl_b32 s32, s26, 2')
    e('s_add_u32 s32, s32, s39')
    e('s_mul_i32 s32, s32, 12288')
    e('s_add_u32 s32, s32, %d' % KVP)
    e('v_lshl_add_u32 v15, v1, 4, s32')
    e('s_lshl_b32 s33, s25, 8')
    e('s_add_u32 s32, s32, s33')
    e('v_lshlrev_b32 v14, 4, v2')
    e('v_lshl_add_u32 v14, v3, 12, v14')
    e('v_add_u32 v14, s32, v14')
    marks['clear'] = len(sd.L)
    e('s_mul_i32 s32, s39, 2304')
    e('s_add_u32 s32, s32, %d' % IMG)
    e('v_lshl_add_u32 v4, v1, 4, s32')
    for k in range(4): e('v_mov_b32 %s, 0' % v(40 + k))
    e('ds_write_b128 v4, v[40:43]')
    e('ds_write_b128 v4, v[40:43] offset:1024')
    e('v_lshl_add_u32 v4, v1, 2, s32')
    e('ds_write_b32 v4, v40 offset:2048')
    e('v_mov_b32 v55, %d' % LCNT)
    e('ds_write_b32 v55, v40')
    for j in range(5):
        e('v_add_u32 v4, %d, v1' % (64 * j))
        div_small(e, 5, 6, 4, 9, 7)
        e('v_lshlrev_b32 v6, 4, v6')
        e('v_add_u32 v6, s40, v6')
        e('v_lshrrev_b32 v4, 3, v5')
        e('v_and_b32 v7, 1, v5')
        e('v_bfe_u32 v5, v5, 1, 2')
        e('v_lshl_add_u32 v19, v7, 2, v5')
        e('v_lshl_add_u32 v39, v4, 3, v19')
        e('v_mul_u32_u24 v39, 3456, v39')
        e('v_add_u32 %s, v39, v6' % v(24 + j))
        e('v_lshl_add_u32 v39, v4, 2, v5')
        e('v_lshl_add_u32 v39, v7, 4, v39')
        e('v_mul_u32_u24 v39, 1152, v39')
        e('v_add_u32 %s, v39, v6' % v(29 + j))
        e('v_mul_u32_u24 v39, 72, v4')
        e('v_add_u32 v39, v39, v19')
        e('v_mul_u32_u24 v39, 1152, v39')
        e('v_add_u32 %s, v39, v6' % v(34 + j))
    e('s_lshr_b32 s45, s39, 1')
    e('s_lshl_b32 s46, s39, 1')
    e('s_lshl_b32 s47, s39, 10')
    e('s_add_u32 s47, s47, %d' % CST)
    e('s_add_u32 s32, s47, 768')
    e('v_lshl_add_u32 v44, v2, 3, s32')
    for i in range(2):
        e('v_add_u32 v4, %d, v3' % (4 * i))
        e('v_subrev_u32 v5, s45, v4')
        e('v_cmp_gt_u32 s[48:49], 5, v5')
        e('v_lshlrev_b32 v4, 2, v4')
        e('v_subrev_u32 v4, s46, v4')
        e('v_cmp_gt_u32 %s, 18, v4' % s(52 + 4 * i, 2))
        e('v_add_u32 v4, 2, v4')
        e('v_cmp_gt_u32 %s, 18, v4' % s(54 + 4 * i, 2))
        for j in range(2):
            e('v_add_u32 v6, %d, v2' % (16 * j - 8))
            e('v_subrev_u32 v6, s46, v6')
            e('v_cmp_gt_u32 vcc, 18, v6')
            e('v_mul_u32_u24 v6, 5, v6')
            e('v_add_u32 v6, v6, v5')
            e('s_and_b64 vcc, vcc, s[48:49]')
            e('v_lshl_add_u32 v6, v6, 3, s47')
            e('v_cndmask_b32 %s, v44, v6, vcc' % v(45 + 2 * i + j))
        e('v_cmp_eq_u32 vcc, 0, v2')
        e('v_add_u32 v6, 90, v5')
        e('v_lshl_add_u32 v6, v6, 3, s47')
        e('s_and_b64 vcc, vcc, s[48:49]')
        e('v_cndmask_b32 %s, v44, v6, vcc' % v(49 + i))
    e('s_mul_i32 s32, s39, 18')
    e('s_add_u32 s32, s32, 8')
    e('s_lshl_b32 s33, s39, 2')
    e('s_add_u32 s33, s33, s45')
    e('v_cmp_gt_u32 s[48:49], 2, v3')
    for b in range(3):
        e('v_lshl_add_u32 v4, v2, 1, v3')
        e('v_add_u32 v4, %d, v4' % (32 * b))
        div_small(e, 5, 6, 4, 5, 7)
        e('v_add_u32 v6, s33, v6')
        e('v_add_u32 v7, s32, v5')
        e('v_lshrrev_b32 v19, 4, v7')
        e('v_and_b32 v7, 15, v7')
        e('v_lshrrev_b32 v39, 2, v6')
        e('v_and_b32 v6, 3, v6')
        e('v_lshl_add_u32 v19, v19, 1, v39')
        if b == 2:
            e('v_cmp_eq_u32 vcc, 18, v5')
            e('v_add_u32 v39, 13, v39')
            e('v_cndmask_b32 v19, v19, v39, vcc')
            e('v_mov_b32 v39, s39')
            e('v_cndmask_b32 v7, v7, v39, vcc')
        e('v_lshl_add_u32 v7, v6, 4, v7')
        e('v_lshlrev_b32 v7, 3, v7')
        e('v_lshl_add_u32 v7, v19, 9, v7')
        e('v_add_u32 v7, %d, v7' % IMG)
        if b == 2:
            e('s_and_b64 vcc, vcc, s[48:49]')
            e('v_cndmask_b32 v54, v44, v7, vcc')
            e('v_cmp_gt_u32 vcc, 19, v5')
            e('s_and_b64 s[48:49], vcc, s[48:49]')
        e('v_cndmask_b32 %s, v44, v7, s[48:49]' % v(51 + b))
    e('v_and_b32 v4, 1, v2')
    e('v_lshlrev_b32 v4, 4, v4')
    e('v_mov_b32 v5, 0x3f80')
    e('v_lshlrev_b32 v4, v4, v5')
    e('v_lshrrev_b32 v5, 1, v2')
    for k in range(4):
        e('v_cmp_eq_u32 vcc, %d, v5' % k)
        e('v_mov_b32 %s, 0x3f803f80' % v(60 + k))
        e('v_cndmask_b32 %s, 0, v4, vcc' % v(56 + k))
    for k, df in enumerate((0, 1, 5, 6)):
        e('s_add_u32 s32, s39, %d' % df)
        e('s_lshl_b32 s33, s32, 10')
        e('s_add_u32 s34, s33, %d' % SCR)
        e('s_sub_u32 s33, s33, 8192')
        e('s_movk_i32 %s, 4096' % s(48 + k))
        sd.L.append('s_cmp_lt_u32 s32, 8\ns_cselect_b32 s33, s34, s33\ns_cselect_b32 %s, 8192, %s' % (s(48 + k), s(48 + k)))
        e('v_lshl_add_u32 %s, v1, 4, s33' % v(64 + k))
    e('v_and_b32 v19, 3, v1')
    e('v_lshlrev_b32 v19, 6, v19')
    e = main
    side = list(sd.L); done = [0]
    def run_side(n=None, upto=None):
        stop = upto if upto is not None else min(len(side), done[0] + n)
        while done[0] < stop:
            e(side[done[0]]); done[0] += 1

    ctok = {}
    def chunk(p, per, mid=None):
        sl = SLOT * (p % 4)
        e('s_lshl_b32 s3, s43, 7')
        e('s_mul_i32 s35, s43, %d' % (64 * 3456))
        for j in range(4):
            e('s_add_u32 m0, s41, %d' % (sl + 1024 * j))
            if j: e('s_add_u32 s3, s3, 9216')
            e('buffer_load_dwordx4 v8, s[16:19], s3 offen lds')
            run_side(per)
        for j in range(5):
            if mid: mid(j)
            e('s_add_u32 m0, s42, %d' % (sl + 1024 * j))
            if j == 4: e('s_mov_b32 exec_hi, 0')
            e('buffer_load_dwordx4 %s, s[20:23], s35 offen lds' % v(9 + j))
            if j < 4: run_side(per)
        e('s_mov_b32 exec_hi, -1')
        e('s_add_u32 s43, s43, 1')
        e('s_cmp_eq_u32 s43, 9')
        e('s_cselect_b32 s43, 0, s43')
        ctok[p] = e.vm()
    stamp(1)
    chunk(0, 0, woff); chunk(1, 0)
    stamp(0)
    e.section('loader')
    def tile144(srd, vregs, soff):
        for j in range(5):
            e('s_add_u32 m0, s34, %d' % (1024 * j))
            if j == 4: e('s_mov_b32 exec_hi, 0')
            e('buffer_load_dwordx4 %s, %s, %s offen lds' % (v(vregs + j), srd, soff))
        e('s_mov_b32 exec_hi, -1')
    def wq_group(lo, n):
        for rnd in range((n + 3) // 4):
            e('s_add_u32 s35, s39, %d' % (lo + 4 * rnd))
            if 4 * rnd + 4 > n: e('s_min_u32 s35, s35, %d' % (lo + n - 1))
            e('s_lshr_b32 s32, s35, 1')
            e('s_add_u32 s32, s32, s27')
            e('s_sub_u32 s33, s32, 9')
            e('s_cmp_ge_u32 s32, 9')
            e('s_cselect_b32 s32, s33, s32')
            e('s_lshl_b32 s32, s32, 1')
            e('s_and_b32 s33, s35, 1')
            e('s_add_u32 s32, s32, s33')
            e('s_mul_i32 s32, s32, %d' % (32 * 3456))
            e('s_mul_i32 s34, s35, 4608')
            e('s_add_u32 s34, s34, %d' % (WQ_LO if lo < 15 else WQ_HI - 15 * 4608))
            tile144('s[20:23]', 24, 's32')
    for p in range(9):
        e.wait_vm(ctok[p])
        e('s_barrier')
        if p in (1, 2, 3, 5, 6): stamp({1: 11, 2: 12, 3: 13, 5: 14, 6: 15}[p])
        if p == 0:
            stamp(2)
        if 't' in opts.get('horder', '') and p == int(opts.get('trig', 2)):
            e('s_or_b32 s3, s39, s2')
            e('s_cmp_ge_u32 s3, 8')
            e('s_cbranch_scc1 L_b_notrig')
            e('s_cmp_lg_u32 s39, 0')
            e('s_cbranch_scc1 L_b_notrig')
            e('s_lshl_b32 s3, s2, 2')
            e('v_mov_b32 v20, s3')
            e('v_mov_b32 v21, 1')
            e('s_mov_b64 exec, 1')
            e('global_store_dword v20, v21, s[12:13] offset:16 sc1')
            e('s_mov_b64 exec, -1')
            e.nvm -= 1
            e.label('L_b_notrig')
        if p <= 6: chunk(p + 2, 7)
        if p == 6:
            run_side(upto=len(side))
            wq_group(15, 3)
        if p == 7: wq_group(0, 7)
        if p == 8: wq_group(7, 8)
    stamp(3)
    e('s_mov_b32 s44, %d' % SPIN)
    e('s_cmp_lg_u32 s39, 0')
    e('s_cbranch_scc1 L_b_cntdone')
    e('s_mov_b64 exec, 15')
    e.label('L_b_cnt')
    e('global_load_dword v5, v19, s[12:13] sc1')
    e('s_sub_u32 s44, s44, 1')
    e('s_cbranch_scc1 L_b_cntdone')
    e('s_waitcnt vmcnt(0)')
    e('v_cmp_gt_u32 vcc, 14, v5')
    e('s_cbranch_vccnz L_b_cnt')
    e.label('L_b_cntdone')
    e('s_mov_b64 exec, -1')
    e('s_waitcnt vmcnt(0) lgkmcnt(0)')
    stamp(4)
    e('s_barrier')
    stamp(5)
    e('s_setprio 2')
    tk = []
    for w in range(4):
        for k in range(4):
            e('ds_read_b128 %s, %s' % (a(16 * w + 4 * k, 4), v(64 + k)))
            if w < 3: e('v_add_u32 %s, %s, %s' % (v(64 + k), s(48 + k), v(64 + k)))
        tk.append(e.lg())
    e('v_mov_b32 v4, s47')
    e('v_mov_b32 v5, 1')
    e('ds_write_b64 v4, v[40:41] offset:760')
    DD = 68
    for w in range(4):
        e.wait_lg(tk[w])
        if w == 3:
            e('s_mov_b64 exec, 1')
            e('ds_add_u32 v55, v5')
            e('s_mov_b64 exec, -1')
        for i in range(2):
            for j in range(2):
                d = DD + 8 * i + 4 * j
                e('v_mfma_f32_16x16x32_bf16 %s, %s, %s, %s' % (v(d, 4), a(16 * w + 4 * i, 4), a(16 * w + 8 + 4 * j, 4), v(d, 4) if w else '0'))
            d = DD + 16 + 4 * i
            e('v_mfma_f32_16x16x32_bf16 %s, %s, v[60:63], %s' % (v(d, 4), a(16 * w + 4 * i, 4), v(d, 4) if w else '0'))
    e('v_lshl_add_u32 v4, v1, 4, s47')
    e('v_mov_b32 v5, 0x7fc07fc0')
    e('v_add_u32 v16, 4096, v15')
    e('v_add_u32 v17, 8192, v15')
    for i in range(2):
        for j in range(3):
            d = DD + 8 * i + 4 * j if j < 2 else DD + 16 + 4 * i
            o = 92 + 2 * (3 * i + j)
            for k in range(2): e('v_cvt_pk_bf16_f32 %s, %s, %s' % (v(o + k), v(d + 2 * k), v(d + 2 * k + 1)))
            for k in range(2): e('v_cndmask_b32 %s, 0, %s, %s' % (v(o + k), v(o + k), s(52 + 4 * i + 2 * k, 2)))
            e('ds_write_b64 %s, %s' % (v(45 + 2 * i + j) if j < 2 else v(49 + i), v(o, 2)))
    e('ds_read_b128 v[68:71], v4')
    e('s_waitcnt lgkmcnt(0)')
    e('v_cmp_eq_u32 vcc, -1, v68')
    e('s_mov_b32 s44, %d' % SPIN)
    e('v_cndmask_b32 v68, v68, v5, vcc')
    e('s_mov_b32 exec_hi, 0xffff')
    e('global_store_dwordx4 v14, v[68:71], s[14:15] sc1')
    e('s_mov_b32 exec_hi, -1')
    stamp(6)
    def wo_block(first, last):
        e('s_add_u32 s35, s39, %d' % first)
        if first + 3 > last: e('s_min_u32 s35, s35, %d' % last)
        e('s_lshr_b32 s32, s35, 1')
        e('s_mul_i32 s32, s32, 72')
        e('s_and_b32 s33, s35, 1')
        e('s_lshl_b32 s33, s33, 5')
        e('s_add_u32 s32, s32, s33')
        e('s_add_u32 s32, s32, 8')
        e('s_mul_i32 s32, s32, 1152')
        e('s_mul_i32 s34, s35, 4608')
        if last < 13:
            e('s_add_u32 s33, s34, %d' % (SCR - 6 * 4608))
            e('s_cmp_ge_u32 s35, 6')
            e('s_cselect_b32 s34, s33, s34')
        else:
            e('s_add_u32 s34, s34, %d' % (WQ_LO - 13 * 4608))
        tile144('s[28:31]', 29, 's32')
    e('s_mov_b32 s44, %d' % SPIN)
    e.label('L_b_lcnt')
    e('ds_read_b32 v4, v55')
    e('s_sub_u32 s44, s44, 1')
    e('s_cbranch_scc1 L_b_lcntdone')
    e('s_waitcnt lgkmcnt(0)')
    e('v_cmp_gt_u32 vcc, 4, v4')
    e('s_cbranch_vccnz L_b_lcnt')
    e.label('L_b_lcntdone')
    e('s_waitcnt lgkmcnt(0)')
    nearly = int(opts.get('woearly', 3))
    for k in range(nearly): wo_block(4 * k, 12)
    e('v_lshlrev_b32 v4, 8, v2')
    e('v_lshlrev_b32 v6, 4, v1')
    e('v_sub_u32 v5, v17, v6')
    e('v_add_u32 v4, v4, v5')
    e('s_mov_b32 s44, %d' % SPIN)
    stamp(7)
    e.label('L_b_gather')
    X = 64
    for b in range(3):
        for i in range(4): e('global_load_dwordx4 %s, %s, s[14:15] offset:%d sc1' % (v(X + 16 * b + 4 * i, 4), v(15 + b), 1024 * i))
    e('s_mov_b64 s[32:33], 0')
    for k in range(12):
        if k % 4 == 0: e('s_waitcnt vmcnt(%d)' % (8 - k))
        e('v_cmp_eq_u32 vcc, -1, %s' % v(X + 4 * k))
        e('s_or_b64 s[32:33], s[32:33], vcc')
    e('s_cmp_eq_u64 s[32:33], 0')
    e('s_cbranch_scc1 L_b_gathered')
    e('s_mov_b64 exec, 0xffff')
    e.label('L_b_kvprobe')
    e('global_load_dword v5, v4, s[14:15] sc1')
    e('s_sub_u32 s44, s44, 1')
    e('s_cbranch_scc1 L_b_gathered')
    e('s_waitcnt vmcnt(0)')
    e('v_cmp_eq_u32 vcc, -1, v5')
    e('s_cbranch_vccnz L_b_kvprobe')
    e('s_mov_b64 exec, -1')
    e('s_branch L_b_gather')
    e.label('L_b_gathered')
    e('s_mov_b64 exec, -1')
    stamp(8)
    for i in range(4):
        for b in range(3):
            e('v_mfma_f32_16x16x32_bf16 %s, v[56:59], %s, %s' % (v(8 + 4 * b, 4), v(X + 16 * b + 4 * i, 4), v(8 + 4 * b, 4) if i else '0'))
    for b in range(3):
        for k in range(2): e('v_cvt_pk_bf16_f32 %s, %s, %s' % (v(20 + 2 * b + k), v(8 + 4 * b + 2 * k), v(8 + 4 * b + 2 * k + 1)))
        e('ds_write_b64 %s, %s' % (v(51 + b), v(20 + 2 * b, 2)))
    for k in range(1, 4): e('ds_write_b64 v54, v[24:25] offset:%d' % (32 * k))
    e('s_setprio 0')
    e('s_waitcnt lgkmcnt(0)')
    stamp(9)
    e('s_barrier')
    for k in range(nearly, 3): wo_block(4 * k, 12)
    e('s_cmp_lg_u32 s39, 0')
    e('s_cbranch_scc1 L_b_wo13')
    wo_block(12, 12)
    e('s_branch L_b_wo16')
    e.label('L_b_wo13')
    wo_block(12, 15)
    e.label('L_b_wo16')
    e('s_cmp_ge_u32 s39, 2')
    e('s_cbranch_scc1 L_b_wodone')
    e('s_mul_i32 s32, s39, %d' % (288 * 1152))
    e('s_mul_i32 s34, s39, 4608')
    e('s_add_u32 s34, s34, %d' % (WQ_LO + 3 * 4608))
    tile144('s[28:31]', 34, 's32')
    e.label('L_b_wodone')
    e('s_waitcnt vmcnt(0)')
    stamp(10)
    e('s_barrier')
    e('s_endpgm')


def role_h(e, opts):
    e.label('L_roleH')
    e('s_getpc_b64 s[32:33]')
    e.label('L_h_pc')
    e('s_sub_u32 s32, s32, L_h_pc-KERNEL_START')
    e('s_subb_u32 s33, s33, 0')
    e('v_lshlrev_b32 v1, 7, v0')
    e('v_cmp_gt_u32 vcc, KERNEL_END-KERNEL_START, v1')
    e('s_and_saveexec_b64 s[34:35], vcc')
    e('s_cbranch_execz L_h_nocode')
    if int(opts.get('pfcode', 1)): e('global_load_dword v2, v1, s[32:33]')
    e.label('L_h_nocode')
    e('s_mov_b64 exec, s[34:35]')
    e('s_mov_b32 s41, s24')
    e('s_mov_b32 s42, s25')
    e('s_sub_u32 s26, s2, 224')
    e('s_sub_u32 s27, s24, 8')
    e('s_mul_i32 s27, s27, 6')
    e('s_add_u32 s27, s27, s25')
    e('s_add_u32 s27, s27, 30')
    e('s_cmp_ge_u32 s24, 12')
    e('s_cselect_b32 s26, s26, s27')
    e('s_mul_i32 s27, s26, 49152')
    e('v_lshl_add_u32 v4, v0, 4, s27')
    for k in range(4): e('v_mov_b32 %s, -1' % v(8 + k))
    e('s_and_b32 s24, s24, 3')
    e('s_mul_i32 s24, s24, 144')
    e('s_and_b32 s25, s25, 1')
    e('s_lshl_b32 s25, s25, 9')
    for k in range(2):
        e('v_add_u32 v16, %d, v0' % (512 * k))
        e('v_min_u32 v16, 719, v16')
        div_small(e, 5, 6, 16, 5, 7)
        e('v_add_u32 v5, s24, v5')
        e('v_lshl_add_u32 v6, v6, 7, s25')
        e('v_mul_u32_u24 v7, 3456, v5')
        e('v_mul_u32_u24 v5, 1152, v5')
        e('v_add_u32 %s, v7, v6' % v(14 + k))
        e('v_add_u32 %s, v5, v6' % v(12 + k))
    order = opts.get('horder', 'wqwc')
    e('s_waitcnt lgkmcnt(0)')
    for ch in order:
        if ch == 'w': e('s_waitcnt vmcnt(0)')
        if ch == 'f': first_touch(e, 's41', 's42', 24, 20)
        if ch == 'G': first_touch(e, 's41', 's42', 24, 21, 5)
        if ch == 'g':
            e('s_and_b32 s39, s41, 3')
            e('s_add_u32 s39, s39, 5')
            for k in range(3): touch_tiles(e, 0, 's39', 384 * k, 384, 's42', 24, 21 + k)
        if ch == 's':
            e('s_mov_b32 s28, %d' % int(opts.get('hspin', 100)))
            e.label('L_h_spin')
            e('s_sleep 1')
            e('s_sub_u32 s28, s28, 1')
            e('s_cbranch_scc0 L_h_spin')
        if ch == 't':
            e('s_and_b32 s27, s2, 7')
            e('s_lshl_b32 s27, s27, 2')
            e('v_mov_b32 v5, s27')
            e('s_mov_b32 s28, %d' % SPIN)
            e('v_readfirstlane_b32 s29, v0')
            e('s_cmp_lg_u32 s29, 0')
            e('s_cbranch_scc1 L_h_trigd')
            e('s_mov_b64 exec, 1')
            e.label('L_h_trig')
            e('global_load_dword v6, v5, s[54:55] offset:16 sc1')
            e('s_sub_u32 s28, s28, 1')
            e('s_cbranch_scc1 L_h_trigd')
            e('s_waitcnt vmcnt(0)')
            e('v_cmp_eq_u32 vcc, 0, v6')
            e('s_cbranch_vccnz L_h_trig')
            e.label('L_h_trigd')
            e('s_mov_b64 exec, -1')
            e('s_barrier')
        if ch == 'q':
            for k in range(2): e('global_load_dword %s, %s, s[48:49]' % (v(16 + k), v(14 + k)))
        if ch == 'o':
            for k in range(2): e('global_load_dword %s, %s, s[50:51]' % (v(18 + k), v(12 + k)))
        if ch == 'c':
            for k in range(6):
                e('global_store_dwordx4 v4, v[8:11], s[56:57] sc1')
                if k < 5: e('v_add_u32 v4, 8192, v4')
    e('s_and_b32 s26, s26, 3')
    e('s_lshl_b32 s26, s26, 6')
    e('v_mov_b32 v5, s26')
    e('v_mov_b32 v6, 1')
    e('v_cmp_eq_u32 vcc, 0, v0')
    e('s_waitcnt vmcnt(0)')
    e('s_barrier')
    e('s_and_saveexec_b64 s[34:35], vcc')
    e('s_cbranch_execz L_h_noadd')
    e('global_atomic_add v5, v6, s[54:55] sc1')
    e.label('L_h_noadd')
    e('s_mov_b64 exec, s[34:35]')
    if 'q' not in order:
        for k in range(2): e('global_load_dword %s, %s, s[48:49]' % (v(16 + k), v(14 + k)))
    if 'o' not in order:
        for k in range(2): e('global_load_dword %s, %s, s[50:51]' % (v(18 + k), v(12 + k)))
    e('s_endpgm')
```

```python
import sys
from asmlib import *
import gen_a
KN = 'concat_heads__ssm_conv_s4__linear_attn_block__prompt_kernel'
HEAD = open('concat_heads__ssm_conv_s4__linear_attn_block__prompt.s.ref').read().split('; Override launch')[0]
LDS = 163840
STAMP_BASE = 64 << 20

def make(stamps=False, roles='AB', opts=None):
    opts = opts or {}
    e = Asm()
    nst = [0]
    def mk_stamp(role):
        if not stamps: return None
        def st(i):
            e('%s %s' % ('s_memrealtime' if opts.get('rt') else 's_memtime', s(64 + 2 * i, 2)))
        return st
    e.label(KN)
    probe = opts.get('probe')
    if stamps or probe:
        e('s_memrealtime s[60:61]')
        e('s_memrealtime s[62:63]' if opts.get('rt') else 's_memtime s[62:63]')
    import gen_b
    e.secs = {'head': e.L}
    e('s_load_dwordx16 s[4:19], s[0:1], 0')
    e('s_load_dwordx8 s[44:51], s[0:1], 64')
    e('s_load_dwordx4 s[52:55], s[0:1], 96')
    e('s_load_dwordx2 s[56:57], s[0:1], 112')
    e('s_cmp_ge_u32 s2, 128')
    e('s_cbranch_scc1 L_roleA')
    if 'B' in roles: gen_b.role_b(e, mk_stamp('B'), opts)
    else: e('s_branch L_exit')
    e.section('ahead', False)
    gen_a.role_a(e, mk_stamp('A'), opts)
    e.section('helper', False)
    gen_b.role_h(e, opts)
    e.section('exit', False)
    e.label('L_exit')
    e('s_endpgm')
    order = ['head', 'ahead', 'helper', 'exit', 'amain', 'loader', 'compute', 'strict']
    assert set(e.secs) <= set(order)
    lines = sum([e.secs.get(k, []) for k in order], [])
    keep = len(e.secs['head']) + len(e.secs['ahead']) + len(e.secs['helper']) + len(e.secs['exit'])
    if 'A' not in roles:
        k = lines.index('s_cbranch_scc1 L_roleH')
        lines.insert(k + 1, 's_branch L_exit')
    if probe:
        k = [i for i, l in enumerate(lines) if l == 's_endpgm'][-1 if probe[0] == 'b' else 2]
        d = Asm()
        d('s_waitcnt vmcnt(0)')
        d('s_memrealtime s[62:63]' if probe[1:] == 'rt' else 's_memtime s[64:65]')
        d('s_memrealtime s[66:67]')
        d('s_waitcnt lgkmcnt(0)')
        if probe[1:] == 'rt':
            d('s_sub_u32 s6, s62, s60')
            d('s_lshl_b32 s6, s6, 2')
        else:
            d('s_sub_u32 s6, s64, s62')
            d('s_lshr_b32 s6, s6, 3')
        d.label('L_probe')
        d('s_memrealtime s[68:69]')
        d('s_waitcnt lgkmcnt(0)')
        d('s_sub_u32 s7, s68, s66')
        d('s_cmp_lt_u32 s7, s6')
        d('s_cbranch_scc1 L_probe')
        lines = lines[:k] + d.L + lines[k:]
    if stamps:
        out = []
        for k, l in enumerate(lines):
            if l == 's_endpgm' and k > keep: out.append('s_branch L_dump')
            else: out.append(l)
        lines = out
        d = Asm()
        d.label('L_dump')
        d('s_waitcnt vmcnt(0)')
        d('s_memrealtime s[96:97]' if opts.get('rt') else 's_memtime s[96:97]')
        d('s_memrealtime s[98:99]')
        d('s_load_dwordx2 s[4:5], s[0:1], 112')
        d('v_mbcnt_lo_u32_b32 v1, -1, 0')
        d('v_mbcnt_hi_u32_b32 v1, -1, v1')
        d('s_waitcnt lgkmcnt(0)')
        d('v_mov_b32 v2, s60')
        for i in range(17):
            d('s_sub_u32 s6, %s, s62' % s(64 + 2 * i))
            d('v_mov_b32 v3, s6')
            d('v_cmp_eq_u32 vcc, %d, v1' % (i + 2))
            d('v_cndmask_b32 v2, v2, v3, vcc')
        d('v_mov_b32 v3, s98')
        d('v_cmp_eq_u32 vcc, 1, v1')
        d('v_cndmask_b32 v2, v2, v3, vcc')
        d('s_lshl_b32 s6, s2, 3')
        d('s_add_u32 s6, s6, s24')
        d('s_lshl_b32 s6, s6, 8')
        d('s_add_u32 s6, s6, %d' % STAMP_BASE)
        d('v_lshl_add_u32 v1, v1, 2, s6')
        d('global_store_dword v1, v2, s[4:5]')
        d('s_endpgm')
        lines += d.L
    lines, added = pad_hazards(lines)
    lines = [l.replace('KERNEL_START', KN).replace('KERNEL_END', 'L_end') for l in lines] + ['L_end:']
    body = '\n'.join(l if l.endswith(':') else '    ' + l for l in lines)
    txt = HEAD + '; @launch grid=(256,1,1) block=(512,1,1) lds=%d\n' % LDS
    txt += '.amdgcn_target "amdgcn-amd-amdhsa--gfx950"\n.text\n.globl %s\n.p2align 8\n.type %s,@function\n' % (KN, KN)
    txt += body + '\n'
    txt += '''.section .rodata,"a"
.p2align 6
.amdhsa_kernel %s
  .amdhsa_next_free_vgpr 256
  .amdhsa_next_free_sgpr 102
  .amdhsa_accum_offset 112
  .amdhsa_group_segment_fixed_size 0
  .amdhsa_kernarg_size 120
  .amdhsa_user_sgpr_count 2
  .amdhsa_user_sgpr_kernarg_segment_ptr 1
  .amdhsa_system_sgpr_workgroup_id_x 1
.end_amdhsa_kernel
''' % KN
    return txt, added

if __name__ == '__main__':
    out = sys.argv[1]
    stamps = 'stamps' in sys.argv[2:]
    roles = [x for x in sys.argv[2:] if x in ('A', 'B', 'AB')]
    opts = dict(x.split('=') for x in sys.argv[2:] if '=' in x)
    txt, added = make(stamps, roles[0] if roles else 'AB', opts)
    open(out, 'w').write(txt)
    print('wrote', out, len(txt), 'bytes; nop states added', added)
```

```python
from asmlib import *
from gen_a import f2u, LOG2E
EPS = f2u(1e-6)
SLOT = 34816; WOFF = 16384
WQ_LO = SLOT; WQ_HI = 4 * SLOT; IMG = WQ_HI + 3 * 4608
SCR = 3 * SLOT
CST = SLOT - 4096
LCNT = IMG + 9216
STG = WQ_LO + 5 * 4608
def wo_base(ks): return 4608 * ks if ks < 6 else SCR + 4608 * (ks - 6) if ks < 13 else WQ_LO + 4608 * (ks - 13)
KVP = 0; OB = 8 * 4 * 12288; HAND = OB + 16 * 8 * 18 * 1024
SPIN = 20000
def wq_base(ks): return WQ_LO + 4608 * ks if ks < 15 else WQ_HI + 4608 * (ks - 15)

def div_small(e, q, r, x, d, t):
    e('v_mul_u32_u24 %s, %d, %s' % (v(q), (1 << 16) // d + 1, v(x)))
    e('v_lshrrev_b32 %s, 16, %s' % (v(q), v(q)))
    e('v_mul_u32_u24 %s, %d, %s' % (v(t), d, v(q)))
    e('v_sub_u32 %s, %s, %s' % (v(r), v(x), v(t)))
for d in (5, 9, 18):
    assert all((x * ((1 << 16) // d + 1)) >> 16 == x // d for x in range(1024))

def phi_pair(e, x, dst, t, plain=False):
    if plain:
        return [lambda: e('v_mul_f32 %s, s36, %s' % (v(t), v(x))),
                lambda: e('v_mul_f32 %s, s36, %s' % (v(t + 1), v(x + 1))),
                lambda: e('v_max_f32 %s, s38, %s' % (v(t + 2), v(x))),
                lambda: e('v_exp_f32_e64 %s, %s clamp' % (v(t), v(t))),
                lambda: e('v_max_f32 %s, s38, %s' % (v(t + 3), v(x + 1))),
                lambda: e('v_exp_f32_e64 %s, %s clamp' % (v(t + 1), v(t + 1))),
                lambda: e('v_add_f32 %s, %s, %s' % (v(t), v(t), v(t + 2))),
                lambda: e('v_add_f32 %s, %s, %s' % (v(t + 1), v(t + 1), v(t + 3))),
                lambda: e('v_cvt_pk_bf16_f32 %s, %s, %s' % (v(dst), v(t), v(t + 1)))]
    return [lambda: e('v_pk_mul_f32 %s, %s, s[36:37]' % (v(t, 2), v(x, 2))),
            lambda: e('v_max_f32 %s, s38, %s' % (v(t + 2), v(x))),
            lambda: e('v_exp_f32_e64 %s, %s clamp' % (v(t), v(t))),
            lambda: e('v_exp_f32_e64 %s, %s clamp' % (v(t + 1), v(t + 1))),
            lambda: e('v_max_f32 %s, s38, %s' % (v(t + 3), v(x + 1))),
            lambda: e('v_pk_add_f32 %s, %s, %s' % (v(t, 2), v(t, 2), v(t + 2, 2))),
            lambda: e('v_cvt_pk_bf16_f32 %s, %s, %s' % (v(dst), v(t), v(t + 1)))]
def zipper(*streams):
    streams = [list(x) for x in streams]
    while any(streams):
        for st in streams:
            if st: st.pop(0)()

def touch_tiles(e, idx, chunk, lo, n, x_, tmp, dst):
    t0, t1, t2, t3 = tmp, tmp + 1, tmp + 2, tmp + 3
    e('v_min_u32 %s, %d, %s' % (v(t0), n - 1, v(idx)))
    e('v_add_u32 %s, %s, %s' % (v(t0), lo, v(t0)))
    e('s_lshr_b32 s36, %s, 1' % x_)
    e('s_mul_i32 s36, s36, %d' % (512 * 1152))
    e('s_lshl_b32 s37, %s, 7' % chunk)
    e('s_add_u32 s36, s36, s37')
    e('s_and_b32 s37, %s, 1' % x_)
    e('s_lshl_b32 s37, s37, 9')
    e('s_mul_i32 s38, %s, %d' % (chunk, 64 * 3456))
    e('s_add_u32 s37, s37, s38')
    e('s_add_u32 s37, s37, 1152')
    e('v_cmp_gt_u32 vcc, 512, %s' % v(t0))
    e('v_mul_u32_u24 %s, 1152, %s' % (v(t1), v(t0)))
    e('v_add_u32 %s, s36, %s' % (v(t1), v(t1)))
    e('v_subrev_u32 %s, 512, %s' % (v(t0), v(t0)))
    e('v_max_i32 %s, 0, %s' % (v(t0), v(t0)))
    div_small(e, t2, t3, t0, 5, t0 + 4)
    e('v_and_b32 %s, 1, %s' % (v(t0), v(t2)))
    e('v_lshrrev_b32 %s, 1, %s' % (v(t2), v(t2)))
    e('v_mul_u32_u24 %s, 3456, %s' % (v(t2), v(t2)))
    e('v_mul_u32_u24 %s, 1152, %s' % (v(t0), v(t0)))
    e('v_lshl_add_u32 %s, %s, 7, s37' % (v(t3), v(t3)))
    e('v_add3_u32 %s, %s, %s, %s' % (v(t2), v(t2), v(t0), v(t3)))
    e('v_mov_b32 %s, s46' % v(t0))
    e('v_mov_b32 %s, s48' % v(t3))
    e('v_cndmask_b32 %s, %s, %s, vcc' % (v(t1), v(t2), v(t1)))
    e('v_cndmask_b32 %s, %s, %s, vcc' % (v(t2), v(t3), v(t0)))
    e('v_mov_b32 %s, s47' % v(t0))
    e('v_mov_b32 %s, s49' % v(t3))
    e('v_cndmask_b32 %s, %s, %s, vcc' % (v(t3), v(t3), v(t0)))
    e('v_add_co_u32 %s, vcc, %s, %s' % (v(t2), v(t2), v(t1)))
    e('v_addc_co_u32 %s, vcc, 0, %s, vcc' % (v(t3), v(t3)))
    e('global_load_dword %s, %s, off' % (v(dst), v(t2, 2)))

def first_touch(e, j_, x_, tmp, dst, first=1):
    e('s_and_b32 s39, %s, 3' % j_)
    e('s_add_u32 s39, s39, %d' % first)
    e('s_lshr_b32 s40, %s, 2' % j_)
    e('s_mul_i32 s40, s40, 288')
    touch_tiles(e, 0, 's39', 's40', 288, x_, tmp, dst)

def role_b(e, stamp, opts):
    stamp = stamp or (lambda i: None)
    rot = int(opts.get('rot', 0))
    e('v_lshrrev_b32 v2, 6, v0')
    e('v_and_b32 v1, 63, v0')
    e('v_readfirstlane_b32 s24, v2')
    e('s_and_b32 s32, s2, 7')
    e('s_lshr_b32 s33, s2, 3')
    e('s_and_b32 s34, s33, 3')
    e('s_lshr_b32 s33, s33, 2')
    e('s_lshr_b32 s25, s32, 1')
    e('s_lshl_b32 s25, s25, 2')
    e('s_add_u32 s25, s25, s34')
    e('s_and_b32 s26, s32, 1')
    e('s_lshl_b32 s26, s26, 2')
    e('s_add_u32 s26, s26, s33')
    if rot:
        e('s_add_u32 s27, s33, s34')
        e('s_and_b32 s27, s27, 3')
        e('s_lshl_b32 s27, s27, 1')
        e('s_lshr_b32 s35, s32, 1')
        e('s_xor_b32 s35, s35, s32')
        e('s_and_b32 s35, s35, 1')
        e('s_add_u32 s27, s27, s35')
    else:
        e('s_mov_b32 s27, 0')
    e('v_and_b32 v2, 15, v1')
    e('v_lshrrev_b32 v3, 4, v1')
    e('s_cmp_lt_u32 s24, 4')
    e('s_cbranch_scc1 L_b_compute')
    loader(e, stamp, opts)
    e.section('compute', False)
    e.label('L_b_compute')
    compute(e, stamp, opts)

def compute(e, stamp, opts):
    e.nvm = 0; e.nlg = 0
    ACC = 8; RING = 80; NR = 6; D = 4
    acc = lambda ct, rt: ACC + 8 * ct + 4 * rt
    e('s_mov_b32 s36, 0x%08x' % LOG2E)
    e('s_mov_b32 s37, s36')
    e('s_mov_b32 s38, 0x%08x' % EPS)
    e('s_lshl_b32 s32, s24, 12')
    e('v_and_b32 v104, 7, v2')
    e('v_xor_b32 v105, v3, v104')
    e('v_lshlrev_b32 v106, 7, v2')
    e('v_add_u32 v106, s32, v106')
    e('v_lshl_add_u32 v4, v105, 4, v106')
    e('v_xor_b32 v105, 4, v105')
    e('v_lshl_add_u32 v5, v105, 4, v106')
    e('v_lshrrev_b32 v104, 2, v2')
    e('v_and_b32 v105, 3, v2')
    e('v_lshlrev_b32 v105, 3, v105')
    e('v_lshl_add_u32 v106, v3, 2, v104')
    e('v_mul_u32_u24 v106, 288, v106')
    e('v_add_u32 v106, v106, v105')
    e('v_add_u32 v6, %d, v106' % WOFF)
    e('v_lshlrev_b32 v104, 1, v104')
    e('v_lshl_add_u32 v104, v3, 3, v104')
    e('v_mul_u32_u24 v104, 144, v104')
    e('v_add_u32 v104, v104, v105')
    e('v_add_u32 v7, %d, v104' % WQ_LO)
    e('v_cmp_gt_u32 vcc, 8, v2')
    for k in range(4): e('v_mov_b32 %s, s38' % v(108 + k))
    for k in range(4): e('v_cndmask_b32 %s, 0, v108, vcc' % v(104 + k))
    e('v_cmp_gt_u32 s[40:41], 2, v3')
    e('v_cmp_gt_u32 s[42:43], 3, v3')
    e('s_waitcnt lgkmcnt(0)')
    e('s_mov_b64 s[10:11], s[52:53]')
    e('s_mov_b64 s[14:15], s[56:57]')
    stamp(0)
    F = [(p, s_, ct) for p in range(8) for s_ in range(2) for ct in range(9)]
    F += [(8, s_, ct) for s_ in range(2) for ct in range(5)] + [(8, s_, ct) for s_ in range(2) for ct in range(5, 9)]
    tok = {}
    def items(f):
        p, s_, ct = F[f]
        it = []
        if ct == 0 and s_ == 0:
            pre = []
            if p:
                dl = SLOT if p % 4 else -3 * SLOT
                for r in (4, 5, 6): pre.append('v_add_u32 %s, %d, %s' % (v(r), dl, v(r)) if dl > 0 else 'v_subrev_u32 %s, %d, %s' % (v(r), -dl, v(r)))
            if p == 8: pre.append('s_waitcnt lgkmcnt(0)')
            pre.append('s_barrier')
            it.append(lambda: (e('\n'.join(pre)), stamp({0: 1, 4: 2, 8: 3}[p]) if p in (0, 4, 8) else None))
        if ct == 0:
            for rt in range(2): it.append(lambda rt=rt: e('ds_read_b128 %s, %s offset:%d' % (a(16 * p + 8 * s_ + 4 * rt, 4), v(4 + s_), 2048 * rt)))
        r = RING + 4 * (f % NR)
        for h in range(2): it.append(lambda h=h: e('ds_read_b64_tr_b16 %s, v6 offset:%d' % (v(r + 2 * h, 2), 9216 * s_ + 4608 * h + 32 * ct)))
        return it
    for f in range(D):
        for x in items(f): x()
        tok[f] = e.lg()
    def put(fi, r):
        if fi < 8: e('ds_write_b128 v4, %s offset:%d' % (v(r, 4), 1024 * fi))
        else: e('ds_write_b128 v5, %s offset:%d' % (v(r, 4), 1024 * (fi - 8)))
    def phi_tile(x, dst, t, plain):
        zz = [phi_pair(e, x[k], dst[k], t + 4 * k, plain=plain) for k in range(4)]
        return [z[k] for k in range(len(zz[0])) for z in zz]
    late = []
    for f, (p, s_, ct) in enumerate(F):
        it = items(f + D) if f + D < len(F) else []
        e.wait_lg(tok[f])
        for rt in range(2):
            c = v(acc(ct, rt), 4) if f >= 9 else 'v[108:111]' if ct < 4 else 'v[104:107]' if ct == 4 else '0'
            e('v_mfma_f32_16x16x32_bf16 %s, %s, %s, %s' % (v(acc(ct, rt), 4), a(16 * p + 8 * s_ + 4 * rt, 4), v(RING + 4 * (f % NR), 4), c))
            h = (len(it) + 1) // 2
            for x in (it[:h] if rt == 0 else it[h:]): x()
        tok[f + D] = e.lg()
    stamp(4)
    e('s_lshl_b32 s32, s24, 13\ns_add_u32 s32, s32, %d\nv_lshl_add_u32 v4, v1, 4, s32' % SCR)
    e('s_lshl_b32 s32, s24, 12\nv_lshl_add_u32 v5, v1, 4, s32')
    for t in range(5):
        o = acc(t, 0) if t < 4 else 96
        for x in phi_tile([acc(t, 0) + 2 * k for k in range(4)], [o + k for k in range(4)], 80, False): x()
        put(t, o)
        o = acc(4 + t, 0) if t else 100
        for k in range(4): e('v_cvt_pk_bf16_f32 %s, %s, %s' % (v(o + k), v(acc(4 + t, 0) + 2 * k), v(acc(4 + t, 0) + 2 * k + 1)))
        put(5 + t, o)
    e('v_add_u32 v6, %d, v7' % (WQ_HI - WQ_LO))
    e('s_waitcnt lgkmcnt(0)')
    stamp(5)
    e('s_barrier')
    def gemm144(where, c0, G, ring, hook=None, xs=lambda ks, rt: a(8 * ks + 4 * rt, 4)):
        RG, NG, DG = ring
        tk = {}
        def iss(f, h):
            ks, ct = G[f]
            ad, off = where(ks)
            e('ds_read_b64_tr_b16 %s, %s offset:%d' % (v(RG + 4 * (f % NG) + 2 * h, 2), ad, off + 144 * h + 32 * ct))
            tk[f] = e.lg()
        for f in range(DG): iss(f, 0); iss(f, 1)
        for f, (ks, ct) in enumerate(G):
            if hook: hook(f, ks, ct, 0)
            e.wait_lg(tk[f])
            for rt in range(2):
                e('v_mfma_f32_16x16x32_bf16 %s, %s, %s, %s' % (v(acc(ct, rt), 4), v(RG + 4 * (f % NG), 4), xs(ks, rt), v(acc(ct, rt), 4) if ks else c0))
                if f + DG < len(G): iss(f + DG, rt)
                if hook: hook(f, ks, ct, 1 + rt)
    PQ = 48
    def phi_q(t, plain): return phi_tile([acc(t, k >> 1) + 2 * (k & 1) for k in range(4)], [PQ + 10 * (k >> 1) + 2 * t + (k & 1) for k in range(4)], 92 if plain else 68, plain)
    NQ = int(opts.get('nq', 5))
    rest = []
    def qhook(f, ks, ct, ph):
        if f == 18 * NQ + 1 and ph == 0:
            for t in range(NQ): rest.extend(phi_q(t, True))
        if ph and rest: rest.pop(0)()
    gemm144(lambda ks: ('v7', wq_base(ks) - WQ_LO) if ks < 15 else ('v6', wq_base(ks) - WQ_HI), 'v[108:111]',
            [(ks, ct) for ks in range(18) for ct in range(NQ)] + [(ks, ct) for ks in range(18) for ct in range(NQ, 5)], (68, 6, 4), qhook)
    stamp(6)
    for x in rest: x()
    for t in range(NQ if NQ < 5 else 0, 5):
        for x in phi_q(t, False): x()
    DEN = 68
    e('v_lshlrev_b32 v4, 3, v1')
    e('v_add_u32 v4, %d, v4' % IMG)
    e('s_add_u32 s16, s14, %d' % OB)
    e('s_addc_u32 s17, s15, 0')
    e('s_mov_b32 s18, %d' % (HAND - OB))
    e('s_mov_b32 s19, 0x20000')
    e('s_lshl_b32 s32, s25, 3')
    e('s_lshl_b32 s33, s24, 1')
    e('s_add_u32 s32, s32, s33')
    e('s_mul_i32 s32, s32, %d' % (18 * 1024))
    e('v_lshl_add_u32 v105, v1, 4, s32')
    e('v_add_u32 v106, %d, v105' % (18 * 1024))
    e('s_lshl_b32 s20, s26, 11')
    e('s_lshr_b32 s33, s26, 2')
    e('s_lshl_b32 s33, s33, 10')
    e('s_and_b32 s34, s26, 3')
    e('s_lshl_b32 s34, s34, 8')
    e('s_add_u32 s33, s33, s34')
    e('s_add_u32 s33, s33, s32')
    e('s_add_u32 s33, s33, %d' % (16 * 1024 - 16))
    e('s_movk_i32 s21, %d' % (18 * 1024))
    e('v_lshlrev_b32 v104, 4, v2')
    e('v_lshl_add_u32 v104, v3, 3, v104')
    e('v_add_u32 v104, s33, v104')
    stamp(7)
    e('s_barrier')
    stamp(8)
    t0 = e.lg()
    for pl in list(range(13, 18)) + list(range(13)): e('ds_read_b64 %s, v4 offset:%d' % (a(2 * pl, 2), 512 * pl))
    def mm(d, pl, dt, n, rt, c):
        e('v_mfma_f32_16x16x%d_bf16 %s, %s, %s, %s' % (16 * n, v(d, 4), a(2 * pl, 2 * n), v(PQ + 10 * rt + 2 * dt, 2 * n), c))
    e.wait_lg(t0 + 5)
    for pl, dt, n in ((13, 0, 2), (15, 2, 2), (17, 4, 1)):
        for rt in range(2): mm(DEN + 4 * rt, pl, dt, n, rt, v(DEN + 4 * rt, 4) if dt else 'v[108:111]')
    OUT = PQ
    def scale(rt):
        i = DEN + 4 * rt; t = 76 + 4 * rt; o = OUT + 10 * rt
        pre = [lambda k=k: e('v_rcp_f32 %s, %s' % (v(i + k), v(i + k))) for k in range(4)]
        pre += [lambda: e('v_cndmask_b32 %s, %s, %s, s[42:43]' % (v(t), v(i + 1), v(i))),
                lambda: e('v_cndmask_b32 %s, %s, %s, s[40:41]' % (v(t + 1), v(i + 1), v(i))),
                lambda: e('v_cndmask_b32 %s, %s, %s, s[42:43]' % (v(t + 2), v(i + 2), v(i + 1))),
                lambda: e('v_cndmask_b32 %s, %s, %s, s[42:43]' % (v(t + 3), v(i + 3), v(i + 2)))]
        sc = {0: (i, i), 1: (t, t + 1), 2: (t + 2, t + 2), 3: (i + 2, t + 3), 4: (i + 3, i + 3)}
        st = []
        for u in (0, 4, 1, 2, 3):
            for k in range(2):
                f_ = sc[u][k]
                st.append(lambda u=u, k=k, f_=f_: e('v_pk_mul_f32 %s, %s, %s op_sel:[0,%d] op_sel_hi:[1,%d]' % (v(acc(u, rt) + 2 * k, 2), v(acc(u, rt) + 2 * k, 2), v(f_ & ~1, 2), f_ & 1, f_ & 1)))
        for u in (0, 4, 1, 2, 3):
            d = o + (2 * (u - 1) if u else 8)
            for k in range(2): st.append(lambda u=u, k=k, d=d: e('v_cvt_pk_bf16_f32 %s, %s, %s' % (v(d + k), v(acc(u, rt) + 2 * k), v(acc(u, rt) + 2 * k + 1))))
        for d in (o, o + 4, o + 8): st.append(lambda d=d: e('v_min_u32 %s, -2, %s' % (v(d), v(d))))
        st.append(lambda: e('buffer_store_dwordx4 %s, %s, s[16:19], s20 offen sc1' % (v(o, 4), v(105 + rt))))
        st.append(lambda: e('buffer_store_dwordx4 %s, %s, s[16:19], s20 offen offset:1024 sc1' % (v(o + 4, 4), v(105 + rt))))
        return pre, st
    (p0, s0), (p1, s1) = scale(0), scale(1)
    fill = p0 + p1
    e.wait_lg(t0 + 18)
    for rt in range(2):
        ops = [(u, 2 * u + first, first, 2, '0') for u, first in enumerate((0, 0, 1, 2, 3))]
        ops = [ops[1], ops[2], ops[3], ops[0], ops[4]] + [(u, 2 * u + first + 2, first + 2, 1, None) for u, first in ((1, 0), (2, 1), (3, 2))]
        for k, (u, pl, dt, n, c) in enumerate(ops):
            mm(acc(u, rt), pl, dt, n, rt, c or v(acc(u, rt), 4))
            if rt or k >= 2:
                for x in fill[:2]: x()
                fill = fill[2:]
    for x in fill + s0 + s1: x()
    e('s_mov_b32 exec_lo, 0')
    e('buffer_store_dwordx2 %s, v104, s[16:19], 0 offen sc1' % v(OUT + 8, 2))
    e('buffer_store_dwordx2 %s, v104, s[16:19], s21 offen sc1' % v(OUT + 18, 2))
    e('s_mov_b32 exec_lo, -1')
    stamp(9)
    e('v_subrev_u32 v7, %d, v7' % WQ_LO)
    e('v_add_u32 v6, %d, v7' % SCR)
    e('s_mov_b32 s39, 0')
    e('s_movk_i32 s23, %d' % (16 * 1024))
    e('s_barrier')
    e.label('L_b_gemm2')
    otok = {}
    AHEAD = int(opts.get('ahead', 4))
    osrc = lambda ks, rt: v(OUT + 10 * rt + 4 * ks, 4) if ks < 2 else a(8 * ks + 4 * rt, 4)
    def oload(j, rt):
        if j < 16 and rt == 0:
            e('s_add_u32 s22, s22, 1024')
            e('s_and_b32 s22, s22, 0x3fff')
        e('buffer_load_dwordx4 %s, %s, s[16:19], %s offen%s sc1' % (osrc(j, rt), v(105 + rt), 's22' if j < 16 else 's23', ' offset:1024' if j == 17 else ''))
        otok[j] = e.vm()
    pend = [(j, rt) for j in range(2, 18) for rt in range(2)]
    tail = []
    def put_out(ct):
        r = []
        for rt in range(2):
            d = 48 + 4 * ct + 2 * rt
            for k in range(2): r.append(lambda d=d, k=k, rt=rt: e('v_cvt_pk_bf16_f32 %s, %s, %s' % (v(d + k), v(acc(ct, rt) + 2 * k), v(acc(ct, rt) + 2 * k + 1))))
            r.append(lambda d=d, rt=rt: e('ds_write_b64 v4, %s offset:%d' % (v(d, 2), 2304 * rt + 32 * ct)))
        return r
    def hook(f, ks, ct, ph):
        if f == 10 and ph == 0:
            e('s_lshl_b32 s32, s25, 7')
            e('s_lshl_b32 s33, s24, 5')
            e('s_add_u32 s32, s32, s33')
            e('s_mul_i32 s32, s32, 2304')
            e('s_mul_i32 s33, s26, 144')
            e('s_add_u32 s32, s32, s33')
            e('s_add_u32 s32, s32, 1152')
            for j in range(5):
                e('v_add_u32 v48, %d, v1' % (64 * j))
                div_small(e, 49, 50, 48, 9, 51)
                e('v_mul_u32_u24 v49, 2304, v49')
                e('v_lshl_add_u32 v49, v50, 4, v49')
                e('v_add_u32 %s, s32, v49' % v(108 + j if j < 4 else 104))
            e('s_mul_i32 s33, s24, 4608')
            e('s_add_u32 s33, s33, %d' % STG)
            e('v_mul_u32_u24 v4, 144, v2')
            e('v_lshl_add_u32 v4, v3, 3, v4')
            e('v_add_u32 v4, s33, v4')
            e('v_lshl_add_u32 v5, v1, 4, s33')
            e('s_mov_b32 s44, %d' % SPIN)
            e('s_add_u32 s22, s20, 1024')
            e('v_lshlrev_b32 v107, 8, v1')
            e('v_lshlrev_b32 v48, 4, v1')
            e('v_sub_u32 v107, v107, v48')
            e('v_add_u32 v107, v107, v106')
            e('s_mov_b64 exec, 0xff')
            e.label('L_b_probe')
            e('buffer_load_dword v68, v107, s[16:19], s23 offen offset:248 sc1')
            e('s_sub_u32 s44, s44, 1')
            e('s_cbranch_scc1 L_b_probed')
            e('s_waitcnt vmcnt(0)')
            e('v_cmp_eq_u32 vcc, -1, v68')
            e('s_cbranch_vccnz L_b_probe')
            e.label('L_b_probed')
            e('s_mov_b64 exec, -1')
            if opts.get('count'): e('s_sub_u32 s92, s62, s44\ns_add_u32 s92, s92, %d' % SPIN)
            stamp(10)
            e.nvm = 0
            for _ in range(2 * AHEAD): oload(*pend.pop(0))
            stamp(11)
        if ct == 0 and ph == 0 and 2 <= ks: e.wait_vm(otok[ks])
        if ph == 1 and pend and f >= 10 and ct in ((0, 1, 2, 3) if f < 25 else (1, 3)): oload(*pend.pop(0))
        if ks == 17:
            if ph == 0 and 2 <= ct: tail.extend(put_out(ct - 2))
            if ph:
                for x in tail[:2]: x()
                del tail[:2]
    gemm144(lambda ks: ('v6', wo_base(ks) - SCR) if 6 <= ks < 13 else ('v7', wo_base(ks)), '0',
            [(ks, ct) for ks in range(18) for ct in range(5)], (72, 8, 5), hook, osrc)
    stamp(12)
    for x in tail + put_out(3): x()
    e('s_cmp_lg_u32 s39, 0')
    e('s_cbranch_scc1 L_b_store')
    e('v_cmp_u_f32 vcc, %s, %s' % (v(acc(0, 0)), v(acc(0, 1))))
    e('s_cbranch_vccnz L_b_strict')
    e.label('L_b_store')
    e('s_mov_b32 exec_hi, 0')
    for x in put_out(4): x()
    e('s_mov_b32 exec_hi, -1')
    t0 = e.lg()
    for j in range(5): e('ds_read_b128 %s, v5 offset:%d' % (v(8 + 4 * j, 4), 1024 * j))
    for j in range(5):
        e.wait_lg(t0 + j + 1)
        if j == 4: e('s_mov_b32 exec_hi, 0')
        e('global_store_dwordx4 %s, %s, s[10:11]' % (v(108 + j if j < 4 else 104), v(8 + 4 * j, 4)))
    e('s_mov_b32 exec_hi, -1')
    stamp(13)
    e('s_endpgm')
    e.section('strict', False)
    e.label('L_b_strict')
    e('s_mov_b32 s39, 1')
    e('s_mov_b32 s44, %d' % SPIN)
    e.label('L_b_strict1')
    for ks in range(18):
        e('s_movk_i32 s22, %d' % (1024 * ks))
        for rt in range(2): e('buffer_load_dwordx4 %s, %s, s[16:19], s22 offen sc1' % (a(8 * ks + 4 * rt, 4), v(105 + rt)))
    for rt in range(2):
        for k in range(2): e('buffer_load_dwordx4 %s, %s, s[16:19], s20 offen offset:%d sc1' % (v(OUT + 10 * rt + 4 * k, 4), v(105 + rt), 1024 * k))
    e('s_waitcnt vmcnt(0)')
    e('s_sub_u32 s44, s44, 1')
    e('s_cbranch_scc1 L_b_gemm2')
    e('s_mov_b64 s[32:33], 0')
    for k in range(72):
        if (k & 1) == 0 or k >= 64:
            e('v_accvgpr_read_b32 v68, %s' % a(2 * k))
            e('v_cmp_eq_u32 vcc, -1, v68')
            e('s_or_b64 s[32:33], s[32:33], vcc')
    e('s_cmp_lg_u64 s[32:33], 0')
    e('s_cbranch_scc1 L_b_strict1')
    e('s_branch L_b_gemm2')

def loader(e, stamp, opts):
    e.nvm = 0; e.nlg = 0
    e('s_sub_u32 s39, s24, 4')
    e('v_lshrrev_b32 v4, 3, v1')
    e('v_and_b32 v5, 7, v1')
    e('v_xor_b32 v5, v5, v4')
    e('s_lshl_b32 s32, s25, 7')
    e('s_lshl_b32 s33, s39, 5')
    e('s_add_u32 s32, s32, s33')
    e('v_add_u32 v4, s32, v4')
    e('v_mul_u32_u24 v4, 1152, v4')
    e('v_lshl_add_u32 v8, v5, 4, v4')
    e('s_lshr_b32 s32, s39, 1')
    e('s_lshl_b32 s32, s32, 5')
    e('s_and_b32 s33, s39, 1')
    e('s_lshl_b32 s33, s33, 2')
    e('s_add_u32 s32, s32, s33')
    e('s_mul_i32 s40, s26, 144')
    e('s_mul_i32 s32, s32, 3456')
    e('s_add_u32 s32, s32, s40')
    e('s_add_u32 s32, s32, 1152')
    def woff(j):
        e('v_add_u32 v4, %d, v1' % (64 * j))
        div_small(e, 5, 6, 4, 18, 7)
        e('v_and_b32 v4, 12, v5')
        e('v_add_u32 v4, v4, v5')
        e('v_mul_u32_u24 v4, 3456, v4')
        e('v_cmp_lt_u32 vcc, 8, v6')
        e('v_lshl_add_u32 v4, v6, 4, v4')
        e('v_add_u32 v4, s32, v4')
        e('v_add_u32 v5, 1008, v4')
        e('v_cndmask_b32 %s, v4, v5, vcc' % v(9 + j))
    e('s_lshl_b32 s41, s39, 12')
    e('s_mul_i32 s42, s39, 4608')
    e('s_add_u32 s42, s42, %d' % WOFF)
    e('s_mov_b32 s43, s27')
    e('s_mov_b32 s22, %d\ns_mov_b32 s23, 0x20000' % (576 * 3456))
    e('s_mov_b32 s30, %d\ns_mov_b32 s31, 0x20000' % (576 * 1152))
    e('s_waitcnt lgkmcnt(0)')
    e('s_mov_b64 s[16:17], s[46:47]\ns_mov_b32 s18, %d\ns_mov_b32 s19, 0x20000' % (2048 * 1152))
    e('s_mov_b64 s[20:21], s[48:49]\ns_mov_b64 s[28:29], s[50:51]\ns_mov_b64 s[12:13], s[54:55]\ns_mov_b64 s[14:15], s[56:57]')

    main = e; sd = Asm(); e = sd
    marks = {}
    e('s_lshl_b32 s32, s26, 2')
    e('s_add_u32 s32, s32, s39')
    e('s_mul_i32 s32, s32, 12288')
    e('s_add_u32 s32, s32, %d' % KVP)
    e('v_lshl_add_u32 v15, v1, 4, s32')
    e('s_lshl_b32 s33, s25, 8')
    e('s_add_u32 s32, s32, s33')
    e('v_lshlrev_b32 v14, 4, v2')
    e('v_lshl_add_u32 v14, v3, 12, v14')
    e('v_add_u32 v14, s32, v14')
    marks['clear'] = len(sd.L)
    e('s_mul_i32 s32, s39, 2304')
    e('s_add_u32 s32, s32, %d' % IMG)
    e('v_lshl_add_u32 v4, v1, 4, s32')
    for k in range(4): e('v_mov_b32 %s, 0' % v(40 + k))
    e('ds_write_b128 v4, v[40:43]')
    e('ds_write_b128 v4, v[40:43] offset:1024')
    e('v_lshl_add_u32 v4, v1, 2, s32')
    e('ds_write_b32 v4, v40 offset:2048')
    e('v_mov_b32 v55, %d' % LCNT)
    e('ds_write_b32 v55, v40')
    for j in range(5):
        e('v_add_u32 v4, %d, v1' % (64 * j))
        div_small(e, 5, 6, 4, 9, 7)
        e('v_lshlrev_b32 v6, 4, v6')
        e('v_add_u32 v6, s40, v6')
        e('v_lshrrev_b32 v4, 3, v5')
        e('v_and_b32 v7, 1, v5')
        e('v_bfe_u32 v5, v5, 1, 2')
        e('v_lshl_add_u32 v19, v7, 2, v5')
        e('v_lshl_add_u32 v39, v4, 3, v19')
        e('v_mul_u32_u24 v39, 3456, v39')
        e('v_add_u32 %s, v39, v6' % v(24 + j))
        e('v_lshl_add_u32 v39, v4, 2, v5')
        e('v_lshl_add_u32 v39, v7, 4, v39')
        e('v_mul_u32_u24 v39, 1152, v39')
        e('v_add_u32 %s, v39, v6' % v(29 + j))
        e('v_mul_u32_u24 v39, 72, v4')
        e('v_add_u32 v39, v39, v19')
        e('v_mul_u32_u24 v39, 1152, v39')
        e('v_add_u32 %s, v39, v6' % v(34 + j))
    e('s_lshr_b32 s45, s39, 1')
    e('s_lshl_b32 s46, s39, 1')
    e('s_lshl_b32 s47, s39, 10')
    e('s_add_u32 s47, s47, %d' % CST)
    e('s_add_u32 s32, s47, 768')
    e('v_lshl_add_u32 v44, v2, 3, s32')
    for i in range(2):
        e('v_add_u32 v4, %d, v3' % (4 * i))
        e('v_subrev_u32 v5, s45, v4')
        e('v_cmp_gt_u32 s[48:49], 5, v5')
        e('v_lshlrev_b32 v4, 2, v4')
        e('v_subrev_u32 v4, s46, v4')
        e('v_cmp_gt_u32 %s, 18, v4' % s(52 + 4 * i, 2))
        e('v_add_u32 v4, 2, v4')
        e('v_cmp_gt_u32 %s, 18, v4' % s(54 + 4 * i, 2))
        for j in range(2):
            e('v_add_u32 v6, %d, v2' % (16 * j - 8))
            e('v_subrev_u32 v6, s46, v6')
            e('v_cmp_gt_u32 vcc, 18, v6')
            e('v_mul_u32_u24 v6, 5, v6')
            e('v_add_u32 v6, v6, v5')
            e('s_and_b64 vcc, vcc, s[48:49]')
            e('v_lshl_add_u32 v6, v6, 3, s47')
            e('v_cndmask_b32 %s, v44, v6, vcc' % v(45 + 2 * i + j))
        e('v_cmp_eq_u32 vcc, 0, v2')
        e('v_add_u32 v6, 90, v5')
        e('v_lshl_add_u32 v6, v6, 3, s47')
        e('s_and_b64 vcc, vcc, s[48:49]')
        e('v_cndmask_b32 %s, v44, v6, vcc' % v(49 + i))
    e('s_mul_i32 s32, s39, 18')
    e('s_add_u32 s32, s32, 8')
    e('s_lshl_b32 s33, s39, 2')
    e('s_add_u32 s33, s33, s45')
    e('v_cmp_gt_u32 s[48:49], 2, v3')
    for b in range(3):
        e('v_lshl_add_u32 v4, v2, 1, v3')
        e('v_add_u32 v4, %d, v4' % (32 * b))
        div_small(e, 5, 6, 4, 5, 7)
        e('v_add_u32 v6, s33, v6')
        e('v_add_u32 v7, s32, v5')
        e('v_lshrrev_b32 v19, 4, v7')
        e('v_and_b32 v7, 15, v7')
        e('v_lshrrev_b32 v39, 2, v6')
        e('v_and_b32 v6, 3, v6')
        e('v_lshl_add_u32 v19, v19, 1, v39')
        if b == 2:
            e('v_cmp_eq_u32 vcc, 18, v5')
            e('v_add_u32 v39, 13, v39')
            e('v_cndmask_b32 v19, v19, v39, vcc')
            e('v_mov_b32 v39, s39')
            e('v_cndmask_b32 v7, v7, v39, vcc')
        e('v_lshl_add_u32 v7, v6, 4, v7')
        e('v_lshlrev_b32 v7, 3, v7')
        e('v_lshl_add_u32 v7, v19, 9, v7')
        e('v_add_u32 v7, %d, v7' % IMG)
        if b == 2:
            e('s_and_b64 vcc, vcc, s[48:49]')
            e('v_cndmask_b32 v54, v44, v7, vcc')
            e('v_cmp_gt_u32 vcc, 19, v5')
            e('s_and_b64 s[48:49], vcc, s[48:49]')
        e('v_cndmask_b32 %s, v44, v7, s[48:49]' % v(51 + b))
    e('v_and_b32 v4, 1, v2')
    e('v_lshlrev_b32 v4, 4, v4')
    e('v_mov_b32 v5, 0x3f80')
    e('v_lshlrev_b32 v4, v4, v5')
    e('v_lshrrev_b32 v5, 1, v2')
    for k in range(4):
        e('v_cmp_eq_u32 vcc, %d, v5' % k)
        e('v_mov_b32 %s, 0x3f803f80' % v(60 + k))
        e('v_cndmask_b32 %s, 0, v4, vcc' % v(56 + k))
    for k, df in enumerate((0, 1, 5, 6)):
        e('s_add_u32 s32, s39, %d' % df)
        e('s_lshl_b32 s33, s32, 10')
        e('s_add_u32 s34, s33, %d' % SCR)
        e('s_sub_u32 s33, s33, 8192')
        e('s_movk_i32 %s, 4096' % s(48 + k))
        sd.L.append('s_cmp_lt_u32 s32, 8\ns_cselect_b32 s33, s34, s33\ns_cselect_b32 %s, 8192, %s' % (s(48 + k), s(48 + k)))
        e('v_lshl_add_u32 %s, v1, 4, s33' % v(64 + k))
    e('v_and_b32 v19, 3, v1')
    e('v_lshlrev_b32 v19, 6, v19')
    e = main
    side = list(sd.L); done = [0]
    def run_side(n=None, upto=None):
        stop = upto if upto is not None else min(len(side), done[0] + n)
        while done[0] < stop:
            e(side[done[0]]); done[0] += 1

    ctok = {}
    def chunk(p, per, mid=None):
        sl = SLOT * (p % 4)
        e('s_lshl_b32 s3, s43, 7')
        e('s_mul_i32 s35, s43, %d' % (64 * 3456))
        for j in range(4):
            e('s_add_u32 m0, s41, %d' % (sl + 1024 * j))
            if j: e('s_add_u32 s3, s3, 9216')
            e('buffer_load_dwordx4 v8, s[16:19], s3 offen lds')
            run_side(per)
        for j in range(5):
            if mid: mid(j)
            e('s_add_u32 m0, s42, %d' % (sl + 1024 * j))
            if j == 4: e('s_mov_b32 exec_hi, 0')
            e('buffer_load_dwordx4 %s, s[20:23], s35 offen lds' % v(9 + j))
            if j < 4: run_side(per)
        e('s_mov_b32 exec_hi, -1')
        e('s_add_u32 s43, s43, 1')
        e('s_cmp_eq_u32 s43, 9')
        e('s_cselect_b32 s43, 0, s43')
        ctok[p] = e.vm()
    stamp(1)
    chunk(0, 0, woff); chunk(1, 0)
    stamp(0)
    e.section('loader')
    def tile144(srd, vregs, soff):
        for j in range(5):
            e('s_add_u32 m0, s34, %d' % (1024 * j))
            if j == 4: e('s_mov_b32 exec_hi, 0')
            e('buffer_load_dwordx4 %s, %s, %s offen lds' % (v(vregs + j), srd, soff))
        e('s_mov_b32 exec_hi, -1')
    def wq_group(lo, n):
        for rnd in range((n + 3) // 4):
            e('s_add_u32 s35, s39, %d' % (lo + 4 * rnd))
            if 4 * rnd + 4 > n: e('s_min_u32 s35, s35, %d' % (lo + n - 1))
            e('s_lshr_b32 s32, s35, 1')
            e('s_add_u32 s32, s32, s27')
            e('s_sub_u32 s33, s32, 9')
            e('s_cmp_ge_u32 s32, 9')
            e('s_cselect_b32 s32, s33, s32')
            e('s_lshl_b32 s32, s32, 1')
            e('s_and_b32 s33, s35, 1')
            e('s_add_u32 s32, s32, s33')
            e('s_mul_i32 s32, s32, %d' % (32 * 3456))
            e('s_mul_i32 s34, s35, 4608')
            e('s_add_u32 s34, s34, %d' % (WQ_LO if lo < 15 else WQ_HI - 15 * 4608))
            tile144('s[20:23]', 24, 's32')
    for p in range(9):
        e.wait_vm(ctok[p])
        e('s_barrier')
        if p in (1, 2, 3, 5, 6): stamp({1: 11, 2: 12, 3: 13, 5: 14, 6: 15}[p])
        if p == 0:
            stamp(2)
        if 't' in opts.get('horder', '') and p == int(opts.get('trig', 2)):
            e('s_or_b32 s3, s39, s2')
            e('s_cmp_ge_u32 s3, 8')
            e('s_cbranch_scc1 L_b_notrig')
            e('s_cmp_lg_u32 s39, 0')
            e('s_cbranch_scc1 L_b_notrig')
            e('s_lshl_b32 s3, s2, 2')
            e('v_mov_b32 v20, s3')
            e('v_mov_b32 v21, 1')
            e('s_mov_b64 exec, 1')
            e('global_store_dword v20, v21, s[12:13] offset:16 sc1')
            e('s_mov_b64 exec, -1')
            e.nvm -= 1
            e.label('L_b_notrig')
        if p <= 6: chunk(p + 2, 7)
        if p == 6:
            run_side(upto=len(side))
            wq_group(15, 3)
        if p == 7: wq_group(0, 7)
        if p == 8: wq_group(7, 8)
    stamp(3)
    e('s_mov_b32 s44, %d' % SPIN)
    e('s_cmp_lg_u32 s39, 0')
    e('s_cbranch_scc1 L_b_cntdone')
    e('s_mov_b64 exec, 15')
    e.label('L_b_cnt')
    e('global_load_dword v5, v19, s[12:13] sc1')
    e('s_sub_u32 s44, s44, 1')
    e('s_cbranch_scc1 L_b_cntdone')
    e('s_waitcnt vmcnt(0)')
    e('v_cmp_gt_u32 vcc, 14, v5')
    e('s_cbranch_vccnz L_b_cnt')
    e.label('L_b_cntdone')
    e('s_mov_b64 exec, -1')
    e('s_waitcnt vmcnt(0) lgkmcnt(0)')
    stamp(4)
    e('s_barrier')
    stamp(5)
    e('s_setprio 2')
    tk = []
    for w in range(4):
        for k in range(4):
            e('ds_read_b128 %s, %s' % (a(16 * w + 4 * k, 4), v(64 + k)))
            if w < 3: e('v_add_u32 %s, %s, %s' % (v(64 + k), s(48 + k), v(64 + k)))
        tk.append(e.lg())
    e('v_mov_b32 v4, s47')
    e('v_mov_b32 v5, 1')
    e('ds_write_b64 v4, v[40:41] offset:760')
    DD = 68
    for w in range(4):
        e.wait_lg(tk[w])
        if w == 3:
            e('s_mov_b64 exec, 1')
            e('ds_add_u32 v55, v5')
            e('s_mov_b64 exec, -1')
        for i in range(2):
            for j in range(2):
                d = DD + 8 * i + 4 * j
                e('v_mfma_f32_16x16x32_bf16 %s, %s, %s, %s' % (v(d, 4), a(16 * w + 4 * i, 4), a(16 * w + 8 + 4 * j, 4), v(d, 4) if w else '0'))
            d = DD + 16 + 4 * i
            e('v_mfma_f32_16x16x32_bf16 %s, %s, v[60:63], %s' % (v(d, 4), a(16 * w + 4 * i, 4), v(d, 4) if w else '0'))
    e('v_lshl_add_u32 v4, v1, 4, s47')
    e('v_add_u32 v16, 4096, v15')
    e('v_add_u32 v17, 8192, v15')
    for i in range(2):
        for j in range(3):
            d = DD + 8 * i + 4 * j if j < 2 else DD + 16 + 4 * i
            o = 92 + 2 * (3 * i + j)
            for k in range(2): e('v_cvt_pk_bf16_f32 %s, %s, %s' % (v(o + k), v(d + 2 * k), v(d + 2 * k + 1)))
            for k in range(2): e('v_cndmask_b32 %s, 0, %s, %s' % (v(o + k), v(o + k), s(52 + 4 * i + 2 * k, 2)))
            e('ds_write_b64 %s, %s' % (v(45 + 2 * i + j) if j < 2 else v(49 + i), v(o, 2)))
    e('ds_read_b128 v[68:71], v4')
    e('s_waitcnt lgkmcnt(0)')
    e('v_min_u32 v68, -2, v68')
    e('s_mov_b32 exec_hi, 0xffff')
    e('global_store_dwordx4 v14, v[68:71], s[14:15] sc1')
    e('s_mov_b32 exec_hi, -1')
    stamp(6)
    def wo_block(first, last):
        e('s_add_u32 s35, s39, %d' % first)
        if first + 3 > last: e('s_min_u32 s35, s35, %d' % last)
        e('s_lshr_b32 s32, s35, 1')
        e('s_add_u32 s32, s32, s26')
        e('s_and_b32 s32, s32, 7')
        e('s_mul_i32 s32, s32, 72')
        e('s_and_b32 s33, s35, 1')
        e('s_lshl_b32 s33, s33, 5')
        e('s_add_u32 s32, s32, s33')
        e('s_add_u32 s32, s32, 8')
        e('s_mul_i32 s32, s32, 1152')
        e('s_mul_i32 s34, s35, 4608')
        if last < 13:
            e('s_add_u32 s33, s34, %d' % (SCR - 6 * 4608))
            e('s_cmp_ge_u32 s35, 6')
            e('s_cselect_b32 s34, s33, s34')
        else:
            e('s_add_u32 s34, s34, %d' % (WQ_LO - 13 * 4608))
        tile144('s[28:31]', 29, 's32')
    e('s_mov_b32 s44, %d' % SPIN)
    e.label('L_b_lcnt')
    e('ds_read_b32 v4, v55')
    e('s_sub_u32 s44, s44, 1')
    e('s_cbranch_scc1 L_b_lcntdone')
    e('s_waitcnt lgkmcnt(0)')
    e('v_cmp_gt_u32 vcc, 4, v4')
    e('s_cbranch_vccnz L_b_lcnt')
    e.label('L_b_lcntdone')
    e('s_waitcnt lgkmcnt(0)')
    nearly = int(opts.get('woearly', 3))
    for k in range(nearly): wo_block(4 * k, 12)
    e('v_lshlrev_b32 v4, 8, v2')
    e('v_lshlrev_b32 v6, 4, v1')
    e('v_sub_u32 v5, v17, v6')
    e('v_add_u32 v4, v4, v5')
    e('s_mov_b32 s44, %d' % SPIN)
    stamp(7)
    e.label('L_b_gather')
    X = 64
    for b in range(3):
        for i in range(4): e('global_load_dwordx4 %s, %s, s[14:15] offset:%d sc1' % (v(X + 16 * b + 4 * i, 4), v(15 + b), 1024 * i))
    e('s_mov_b64 s[32:33], 0')
    for k in range(12):
        if k % 4 == 0: e('s_waitcnt vmcnt(%d)' % (8 - k))
        e('v_cmp_eq_u32 vcc, -1, %s' % v(X + 4 * k))
        e('s_or_b64 s[32:33], s[32:33], vcc')
    e('s_cmp_eq_u64 s[32:33], 0')
    e('s_cbranch_scc1 L_b_gathered')
    e('s_mov_b64 exec, 0xffff')
    e.label('L_b_kvprobe')
    e('global_load_dword v5, v4, s[14:15] sc1')
    e('s_sub_u32 s44, s44, 1')
    e('s_cbranch_scc1 L_b_gathered')
    e('s_waitcnt vmcnt(0)')
    e('v_cmp_eq_u32 vcc, -1, v5')
    e('s_cbranch_vccnz L_b_kvprobe')
    e('s_mov_b64 exec, -1')
    e('s_branch L_b_gather')
    e.label('L_b_gathered')
    e('s_mov_b64 exec, -1')
    stamp(8)
    for i in range(4):
        for b in range(3):
            e('v_mfma_f32_16x16x32_bf16 %s, v[56:59], %s, %s' % (v(8 + 4 * b, 4), v(X + 16 * b + 4 * i, 4), v(8 + 4 * b, 4) if i else '0'))
    for b in range(3):
        for k in range(2): e('v_cvt_pk_bf16_f32 %s, %s, %s' % (v(20 + 2 * b + k), v(8 + 4 * b + 2 * k), v(8 + 4 * b + 2 * k + 1)))
        e('ds_write_b64 %s, %s' % (v(51 + b), v(20 + 2 * b, 2)))
    for k in range(1, 4): e('ds_write_b64 v54, v[24:25] offset:%d' % (32 * k))
    e('s_setprio 0')
    e('s_waitcnt lgkmcnt(0)')
    stamp(9)
    e('s_barrier')
    for k in range(nearly, 3): wo_block(4 * k, 12)
    e('s_cmp_lg_u32 s39, 0')
    e('s_cbranch_scc1 L_b_wo13')
    wo_block(12, 12)
    e('s_branch L_b_wo16')
    e.label('L_b_wo13')
    wo_block(12, 15)
    e.label('L_b_wo16')
    e('s_cmp_ge_u32 s39, 2')
    e('s_cbranch_scc1 L_b_wodone')
    e('s_mul_i32 s32, s39, %d' % (288 * 1152))
    e('s_mul_i32 s34, s39, 4608')
    e('s_add_u32 s34, s34, %d' % (WQ_LO + 3 * 4608))
    tile144('s[28:31]', 34, 's32')
    e.label('L_b_wodone')
    e('s_waitcnt vmcnt(0)')
    stamp(10)
    e('s_barrier')
    e('s_endpgm')


def role_h(e, opts):
    e.label('L_roleH')
    e('s_getpc_b64 s[32:33]')
    e.label('L_h_pc')
    e('s_sub_u32 s32, s32, L_h_pc-KERNEL_START')
    e('s_subb_u32 s33, s33, 0')
    e('v_lshlrev_b32 v1, 7, v0')
    e('v_cmp_gt_u32 vcc, KERNEL_END-KERNEL_START, v1')
    e('s_and_saveexec_b64 s[34:35], vcc')
    e('s_cbranch_execz L_h_nocode')
    if int(opts.get('pfcode', 1)): e('global_load_dword v2, v1, s[32:33]')
    e.label('L_h_nocode')
    e('s_mov_b64 exec, s[34:35]')
    e('s_mov_b32 s41, s24')
    e('s_mov_b32 s42, s25')
    e('s_sub_u32 s26, s2, 224')
    e('s_sub_u32 s27, s24, 8')
    e('s_mul_i32 s27, s27, 6')
    e('s_add_u32 s27, s27, s25')
    e('s_add_u32 s27, s27, 30')
    e('s_cmp_ge_u32 s24, 12')
    e('s_cselect_b32 s26, s26, s27')
    e('s_mul_i32 s27, s26, 49152')
    e('v_lshl_add_u32 v4, v0, 4, s27')
    for k in range(4): e('v_mov_b32 %s, -1' % v(8 + k))
    e('s_and_b32 s24, s24, 3')
    e('s_mul_i32 s24, s24, 144')
    e('s_and_b32 s25, s25, 1')
    e('s_lshl_b32 s25, s25, 9')
    for k in range(2):
        e('v_add_u32 v16, %d, v0' % (512 * k))
        e('v_min_u32 v16, 719, v16')
        div_small(e, 5, 6, 16, 5, 7)
        e('v_add_u32 v5, s24, v5')
        e('v_lshl_add_u32 v6, v6, 7, s25')
        e('v_mul_u32_u24 v7, 3456, v5')
        e('v_mul_u32_u24 v5, 1152, v5')
        e('v_add_u32 %s, v7, v6' % v(14 + k))
        e('v_add_u32 %s, v5, v6' % v(12 + k))
    order = opts.get('horder', 'fwGqc')
    e('s_waitcnt lgkmcnt(0)')
    for ch in order:
        if ch == 'w': e('s_waitcnt vmcnt(0)')
        if ch == 'f': first_touch(e, 's41', 's42', 24, 20)
        if ch == 'G': first_touch(e, 's41', 's42', 24, 21, 5)
        if ch == 'g':
            e('s_and_b32 s39, s41, 3')
            e('s_add_u32 s39, s39, 5')
            for k in range(3): touch_tiles(e, 0, 's39', 384 * k, 384, 's42', 24, 21 + k)
        if ch == 's':
            e('s_mov_b32 s28, %d' % int(opts.get('hspin', 100)))
            e.label('L_h_spin')
            e('s_sleep 1')
            e('s_sub_u32 s28, s28, 1')
            e('s_cbranch_scc0 L_h_spin')
        if ch == 't':
            e('s_and_b32 s27, s2, 7')
            e('s_lshl_b32 s27, s27, 2')
            e('v_mov_b32 v5, s27')
            e('s_mov_b32 s28, %d' % SPIN)
            e('v_readfirstlane_b32 s29, v0')
            e('s_cmp_lg_u32 s29, 0')
            e('s_cbranch_scc1 L_h_trigd')
            e('s_mov_b64 exec, 1')
            e.label('L_h_trig')
            e('global_load_dword v6, v5, s[54:55] offset:16 sc1')
            e('s_sub_u32 s28, s28, 1')
            e('s_cbranch_scc1 L_h_trigd')
            e('s_waitcnt vmcnt(0)')
            e('v_cmp_eq_u32 vcc, 0, v6')
            e('s_cbranch_vccnz L_h_trig')
            e.label('L_h_trigd')
            e('s_mov_b64 exec, -1')
            e('s_barrier')
        if ch == 'q':
            for k in range(2): e('global_load_dword %s, %s, s[48:49]' % (v(16 + k), v(14 + k)))
        if ch == 'o':
            for k in range(2): e('global_load_dword %s, %s, s[50:51]' % (v(18 + k), v(12 + k)))
        if ch == 'c':
            for k in range(6):
                e('global_store_dwordx4 v4, v[8:11], s[56:57] sc1')
                if k < 5: e('v_add_u32 v4, 8192, v4')
    e('s_and_b32 s26, s26, 3')
    e('s_lshl_b32 s26, s26, 6')
    e('v_mov_b32 v5, s26')
    e('v_mov_b32 v6, 1')
    e('v_cmp_eq_u32 vcc, 0, v0')
    e('s_waitcnt vmcnt(0)')
    e('s_barrier')
    e('s_and_saveexec_b64 s[34:35], vcc')
    e('s_cbranch_execz L_h_noadd')
    e('global_atomic_add v5, v6, s[54:55] sc1')
    e.label('L_h_noadd')
    e('s_mov_b64 exec, s[34:35]')
    if 'q' not in order:
        for k in range(2): e('global_load_dword %s, %s, s[48:49]' % (v(16 + k), v(14 + k)))
    if 'o' not in order:
        for k in range(2): e('global_load_dword %s, %s, s[50:51]' % (v(18 + k), v(12 + k)))
    e('s_endpgm')
```

```python
from asmlib import *
from gen_a import f2u, LOG2E
EPS = f2u(1e-6)
SLOT = 34816; WOFF = 16384
WQ_LO = SLOT; WQ_HI = 4 * SLOT; IMG = WQ_HI + 3 * 4608
SCR = 3 * SLOT
CST = SLOT - 4096
LCNT = IMG + 9216
STG = WQ_LO + 5 * 4608
def wo_base(ks): return 4608 * ks if ks < 6 else SCR + 4608 * (ks - 6) if ks < 13 else WQ_LO + 4608 * (ks - 13)
KVP = 0; OB = 8 * 4 * 12288; HAND = OB + 16 * 8 * 18 * 1024
SPIN = 20000
def wq_base(ks): return WQ_LO + 4608 * ks if ks < 15 else WQ_HI + 4608 * (ks - 15)

def div_small(e, q, r, x, d, t):
    e('v_mul_u32_u24 %s, %d, %s' % (v(q), (1 << 16) // d + 1, v(x)))
    e('v_lshrrev_b32 %s, 16, %s' % (v(q), v(q)))
    e('v_mul_u32_u24 %s, %d, %s' % (v(t), d, v(q)))
    e('v_sub_u32 %s, %s, %s' % (v(r), v(x), v(t)))
for d in (5, 9, 18):
    assert all((x * ((1 << 16) // d + 1)) >> 16 == x // d for x in range(1024))

def phi_pair(e, x, dst, t, plain=False):
    if plain:
        return [lambda: e('v_mul_f32 %s, s36, %s' % (v(t), v(x))),
                lambda: e('v_mul_f32 %s, s36, %s' % (v(t + 1), v(x + 1))),
                lambda: e('v_max_f32 %s, s38, %s' % (v(t + 2), v(x))),
                lambda: e('v_exp_f32_e64 %s, %s clamp' % (v(t), v(t))),
                lambda: e('v_max_f32 %s, s38, %s' % (v(t + 3), v(x + 1))),
                lambda: e('v_exp_f32_e64 %s, %s clamp' % (v(t + 1), v(t + 1))),
                lambda: e('v_add_f32 %s, %s, %s' % (v(t), v(t), v(t + 2))),
                lambda: e('v_add_f32 %s, %s, %s' % (v(t + 1), v(t + 1), v(t + 3))),
                lambda: e('v_cvt_pk_bf16_f32 %s, %s, %s' % (v(dst), v(t), v(t + 1)))]
    return [lambda: e('v_pk_mul_f32 %s, %s, s[36:37]' % (v(t, 2), v(x, 2))),
            lambda: e('v_max_f32 %s, s38, %s' % (v(t + 2), v(x))),
            lambda: e('v_exp_f32_e64 %s, %s clamp' % (v(t), v(t))),
            lambda: e('v_exp_f32_e64 %s, %s clamp' % (v(t + 1), v(t + 1))),
            lambda: e('v_max_f32 %s, s38, %s' % (v(t + 3), v(x + 1))),
            lambda: e('v_pk_add_f32 %s, %s, %s' % (v(t, 2), v(t, 2), v(t + 2, 2))),
            lambda: e('v_cvt_pk_bf16_f32 %s, %s, %s' % (v(dst), v(t), v(t + 1)))]
def zipper(*streams):
    streams = [list(x) for x in streams]
    while any(streams):
        for st in streams:
            if st: st.pop(0)()

def touch_tiles(e, idx, chunk, lo, n, x_, tmp, dst):
    t0, t1, t2, t3 = tmp, tmp + 1, tmp + 2, tmp + 3
    e('v_min_u32 %s, %d, %s' % (v(t0), n - 1, v(idx)))
    e('v_add_u32 %s, %s, %s' % (v(t0), lo, v(t0)))
    e('s_lshr_b32 s36, %s, 1' % x_)
    e('s_mul_i32 s36, s36, %d' % (512 * 1152))
    e('s_lshl_b32 s37, %s, 7' % chunk)
    e('s_add_u32 s36, s36, s37')
    e('s_and_b32 s37, %s, 1' % x_)
    e('s_lshl_b32 s37, s37, 9')
    e('s_mul_i32 s38, %s, %d' % (chunk, 64 * 3456))
    e('s_add_u32 s37, s37, s38')
    e('s_add_u32 s37, s37, 1152')
    e('v_cmp_gt_u32 vcc, 512, %s' % v(t0))
    e('v_mul_u32_u24 %s, 1152, %s' % (v(t1), v(t0)))
    e('v_add_u32 %s, s36, %s' % (v(t1), v(t1)))
    e('v_subrev_u32 %s, 512, %s' % (v(t0), v(t0)))
    e('v_max_i32 %s, 0, %s' % (v(t0), v(t0)))
    div_small(e, t2, t3, t0, 5, t0 + 4)
    e('v_and_b32 %s, 1, %s' % (v(t0), v(t2)))
    e('v_lshrrev_b32 %s, 1, %s' % (v(t2), v(t2)))
    e('v_mul_u32_u24 %s, 3456, %s' % (v(t2), v(t2)))
    e('v_mul_u32_u24 %s, 1152, %s' % (v(t0), v(t0)))
    e('v_lshl_add_u32 %s, %s, 7, s37' % (v(t3), v(t3)))
    e('v_add3_u32 %s, %s, %s, %s' % (v(t2), v(t2), v(t0), v(t3)))
    e('v_mov_b32 %s, s46' % v(t0))
    e('v_mov_b32 %s, s48' % v(t3))
    e('v_cndmask_b32 %s, %s, %s, vcc' % (v(t1), v(t2), v(t1)))
    e('v_cndmask_b32 %s, %s, %s, vcc' % (v(t2), v(t3), v(t0)))
    e('v_mov_b32 %s, s47' % v(t0))
    e('v_mov_b32 %s, s49' % v(t3))
    e('v_cndmask_b32 %s, %s, %s, vcc' % (v(t3), v(t3), v(t0)))
    e('v_add_co_u32 %s, vcc, %s, %s' % (v(t2), v(t2), v(t1)))
    e('v_addc_co_u32 %s, vcc, 0, %s, vcc' % (v(t3), v(t3)))
    e('global_load_dword %s, %s, off' % (v(dst), v(t2, 2)))

def first_touch(e, j_, x_, tmp, dst, first=1):
    e('s_and_b32 s39, %s, 3' % j_)
    e('s_add_u32 s39, s39, %d' % first)
    e('s_lshr_b32 s40, %s, 2' % j_)
    e('s_mul_i32 s40, s40, 288')
    touch_tiles(e, 0, 's39', 's40', 288, x_, tmp, dst)

def role_b(e, stamp, opts):
    stamp = stamp or (lambda i: None)
    rot = int(opts.get('rot', 0))
    e('v_lshrrev_b32 v2, 6, v0')
    e('v_and_b32 v1, 63, v0')
    e('v_readfirstlane_b32 s24, v2')
    e('s_and_b32 s32, s2, 7')
    e('s_lshr_b32 s33, s2, 3')
    e('s_and_b32 s34, s33, 3')
    e('s_lshr_b32 s33, s33, 2')
    e('s_lshr_b32 s25, s32, 1')
    e('s_lshl_b32 s25, s25, 2')
    e('s_add_u32 s25, s25, s34')
    e('s_and_b32 s26, s32, 1')
    e('s_lshl_b32 s26, s26, 2')
    e('s_add_u32 s26, s26, s33')
    if rot:
        e('s_add_u32 s27, s33, s34')
        e('s_and_b32 s27, s27, 3')
        e('s_lshl_b32 s27, s27, 1')
        e('s_lshr_b32 s35, s32, 1')
        e('s_xor_b32 s35, s35, s32')
        e('s_and_b32 s35, s35, 1')
        e('s_add_u32 s27, s27, s35')
    else:
        e('s_mov_b32 s27, 0')
    e('v_and_b32 v2, 15, v1')
    e('v_lshrrev_b32 v3, 4, v1')
    e('s_cmp_lt_u32 s24, 4')
    e('s_cbranch_scc1 L_b_compute')
    loader(e, stamp, opts)
    e.section('compute', False)
    e.label('L_b_compute')
    compute(e, stamp, opts)

def compute(e, stamp, opts):
    e.nvm = 0; e.nlg = 0
    ACC = 8; RING = 80; NR = 6; D = 4
    acc = lambda ct, rt: ACC + 8 * ct + 4 * rt
    e('s_mov_b32 s36, 0x%08x' % LOG2E)
    e('s_mov_b32 s37, s36')
    e('s_mov_b32 s38, 0x%08x' % EPS)
    e('s_lshl_b32 s32, s24, 12')
    e('v_and_b32 v104, 7, v2')
    e('v_xor_b32 v105, v3, v104')
    e('v_lshlrev_b32 v106, 7, v2')
    e('v_add_u32 v106, s32, v106')
    e('v_lshl_add_u32 v4, v105, 4, v106')
    e('v_xor_b32 v105, 4, v105')
    e('v_lshl_add_u32 v5, v105, 4, v106')
    e('v_lshrrev_b32 v104, 2, v2')
    e('v_and_b32 v105, 3, v2')
    e('v_lshlrev_b32 v105, 3, v105')
    e('v_lshl_add_u32 v106, v3, 2, v104')
    e('v_mul_u32_u24 v106, 288, v106')
    e('v_add_u32 v106, v106, v105')
    e('v_add_u32 v6, %d, v106' % WOFF)
    e('v_lshlrev_b32 v104, 1, v104')
    e('v_lshl_add_u32 v104, v3, 3, v104')
    e('v_mul_u32_u24 v104, 144, v104')
    e('v_add_u32 v104, v104, v105')
    e('v_add_u32 v7, %d, v104' % WQ_LO)
    e('v_cmp_gt_u32 vcc, 8, v2')
    for k in range(4): e('v_mov_b32 %s, s38' % v(108 + k))
    for k in range(4): e('v_cndmask_b32 %s, 0, v108, vcc' % v(104 + k))
    e('v_cmp_gt_u32 s[40:41], 2, v3')
    e('v_cmp_gt_u32 s[42:43], 3, v3')
    e('s_waitcnt lgkmcnt(0)')
    e('s_mov_b64 s[10:11], s[52:53]')
    e('s_mov_b64 s[14:15], s[56:57]')
    stamp(0)
    F = [(p, s_, ct) for p in range(8) for s_ in range(2) for ct in range(9)]
    F += [(8, s_, ct) for s_ in range(2) for ct in range(5)] + [(8, s_, ct) for s_ in range(2) for ct in range(5, 9)]
    tok = {}
    def items(f):
        p, s_, ct = F[f]
        it = []
        if ct == 0 and s_ == 0:
            pre = []
            if p:
                dl = SLOT if p % 4 else -3 * SLOT
                for r in (4, 5, 6): pre.append('v_add_u32 %s, %d, %s' % (v(r), dl, v(r)) if dl > 0 else 'v_subrev_u32 %s, %d, %s' % (v(r), -dl, v(r)))
            if p == 8: pre.append('s_waitcnt lgkmcnt(0)')
            pre.append('s_barrier')
            it.append(lambda: (e('\n'.join(pre)), stamp({0: 1, 4: 2, 8: 3}[p]) if p in (0, 4, 8) else None))
        if ct == 0:
            for rt in range(2): it.append(lambda rt=rt: e('ds_read_b128 %s, %s offset:%d' % (a(16 * p + 8 * s_ + 4 * rt, 4), v(4 + s_), 2048 * rt)))
        r = RING + 4 * (f % NR)
        for h in range(2): it.append(lambda h=h: e('ds_read_b64_tr_b16 %s, v6 offset:%d' % (v(r + 2 * h, 2), 9216 * s_ + 4608 * h + 32 * ct)))
        return it
    for f in range(D):
        for x in items(f): x()
        tok[f] = e.lg()
    def put(fi, r):
        if fi < 8: e('ds_write_b128 v4, %s offset:%d' % (v(r, 4), 1024 * fi))
        else: e('ds_write_b128 v5, %s offset:%d' % (v(r, 4), 1024 * (fi - 8)))
    def phi_tile(x, dst, t, plain):
        zz = [phi_pair(e, x[k], dst[k], t + 4 * k, plain=plain) for k in range(4)]
        return [z[k] for k in range(len(zz[0])) for z in zz]
    def handoff_setup():
        e('s_add_u32 s16, s14, %d' % OB)
        e('s_addc_u32 s17, s15, 0')
        e('s_mov_b32 s18, %d' % (HAND - OB))
        e('s_mov_b32 s19, 0x20000')
        e('s_lshl_b32 s32, s25, 3')
        e('s_lshl_b32 s33, s24, 1')
        e('s_add_u32 s32, s32, s33')
        e('s_mul_i32 s32, s32, %d' % (18 * 1024))
        e('v_lshl_add_u32 v105, v1, 4, s32')
        e('v_add_u32 v106, %d, v105' % (18 * 1024))
        e('s_lshl_b32 s20, s26, 11')
        e('s_lshr_b32 s33, s26, 2')
        e('s_lshl_b32 s33, s33, 10')
        e('s_and_b32 s34, s26, 3')
        e('s_lshl_b32 s34, s34, 8')
        e('s_add_u32 s33, s33, s34')
        e('s_add_u32 s33, s33, s32')
        e('s_add_u32 s33, s33, %d' % (16 * 1024 - 16))
        e('s_movk_i32 s21, %d' % (18 * 1024))
        e('v_lshlrev_b32 v104, 4, v2')
        e('v_lshl_add_u32 v104, v3, 3, v104')
        e('v_add_u32 v104, s33, v104')
    for f, (p, s_, ct) in enumerate(F):
        it = items(f + D) if f + D < len(F) else []
        if f == 18 - D: handoff_setup()
        e.wait_lg(tok[f])
        for rt in range(2):
            c = v(acc(ct, rt), 4) if f >= 9 else 'v[108:111]' if ct < 4 else 'v[104:107]' if ct == 4 else '0'
            e('v_mfma_f32_16x16x32_bf16 %s, %s, %s, %s' % (v(acc(ct, rt), 4), a(16 * p + 8 * s_ + 4 * rt, 4), v(RING + 4 * (f % NR), 4), c))
            h = (len(it) + 1) // 2
            for x in (it[:h] if rt == 0 else it[h:]): x()
        tok[f + D] = e.lg()
    stamp(4)
    e('s_lshl_b32 s32, s24, 13\ns_add_u32 s32, s32, %d\nv_lshl_add_u32 v4, v1, 4, s32' % SCR)
    e('s_lshl_b32 s32, s24, 12\nv_lshl_add_u32 v5, v1, 4, s32')
    for t in range(5):
        o = acc(t, 0) if t < 4 else 96
        for x in phi_tile([acc(t, 0) + 2 * k for k in range(4)], [o + k for k in range(4)], 80, False): x()
        put(t, o)
        o = acc(4 + t, 0) if t else 100
        for k in range(4): e('v_cvt_pk_bf16_f32 %s, %s, %s' % (v(o + k), v(acc(4 + t, 0) + 2 * k), v(acc(4 + t, 0) + 2 * k + 1)))
        put(5 + t, o)
    e('v_add_u32 v6, %d, v7' % (WQ_HI - WQ_LO))
    e('v_mov_b32 v5, %d' % LCNT)
    e('s_waitcnt lgkmcnt(0)')
    stamp(5)
    e('s_barrier')
    def gemm144(where, c0, G, ring, hook=None, xs=lambda ks, rt: a(8 * ks + 4 * rt, 4)):
        RG, NG, DG = ring
        tk = {}
        def iss(f, h):
            ks, ct = G[f]
            ad, off = where(ks)
            e('ds_read_b64_tr_b16 %s, %s offset:%d' % (v(RG + 4 * (f % NG) + 2 * h, 2), ad, off + 144 * h + 32 * ct))
            tk[f] = e.lg()
        for f in range(DG): iss(f, 0); iss(f, 1)
        for f, (ks, ct) in enumerate(G):
            if hook: hook(f, ks, ct, 0)
            e.wait_lg(tk[f])
            for rt in range(2):
                e('v_mfma_f32_16x16x32_bf16 %s, %s, %s, %s' % (v(acc(ct, rt), 4), v(RG + 4 * (f % NG), 4), xs(ks, rt), v(acc(ct, rt), 4) if ks else c0))
                if f + DG < len(G): iss(f + DG, rt)
                if hook: hook(f, ks, ct, 1 + rt)
    PQ = 48
    def phi_q(t, plain): return phi_tile([acc(t, k >> 1) + 2 * (k & 1) for k in range(4)], [PQ + 10 * (k >> 1) + 2 * t + (k & 1) for k in range(4)], 92 if plain else 68, plain)
    NQ = int(opts.get('nq', 5))
    rest = []
    def qhook(f, ks, ct, ph):
        if f == 40 and ph == 1: e('ds_read_b32 v92, v5 offset:4')
        if f == 54 and ph == 0:
            e('s_mov_b32 s44, %d' % SPIN)
            e.label('L_b_wq')
            e('v_cmp_gt_u32 vcc, 4, v92')
            e('s_cbranch_vccz L_b_wqok')
            e('ds_read_b32 v92, v5 offset:4')
            e.nlg -= 1
            e('s_waitcnt lgkmcnt(0)')
            e('s_sub_u32 s44, s44, 1')
            e('s_cbranch_scc0 L_b_wq')
            e.label('L_b_wqok')
        if f == 18 * NQ + 1 and ph == 0:
            for t in range(NQ): rest.extend(phi_q(t, True))
        if ph and rest: rest.pop(0)()
    gemm144(lambda ks: ('v7', wq_base(ks) - WQ_LO) if ks < 15 else ('v6', wq_base(ks) - WQ_HI), 'v[108:111]',
            [(ks, ct) for ks in range(18) for ct in range(NQ)] + [(ks, ct) for ks in range(18) for ct in range(NQ, 5)], (68, 6, 4), qhook)
    stamp(6)
    for x in rest: x()
    for t in range(NQ if NQ < 5 else 0, 5):
        for x in phi_q(t, False): x()
    DEN = 68
    e('v_lshlrev_b32 v4, 3, v1')
    e('v_add_u32 v4, %d, v4' % IMG)
    stamp(7)
    e('s_barrier')
    stamp(8)
    t0 = e.lg()
    for pl in list(range(13, 18)) + list(range(13)): e('ds_read_b64 %s, v4 offset:%d' % (a(2 * pl, 2), 512 * pl))
    def mm(d, pl, dt, n, rt, c):
        e('v_mfma_f32_16x16x%d_bf16 %s, %s, %s, %s' % (16 * n, v(d, 4), a(2 * pl, 2 * n), v(PQ + 10 * rt + 2 * dt, 2 * n), c))
    e.wait_lg(t0 + 5)
    for pl, dt, n in ((13, 0, 2), (15, 2, 2), (17, 4, 1)):
        for rt in range(2): mm(DEN + 4 * rt, pl, dt, n, rt, v(DEN + 4 * rt, 4) if dt else 'v[108:111]')
    OUT = PQ
    def scale(rt):
        i = DEN + 4 * rt; t = 76 + 4 * rt; o = OUT + 10 * rt
        pre = [lambda k=k: e('v_rcp_f32 %s, %s' % (v(i + k), v(i + k))) for k in range(4)]
        pre += [lambda: e('v_cndmask_b32 %s, %s, %s, s[42:43]' % (v(t), v(i + 1), v(i))),
                lambda: e('v_cndmask_b32 %s, %s, %s, s[40:41]' % (v(t + 1), v(i + 1), v(i))),
                lambda: e('v_cndmask_b32 %s, %s, %s, s[42:43]' % (v(t + 2), v(i + 2), v(i + 1))),
                lambda: e('v_cndmask_b32 %s, %s, %s, s[42:43]' % (v(t + 3), v(i + 3), v(i + 2)))]
        sc = {0: (i, i), 1: (t, t + 1), 2: (t + 2, t + 2), 3: (i + 2, t + 3), 4: (i + 3, i + 3)}
        st = []
        for u in (0, 4, 1, 2, 3):
            for k in range(2):
                f_ = sc[u][k]
                st.append(lambda u=u, k=k, f_=f_: e('v_pk_mul_f32 %s, %s, %s op_sel:[0,%d] op_sel_hi:[1,%d]' % (v(acc(u, rt) + 2 * k, 2), v(acc(u, rt) + 2 * k, 2), v(f_ & ~1, 2), f_ & 1, f_ & 1)))
        for u in (0, 4, 1, 2, 3):
            d = o + (2 * (u - 1) if u else 8)
            for k in range(2): st.append(lambda u=u, k=k, d=d: e('v_cvt_pk_bf16_f32 %s, %s, %s' % (v(d + k), v(acc(u, rt) + 2 * k), v(acc(u, rt) + 2 * k + 1))))
        for d in (o, o + 4, o + 8): st.append(lambda d=d: e('v_min_u32 %s, -2, %s' % (v(d), v(d))))
        st.append(lambda: e('buffer_store_dwordx4 %s, %s, s[16:19], s20 offen sc1' % (v(o, 4), v(105 + rt))))
        st.append(lambda: e('buffer_store_dwordx4 %s, %s, s[16:19], s20 offen offset:1024 sc1' % (v(o + 4, 4), v(105 + rt))))
        return pre, st
    (p0, s0), (p1, s1) = scale(0), scale(1)
    fill = p0 + p1
    e.wait_lg(t0 + 18)
    for rt in range(2):
        ops = [(u, 2 * u + first, first, 2, '0') for u, first in enumerate((0, 0, 1, 2, 3))]
        ops = [ops[1], ops[2], ops[3], ops[0], ops[4]] + [(u, 2 * u + first + 2, first + 2, 1, None) for u, first in ((1, 0), (2, 1), (3, 2))]
        for k, (u, pl, dt, n, c) in enumerate(ops):
            mm(acc(u, rt), pl, dt, n, rt, c or v(acc(u, rt), 4))
            if rt or k >= 2:
                for x in fill[:2]: x()
                fill = fill[2:]
    for x in fill + s0 + s1: x()
    e('s_mov_b32 exec_lo, 0')
    e('buffer_store_dwordx2 %s, v104, s[16:19], 0 offen sc1' % v(OUT + 8, 2))
    e('buffer_store_dwordx2 %s, v104, s[16:19], s21 offen sc1' % v(OUT + 18, 2))
    e('s_mov_b32 exec_lo, -1')
    stamp(9)
    e('v_subrev_u32 v7, %d, v7' % WQ_LO)
    e('v_add_u32 v6, %d, v7' % SCR)
    e('s_mov_b32 s39, 0')
    e('s_movk_i32 s23, %d' % (16 * 1024))
    e('s_barrier')
    e.label('L_b_gemm2')
    otok = {}
    AHEAD = int(opts.get('ahead', 4))
    osrc = lambda ks, rt: v(OUT + 10 * rt + 4 * ks, 4) if ks < 2 else a(8 * ks + 4 * rt, 4)
    def oload(j, rt):
        if j < 16 and rt == 0:
            e('s_add_u32 s22, s22, 1024')
            e('s_and_b32 s22, s22, 0x3fff')
        e('buffer_load_dwordx4 %s, %s, s[16:19], %s offen%s sc1' % (osrc(j, rt), v(105 + rt), 's22' if j < 16 else 's23', ' offset:1024' if j == 17 else ''))
        otok[j] = e.vm()
    pend = [(j, rt) for j in range(2, 18) for rt in range(2)]
    tail = []
    def put_out(ct):
        r = []
        for rt in range(2):
            d = 48 + 4 * ct + 2 * rt
            for k in range(2): r.append(lambda d=d, k=k, rt=rt: e('v_cvt_pk_bf16_f32 %s, %s, %s' % (v(d + k), v(acc(ct, rt) + 2 * k), v(acc(ct, rt) + 2 * k + 1))))
            r.append(lambda d=d, rt=rt: e('ds_write_b64 v4, %s offset:%d' % (v(d, 2), 2304 * rt + 32 * ct)))
        return r
    def hook(f, ks, ct, ph):
        if f == 10 and ph == 0:
            e('s_lshl_b32 s32, s25, 7')
            e('s_lshl_b32 s33, s24, 5')
            e('s_add_u32 s32, s32, s33')
            e('s_mul_i32 s32, s32, 2304')
            e('s_mul_i32 s33, s26, 144')
            e('s_add_u32 s32, s32, s33')
            e('s_add_u32 s32, s32, 1152')
            for j in range(5):
                e('v_add_u32 v48, %d, v1' % (64 * j))
                div_small(e, 49, 50, 48, 9, 51)
                e('v_mul_u32_u24 v49, 2304, v49')
                e('v_lshl_add_u32 v49, v50, 4, v49')
                e('v_add_u32 %s, s32, v49' % v(108 + j if j < 4 else 104))
            e('s_mul_i32 s33, s24, 4608')
            e('s_add_u32 s33, s33, %d' % STG)
            e('v_mul_u32_u24 v4, 144, v2')
            e('v_lshl_add_u32 v4, v3, 3, v4')
            e('v_add_u32 v4, s33, v4')
            e('v_lshl_add_u32 v5, v1, 4, s33')
            e('s_mov_b32 s44, %d' % SPIN)
            e('s_add_u32 s22, s20, 1024')
            e('v_lshlrev_b32 v107, 8, v1')
            e('v_lshlrev_b32 v48, 4, v1')
            e('v_sub_u32 v107, v107, v48')
            e('v_add_u32 v107, v107, v106')
            for _ in range(int(opts.get('pdelay', 0))): e('s_nop 15')
            e('s_mov_b64 exec, 0xff')
            e.label('L_b_probe')
            e('buffer_load_dword v68, v107, s[16:19], s23 offen offset:248 sc1')
            e('s_sub_u32 s44, s44, 1')
            e('s_cbranch_scc1 L_b_probed')
            e('s_waitcnt vmcnt(0)')
            e('v_cmp_eq_u32 vcc, -1, v68')
            e('s_cbranch_vccnz L_b_probe')
            e.label('L_b_probed')
            e('s_mov_b64 exec, -1')
            if opts.get('count'): e('s_sub_u32 s92, s62, s44\ns_add_u32 s92, s92, %d' % SPIN)
            stamp(10)
            e.nvm = 0
            for _ in range(2 * AHEAD): oload(*pend.pop(0))
            stamp(11)
        if ct == 0 and ph == 0 and 2 <= ks: e.wait_vm(otok[ks])
        if ph == 1 and pend and f >= 10 and ct in ((0, 1, 2, 3) if f < 25 else (1, 3)): oload(*pend.pop(0))
        if ks == 17:
            if ph == 0 and 2 <= ct: tail.extend(put_out(ct - 2))
            if ph:
                for x in tail[:2]: x()
                del tail[:2]
    gemm144(lambda ks: ('v6', wo_base(ks) - SCR) if 6 <= ks < 13 else ('v7', wo_base(ks)), '0',
            [(ks, ct) for ks in range(18) for ct in range(5)], (72, 8, 5), hook, osrc)
    stamp(12)
    for x in tail + put_out(3): x()
    e('s_cmp_lg_u32 s39, 0')
    e('s_cbranch_scc1 L_b_store')
    e('v_cmp_u_f32 vcc, %s, %s' % (v(acc(0, 0)), v(acc(0, 1))))
    e('s_cbranch_vccnz L_b_strict')
    e.label('L_b_store')
    e('s_mov_b32 exec_hi, 0')
    for x in put_out(4): x()
    e('s_mov_b32 exec_hi, -1')
    t0 = e.lg()
    for j in range(5): e('ds_read_b128 %s, v5 offset:%d' % (v(8 + 4 * j, 4), 1024 * j))
    for j in range(5):
        e.wait_lg(t0 + j + 1)
        if j == 4: e('s_mov_b32 exec_hi, 0')
        e('global_store_dwordx4 %s, %s, s[10:11]' % (v(108 + j if j < 4 else 104), v(8 + 4 * j, 4)))
    e('s_mov_b32 exec_hi, -1')
    stamp(13)
    e('s_endpgm')
    e.section('strict', False)
    e.label('L_b_strict')
    e('s_mov_b32 s39, 1')
    e('s_mov_b32 s44, %d' % SPIN)
    e.label('L_b_strict1')
    for ks in range(18):
        e('s_movk_i32 s22, %d' % (1024 * ks))
        for rt in range(2): e('buffer_load_dwordx4 %s, %s, s[16:19], s22 offen sc1' % (a(8 * ks + 4 * rt, 4), v(105 + rt)))
    for rt in range(2):
        for k in range(2): e('buffer_load_dwordx4 %s, %s, s[16:19], s20 offen offset:%d sc1' % (v(OUT + 10 * rt + 4 * k, 4), v(105 + rt), 1024 * k))
    e('s_waitcnt vmcnt(0)')
    e('s_sub_u32 s44, s44, 1')
    e('s_cbranch_scc1 L_b_gemm2')
    e('s_mov_b64 s[32:33], 0')
    for k in range(72):
        if (k & 1) == 0 or k >= 64:
            e('v_accvgpr_read_b32 v68, %s' % a(2 * k))
            e('v_cmp_eq_u32 vcc, -1, v68')
            e('s_or_b64 s[32:33], s[32:33], vcc')
    e('s_cmp_lg_u64 s[32:33], 0')
    e('s_cbranch_scc1 L_b_strict1')
    e('s_branch L_b_gemm2')

def loader(e, stamp, opts):
    e.nvm = 0; e.nlg = 0
    e('s_sub_u32 s39, s24, 4')
    e('v_lshrrev_b32 v4, 3, v1')
    e('v_and_b32 v5, 7, v1')
    e('v_xor_b32 v5, v5, v4')
    e('s_lshl_b32 s32, s25, 7')
    e('s_lshl_b32 s33, s39, 5')
    e('s_add_u32 s32, s32, s33')
    e('v_add_u32 v4, s32, v4')
    e('v_mul_u32_u24 v4, 1152, v4')
    e('v_lshl_add_u32 v8, v5, 4, v4')
    e('s_lshr_b32 s32, s39, 1')
    e('s_lshl_b32 s32, s32, 5')
    e('s_and_b32 s33, s39, 1')
    e('s_lshl_b32 s33, s33, 2')
    e('s_add_u32 s32, s32, s33')
    e('s_mul_i32 s40, s26, 144')
    e('s_mul_i32 s32, s32, 3456')
    e('s_add_u32 s32, s32, s40')
    e('s_add_u32 s32, s32, 1152')
    def woff(j):
        e('v_add_u32 v4, %d, v1' % (64 * j))
        div_small(e, 5, 6, 4, 18, 7)
        e('v_and_b32 v4, 12, v5')
        e('v_add_u32 v4, v4, v5')
        e('v_mul_u32_u24 v4, 3456, v4')
        e('v_cmp_lt_u32 vcc, 8, v6')
        e('v_lshl_add_u32 v4, v6, 4, v4')
        e('v_add_u32 v4, s32, v4')
        e('v_add_u32 v5, 1008, v4')
        e('v_cndmask_b32 %s, v4, v5, vcc' % v(9 + j))
    e('s_lshl_b32 s41, s39, 12')
    e('s_mul_i32 s42, s39, 4608')
    e('s_add_u32 s42, s42, %d' % WOFF)
    e('s_mov_b32 s43, s27')
    e('s_mov_b32 s22, %d\ns_mov_b32 s23, 0x20000' % (576 * 3456))
    e('s_mov_b32 s30, %d\ns_mov_b32 s31, 0x20000' % (576 * 1152))
    e('s_waitcnt lgkmcnt(0)')
    e('s_mov_b64 s[16:17], s[46:47]\ns_mov_b32 s18, %d\ns_mov_b32 s19, 0x20000' % (2048 * 1152))
    e('s_mov_b64 s[20:21], s[48:49]\ns_mov_b64 s[28:29], s[50:51]\ns_mov_b64 s[12:13], s[54:55]\ns_mov_b64 s[14:15], s[56:57]')

    main = e; sd = Asm(); e = sd
    marks = {}
    e('s_lshl_b32 s32, s26, 2')
    e('s_add_u32 s32, s32, s39')
    e('s_mul_i32 s32, s32, 12288')
    e('s_add_u32 s32, s32, %d' % KVP)
    e('v_lshl_add_u32 v15, v1, 4, s32')
    e('s_lshl_b32 s33, s25, 8')
    e('s_add_u32 s32, s32, s33')
    e('v_lshlrev_b32 v14, 4, v2')
    e('v_lshl_add_u32 v14, v3, 12, v14')
    e('v_add_u32 v14, s32, v14')
    marks['clear'] = len(sd.L)
    e('s_mul_i32 s32, s39, 2304')
    e('s_add_u32 s32, s32, %d' % IMG)
    e('v_lshl_add_u32 v4, v1, 4, s32')
    for k in range(4): e('v_mov_b32 %s, 0' % v(40 + k))
    e('ds_write_b128 v4, v[40:43]')
    e('ds_write_b128 v4, v[40:43] offset:1024')
    e('v_lshl_add_u32 v4, v1, 2, s32')
    e('ds_write_b32 v4, v40 offset:2048')
    e('v_mov_b32 v55, %d' % LCNT)
    e('ds_write_b32 v55, v40')
    for j in range(5):
        e('v_add_u32 v4, %d, v1' % (64 * j))
        div_small(e, 5, 6, 4, 9, 7)
        e('v_lshlrev_b32 v6, 4, v6')
        e('v_add_u32 v6, s40, v6')
        e('v_lshrrev_b32 v4, 3, v5')
        e('v_and_b32 v7, 1, v5')
        e('v_bfe_u32 v5, v5, 1, 2')
        e('v_lshl_add_u32 v19, v7, 2, v5')
        e('v_lshl_add_u32 v39, v4, 3, v19')
        e('v_mul_u32_u24 v39, 3456, v39')
        e('v_add_u32 %s, v39, v6' % v(24 + j))
        e('v_lshl_add_u32 v39, v4, 2, v5')
        e('v_lshl_add_u32 v39, v7, 4, v39')
        e('v_mul_u32_u24 v39, 1152, v39')
        e('v_add_u32 %s, v39, v6' % v(29 + j))
        e('v_mul_u32_u24 v39, 72, v4')
        e('v_add_u32 v39, v39, v19')
        e('v_mul_u32_u24 v39, 1152, v39')
        e('v_add_u32 %s, v39, v6' % v(34 + j))
    e('s_lshr_b32 s45, s39, 1')
    e('s_lshl_b32 s46, s39, 1')
    e('s_lshl_b32 s47, s39, 10')
    e('s_add_u32 s47, s47, %d' % CST)
    e('s_add_u32 s32, s47, 768')
    e('v_lshl_add_u32 v44, v2, 3, s32')
    for i in range(2):
        e('v_add_u32 v4, %d, v3' % (4 * i))
        e('v_subrev_u32 v5, s45, v4')
        e('v_cmp_gt_u32 s[48:49], 5, v5')
        for j in range(2):
            e('v_add_u32 v6, %d, v2' % (16 * j - 8))
            e('v_subrev_u32 v6, s46, v6')
            e('v_cmp_gt_u32 vcc, 18, v6')
            e('v_mul_u32_u24 v6, 5, v6')
            e('v_add_u32 v6, v6, v5')
            e('s_and_b64 vcc, vcc, s[48:49]')
            e('v_lshl_add_u32 v6, v6, 3, s47')
            e('v_cndmask_b32 %s, v44, v6, vcc' % v(45 + 2 * i + j))
        e('v_cmp_eq_u32 vcc, 0, v2')
        e('v_add_u32 v6, 90, v5')
        e('v_lshl_add_u32 v6, v6, 3, s47')
        e('s_and_b64 vcc, vcc, s[48:49]')
        e('v_cndmask_b32 %s, %s, v6, vcc' % (v(45 + 2 * i), v(45 + 2 * i)))
    e('s_mul_i32 s32, s39, 18')
    e('s_add_u32 s32, s32, 8')
    e('s_lshl_b32 s33, s39, 2')
    e('s_add_u32 s33, s33, s45')
    e('v_cmp_gt_u32 s[48:49], 2, v3')
    for b in range(3):
        e('v_lshl_add_u32 v4, v2, 1, v3')
        e('v_add_u32 v4, %d, v4' % (32 * b))
        div_small(e, 5, 6, 4, 5, 7)
        e('v_add_u32 v6, s33, v6')
        e('v_add_u32 v7, s32, v5')
        e('v_lshrrev_b32 v19, 4, v7')
        e('v_and_b32 v7, 15, v7')
        e('v_lshrrev_b32 v39, 2, v6')
        e('v_and_b32 v6, 3, v6')
        e('v_lshl_add_u32 v19, v19, 1, v39')
        if b == 2:
            e('v_cmp_eq_u32 vcc, 18, v5')
            e('v_add_u32 v39, 13, v39')
            e('v_cndmask_b32 v19, v19, v39, vcc')
            e('v_mov_b32 v39, s39')
            e('v_cndmask_b32 v7, v7, v39, vcc')
        e('v_lshl_add_u32 v7, v6, 4, v7')
        e('v_lshlrev_b32 v7, 3, v7')
        e('v_lshl_add_u32 v7, v19, 9, v7')
        e('v_add_u32 v7, %d, v7' % IMG)
        if b == 2:
            e('s_and_b64 vcc, vcc, s[48:49]')
            e('v_cndmask_b32 v54, v44, v7, vcc')
            e('v_cmp_gt_u32 vcc, 19, v5')
            e('s_and_b64 s[48:49], vcc, s[48:49]')
        e('v_cndmask_b32 %s, v44, v7, s[48:49]' % v(51 + b))
    e('v_and_b32 v4, 1, v2')
    e('v_lshlrev_b32 v4, 4, v4')
    e('v_mov_b32 v5, 0x3f80')
    e('v_lshlrev_b32 v4, v4, v5')
    e('v_lshrrev_b32 v5, 1, v2')
    for k in range(4):
        e('v_cmp_eq_u32 vcc, %d, v5' % k)
        e('v_cndmask_b32 %s, 0, v4, vcc' % v(56 + k))
    for k in range(4): e('v_mov_b32 %s, 0x3f803f80' % v(8 + 96 + k))
    e('ds_write_b128 v55, v[104:107] offset:16')
    e('ds_write_b128 v55, v[40:43] offset:32')
    e('ds_write_b32 v55, v40 offset:4')
    for k, df in enumerate((0, 1, 5, 6)):
        e('s_add_u32 s32, s39, %d' % df)
        e('s_lshl_b32 s33, s32, 10')
        e('s_add_u32 s34, s33, %d' % SCR)
        e('s_sub_u32 s33, s33, 8192')
        e('s_movk_i32 s48, 4096')
        sd.L.append('s_cmp_lt_u32 s32, 8\ns_cselect_b32 s33, s34, s33\ns_cselect_b32 s48, 8192, s48')
        e('v_lshl_add_u32 %s, v1, 4, s33' % v(64 + k))
        e('v_mov_b32 %s, s48' % v(60 + k))
        if k < 3:
            if k == 0: e('v_cmp_gt_u32 vcc, s46, v2')
            if k == 1:
                e('s_add_u32 s32, s46, 2')
                e('v_cmp_le_u32 vcc, s32, v2')
            if k == 2: e('v_cmp_eq_u32 vcc, 0, v2')
            e('v_mov_b32 v4, %d' % (LCNT + (16 if k == 2 else 32)))
            e('v_cndmask_b32 %s, %s, v4, vcc' % (v(64 + k), v(64 + k)))
            e('v_cndmask_b32 %s, %s, v40, vcc' % (v(60 + k), v(60 + k)))
    e('v_and_b32 v19, 3, v1')
    e('v_lshlrev_b32 v19, 6, v19')
    e = main
    side = list(sd.L); done = [0]
    def run_side(n=None, upto=None):
        stop = upto if upto is not None else min(len(side), done[0] + n)
        while done[0] < stop:
            e(side[done[0]]); done[0] += 1

    ctok = {}
    def chunk(p, per, mid=None):
        sl = SLOT * (p % 4)
        e('s_lshl_b32 s3, s43, 7')
        e('s_mul_i32 s35, s43, %d' % (64 * 3456))
        for j in range(4):
            e('s_add_u32 m0, s41, %d' % (sl + 1024 * j))
            if j: e('s_add_u32 s3, s3, 9216')
            e('buffer_load_dwordx4 v8, s[16:19], s3 offen lds')
            run_side(per)
        for j in range(5):
            if mid: mid(j)
            e('s_add_u32 m0, s42, %d' % (sl + 1024 * j))
            if j == 4: e('s_mov_b32 exec_hi, 0')
            e('buffer_load_dwordx4 %s, s[20:23], s35 offen lds' % v(9 + j))
            if j < 4: run_side(per)
        e('s_mov_b32 exec_hi, -1')
        e('s_add_u32 s43, s43, 1')
        e('s_cmp_eq_u32 s43, 9')
        e('s_cselect_b32 s43, 0, s43')
        ctok[p] = e.vm()
    stamp(1)
    chunk(0, 0, woff); chunk(1, 0)
    stamp(0)
    e.section('loader')
    def tile144(srd, vregs, soff):
        for j in range(5):
            e('s_add_u32 m0, s34, %d' % (1024 * j))
            if j == 4: e('s_mov_b32 exec_hi, 0')
            e('buffer_load_dwordx4 %s, %s, %s offen lds' % (v(vregs + j), srd, soff))
        e('s_mov_b32 exec_hi, -1')
    def wq_group(lo, n):
        for rnd in range((n + 3) // 4):
            e('s_add_u32 s35, s39, %d' % (lo + 4 * rnd))
            if 4 * rnd + 4 > n: e('s_min_u32 s35, s35, %d' % (lo + n - 1))
            e('s_lshr_b32 s32, s35, 1')
            e('s_add_u32 s32, s32, s27')
            e('s_sub_u32 s33, s32, 9')
            e('s_cmp_ge_u32 s32, 9')
            e('s_cselect_b32 s32, s33, s32')
            e('s_lshl_b32 s32, s32, 1')
            e('s_and_b32 s33, s35, 1')
            e('s_add_u32 s32, s32, s33')
            e('s_mul_i32 s32, s32, %d' % (32 * 3456))
            e('s_mul_i32 s34, s35, 4608')
            if lo + 4 * rnd + 3 >= 15:
                e('s_add_u32 s33, s34, %d' % (WQ_HI - WQ_LO - 15 * 4608))
                e('s_cmp_ge_u32 s35, 15')
                e('s_cselect_b32 s34, s33, s34')
            e('s_add_u32 s34, s34, %d' % WQ_LO)
            tile144('s[20:23]', 24, 's32')
    for p in range(9):
        e.wait_vm(ctok[p])
        e('s_barrier')
        if p in (1, 2, 3, 5, 6): stamp({1: 11, 2: 12, 3: 13, 5: 14, 6: 15}[p])
        if p == 0:
            stamp(2)
        if 't' in opts.get('horder', '') and p == int(opts.get('trig', 2)):
            e('s_or_b32 s3, s39, s2')
            e('s_cmp_ge_u32 s3, 8')
            e('s_cbranch_scc1 L_b_notrig')
            e('s_cmp_lg_u32 s39, 0')
            e('s_cbranch_scc1 L_b_notrig')
            e('s_lshl_b32 s3, s2, 2')
            e('v_mov_b32 v20, s3')
            e('v_mov_b32 v21, 1')
            e('s_mov_b64 exec, 1')
            e('global_store_dword v20, v21, s[12:13] offset:16 sc1')
            e('s_mov_b64 exec, -1')
            e.nvm -= 1
            e.label('L_b_notrig')
        if p <= 6: chunk(p + 2, 7)
        if p == 6: run_side(upto=len(side))
        if p == 7: wq_group(0, 4)
        if p == 8:
            wq_group(4, 8)
            e('s_cmp_lg_u32 s39, 0')
            e('s_cbranch_scc1 L_b_nocnt')
            e('s_mov_b64 exec, 15')
            e('global_load_dword v20, v19, s[12:13] sc1')
            e('s_mov_b64 exec, -1')
            e.label('L_b_nocnt')
            t_wq = e.vm()
            wq_group(12, 6)
    stamp(3)
    e.wait_vm(t_wq)
    e('s_cmp_lg_u32 s39, 0')
    e('s_cbranch_scc1 L_b_cntdone')
    e('s_mov_b64 exec, 15')
    e('v_cmp_gt_u32 vcc, 14, v20')
    e('s_cbranch_vccz L_b_cntdone')
    e('s_mov_b32 s44, %d' % SPIN)
    e.label('L_b_cnt')
    e('global_load_dword v20, v19, s[12:13] sc1')
    e('s_sub_u32 s44, s44, 1')
    e('s_cbranch_scc1 L_b_cntdone')
    e('s_waitcnt vmcnt(0)')
    e('v_cmp_gt_u32 vcc, 14, v20')
    e('s_cbranch_vccnz L_b_cnt')
    e.label('L_b_cntdone')
    e('s_mov_b64 exec, -1')
    e('s_waitcnt lgkmcnt(0)')
    stamp(4)
    e('s_barrier')
    stamp(5)
    e('s_setprio 2')
    tk = []
    for w in range(4):
        for k in range(4):
            e('ds_read_b128 %s, %s' % (a(16 * w + 4 * k, 4), v(64 + k)))
            if w < 3: e('v_add_u32 %s, %s, %s' % (v(64 + k), v(60 + k), v(64 + k)))
        tk.append(e.lg())
    e('v_mov_b32 v4, s47')
    e('v_mov_b32 v5, 1')
    e('ds_write_b64 v4, v[40:41] offset:760')
    DD = 68
    for w in range(4):
        e.wait_lg(tk[w])
        if w == 3:
            e('s_mov_b64 exec, 1')
            e('ds_add_u32 v55, v5')
            e('s_mov_b64 exec, -1')
        for i in range(2):
            for j in range(2):
                d = DD + 8 * i + 4 * j
                e('v_mfma_f32_16x16x32_bf16 %s, %s, %s, %s' % (v(d, 4), a(16 * w + 4 * i, 4), a(16 * w + 8 + 4 * j, 4), v(d, 4) if w else '0'))
    e('v_lshl_add_u32 v4, v1, 4, s47')
    e('v_add_u32 v16, 4096, v15')
    e('v_add_u32 v17, 8192, v15')
    for i in range(2):
        for j in range(2):
            d = DD + 8 * i + 4 * j
            o = 92 + 2 * (2 * i + j)
            for k in range(2): e('v_cvt_pk_bf16_f32 %s, %s, %s' % (v(o + k), v(d + 2 * k), v(d + 2 * k + 1)))
            e('ds_write_b64 %s, %s' % (v(45 + 2 * i + j), v(o, 2)))
    e('ds_read_b128 v[68:71], v4')
    e('s_waitcnt vmcnt(0)')
    e('s_mov_b64 exec, 1')
    e('ds_add_u32 v55, v5 offset:4')
    e('s_mov_b64 exec, -1')
    e('s_waitcnt lgkmcnt(1)')
    e('v_min_u32 v68, -2, v68')
    e('s_mov_b32 exec_hi, 0xffff')
    e('global_store_dwordx4 v14, v[68:71], s[14:15] sc1')
    e('s_mov_b32 exec_hi, -1')
    stamp(6)
    def wo_block(first, last):
        e('s_add_u32 s35, s39, %d' % first)
        if first + 3 > last: e('s_min_u32 s35, s35, %d' % last)
        e('s_lshr_b32 s32, s35, 1')
        e('s_add_u32 s32, s32, s26')
        e('s_and_b32 s32, s32, 7')
        e('s_mul_i32 s32, s32, 72')
        e('s_and_b32 s33, s35, 1')
        e('s_lshl_b32 s33, s33, 5')
        e('s_add_u32 s32, s32, s33')
        e('s_add_u32 s32, s32, 8')
        e('s_mul_i32 s32, s32, 1152')
        e('s_mul_i32 s34, s35, 4608')
        if last < 13:
            e('s_add_u32 s33, s34, %d' % (SCR - 6 * 4608))
            e('s_cmp_ge_u32 s35, 6')
            e('s_cselect_b32 s34, s33, s34')
        else:
            e('s_add_u32 s34, s34, %d' % (WQ_LO - 13 * 4608))
        tile144('s[28:31]', 29, 's32')
    e('s_mov_b32 s44, %d' % SPIN)
    e.label('L_b_lcnt')
    e('ds_read_b32 v4, v55')
    e('s_sub_u32 s44, s44, 1')
    e('s_cbranch_scc1 L_b_lcntdone')
    e('s_waitcnt lgkmcnt(0)')
    e('v_cmp_gt_u32 vcc, 4, v4')
    e('s_cbranch_vccnz L_b_lcnt')
    e.label('L_b_lcntdone')
    e('s_waitcnt lgkmcnt(0)')
    nearly = int(opts.get('woearly', 3))
    for k in range(nearly): wo_block(4 * k, 12)
    e('v_lshlrev_b32 v4, 8, v2')
    e('v_lshlrev_b32 v6, 4, v1')
    e('v_sub_u32 v5, v17, v6')
    e('v_add_u32 v4, v4, v5')
    e('s_mov_b32 s44, %d' % SPIN)
    stamp(7)
    e.label('L_b_gather')
    X = 64
    for b in range(3):
        for i in range(4): e('global_load_dwordx4 %s, %s, s[14:15] offset:%d sc1' % (v(X + 16 * b + 4 * i, 4), v(15 + b), 1024 * i))
    e('s_mov_b64 s[32:33], 0')
    for k in range(12):
        if k % 4 == 0: e('s_waitcnt vmcnt(%d)' % (8 - k))
        e('v_cmp_eq_u32 vcc, -1, %s' % v(X + 4 * k))
        e('s_or_b64 s[32:33], s[32:33], vcc')
    e('s_cmp_eq_u64 s[32:33], 0')
    e('s_cbranch_scc1 L_b_gathered')
    e('s_mov_b64 exec, 0xffff')
    e.label('L_b_kvprobe')
    e('global_load_dword v5, v4, s[14:15] sc1')
    e('s_sub_u32 s44, s44, 1')
    e('s_cbranch_scc1 L_b_gathered')
    e('s_waitcnt vmcnt(0)')
    e('v_cmp_eq_u32 vcc, -1, v5')
    e('s_cbranch_vccnz L_b_kvprobe')
    e('s_mov_b64 exec, -1')
    e('s_branch L_b_gather')
    e.label('L_b_gathered')
    e('s_mov_b64 exec, -1')
    stamp(8)
    for i in range(4):
        for b in range(3):
            e('v_mfma_f32_16x16x32_bf16 %s, v[56:59], %s, %s' % (v(8 + 4 * b, 4), v(X + 16 * b + 4 * i, 4), v(8 + 4 * b, 4) if i else '0'))
    for b in range(3):
        for k in range(2): e('v_cvt_pk_bf16_f32 %s, %s, %s' % (v(20 + 2 * b + k), v(8 + 4 * b + 2 * k), v(8 + 4 * b + 2 * k + 1)))
        e('ds_write_b64 %s, %s' % (v(51 + b), v(20 + 2 * b, 2)))
    for k in range(1, 4): e('ds_write_b64 v54, v[24:25] offset:%d' % (32 * k))
    e('s_setprio 0')
    e('s_waitcnt lgkmcnt(0)')
    stamp(9)
    e('s_barrier')
    for k in range(nearly, 3): wo_block(4 * k, 12)
    e('s_cmp_lg_u32 s39, 0')
    e('s_cbranch_scc1 L_b_wo13')
    wo_block(12, 12)
    e('s_branch L_b_wo16')
    e.label('L_b_wo13')
    wo_block(12, 15)
    e.label('L_b_wo16')
    e('s_cmp_ge_u32 s39, 2')
    e('s_cbranch_scc1 L_b_wodone')
    e('s_mul_i32 s32, s39, %d' % (288 * 1152))
    e('s_mul_i32 s34, s39, 4608')
    e('s_add_u32 s34, s34, %d' % (WQ_LO + 3 * 4608))
    tile144('s[28:31]', 34, 's32')
    e.label('L_b_wodone')
    e('s_waitcnt vmcnt(0)')
    stamp(10)
    e('s_barrier')
    e('s_endpgm')


def role_h(e, opts, stamp=None):
    stamp = stamp or (lambda i: None)
    e.label('L_roleH')
    e('s_getpc_b64 s[32:33]')
    e.label('L_h_pc')
    e('s_sub_u32 s32, s32, L_h_pc-KERNEL_START')
    e('s_subb_u32 s33, s33, 0')
    e('v_lshlrev_b32 v1, 7, v0')
    e('v_cmp_gt_u32 vcc, KERNEL_END-KERNEL_START, v1')
    e('s_and_saveexec_b64 s[34:35], vcc')
    e('s_cbranch_execz L_h_nocode')
    if int(opts.get('pfcode', 1)): e('global_load_dword v2, v1, s[32:33]')
    e.label('L_h_nocode')
    e('s_mov_b64 exec, s[34:35]')
    e('s_mov_b32 s41, s24')
    e('s_mov_b32 s42, s25')
    e('s_sub_u32 s26, s2, 224')
    e('s_sub_u32 s27, s24, 8')
    e('s_mul_i32 s27, s27, 6')
    e('s_add_u32 s27, s27, s25')
    e('s_add_u32 s27, s27, 30')
    e('s_cmp_ge_u32 s24, 12')
    e('s_cselect_b32 s26, s26, s27')
    e('s_mul_i32 s27, s26, 49152')
    e('v_lshl_add_u32 v4, v0, 4, s27')
    for k in range(4): e('v_mov_b32 %s, -1' % v(8 + k))
    e('s_and_b32 s24, s24, 3')
    e('s_mul_i32 s24, s24, 144')
    e('s_and_b32 s25, s25, 1')
    e('s_lshl_b32 s25, s25, 9')
    for k in range(2):
        e('v_add_u32 v16, %d, v0' % (512 * k))
        e('v_min_u32 v16, 719, v16')
        div_small(e, 5, 6, 16, 5, 7)
        e('v_add_u32 v5, s24, v5')
        e('v_lshl_add_u32 v6, v6, 7, s25')
        e('v_mul_u32_u24 v7, 3456, v5')
        e('v_mul_u32_u24 v5, 1152, v5')
        e('v_add_u32 %s, v7, v6' % v(14 + k))
        e('v_add_u32 %s, v5, v6' % v(12 + k))
    order = opts.get('horder', 'fwGcq')
    e('s_waitcnt lgkmcnt(0)')
    for n_, ch in enumerate(order):
        stamp(n_)
        if ch == 'w': e('s_waitcnt vmcnt(0)')
        if ch == 'f': first_touch(e, 's41', 's42', 24, 20)
        if ch == 'G': first_touch(e, 's41', 's42', 24, 21, 5)
        if ch == 'g':
            e('s_and_b32 s39, s41, 3')
            e('s_add_u32 s39, s39, 5')
            for k in range(3): touch_tiles(e, 0, 's39', 384 * k, 384, 's42', 24, 21 + k)
        if ch == 's':
            e('s_mov_b32 s28, %d' % int(opts.get('hspin', 100)))
            e.label('L_h_spin')
            e('s_sleep 1')
            e('s_sub_u32 s28, s28, 1')
            e('s_cbranch_scc0 L_h_spin')
        if ch == 't':
            e('s_and_b32 s27, s2, 7')
            e('s_lshl_b32 s27, s27, 2')
            e('v_mov_b32 v5, s27')
            e('s_mov_b32 s28, %d' % SPIN)
            e('v_readfirstlane_b32 s29, v0')
            e('s_cmp_lg_u32 s29, 0')
            e('s_cbranch_scc1 L_h_trigd')
            e('s_mov_b64 exec, 1')
            e.label('L_h_trig')
            e('global_load_dword v6, v5, s[54:55] offset:16 sc1')
            e('s_sub_u32 s28, s28, 1')
            e('s_cbranch_scc1 L_h_trigd')
            e('s_waitcnt vmcnt(0)')
            e('v_cmp_eq_u32 vcc, 0, v6')
            e('s_cbranch_vccnz L_h_trig')
            e.label('L_h_trigd')
            e('s_mov_b64 exec, -1')
            e('s_barrier')
        if ch == 'q':
            for k in range(2): e('global_load_dword %s, %s, s[48:49]' % (v(16 + k), v(14 + k)))
        if ch == 'o':
            for k in range(2): e('global_load_dword %s, %s, s[50:51]' % (v(18 + k), v(12 + k)))
        if ch == 'c':
            for k in range(6):
                e('global_store_dwordx4 v4, v[8:11], s[56:57] sc1')
                if k < 5: e('v_add_u32 v4, 8192, v4')
    e('s_and_b32 s26, s26, 3')
    e('s_lshl_b32 s26, s26, 6')
    e('v_mov_b32 v5, s26')
    e('v_mov_b32 v6, 1')
    e('v_cmp_eq_u32 vcc, 0, v0')
    stamp(8)
    e('s_waitcnt vmcnt(0)')
    stamp(9)
    e('s_barrier')
    e('s_and_saveexec_b64 s[34:35], vcc')
    e('s_cbranch_execz L_h_noadd')
    e('global_atomic_add v5, v6, s[54:55] sc1')
    e.label('L_h_noadd')
    e('s_mov_b64 exec, s[34:35]')
    if 'q' not in order:
        for k in range(2): e('global_load_dword %s, %s, s[48:49]' % (v(16 + k), v(14 + k)))
    if 'o' not in order:
        for k in range(2): e('global_load_dword %s, %s, s[50:51]' % (v(18 + k), v(12 + k)))
    if opts.get('hst'):
        e('v_lshrrev_b32 v2, 6, v0\nv_readfirstlane_b32 s24, v2\ns_branch L_dump')
    e('s_endpgm')
```

```python
import sys
from asmlib import *
import gen_a
KN = 'concat_heads__ssm_conv_s4__linear_attn_block__prompt_kernel'
HEAD = open('concat_heads__ssm_conv_s4__linear_attn_block__prompt.s.ref').read().split('; Override launch')[0]
LDS = 163840
STAMP_BASE = 64 << 20

def make(stamps=False, roles='AB', opts=None):
    opts = opts or {}
    e = Asm()
    nst = [0]
    def mk_stamp(role):
        if opts.get('at'):
            def st1(i):
                sec = [k for k, x in e.secs.items() if x is e.L][0]
                who = 'c' if sec == 'compute' else 'a' if role == 'A' else 'h' if role == 'H' else 'l'
                if opts['at'] == '%s%d' % (who, i): e('s_memrealtime s[70:71]')
            return st1
        if not stamps: return None
        def st(i):
            e('%s %s' % ('s_memrealtime' if opts.get('rt') else 's_memtime', s(64 + 2 * i, 2)))
        return st
    e.label(KN)
    probe = opts.get('probe')
    if stamps or probe:
        e('s_memrealtime s[60:61]')
        e('s_memrealtime s[62:63]' if opts.get('rt') else 's_memtime s[62:63]')
    import gen_b
    e.secs = {'head': e.L}
    e('s_load_dwordx16 s[4:19], s[0:1], 0')
    e('s_load_dwordx8 s[44:51], s[0:1], 64')
    e('s_load_dwordx4 s[52:55], s[0:1], 96')
    e('s_load_dwordx2 s[56:57], s[0:1], 112')
    e('s_cmp_ge_u32 s2, 128')
    e('s_cbranch_scc1 L_roleA')
    if 'B' in roles: gen_b.role_b(e, mk_stamp('B'), opts)
    else: e('s_branch L_exit')
    e.section('ahead', False)
    gen_a.role_a(e, mk_stamp('A'), opts)
    e.section('helper', False)
    gen_b.role_h(e, opts, mk_stamp('H') if opts.get('hst') else None)
    e.section('exit', False)
    e.label('L_exit')
    e('s_endpgm')
    order = ['head', 'ahead', 'helper', 'exit', 'amain', 'loader', 'compute', 'strict']
    assert set(e.secs) <= set(order)
    lines = sum([e.secs.get(k, []) for k in order], [])
    keep = len(e.secs['head']) + len(e.secs['ahead']) + len(e.secs['helper']) + len(e.secs['exit'])
    if 'A' not in roles:
        k = lines.index('s_cbranch_scc1 L_roleH')
        lines.insert(k + 1, 's_branch L_exit')
    if probe:
        k = [i for i, l in enumerate(lines) if l == 's_endpgm'][{'b': -1, 'l': -2, 'a': 2}[probe[0]]]
        d = Asm()
        d('s_waitcnt vmcnt(0)')
        d('s_memrealtime s[62:63]' if probe[1:] == 'rt' else 's_memtime s[64:65]')
        d('s_memrealtime s[66:67]')
        d('s_waitcnt lgkmcnt(0)')
        if probe[1:] == 'rt':
            d('s_sub_u32 s6, %s, s60' % ('s70' if opts.get('at') else 's62'))
            d('s_lshl_b32 s6, s6, 2')
        else:
            d('s_sub_u32 s6, s64, s62')
            d('s_lshr_b32 s6, s6, 3')
        d.label('L_probe')
        d('s_memrealtime s[68:69]')
        d('s_waitcnt lgkmcnt(0)')
        d('s_sub_u32 s7, s68, s66')
        d('s_cmp_lt_u32 s7, s6')
        d('s_cbranch_scc1 L_probe')
        lines = lines[:k] + d.L + lines[k:]
    if stamps:
        out = []
        for k, l in enumerate(lines):
            if l == 's_endpgm' and k > keep: out.append('s_branch L_dump')
            else: out.append(l)
        lines = out
        d = Asm()
        d.label('L_dump')
        d('s_waitcnt vmcnt(0)')
        d('s_memrealtime s[96:97]' if opts.get('rt') else 's_memtime s[96:97]')
        d('s_memrealtime s[98:99]')
        d('s_load_dwordx2 s[4:5], s[0:1], 112')
        d('v_mbcnt_lo_u32_b32 v1, -1, 0')
        d('v_mbcnt_hi_u32_b32 v1, -1, v1')
        d('s_waitcnt lgkmcnt(0)')
        d('v_mov_b32 v2, s60')
        for i in range(17):
            d('s_sub_u32 s6, %s, s62' % s(64 + 2 * i))
            d('v_mov_b32 v3, s6')
            d('v_cmp_eq_u32 vcc, %d, v1' % (i + 2))
            d('v_cndmask_b32 v2, v2, v3, vcc')
        d('v_mov_b32 v3, s98')
        d('v_cmp_eq_u32 vcc, 1, v1')
        d('v_cndmask_b32 v2, v2, v3, vcc')
        d('s_lshl_b32 s6, s2, 3')
        d('s_add_u32 s6, s6, s24')
        d('s_lshl_b32 s6, s6, 8')
        d('s_add_u32 s6, s6, %d' % STAMP_BASE)
        d('v_lshl_add_u32 v1, v1, 2, s6')
        d('global_store_dword v1, v2, s[4:5]')
        d('s_endpgm')
        lines += d.L
    if opts.get('sys'): lines = [l.replace(' sc1', ' sc0 sc1') if ('store' in l and opts['sys'] in 'sb') or ('load' in l and opts['sys'] in 'lb') else l for l in lines]
    lines, added = pad_hazards(lines)
    lines = [l.replace('KERNEL_START', KN).replace('KERNEL_END', 'L_end') for l in lines] + ['L_end:']
    body = '\n'.join(l if l.endswith(':') else '    ' + l for l in lines)
    txt = HEAD + '; @launch grid=(256,1,1) block=(512,1,1) lds=%d\n' % LDS
    txt += '.amdgcn_target "amdgcn-amd-amdhsa--gfx950"\n.text\n.globl %s\n.p2align 8\n.type %s,@function\n' % (KN, KN)
    txt += body + '\n'
    txt += '''.section .rodata,"a"
.p2align 6
.amdhsa_kernel %s
  .amdhsa_next_free_vgpr 256
  .amdhsa_next_free_sgpr 102
  .amdhsa_accum_offset 112
  .amdhsa_group_segment_fixed_size 0
  .amdhsa_kernarg_size 120
  .amdhsa_user_sgpr_count 2
  .amdhsa_user_sgpr_kernarg_segment_ptr 1
  .amdhsa_system_sgpr_workgroup_id_x 1
.end_amdhsa_kernel
''' % KN
    return txt, added

if __name__ == '__main__':
    out = sys.argv[1]
    stamps = 'stamps' in sys.argv[2:]
    roles = [x for x in sys.argv[2:] if x in ('A', 'B', 'AB')]
    opts = dict(x.split('=') for x in sys.argv[2:] if '=' in x)
    txt, added = make(stamps, roles[0] if roles else 'AB', opts)
    open(out, 'w').write(txt)
    print('wrote', out, len(txt), 'bytes; nop states added', added)
```

```python
from asmlib import *
import math, struct

def f2u(x): return struct.unpack('<I', struct.pack('<f', x))[0]
LOG2E = f2u(math.log2(math.e)); INV2PI = f2u(1.0 / (2 * math.pi))

A_WORK = 64; A_WS = 8960
A_CMP = A_WORK + 8 * A_WS
CMPS = 3584
A_UT = A_CMP + 8 * CMPS
A_Y1 = A_UT + 8 * 4608
A_END = A_Y1 + 8 * 3072
assert A_END <= 163840
ROWB = 272
CS = 2240

def cmul(e, dst, x, y, t):
    return [lambda: e('v_pk_mul_f32 %s, %s, %s op_sel_hi:[1,0]' % (v(t, 2), v(x, 2), v(y, 2))),
            lambda: e('v_pk_fma_f32 %s, %s, %s, %s op_sel:[1,1,0] op_sel_hi:[0,1,1] neg_lo:[0,1,0]' % (v(dst, 2), v(x, 2), v(y, 2), v(t, 2)))]

def interleave(*streams):
    streams = [list(x) for x in streams]
    while any(streams):
        for st in streams:
            if st: st.pop(0)()

def role_a(e, stamp=None, opts=None):
    opts = opts or {}
    late = int(opts.get('ulate', 1))
    stamp = stamp or (lambda i: None)
    e.label('L_roleA')
    e('s_cmp_ge_u32 s2, 256')
    e('s_cbranch_scc1 L_exit')
    e('s_sub_u32 s24, s2, 128')
    e('s_and_b32 s25, s24, 7')
    e('s_lshr_b32 s24, s24, 3')
    e('s_lshr_b32 s27, s24, 2')
    e('s_lshl_b32 s27, s27, 3')
    e('s_add_u32 s27, s27, s25')
    e('s_cmp_ge_u32 s27, 18')
    e('s_cbranch_scc1 L_roleH')
    e('s_mov_b32 s41, s24')
    e('s_mov_b32 s42, s25')
    e('s_and_b32 s26, s24, 3')
    e('s_lshl_b32 s27, s25, 2')
    e('s_add_u32 s27, s27, 56')
    e('s_lshl_b32 s25, s25, 3')
    e('s_cmp_lt_u32 s24, 8')
    e('s_cselect_b32 s25, s25, s27')
    e('s_add_u32 s25, s25, s24')
    e('v_lshrrev_b32 v10, 6, v0')
    e('v_and_b32 v1, 63, v0')
    e('v_readfirstlane_b32 s24, v10')
    e('s_mov_b32 s30, 0x05040100')
    e('s_mov_b32 s31, 0x07060302')
    e('s_lshl_b32 s28, s25, 3')
    e('s_add_u32 s28, s28, s24')
    e('s_lshl_b32 s29, s28, 8')
    e('v_lshl_add_u32 v10, v1, 2, s29')
    e('s_lshl_b32 s29, s28, 1')
    e('v_mov_b32 v11, s29')
    e('v_lshlrev_b32 v12, 2, v0')
    e('v_mul_u32_u24 v13, 1152, v12')
    e('s_lshl_b32 s29, s25, 4')
    e('v_add_u32 v13, s29, v13')
    e('v_mul_u32_u24 v14, 4608, v0')
    e('v_add_u32 v14, s29, v14')
    e('s_mul_i32 s27, s24, %d' % A_WS)
    e('s_add_u32 s27, s27, %d' % A_WORK)
    e('s_mov_b32 m0, s27')
    e('s_waitcnt lgkmcnt(0)')
    e('global_load_ushort v8, v11, s[18:19]')
    for k in range(6):
        e('global_load_dword %s, v10, %s' % (v(2 + k), s(6 + 2 * k, 2)))
    e('global_load_ushort v9, v11, s[44:45]')
    t_par = e.vm()
    if int(opts.get('atouch', 2)):
        import gen_b
        gen_b.first_touch(e, 's41', 's42', 36, 10)
    def uload(slot):
        for sub in range(4):
            if sub < 3:
                e('s_cmp_lg_u32 s26, %d' % sub)
                e('s_cbranch_scc1 L_a_u%d_%d' % (slot, sub + 1))
            i = (slot + sub) & 3
            e('global_load_dwordx4 %s, v13, s[4:5] offset:%d' % (v(16 + 4 * i, 4), 1152 * i))
            if sub < 3:
                e('s_branch L_a_udone%d' % slot)
                e.label('L_a_u%d_%d' % (slot, sub + 1))
                e.nvm -= 1
        e.label('L_a_udone%d' % slot)
    stamp(0)
    e.section('amain')
    e('s_mul_i32 s33, s24, 4608')
    e('s_add_u32 s33, s33, %d' % A_UT)
    e('v_lshl_add_u32 v38, v1, 3, s33')
    e('v_mov_b32 v36, 0')
    e('v_mov_b32 v37, 0')
    e('ds_write_b64 v38, v[36:37]')
    e('v_and_b32 v36, 31, v1')
    e('v_lshrrev_b32 v37, 5, v1')
    e('v_mul_u32_u24 v86, %d, v36' % ROWB)
    e('v_lshl_add_u32 v86, v37, 4, v86')
    e('v_add_u32 v86, s27, v86')
    for i in range(16): e('v_mov_b32 %s, 0' % v(96 + i))
    e('v_and_b32 v36, 15, v1')
    e('v_lshrrev_b32 v37, 4, v1')
    e('v_lshlrev_b32 v37, 3, v37')
    e('s_movk_i32 s36, 0x3f80')
    for m, (bits, ar) in enumerate(((0x1ff0, 136), (0xfe0, 140))):
        e('v_mov_b32 v38, 0x%x' % bits)
        e('v_lshlrev_b32 v38, v36, v38')
        e('v_lshrrev_b32 v38, v37, v38')
        for k in range(4):
            e('v_bfe_u32 v39, v38, %d, 1' % (2 * k))
            e('v_bfe_u32 v40, v38, %d, 1' % (2 * k + 1))
            e('v_lshl_or_b32 v39, v40, 16, v39')
            e('v_mul_u32_u24 v39, s36, v39')
            e('v_accvgpr_write_b32 %s, v39' % a(ar + k))
    e.wait_vm(t_par)
    stamp(1)
    if int(opts.get('atouch', 2)) > 1: gen_b.first_touch(e, 's41', 's42', 36, 11, 5)
    e('v_lshlrev_b32 v8, 16, v8')
    e('v_mul_f32 v8, 0x%08x, v8' % LOG2E)
    e('v_exp_f32 v8, v8')
    e('v_lshlrev_b32 v9, 16, v9')
    e('v_cvt_pk_bf16_f32 v8, v8, v8')
    e('v_cmp_eq_u32 vcc, 0, v1')
    e('v_lshlrev_b32 v32, 16, v8')
    e('v_cndmask_b32 v35, 0, v9, vcc')
    e('v_mul_f32 v33, 0x%08x, v32' % LOG2E)
    e('v_mul_f32 v34, 0x%08x, v32' % INV2PI)
    e('s_mov_b32 s32, 2')
    e.label('L_a_pass')
    stamp(8)
    if not late: uload(0)
    stamp(9)
    for k in range(6): e('v_lshlrev_b32 %s, 16, %s' % (v(36 + k), v(2 + k)))
    for k in range(6): e('v_lshrrev_b32 %s, 16, %s' % (v(2 + k), v(2 + k)))
    e('v_mul_f32 v36, v33, v36')
    e('v_mul_f32 v37, v34, v37')
    e('v_mul_f32 v38, v32, v38')
    e('v_mul_f32 v39, v32, v39')
    e('v_mul_f32 v70, 0x43800000, v36')
    e('v_mul_f32 v71, 0x43800000, v37')
    e('v_mul_f32 v72, 0x41000000, v36')
    e('v_mul_f32 v73, 0x41000000, v37')
    e('v_fract_f32 v71, v71')
    e('v_fract_f32 v37, v37')
    e('v_fract_f32 v73, v73')
    e('v_exp_f32 v70, v70')
    e('v_cos_f32 v48, v71')
    e('v_sin_f32 v49, v71')
    e('v_exp_f32 v36, v36')
    e('v_cos_f32 v44, v37')
    e('v_sin_f32 v45, v37')
    e('v_exp_f32 v72, v72')
    e('v_cos_f32 v46, v73')
    e('v_sin_f32 v47, v73')
    if int(opts.get('vop2', 0)):
        def cm(d, x, y, ny):
            return [lambda: e('v_mul_f32 %s, %s, %s' % (v(d), v(x), v(y))),
                    lambda: e('v_mul_f32 %s, %s, %s' % (v(d + 1), v(x + 1), v(y))),
                    lambda: e('v_fmac_f32 %s, %s, %s' % (v(d), v(x + 1), v(ny))),
                    lambda: e('v_fmac_f32 %s, %s, %s' % (v(d + 1), v(x), v(y + 1)))]
        neg = lambda d, x: [lambda: e('v_sub_f32 %s, 0, %s' % (v(d), v(x)))]
        e('v_sub_f32 v74, 0, v41')
        for f in cm(42, 38, 40, 74): f()
        e('v_mul_f32 v48, v70, v48')
        e('v_mul_f32 v49, v70, v49')
        e('v_mul_f32 v44, v36, v44')
        e('v_mul_f32 v45, v36, v45')
        e('v_mul_f32 v46, v72, v46')
        e('v_mul_f32 v47, v72, v47')
        e('v_sub_f32 v36, 0, v49')
        e('v_sub_f32 v37, 0, v45')
        e('v_sub_f32 v38, 0, v47')
        cv = {}
        def put(src, row, ng, ch=0):
            cv[ch] = cv.get(ch, 0) + 1
            r = 78 + 2 * ch + (cv[ch] & 1)
            return [lambda: e('v_cvt_pk_bf16_f32 %s, %s, %s%s' % (v(r), v(src), '-' if ng else '', v(src + 1))),
                    lambda: e('ds_write_addtid_b32 %s offset:%d' % (v(r), row * ROWB))]
        chA = put(42, 0, True); src = 42
        for k, r in enumerate([8, 12, 14, 16, 17, 18, 19, 20]):
            d = 50 + 2 * (k & 1)
            chA += cm(d, src, 48, 36) + put(d, r, True); src = d
        pB = lambda x, r: put(x, r, True, 1)
        chB = cm(60, 44, 44, 37) + neg(39, 61) + cm(68, 42, 44, 37) + pB(68, 1)
        chB += cm(62, 42, 60, 39) + pB(62, 2) + cm(70, 68, 60, 39) + pB(70, 3)
        chB += cm(64, 62, 60, 39) + pB(64, 4) + cm(68, 70, 60, 39) + pB(68, 5)
        chB += cm(66, 64, 60, 39) + pB(66, 6) + cm(70, 68, 60, 39) + pB(70, 7)
        chB += cm(68, 64, 48, 36) + pB(68, 10) + cm(70, 62, 48, 36) + pB(70, 9)
        chB += cm(64, 68, 48, 36) + pB(64, 13) + cm(70, 66, 48, 36) + pB(70, 11)
        chB += cm(68, 64, 48, 36) + pB(68, 15)
        chC = cm(54, 46, 46, 38) + cm(56, 54, 46, 38) + neg(40, 55) + cm(58, 54, 54, 40) + neg(41, 59)
        stamp(10)
        interleave(chA, chB, chC)
        stamp(11)
        uload(1)
        stamp(12)
        for k in range(8): e('ds_read_b128 %s, v86 offset:%d' % (a(4 * k, 4), 32 * k))
        e('v_mov_b32 v52, 0x3f80')
        e('ds_write_addtid_b32 v52')
        for f in put(46, 1, False) + put(54, 2, False) + put(56, 3, False) + put(58, 4, False): f()
        regs = {0: (58, 50, 52), 1: (46, 60, 62), 2: (54, 64, 66), 3: (56, 68, 70)}
        chains = []
        for c in (1, 2, 3, 0):
            st = []
            src, r0, r1 = regs[c]
            for j in range(5, 32):
                if j % 4 != c: continue
                st += cm(r0, src, 58, 41) + put(r0, j, False, c); src = r0; r0, r1 = r1, r0
            chains.append(st)
        interleave(*chains)
    else:
        for f in cmul(e, 42, 38, 40, 74): f()
        e('v_mul_f32 v48, v70, v48')
        e('v_mul_f32 v49, v70, v49')
        e('v_mul_f32 v44, v36, v44')
        e('v_mul_f32 v45, v36, v45')
        e('v_mul_f32 v46, v72, v46')
        e('v_mul_f32 v47, v72, v47')
        cv = {}
        def put(src, row, neg, ch=0):
            cv[ch] = cv.get(ch, 0) + 1
            r = 78 + 2 * ch + (cv[ch] & 1)
            return [lambda: e('v_cvt_pk_bf16_f32 %s, %s, %s%s' % (v(r), v(src), '-' if neg else '', v(src + 1))),
                    lambda: e('ds_write_addtid_b32 %s offset:%d' % (v(r), row * ROWB))]
        chA = put(42, 0, True)
        rowsA = [8, 12, 14, 16, 17, 18, 19, 20]
        src = 42
        for r in rowsA:
            chA += cmul(e, 50, src, 48, 70) + put(50, r, True); src = 50
        putB = lambda x, r, n: put(x, r, n, 1)
        chB = cmul(e, 60, 44, 44, 72) + cmul(e, 68, 42, 44, 74) + putB(68, 1, True)
        chB += cmul(e, 62, 42, 60, 72) + putB(62, 2, True) + cmul(e, 68, 68, 60, 74) + putB(68, 3, True)
        chB += cmul(e, 64, 62, 60, 72) + putB(64, 4, True) + cmul(e, 68, 68, 60, 74) + putB(68, 5, True)
        chB += cmul(e, 66, 64, 60, 72) + putB(66, 6, True) + cmul(e, 68, 68, 60, 74) + putB(68, 7, True)
        chB += cmul(e, 64, 64, 48, 72) + putB(64, 10, True) + cmul(e, 62, 62, 48, 74) + putB(62, 9, True)
        chB += cmul(e, 64, 64, 48, 72) + putB(64, 13, True) + cmul(e, 66, 66, 48, 74) + putB(66, 11, True)
        chB += cmul(e, 64, 64, 48, 72) + putB(64, 15, True)
        chC = cmul(e, 54, 46, 46, 76) + cmul(e, 56, 54, 46, 76) + cmul(e, 58, 54, 54, 76)
        stamp(10)
        interleave(chA, chB, chC)
        stamp(11)
        uload(1)
        stamp(12)
        for k in range(8): e('ds_read_b128 %s, v86 offset:%d' % (a(4 * k, 4), 32 * k))
        e('v_mov_b32 v52, 0x3f80')
        e('ds_write_addtid_b32 v52')
        for f in put(46, 1, False) + put(54, 2, False) + put(56, 3, False) + put(58, 4, False): f()
        regs = {0: (58, 50), 1: (46, 52), 2: (54, 54), 3: (56, 56)}
        chains = []
        for c in (1, 2, 3, 0):
            st = []
            src, run = regs[c]
            for j in range(5, 32):
                if j % 4 != c: continue
                st += cmul(e, run, src, 58, 70 + 2 * c) + put(run, j, False, c); src = run
            chains.append(st)
        interleave(*chains)
    stamp(13)
    if late: uload(0)
    e('s_add_u32 s26, s26, 2')
    e('s_and_b32 s26, s26, 3')
    t0 = e.lg()
    for k in range(8): e('ds_read_b128 %s, v86 offset:%d' % (a(32 + 4 * k, 4), 32 * k))
    for k in range(8):
        e.wait_lg(t0 + k + 1)
        e('v_mfma_f32_32x32x16_bf16 v[96:111], %s, %s, v[96:111]' % (a(4 * k, 4), a(32 + 4 * k, 4)))
    e('s_sub_u32 s32, s32, 1')
    e('s_cmp_lg_u32 s32, 0')
    e('s_cbranch_scc1 L_a_pass')
    stamp(2)
    e('s_mul_i32 s34, s24, %d' % CMPS)
    e('s_add_u32 s34, s34, %d' % A_CMP)
    e('v_and_b32 v36, 31, v1')
    e('v_lshrrev_b32 v37, 5, v1')
    e('v_cmp_eq_u32 vcc, 0, v37')
    e('v_lshlrev_b32 v38, 5, v36')
    e('v_lshl_add_u32 v38, v37, 4, v38')
    e('v_add_u32 v38, s34, v38')
    e('v_lshlrev_b32 v39, 4, v36')
    e('v_add_u32 v39, 1024, v39')
    e('v_lshlrev_b32 v40, 3, v36')
    e('v_add_u32 v40, 1536, v40')
    e('v_cndmask_b32 v41, v40, v39, vcc')
    e('v_add_u32 v39, 8, v39')
    e('v_add_u32 v40, 256, v40')
    e('v_cndmask_b32 v42, v40, v39, vcc')
    e('v_add_u32 v41, s34, v41')
    e('v_add_u32 v42, s34, v42')
    e('v_lshlrev_b32 v43, 9, v37')
    e('v_lshl_add_u32 v43, v36, 2, v43')
    e('s_add_u32 s35, s34, 2048')
    e('v_add_u32 v43, s35, v43')
    e('v_lshl_add_u32 v44, v1, 3, s34')
    e('v_lshl_add_u32 v45, v1, 4, s34')
    e('v_cmp_eq_u32 vcc, 0, v1')
    e('v_mov_b32 v51, s34')
    e('v_cndmask_b32 v46, 0, -4, vcc')
    e('v_add_u32 v46, v46, v44')
    e('v_subrev_u32 v47, 16, v45')
    e('v_cndmask_b32 v47, v47, v45, vcc')
    e('v_lshlrev_b32 v49, 4, v1')
    e('v_sub_u32 v49, s27, v49')
    e('v_lshlrev_b32 v50, 3, v1')
    e('v_sub_u32 v50, s27, v50')
    e('v_add_u32 v49, 1072, v49')
    e('v_add_u32 v50, 1592, v50')
    e('v_lshlrev_b32 v48, 2, v1')
    e('v_sub_u32 v48, s34, v48')
    e('v_add_u32 v48, %d, v48' % (3072 + 252))
    e('ds_write_b128 v38, v[96:99]')
    e('ds_write_b64 v41, v[100:101]')
    e('ds_write_b64 v42, v[102:103]')
    e('ds_write2_b32 v43, v104, v105 offset0:0 offset1:32')
    e('ds_write2_b32 v43, v106, v107 offset0:64 offset1:96')
    t0 = e.lg()
    e('ds_read_b64 v[56:57], v44 offset:1536')
    e('ds_read_b32 v58, v44 offset:1544')
    e('ds_read_b32 v59, v46 offset:1536')
    e('ds_read_b32 v55, v46 offset:1532')
    e('ds_read_b64 v[60:61], v44 offset:1024')
    e('ds_read_b32 v62, v44 offset:1032')
    e('ds_read_b32 v63, v46 offset:1024')
    e('ds_read2_b32 v[68:69], v46 offset0:254 offset1:255')
    e('ds_read_b128 v[64:67], v45')
    e('ds_read_b128 v[72:75], v47')
    e('ds_read_b32 v52, v44 offset:2052')
    e('ds_read_b32 v53, v44 offset:2056')
    e('ds_read_b32 v70, v51 offset:2044')
    e('ds_read_b32 v71, v51 offset:2048')
    e('v_and_b32 v36, 7, v1')
    e('v_bfe_u32 v37, v1, 3, 2')
    e('v_mul_u32_u24 v37, %d, v37' % CS)
    e('v_min_u32 v36, 4, v36')
    e('v_lshlrev_b32 v38, 4, v36')
    e('v_cmp_lt_u32 s[36:37], 2, v36')
    e('v_add_u32 v39, %d, v38' % (2112 - 48))
    e('v_cndmask_b32 v38, v38, v39, s[36:37]')
    e('v_add3_u32 v36, v38, v37, s27')
    for k in range(4): e('v_mov_b32 %s, 0' % v(76 + k))
    e('ds_write_b128 v36, v[76:79]')
    e('v_and_b32 v36, 3, v1')
    e('v_lshl_add_u32 v37, v36, 4, s34')
    e('ds_write_b128 v37, v[76:79] offset:%d' % (3072 + 256))
    e('v_bfe_u32 v37, v1, 2, 2')
    e('v_lshlrev_b32 v38, 1, v36')
    e('v_sub_u32 v38, v37, v38')
    e('v_mul_u32_u24 v37, %d, v37' % CS)
    e('v_lshl_add_u32 v37, v36, 2, v37')
    e('v_add_u32 v37, s27, v37')
    e('v_cmp_lt_i32 s[36:37], 0, v38')
    e('v_cmp_lt_i32 s[38:39], 1, v38')
    e('v_cmp_eq_i32 s[40:41], -6, v38')
    def pk(d, x, y): e('v_cvt_pk_bf16_f32 %s, %s, %s' % (v(d), v(x), v(y)))
    def quad(base, pairs):
        for k, (x, y) in enumerate(pairs): pk(base + k, x, y)
    e.wait_lg(t0 + 4)
    A_, B_, C_, A2, D_ = 56, 57, 58, 59, 55
    quad(80, [(C_, C_), (B_, B_), (B_, A_), (A_, A_)]); e('ds_write_b128 v49, v[80:83] offset:%d' % (3 * CS))
    quad(84, [(C_, B_), (B_, B_), (A_, A_), (A_, A_)]); e('ds_write_b128 v49, v[84:87] offset:%d' % (2 * CS))
    quad(88, [(B_, B_), (B_, A_), (A_, A_), (A_, A2)]); e('ds_write_b128 v49, v[88:91] offset:%d' % CS)
    quad(92, [(B_, B_), (A_, A_), (A_, A_), (A2, D_)]); e('ds_write_b128 v49, v[92:95]')
    e.wait_lg(t0 + 14)
    A_, B_, C_, A1, E_, F_ = 60, 61, 62, 63, 69, 68
    e('v_add_f32 v64, v64, v35')
    for k in (73, 74, 75): e('v_cndmask_b32 %s, %s, v76, vcc' % (v(k), v(k)))
    quad(80, [(C_, B_), (A_, A_)]); e('ds_write_b64 v50, v[80:81] offset:%d' % (3 * CS))
    quad(82, [(B_, A_), (A_, A1)]); e('ds_write_b64 v50, v[82:83] offset:%d' % (2 * CS))
    quad(84, [(A_, A_), (A1, E_)]); e('ds_write_b64 v50, v[84:85] offset:%d' % CS)
    quad(86, [(A_, A1), (E_, F_)]); e('ds_write_b64 v50, v[86:87]')
    quad(88, [(67, 66), (65, 64)]); e('ds_write_b64 v50, v[88:89] offset:%d' % (3 * CS + 512))
    quad(90, [(66, 65), (64, 75)]); e('ds_write_b64 v50, v[90:91] offset:%d' % (2 * CS + 512))
    quad(92, [(65, 64), (75, 74)]); e('ds_write_b64 v50, v[92:93] offset:%d' % (CS + 512))
    quad(94, [(64, 75), (74, 73)]); e('ds_write_b64 v50, v[94:95] offset:512')
    pk(54, 53, 52); e('ds_write_b32 v48, v54')
    e('v_cndmask_b32 v39, v71, v76, s[36:37]')
    e('v_cndmask_b32 v40, v71, v76, s[38:39]')
    e('v_cndmask_b32 v40, v40, v70, s[40:41]')
    pk(39, 39, 40); e('ds_write_b32 v37, v39 offset:48')
    stamp(3)
    e('v_lshlrev_b32 v15, 3, v0')
    e('v_add_u32 v15, %d, v15' % (A_UT + 512))
    e('s_waitcnt vmcnt(0)')
    stamp(4)
    for c in range(8):
        sel = 's31' if c & 1 else 's30'
        d = 36 + 2 * (c % 8)
        e('v_perm_b32 %s, %s, %s, %s' % (v(d), v(20 + (c >> 1)), v(16 + (c >> 1)), sel))
        e('v_perm_b32 %s, %s, %s, %s' % (v(d + 1), v(28 + (c >> 1)), v(24 + (c >> 1)), sel))
        e('ds_write_b64 v15, %s offset:%d' % (v(d, 2), c * 4608))
    e('v_and_b32 v2, 15, v1')
    e('v_lshrrev_b32 v3, 4, v1')
    e('v_and_b32 v4, 3, v2')
    e('v_sub_u32 v5, v2, v4')
    e('v_lshlrev_b32 v5, 1, v5')
    e('v_mul_u32_u24 v4, %d, v4' % CS)
    e('v_lshl_add_u32 v4, v3, 4, v4')
    e('v_sub_u32 v4, v4, v5')
    e('s_add_u32 s35, s27, 24')
    e('v_add_u32 v16, s35, v4')
    e('v_lshlrev_b32 v17, 4, v3')
    e('v_lshlrev_b32 v18, 2, v2')
    e('v_sub_u32 v17, v17, v18')
    e('s_add_u32 s35, s34, %d' % (3072 + 60))
    e('v_add_u32 v17, s35, v17')
    e('v_lshlrev_b32 v20, 5, v2')
    e('v_lshl_add_u32 v21, v3, 3, v20')
    e('v_lshl_add_u32 v20, v3, 4, v20')
    e('s_add_u32 s35, s33, 464')
    e('v_add_u32 v19, s35, v20')
    e('v_add_u32 v20, 16, v19')
    e('s_mul_i32 s35, s24, 3072')
    e('s_add_u32 s35, s35, %d' % A_Y1)
    e('v_add_u32 v22, s35, v21')
    e('s_add_u32 s35, s33, 512')
    e('v_add_u32 v21, s35, v21')
    ACC = 64
    for i in range(16): e('v_mov_b32 %s, 0' % v(ACC + i))
    t0 = e.lg()
    for d in range(4, 8):
        o = 16 * (7 - d)
        e('ds_read2_b32 %s, v17 offset0:%d offset1:%d' % (a(96 + 4 * (d - 4), 2), o, o + 1))
        e('ds_read2_b32 %s, v17 offset0:%d offset1:%d' % (a(98 + 4 * (d - 4), 2), o + 2, o + 3))
    e('ds_read_b64 a[128:129], v16')
    e('ds_read_b64 a[130:131], v16 offset:8')
    e('s_waitcnt lgkmcnt(0)')
    e('s_barrier')
    stamp(5)
    mf = lambda d, x, y, c: e('v_mfma_f32_16x16x32_bf16 %s, %s, %s, %s' % (d, x, y, c))
    G1 = int(opts.get('g1', 5))
    T1 = list(range(G1)); T2 = list(range(G1, 8))
    tok = {}
    wgrp = int(opts.get('wgrp', 2))
    def reads(bank, tiles):
        low = max(0, min(tiles) - 3)
        out = []; seen = set()
        def rd(key, txt): out.append(lambda: (e(txt), tok.__setitem__(key, e.lg())))
        for i in range(4):
            for h in range(2): rd(('A', bank, i), 'ds_read_b64 %s, v16 offset:%d' % (a(bank + 4 * i + 2 * h, 2), 2048 - 512 * i + 8 * h))
            for n in tiles:
                m = n - i
                if m >= 0 and m not in seen:
                    seen.add(m); rd(('B', bank, m), 'ds_read_b128 %s, v20 offset:%d' % (a(bank + 16 + 4 * (m - low), 4), 512 * m))
        out.append(lambda: e('v_subrev_u32 v16, 64, v16'))
        out.append(lambda: e('v_subrev_u32 v20, 64, v20'))
        return out
    def spread(nslots, fill):
        per = [len(fill) // nslots + (1 if k < len(fill) % nslots else 0) for k in range(nslots)]
        res = []; k = 0
        for p_ in per: res.append(fill[k:k + p_]); k += p_
        return res
    def half(bank, tiles, more=(), lead=0):
        low = max(0, min(tiles) - 3)
        ops = [(i, n) for i in range(4) for n in tiles if n >= i]
        rd_ = reads(48 - bank, tiles); more = list(more)
        fill = []
        while rd_ or more:
            fill += rd_[:1] + more[:lead or 1]; rd_ = rd_[1:]; more = more[lead or 1:]
        gaps = spread(len(ops), fill)
        have = -1
        for (i, n), gp in zip(ops, gaps):
            need_ = max(max(tok[('A', bank, i2)], tok[('B', bank, n2 - i2)]) for i2, n2 in ops if i2 // wgrp == i // wgrp)
            if need_ > have: e.wait_lg(need_); have = need_
            mf(v(ACC + 4 * n, 4), a(bank + 4 * i, 4), a(bank + 16 + 4 * (n - i - low), 4), v(ACC + 4 * n, 4))
            for f in gp: f()
    t0 = e.lg()
    for c in range(4):
        e('ds_read_b128 %s, v19 offset:%d' % (a(64 + 8 * c, 4), 512 * c))
        e('ds_read_b128 %s, v20 offset:%d' % (a(68 + 8 * c, 4), 512 * c))
    BX = 24
    for c in range(4):
        e.wait_lg(t0 + 2 * c + 2)
        mf(v(BX + 8 * c, 4), a(64 + 8 * c, 4), 'a[136:139]', '0')
        mf(v(BX + 8 * c + 4, 4), a(68 + 8 * c, 4), 'a[140:143]', '0')
        mf(v(ACC + 16 + 4 * c, 4), 'a[128:131]', a(68 + 8 * c, 4), '0')
        if c:
            for r in range(4): pk(BX + 8 * c - 8 + r, BX + 8 * c - 8 + r, BX + 8 * c - 4 + r)
    first = reads(0, T1)
    for c in range(4):
        if c == 1:
            for r in range(4): pk(BX + 24 + r, BX + 24 + r, BX + 28 + r)
        for n in range(4 + c, 8):
            mf(v(ACC + 4 * n, 4), v(BX + 8 * c, 4), a(96 + 4 * (n - c - 4), 4), v(ACC + 4 * n, 4))
            for f in first[:2]: f()
            first = first[2:]
    assert not first
    def loop(tiles, tag, trips, extra=None):
        e('s_mov_b32 s32, %d' % trips)
        e.label('L_a_conv%s' % tag)
        half(0, tiles)
        if extra: extra()
        half(48, tiles)
        e('s_sub_u32 s32, s32, 1')
        e('s_cmp_lg_u32 s32, 0')
        e('s_cbranch_scc1 L_a_conv%s' % tag)
    def put_y(tiles, addr):
        r = []
        for n in tiles:
            r.append(lambda n=n: pk(36 + 2 * n, ACC + 4 * n, ACC + 4 * n + 1))
            r.append(lambda n=n: pk(37 + 2 * n, ACC + 4 * n + 2, ACC + 4 * n + 3))
            r.append(lambda n=n: e('ds_write_b64 %s, %s offset:%d' % (addr, v(36 + 2 * n, 2), 512 * n)))
        return r
    def gather(rows0, rnd, base, stride):
        src = 24 + 8 * rnd if rows0 == 0 else 24
        rd_ = [lambda c=c: (e('ds_read_b32 %s, v23 offset:%d' % (v(src + c), base + c * stride + 2048 * rnd)), tok.__setitem__('y', e.lg())) for c in range(8)]
        ad = v(12 + rnd)
        rd_.append(lambda: e('s_mov_b32 s35, %d\nv_add_u32 %s, s35, v14' % ((rows0 + 1024 * rnd) * 2304, ad)))
        sh = []; st = []
        for i in range(2):
            d = 44 + 8 * rnd + 4 * i
            for c2 in range(4): sh.append(lambda d=d, c2=c2, i=i: e('v_perm_b32 %s, %s, %s, %s' % (v(d + c2), v(src + 1 + 2 * c2), v(src + 2 * c2), 's31' if i else 's30')))
            st.append('global_store_dwordx4 %s, %s, s[52:53] offset:%d' % (ad, v(d, 4), 2304 * i))
        return rd_, sh, st
    loop(T1, 'a', 4)
    stamp(14)
    e('v_add_u32 v16, 576, v16')
    e('v_add_u32 v20, 576, v20')
    for f in reads(0, T2): f()
    e('v_lshlrev_b32 v23, 2, v0')
    e('v_add_u32 v23, %d, v23' % A_UT)
    half(0, T2, put_y(T1, 'v22'))
    e('s_waitcnt lgkmcnt(0)')
    e('s_barrier')
    nr = (256 * G1 + 1023) // 1024
    gs = [gather(0, r, A_Y1 - A_UT, 3072) for r in range(nr)]
    half(48, T2, sum([g[0] for g in gs], []), lead=2)
    stamp(15)
    e.wait_lg(tok['y'])
    half(0, T2, sum([g[1] for g in gs], []))
    held = [(st, 8 if r == 0 else (256 * G1 - 1024) // 128) for r, g in enumerate(gs) for st in g[2]]
    e(held.pop(0)[0])
    half(48, T2)
    def trickle():
        e('s_cmp_lg_u32 s32, 2')
        e('s_cbranch_scc1 L_a_tr1')
        e(held[0][0])
        e('s_branch L_a_trdone')
        e.label('L_a_tr1')
        if len(held) > 1:
            e('s_cmp_ge_u32 s24, %d' % held[1][1])
            e('s_cbranch_scc1 L_a_trdone')
            for st, _ in held[1:]: e(st)
        e.label('L_a_trdone')
    loop(T2, 'b', 2, trickle)
    stamp(6)
    for f in put_y(T2, 'v21'): f()
    e('s_waitcnt lgkmcnt(0)')
    e('s_barrier')
    n2 = 2048 - 256 * G1
    if n2 < 1024:
        e('s_cmp_ge_u32 s24, %d' % (n2 // 128))
        e('s_cbranch_scc1 L_a_done')
    rd_, sh, st = gather(256 * G1, 0, 512 + 512 * G1, 4608)
    for f in rd_: f()
    e.wait_lg(tok['y'])
    for i in range(2):
        for f in sh[4 * i:4 * i + 4]: f()
        e(st[i])
    e.label('L_a_done')
    if opts.get('awb'):
        e('s_waitcnt vmcnt(0)')
        e('s_barrier')
        e('s_cmp_lg_u32 s24, 0')
        e('s_cbranch_scc1 L_a_nowb')
        e('buffer_wbl2 sc1')
        e.label('L_a_nowb')
    stamp(7)
    e('s_endpgm')
```

```python
from asmlib import *
from gen_a import f2u, LOG2E
EPS = f2u(1e-6)
SLOT = 34816; WOFF = 16384
WQ_LO = SLOT; WQ_HI = 4 * SLOT; IMG = WQ_HI + 3 * 4608
SCR = 3 * SLOT
CST = SLOT - 4096
LCNT = IMG + 9216
STG = WQ_LO + 5 * 4608
def wo_base(ks): return 4608 * ks if ks < 6 else SCR + 4608 * (ks - 6) if ks < 13 else WQ_LO + 4608 * (ks - 13)
KVP = 0; OB = 8 * 4 * 12288; HAND = OB + 16 * 8 * 18 * 1024
SPIN = 20000
def wq_base(ks): return WQ_LO + 4608 * ks if ks < 15 else WQ_HI + 4608 * (ks - 15)

def div_small(e, q, r, x, d, t):
    e('v_mul_u32_u24 %s, %d, %s' % (v(q), (1 << 16) // d + 1, v(x)))
    e('v_lshrrev_b32 %s, 16, %s' % (v(q), v(q)))
    e('v_mul_u32_u24 %s, %d, %s' % (v(t), d, v(q)))
    e('v_sub_u32 %s, %s, %s' % (v(r), v(x), v(t)))
for d in (5, 9, 18):
    assert all((x * ((1 << 16) // d + 1)) >> 16 == x // d for x in range(1024))

def phi_pair(e, x, dst, t, plain=False):
    if plain:
        return [lambda: e('v_mul_f32 %s, s36, %s' % (v(t), v(x))),
                lambda: e('v_mul_f32 %s, s36, %s' % (v(t + 1), v(x + 1))),
                lambda: e('v_max_f32 %s, s38, %s' % (v(t + 2), v(x))),
                lambda: e('v_exp_f32_e64 %s, %s clamp' % (v(t), v(t))),
                lambda: e('v_max_f32 %s, s38, %s' % (v(t + 3), v(x + 1))),
                lambda: e('v_exp_f32_e64 %s, %s clamp' % (v(t + 1), v(t + 1))),
                lambda: e('v_add_f32 %s, %s, %s' % (v(t), v(t), v(t + 2))),
                lambda: e('v_add_f32 %s, %s, %s' % (v(t + 1), v(t + 1), v(t + 3))),
                lambda: e('v_cvt_pk_bf16_f32 %s, %s, %s' % (v(dst), v(t), v(t + 1)))]
    return [lambda: e('v_pk_mul_f32 %s, %s, s[36:37]' % (v(t, 2), v(x, 2))),
            lambda: e('v_max_f32 %s, s38, %s' % (v(t + 2), v(x))),
            lambda: e('v_exp_f32_e64 %s, %s clamp' % (v(t), v(t))),
            lambda: e('v_exp_f32_e64 %s, %s clamp' % (v(t + 1), v(t + 1))),
            lambda: e('v_max_f32 %s, s38, %s' % (v(t + 3), v(x + 1))),
            lambda: e('v_pk_add_f32 %s, %s, %s' % (v(t, 2), v(t, 2), v(t + 2, 2))),
            lambda: e('v_cvt_pk_bf16_f32 %s, %s, %s' % (v(dst), v(t), v(t + 1)))]
def zipper(*streams):
    streams = [list(x) for x in streams]
    while any(streams):
        for st in streams:
            if st: st.pop(0)()

def touch_tiles(e, idx, chunk, lo, n, x_, tmp, dst):
    t0, t1, t2, t3 = tmp, tmp + 1, tmp + 2, tmp + 3
    e('v_min_u32 %s, %d, %s' % (v(t0), n - 1, v(idx)))
    e('v_add_u32 %s, %s, %s' % (v(t0), lo, v(t0)))
    e('s_lshr_b32 s36, %s, 1' % x_)
    e('s_mul_i32 s36, s36, %d' % (512 * 1152))
    e('s_lshl_b32 s37, %s, 7' % chunk)
    e('s_add_u32 s36, s36, s37')
    e('s_and_b32 s37, %s, 1' % x_)
    e('s_lshl_b32 s37, s37, 9')
    e('s_mul_i32 s38, %s, %d' % (chunk, 64 * 3456))
    e('s_add_u32 s37, s37, s38')
    e('s_add_u32 s37, s37, 1152')
    e('v_cmp_gt_u32 vcc, 512, %s' % v(t0))
    e('v_mul_u32_u24 %s, 1152, %s' % (v(t1), v(t0)))
    e('v_add_u32 %s, s36, %s' % (v(t1), v(t1)))
    e('v_subrev_u32 %s, 512, %s' % (v(t0), v(t0)))
    e('v_max_i32 %s, 0, %s' % (v(t0), v(t0)))
    div_small(e, t2, t3, t0, 5, t0 + 4)
    e('v_and_b32 %s, 1, %s' % (v(t0), v(t2)))
    e('v_lshrrev_b32 %s, 1, %s' % (v(t2), v(t2)))
    e('v_mul_u32_u24 %s, 3456, %s' % (v(t2), v(t2)))
    e('v_mul_u32_u24 %s, 1152, %s' % (v(t0), v(t0)))
    e('v_lshl_add_u32 %s, %s, 7, s37' % (v(t3), v(t3)))
    e('v_add3_u32 %s, %s, %s, %s' % (v(t2), v(t2), v(t0), v(t3)))
    e('v_mov_b32 %s, s46' % v(t0))
    e('v_mov_b32 %s, s48' % v(t3))
    e('v_cndmask_b32 %s, %s, %s, vcc' % (v(t1), v(t2), v(t1)))
    e('v_cndmask_b32 %s, %s, %s, vcc' % (v(t2), v(t3), v(t0)))
    e('v_mov_b32 %s, s47' % v(t0))
    e('v_mov_b32 %s, s49' % v(t3))
    e('v_cndmask_b32 %s, %s, %s, vcc' % (v(t3), v(t3), v(t0)))
    e('v_add_co_u32 %s, vcc, %s, %s' % (v(t2), v(t2), v(t1)))
    e('v_addc_co_u32 %s, vcc, 0, %s, vcc' % (v(t3), v(t3)))
    e('global_load_dword %s, %s, off' % (v(dst), v(t2, 2)))

def first_touch(e, j_, x_, tmp, dst, first=1):
    e('s_and_b32 s39, %s, 3' % j_)
    e('s_add_u32 s39, s39, %d' % first)
    e('s_lshr_b32 s40, %s, 2' % j_)
    e('s_mul_i32 s40, s40, 288')
    touch_tiles(e, 0, 's39', 's40', 288, x_, tmp, dst)

def role_b(e, stamp, opts):
    stamp = stamp or (lambda i: None)
    rot = int(opts.get('rot', 0))
    e('v_lshrrev_b32 v2, 6, v0')
    e('v_and_b32 v1, 63, v0')
    e('v_readfirstlane_b32 s24, v2')
    e('s_and_b32 s32, s2, 7')
    e('s_lshr_b32 s33, s2, 3')
    e('s_and_b32 s34, s33, 3')
    e('s_lshr_b32 s33, s33, 2')
    e('s_lshr_b32 s25, s32, 1')
    e('s_lshl_b32 s25, s25, 2')
    e('s_add_u32 s25, s25, s34')
    e('s_and_b32 s26, s32, 1')
    e('s_lshl_b32 s26, s26, 2')
    e('s_add_u32 s26, s26, s33')
    if rot:
        e('s_add_u32 s27, s33, s34')
        e('s_and_b32 s27, s27, 3')
        e('s_lshl_b32 s27, s27, 1')
        e('s_lshr_b32 s35, s32, 1')
        e('s_xor_b32 s35, s35, s32')
        e('s_and_b32 s35, s35, 1')
        e('s_add_u32 s27, s27, s35')
    else:
        e('s_mov_b32 s27, 0')
    e('v_and_b32 v2, 15, v1')
    e('v_lshrrev_b32 v3, 4, v1')
    e('s_cmp_lt_u32 s24, 4')
    e('s_cbranch_scc1 L_b_compute')
    loader(e, stamp, opts)
    e.section('compute', False)
    e.label('L_b_compute')
    compute(e, stamp, opts)

def compute(e, stamp, opts):
    e.nvm = 0; e.nlg = 0
    ACC = 8; RING = 80; NR = 6; D = 4
    acc = lambda ct, rt: ACC + 8 * ct + 4 * rt
    e('s_mov_b32 s36, 0x%08x' % LOG2E)
    e('s_mov_b32 s37, s36')
    e('s_mov_b32 s38, 0x%08x' % EPS)
    e('s_lshl_b32 s32, s24, 12')
    e('v_and_b32 v104, 7, v2')
    e('v_xor_b32 v105, v3, v104')
    e('v_lshlrev_b32 v106, 7, v2')
    e('v_add_u32 v106, s32, v106')
    e('v_lshl_add_u32 v4, v105, 4, v106')
    e('v_xor_b32 v105, 4, v105')
    e('v_lshl_add_u32 v5, v105, 4, v106')
    e('v_lshrrev_b32 v104, 2, v2')
    e('v_and_b32 v105, 3, v2')
    e('v_lshlrev_b32 v105, 3, v105')
    e('v_lshl_add_u32 v106, v3, 2, v104')
    e('v_mul_u32_u24 v106, 288, v106')
    e('v_add_u32 v106, v106, v105')
    e('v_add_u32 v6, %d, v106' % WOFF)
    e('v_lshlrev_b32 v104, 1, v104')
    e('v_lshl_add_u32 v104, v3, 3, v104')
    e('v_mul_u32_u24 v104, 144, v104')
    e('v_add_u32 v104, v104, v105')
    e('v_add_u32 v7, %d, v104' % WQ_LO)
    e('v_cmp_gt_u32 vcc, 8, v2')
    for k in range(4): e('v_mov_b32 %s, s38' % v(108 + k))
    for k in range(4): e('v_cndmask_b32 %s, 0, v108, vcc' % v(104 + k))
    e('v_cmp_gt_u32 s[40:41], 2, v3')
    e('v_cmp_gt_u32 s[42:43], 3, v3')
    e('s_waitcnt lgkmcnt(0)')
    e('s_mov_b64 s[10:11], s[52:53]')
    e('s_mov_b64 s[14:15], s[56:57]')
    stamp(0)
    F = [(p, s_, ct) for p in range(8) for s_ in range(2) for ct in range(9)]
    F += [(8, s_, ct) for s_ in range(2) for ct in range(5)] + [(8, s_, ct) for s_ in range(2) for ct in range(5, 9)]
    tok = {}
    def items(f):
        p, s_, ct = F[f]
        it = []
        if ct == 0 and s_ == 0:
            pre = []
            if p:
                dl = SLOT if p % 4 else -3 * SLOT
                for r in (4, 5, 6): pre.append('v_add_u32 %s, %d, %s' % (v(r), dl, v(r)) if dl > 0 else 'v_subrev_u32 %s, %d, %s' % (v(r), -dl, v(r)))
            if p == 8: pre.append('s_waitcnt lgkmcnt(0)')
            pre.append('s_barrier')
            it.append(lambda: (e('\n'.join(pre)), stamp({0: 1, 4: 2, 8: 3}[p]) if p in (0, 4, 8) else None))
        if ct == 0:
            for rt in range(2): it.append(lambda rt=rt: e('ds_read_b128 %s, %s offset:%d' % (a(16 * p + 8 * s_ + 4 * rt, 4), v(4 + s_), 2048 * rt)))
        r = RING + 4 * (f % NR)
        for h in range(2): it.append(lambda h=h: e('ds_read_b64_tr_b16 %s, v6 offset:%d' % (v(r + 2 * h, 2), 9216 * s_ + 4608 * h + 32 * ct)))
        return it
    for f in range(D):
        for x in items(f): x()
        tok[f] = e.lg()
    def put(fi, r):
        if fi < 8: e('ds_write_b128 v4, %s offset:%d' % (v(r, 4), 1024 * fi))
        else: e('ds_write_b128 v5, %s offset:%d' % (v(r, 4), 1024 * (fi - 8)))
    def phi_tile(x, dst, t, plain):
        zz = [phi_pair(e, x[k], dst[k], t + 4 * k, plain=plain) for k in range(4)]
        return [z[k] for k in range(len(zz[0])) for z in zz]
    def handoff_setup():
        e('s_add_u32 s16, s14, %d' % OB)
        e('s_addc_u32 s17, s15, 0')
        e('s_mov_b32 s18, %d' % (HAND - OB))
        e('s_mov_b32 s19, 0x20000')
        e('s_lshl_b32 s32, s25, 3')
        e('s_lshl_b32 s33, s24, 1')
        e('s_add_u32 s32, s32, s33')
        e('s_mul_i32 s32, s32, %d' % (18 * 1024))
        e('v_lshl_add_u32 v105, v1, 4, s32')
        e('v_add_u32 v106, %d, v105' % (18 * 1024))
        e('s_lshl_b32 s20, s26, 11')
        e('s_lshr_b32 s33, s26, 2')
        e('s_lshl_b32 s33, s33, 10')
        e('s_and_b32 s34, s26, 3')
        e('s_lshl_b32 s34, s34, 8')
        e('s_add_u32 s33, s33, s34')
        e('s_add_u32 s33, s33, s32')
        e('s_add_u32 s33, s33, %d' % (16 * 1024 - 16))
        e('s_movk_i32 s21, %d' % (18 * 1024))
        e('v_lshlrev_b32 v104, 4, v2')
        e('v_lshl_add_u32 v104, v3, 3, v104')
        e('v_add_u32 v104, s33, v104')
    for f, (p, s_, ct) in enumerate(F):
        it = items(f + D) if f + D < len(F) else []
        if f == 18 - D: handoff_setup()
        e.wait_lg(tok[f])
        for rt in range(2):
            c = v(acc(ct, rt), 4) if f >= 9 else 'v[108:111]' if ct < 4 else 'v[104:107]' if ct == 4 else '0'
            e('v_mfma_f32_16x16x32_bf16 %s, %s, %s, %s' % (v(acc(ct, rt), 4), a(16 * p + 8 * s_ + 4 * rt, 4), v(RING + 4 * (f % NR), 4), c))
            h = (len(it) + 1) // 2
            for x in (it[:h] if rt == 0 else it[h:]): x()
        tok[f + D] = e.lg()
    stamp(4)
    e('s_lshl_b32 s32, s24, 13\ns_add_u32 s32, s32, %d\nv_lshl_add_u32 v4, v1, 4, s32' % SCR)
    e('s_lshl_b32 s32, s24, 12\nv_lshl_add_u32 v5, v1, 4, s32')
    for t in range(5):
        o = acc(t, 0) if t < 4 else 96
        for x in phi_tile([acc(t, 0) + 2 * k for k in range(4)], [o + k for k in range(4)], 80, False): x()
        put(t, o)
        o = acc(4 + t, 0) if t else 100
        for k in range(4): e('v_cvt_pk_bf16_f32 %s, %s, %s' % (v(o + k), v(acc(4 + t, 0) + 2 * k), v(acc(4 + t, 0) + 2 * k + 1)))
        put(5 + t, o)
    e('v_add_u32 v6, %d, v7' % (WQ_HI - WQ_LO))
    e('v_mov_b32 v5, %d' % LCNT)
    e('s_waitcnt lgkmcnt(0)')
    stamp(5)
    e('s_barrier')
    def gemm144(where, c0, G, ring, hook=None, xs=lambda ks, rt: a(8 * ks + 4 * rt, 4)):
        RG, NG, DG = ring
        tk = {}
        def iss(f, h):
            ks, ct = G[f]
            ad, off = where(ks)
            e('ds_read_b64_tr_b16 %s, %s offset:%d' % (v(RG + 4 * (f % NG) + 2 * h, 2), ad, off + 144 * h + 32 * ct))
            tk[f] = e.lg()
        for f in range(DG): iss(f, 0); iss(f, 1)
        for f, (ks, ct) in enumerate(G):
            if hook: hook(f, ks, ct, 0)
            e.wait_lg(tk[f])
            for rt in range(2):
                e('v_mfma_f32_16x16x32_bf16 %s, %s, %s, %s' % (v(acc(ct, rt), 4), v(RG + 4 * (f % NG), 4), xs(ks, rt), v(acc(ct, rt), 4) if ks else c0))
                if f + DG < len(G): iss(f + DG, rt)
                if hook: hook(f, ks, ct, 1 + rt)
    PQ = 48
    def phi_q(t, plain): return phi_tile([acc(t, k >> 1) + 2 * (k & 1) for k in range(4)], [PQ + 10 * (k >> 1) + 2 * t + (k & 1) for k in range(4)], 92 if plain else 68, plain)
    NQ = int(opts.get('nq', 5))
    rest = []
    def qhook(f, ks, ct, ph):
        if opts.get('qst') and ph == 0 and f in (1, 20, 45, 70): stamp({1: 0, 20: 2, 45: 13, 70: 15}[f])
        if f == 40 and ph == 1: e('ds_read_b32 v92, v5 offset:4')
        if f == 54 and ph == 0:
            e('s_mov_b32 s44, %d' % SPIN)
            e.label('L_b_wq')
            e('v_cmp_gt_u32 vcc, 4, v92')
            e('s_cbranch_vccz L_b_wqok')
            e('ds_read_b32 v92, v5 offset:4')
            e.nlg -= 1
            e('s_waitcnt lgkmcnt(0)')
            e('s_sub_u32 s44, s44, 1')
            e('s_cbranch_scc0 L_b_wq')
            e.label('L_b_wqok')
        if f == 18 * NQ + 1 and ph == 0:
            for t in range(NQ): rest.extend(phi_q(t, True))
        if ph and rest: rest.pop(0)()
    gemm144(lambda ks: ('v7', wq_base(ks) - WQ_LO) if ks < 15 else ('v6', wq_base(ks) - WQ_HI), 'v[108:111]',
            [(ks, ct) for ks in range(18) for ct in range(NQ)] + [(ks, ct) for ks in range(18) for ct in range(NQ, 5)], (60, 8, 5) if opts.get('qring') else (68, 6, 4), qhook)
    stamp(6)
    for x in rest: x()
    for t in range(NQ if NQ < 5 else 0, 5):
        for x in phi_q(t, False): x()
    DEN = 68
    e('v_lshlrev_b32 v4, 3, v1')
    e('v_add_u32 v4, %d, v4' % IMG)
    stamp(7)
    e('s_barrier')
    stamp(8)
    t0 = e.lg()
    for pl in list(range(13, 18)) + list(range(13)): e('ds_read_b64 %s, v4 offset:%d' % (a(2 * pl, 2), 512 * pl))
    def mm(d, pl, dt, n, rt, c):
        e('v_mfma_f32_16x16x%d_bf16 %s, %s, %s, %s' % (16 * n, v(d, 4), a(2 * pl, 2 * n), v(PQ + 10 * rt + 2 * dt, 2 * n), c))
    e.wait_lg(t0 + 5)
    for pl, dt, n in ((13, 0, 2), (15, 2, 2), (17, 4, 1)):
        for rt in range(2): mm(DEN + 4 * rt, pl, dt, n, rt, v(DEN + 4 * rt, 4) if dt else 'v[108:111]')
    OUT = PQ
    def scale(rt):
        i = DEN + 4 * rt; t = 76 + 4 * rt; o = OUT + 10 * rt
        pre = [lambda k=k: e('v_rcp_f32 %s, %s' % (v(i + k), v(i + k))) for k in range(4)]
        pre += [lambda: e('v_cndmask_b32 %s, %s, %s, s[42:43]' % (v(t), v(i + 1), v(i))),
                lambda: e('v_cndmask_b32 %s, %s, %s, s[40:41]' % (v(t + 1), v(i + 1), v(i))),
                lambda: e('v_cndmask_b32 %s, %s, %s, s[42:43]' % (v(t + 2), v(i + 2), v(i + 1))),
                lambda: e('v_cndmask_b32 %s, %s, %s, s[42:43]' % (v(t + 3), v(i + 3), v(i + 2)))]
        sc = {0: (i, i), 1: (t, t + 1), 2: (t + 2, t + 2), 3: (i + 2, t + 3), 4: (i + 3, i + 3)}
        st = []
        for u in (0, 4, 1, 2, 3):
            for k in range(2):
                f_ = sc[u][k]
                st.append(lambda u=u, k=k, f_=f_: e('v_pk_mul_f32 %s, %s, %s op_sel:[0,%d] op_sel_hi:[1,%d]' % (v(acc(u, rt) + 2 * k, 2), v(acc(u, rt) + 2 * k, 2), v(f_ & ~1, 2), f_ & 1, f_ & 1)))
        for u in (0, 4, 1, 2, 3):
            d = o + (2 * (u - 1) if u else 8)
            for k in range(2): st.append(lambda u=u, k=k, d=d: e('v_cvt_pk_bf16_f32 %s, %s, %s' % (v(d + k), v(acc(u, rt) + 2 * k), v(acc(u, rt) + 2 * k + 1))))
        for d in (o, o + 4, o + 8): st.append(lambda d=d: e('v_min_u32 %s, -2, %s' % (v(d), v(d))))
        st.append(lambda: e('buffer_store_dwordx4 %s, %s, s[16:19], s20 offen sc1' % (v(o, 4), v(105 + rt))))
        st.append(lambda: e('buffer_store_dwordx4 %s, %s, s[16:19], s20 offen offset:1024 sc1' % (v(o + 4, 4), v(105 + rt))))
        return pre, st
    (p0, s0), (p1, s1) = scale(0), scale(1)
    fill = p0 + p1
    e.wait_lg(t0 + 18)
    for rt in range(2):
        ops = [(u, 2 * u + first, first, 2, '0') for u, first in enumerate((0, 0, 1, 2, 3))]
        ops = [ops[1], ops[2], ops[3], ops[0], ops[4]] + [(u, 2 * u + first + 2, first + 2, 1, None) for u, first in ((1, 0), (2, 1), (3, 2))]
        for k, (u, pl, dt, n, c) in enumerate(ops):
            mm(acc(u, rt), pl, dt, n, rt, c or v(acc(u, rt), 4))
            if rt or k >= 2:
                for x in fill[:2]: x()
                fill = fill[2:]
    for x in fill + s0 + s1: x()
    e('s_mov_b32 exec_lo, 0')
    e('buffer_store_dwordx2 %s, v104, s[16:19], 0 offen sc1' % v(OUT + 8, 2))
    e('buffer_store_dwordx2 %s, v104, s[16:19], s21 offen sc1' % v(OUT + 18, 2))
    e('s_mov_b32 exec_lo, -1')
    stamp(9)
    e('v_subrev_u32 v7, %d, v7' % WQ_LO)
    e('v_add_u32 v6, %d, v7' % SCR)
    e('s_mov_b32 s39, 0')
    e('s_movk_i32 s23, %d' % (16 * 1024))
    e('s_barrier')
    e.label('L_b_gemm2')
    otok = {}
    AHEAD = int(opts.get('ahead', 4))
    osrc = lambda ks, rt: v(OUT + 10 * rt + 4 * ks, 4) if ks < 2 else a(8 * ks + 4 * rt, 4)
    def oload(j, rt):
        if j < 16 and rt == 0:
            e('s_add_u32 s22, s22, 1024')
            e('s_and_b32 s22, s22, 0x3fff')
        e('buffer_load_dwordx4 %s, %s, s[16:19], %s offen%s sc1' % (osrc(j, rt), v(105 + rt), 's22' if j < 16 else 's23', ' offset:1024' if j == 17 else ''))
        otok[j] = e.vm()
    pend = [(j, rt) for j in range(2, 18) for rt in range(2)]
    tail = []
    def put_out(ct):
        r = []
        for rt in range(2):
            d = 48 + 4 * ct + 2 * rt
            for k in range(2): r.append(lambda d=d, k=k, rt=rt: e('v_cvt_pk_bf16_f32 %s, %s, %s' % (v(d + k), v(acc(ct, rt) + 2 * k), v(acc(ct, rt) + 2 * k + 1))))
            r.append(lambda d=d, rt=rt: e('ds_write_b64 v4, %s offset:%d' % (v(d, 2), 2304 * rt + 32 * ct)))
        return r
    def hook(f, ks, ct, ph):
        if f == 10 and ph == 0:
            e('s_lshl_b32 s32, s25, 7')
            e('s_lshl_b32 s33, s24, 5')
            e('s_add_u32 s32, s32, s33')
            e('s_mul_i32 s32, s32, 2304')
            e('s_mul_i32 s33, s26, 144')
            e('s_add_u32 s32, s32, s33')
            e('s_add_u32 s32, s32, 1152')
            for j in range(5):
                e('v_add_u32 v48, %d, v1' % (64 * j))
                div_small(e, 49, 50, 48, 9, 51)
                e('v_mul_u32_u24 v49, 2304, v49')
                e('v_lshl_add_u32 v49, v50, 4, v49')
                e('v_add_u32 %s, s32, v49' % v(108 + j if j < 4 else 104))
            e('s_mul_i32 s33, s24, 4608')
            e('s_add_u32 s33, s33, %d' % STG)
            e('v_mul_u32_u24 v4, 144, v2')
            e('v_lshl_add_u32 v4, v3, 3, v4')
            e('v_add_u32 v4, s33, v4')
            e('v_lshl_add_u32 v5, v1, 4, s33')
            e('s_mov_b32 s44, %d' % SPIN)
            e('s_add_u32 s22, s20, 1024')
            e('v_lshlrev_b32 v107, 8, v1')
            e('v_lshlrev_b32 v48, 4, v1')
            e('v_sub_u32 v107, v107, v48')
            e('v_add_u32 v107, v107, v106')
            for _ in range(int(opts.get('pdelay', 0))): e('s_nop 15')
            e('s_mov_b64 exec, 0xff')
            e.label('L_b_probe')
            e('buffer_load_dword v68, v107, s[16:19], s23 offen offset:248 sc1')
            e('s_sub_u32 s44, s44, 1')
            e('s_cbranch_scc1 L_b_probed')
            e('s_waitcnt vmcnt(0)')
            e('v_cmp_eq_u32 vcc, -1, v68')
            e('s_cbranch_vccnz L_b_probe')
            e.label('L_b_probed')
            e('s_mov_b64 exec, -1')
            if opts.get('count'): e('s_sub_u32 s92, s62, s44\ns_add_u32 s92, s92, %d' % SPIN)
            stamp(10)
            e.nvm = 0
            for _ in range(2 * AHEAD): oload(*pend.pop(0))
            stamp(11)
        if ct == 0 and ph == 0 and 2 <= ks: e.wait_vm(otok[ks])
        if ph == 1 and pend and f >= 10 and ct in ((0, 1, 2, 3) if f < 25 else (1, 3)): oload(*pend.pop(0))
        if ks == 17:
            if ph == 0 and 2 <= ct: tail.extend(put_out(ct - 2))
            if ph:
                for x in tail[:2]: x()
                del tail[:2]
    gemm144(lambda ks: ('v6', wo_base(ks) - SCR) if 6 <= ks < 13 else ('v7', wo_base(ks)), '0',
            [(ks, ct) for ks in range(18) for ct in range(5)], (72, 8, 5), hook, osrc)
    stamp(12)
    for x in tail + put_out(3): x()
    e('s_cmp_lg_u32 s39, 0')
    e('s_cbranch_scc1 L_b_store')
    e('v_cmp_u_f32 vcc, %s, %s' % (v(acc(0, 0)), v(acc(0, 1))))
    e('s_cbranch_vccnz L_b_strict')
    e.label('L_b_store')
    e('s_mov_b32 exec_hi, 0')
    for x in put_out(4): x()
    e('s_mov_b32 exec_hi, -1')
    t0 = e.lg()
    for j in range(5): e('ds_read_b128 %s, v5 offset:%d' % (v(8 + 4 * j, 4), 1024 * j))
    for j in range(5):
        e.wait_lg(t0 + j + 1)
        if j == 4: e('s_mov_b32 exec_hi, 0')
        e('global_store_dwordx4 %s, %s, s[10:11] %s' % (v(108 + j if j < 4 else 104), v(8 + 4 * j, 4), opts.get('ost', '')))
    e('s_mov_b32 exec_hi, -1')
    if not opts.get('qst'): stamp(13)
    e('s_endpgm')
    e.section('strict', False)
    e.label('L_b_strict')
    e('s_mov_b32 s39, 1')
    e('s_mov_b32 s44, %d' % SPIN)
    e.label('L_b_strict1')
    for ks in range(18):
        e('s_movk_i32 s22, %d' % (1024 * ks))
        for rt in range(2): e('buffer_load_dwordx4 %s, %s, s[16:19], s22 offen sc1' % (a(8 * ks + 4 * rt, 4), v(105 + rt)))
    for rt in range(2):
        for k in range(2): e('buffer_load_dwordx4 %s, %s, s[16:19], s20 offen offset:%d sc1' % (v(OUT + 10 * rt + 4 * k, 4), v(105 + rt), 1024 * k))
    e('s_waitcnt vmcnt(0)')
    e('s_sub_u32 s44, s44, 1')
    e('s_cbranch_scc1 L_b_gemm2')
    e('s_mov_b64 s[32:33], 0')
    for k in range(72):
        if (k & 1) == 0 or k >= 64:
            e('v_accvgpr_read_b32 v68, %s' % a(2 * k))
            e('v_cmp_eq_u32 vcc, -1, v68')
            e('s_or_b64 s[32:33], s[32:33], vcc')
    e('s_cmp_lg_u64 s[32:33], 0')
    e('s_cbranch_scc1 L_b_strict1')
    e('s_branch L_b_gemm2')

def loader(e, stamp, opts):
    e.nvm = 0; e.nlg = 0
    e('s_sub_u32 s39, s24, 4')
    e('v_lshrrev_b32 v4, 3, v1')
    e('v_and_b32 v5, 7, v1')
    e('v_xor_b32 v5, v5, v4')
    e('s_lshl_b32 s32, s25, 7')
    e('s_lshl_b32 s33, s39, 5')
    e('s_add_u32 s32, s32, s33')
    e('v_add_u32 v4, s32, v4')
    e('v_mul_u32_u24 v4, 1152, v4')
    e('v_lshl_add_u32 v8, v5, 4, v4')
    e('s_lshr_b32 s32, s39, 1')
    e('s_lshl_b32 s32, s32, 5')
    e('s_and_b32 s33, s39, 1')
    e('s_lshl_b32 s33, s33, 2')
    e('s_add_u32 s32, s32, s33')
    e('s_mul_i32 s40, s26, 144')
    e('s_mul_i32 s32, s32, 3456')
    e('s_add_u32 s32, s32, s40')
    e('s_add_u32 s32, s32, 1152')
    def woff(j):
        e('v_add_u32 v4, %d, v1' % (64 * j))
        div_small(e, 5, 6, 4, 18, 7)
        e('v_and_b32 v4, 12, v5')
        e('v_add_u32 v4, v4, v5')
        e('v_mul_u32_u24 v4, 3456, v4')
        e('v_cmp_lt_u32 vcc, 8, v6')
        e('v_lshl_add_u32 v4, v6, 4, v4')
        e('v_add_u32 v4, s32, v4')
        e('v_add_u32 v5, 1008, v4')
        e('v_cndmask_b32 %s, v4, v5, vcc' % v(9 + j))
    e('s_lshl_b32 s41, s39, 12')
    e('s_mul_i32 s42, s39, 4608')
    e('s_add_u32 s42, s42, %d' % WOFF)
    e('s_mov_b32 s43, s27')
    e('s_mov_b32 s22, %d\ns_mov_b32 s23, 0x20000' % (576 * 3456))
    e('s_mov_b32 s30, %d\ns_mov_b32 s31, 0x20000' % (576 * 1152))
    e('s_waitcnt lgkmcnt(0)')
    e('s_mov_b64 s[16:17], s[46:47]\ns_mov_b32 s18, %d\ns_mov_b32 s19, 0x20000' % (2048 * 1152))
    e('s_mov_b64 s[20:21], s[48:49]\ns_mov_b64 s[28:29], s[50:51]\ns_mov_b64 s[12:13], s[54:55]\ns_mov_b64 s[14:15], s[56:57]')

    main = e; sd = Asm(); e = sd
    marks = {}
    e('s_lshl_b32 s32, s26, 2')
    e('s_add_u32 s32, s32, s39')
    e('s_mul_i32 s32, s32, 12288')
    e('s_add_u32 s32, s32, %d' % KVP)
    e('v_lshl_add_u32 v15, v1, 4, s32')
    e('s_lshl_b32 s33, s25, 8')
    e('s_add_u32 s32, s32, s33')
    e('v_lshlrev_b32 v14, 4, v2')
    e('v_lshl_add_u32 v14, v3, 12, v14')
    e('v_add_u32 v14, s32, v14')
    marks['clear'] = len(sd.L)
    e('s_mul_i32 s32, s39, 2304')
    e('s_add_u32 s32, s32, %d' % IMG)
    e('v_lshl_add_u32 v4, v1, 4, s32')
    for k in range(4): e('v_mov_b32 %s, 0' % v(40 + k))
    e('ds_write_b128 v4, v[40:43]')
    e('ds_write_b128 v4, v[40:43] offset:1024')
    e('v_lshl_add_u32 v4, v1, 2, s32')
    e('ds_write_b32 v4, v40 offset:2048')
    e('v_mov_b32 v55, %d' % LCNT)
    e('ds_write_b32 v55, v40')
    for j in range(5):
        e('v_add_u32 v4, %d, v1' % (64 * j))
        div_small(e, 5, 6, 4, 9, 7)
        e('v_lshlrev_b32 v6, 4, v6')
        e('v_add_u32 v6, s40, v6')
        e('v_lshrrev_b32 v4, 3, v5')
        e('v_and_b32 v7, 1, v5')
        e('v_bfe_u32 v5, v5, 1, 2')
        e('v_lshl_add_u32 v19, v7, 2, v5')
        e('v_lshl_add_u32 v39, v4, 3, v19')
        e('v_mul_u32_u24 v39, 3456, v39')
        e('v_add_u32 %s, v39, v6' % v(24 + j))
        e('v_lshl_add_u32 v39, v4, 2, v5')
        e('v_lshl_add_u32 v39, v7, 4, v39')
        e('v_mul_u32_u24 v39, 1152, v39')
        e('v_add_u32 %s, v39, v6' % v(29 + j))
        e('v_mul_u32_u24 v39, 72, v4')
        e('v_add_u32 v39, v39, v19')
        e('v_mul_u32_u24 v39, 1152, v39')
        e('v_add_u32 %s, v39, v6' % v(34 + j))
    e('s_lshr_b32 s45, s39, 1')
    e('s_lshl_b32 s46, s39, 1')
    e('s_lshl_b32 s47, s39, 10')
    e('s_add_u32 s47, s47, %d' % CST)
    e('s_add_u32 s32, s47, 768')
    e('v_lshl_add_u32 v44, v2, 3, s32')
    for i in range(2):
        e('v_add_u32 v4, %d, v3' % (4 * i))
        e('v_subrev_u32 v5, s45, v4')
        e('v_cmp_gt_u32 s[48:49], 5, v5')
        for j in range(2):
            e('v_add_u32 v6, %d, v2' % (16 * j - 8))
            e('v_subrev_u32 v6, s46, v6')
            e('v_cmp_gt_u32 vcc, 18, v6')
            e('v_mul_u32_u24 v6, 5, v6')
            e('v_add_u32 v6, v6, v5')
            e('s_and_b64 vcc, vcc, s[48:49]')
            e('v_lshl_add_u32 v6, v6, 3, s47')
            e('v_cndmask_b32 %s, v44, v6, vcc' % v(45 + 2 * i + j))
        e('v_cmp_eq_u32 vcc, 0, v2')
        e('v_add_u32 v6, 90, v5')
        e('v_lshl_add_u32 v6, v6, 3, s47')
        e('s_and_b64 vcc, vcc, s[48:49]')
        e('v_cndmask_b32 %s, %s, v6, vcc' % (v(45 + 2 * i), v(45 + 2 * i)))
    e('s_mul_i32 s32, s39, 18')
    e('s_add_u32 s32, s32, 8')
    e('s_lshl_b32 s33, s39, 2')
    e('s_add_u32 s33, s33, s45')
    e('v_cmp_gt_u32 s[48:49], 2, v3')
    for b in range(3):
        e('v_lshl_add_u32 v4, v2, 1, v3')
        e('v_add_u32 v4, %d, v4' % (32 * b))
        div_small(e, 5, 6, 4, 5, 7)
        e('v_add_u32 v6, s33, v6')
        e('v_add_u32 v7, s32, v5')
        e('v_lshrrev_b32 v19, 4, v7')
        e('v_and_b32 v7, 15, v7')
        e('v_lshrrev_b32 v39, 2, v6')
        e('v_and_b32 v6, 3, v6')
        e('v_lshl_add_u32 v19, v19, 1, v39')
        if b == 2:
            e('v_cmp_eq_u32 vcc, 18, v5')
            e('v_add_u32 v39, 13, v39')
            e('v_cndmask_b32 v19, v19, v39, vcc')
            e('v_mov_b32 v39, s39')
            e('v_cndmask_b32 v7, v7, v39, vcc')
        e('v_lshl_add_u32 v7, v6, 4, v7')
        e('v_lshlrev_b32 v7, 3, v7')
        e('v_lshl_add_u32 v7, v19, 9, v7')
        e('v_add_u32 v7, %d, v7' % IMG)
        if b == 2:
            e('s_and_b64 vcc, vcc, s[48:49]')
            e('v_cndmask_b32 v54, v44, v7, vcc')
            e('v_cmp_gt_u32 vcc, 19, v5')
            e('s_and_b64 s[48:49], vcc, s[48:49]')
        e('v_cndmask_b32 %s, v44, v7, s[48:49]' % v(51 + b))
    e('v_and_b32 v4, 1, v2')
    e('v_lshlrev_b32 v4, 4, v4')
    e('v_mov_b32 v5, 0x3f80')
    e('v_lshlrev_b32 v4, v4, v5')
    e('v_lshrrev_b32 v5, 1, v2')
    for k in range(4):
        e('v_cmp_eq_u32 vcc, %d, v5' % k)
        e('v_cndmask_b32 %s, 0, v4, vcc' % v(56 + k))
    for k in range(4): e('v_mov_b32 %s, 0x3f803f80' % v(8 + 96 + k))
    e('ds_write_b128 v55, v[104:107] offset:16')
    e('ds_write_b128 v55, v[40:43] offset:32')
    e('ds_write_b32 v55, v40 offset:4')
    for k, df in enumerate((0, 1, 5, 6)):
        e('s_add_u32 s32, s39, %d' % df)
        e('s_lshl_b32 s33, s32, 10')
        e('s_add_u32 s34, s33, %d' % SCR)
        e('s_sub_u32 s33, s33, 8192')
        e('s_movk_i32 s48, 4096')
        sd.L.append('s_cmp_lt_u32 s32, 8\ns_cselect_b32 s33, s34, s33\ns_cselect_b32 s48, 8192, s48')
        e('v_lshl_add_u32 %s, v1, 4, s33' % v(64 + k))
        e('v_mov_b32 %s, s48' % v(60 + k))
        if k < 3:
            if k == 0: e('v_cmp_gt_u32 vcc, s46, v2')
            if k == 1:
                e('s_add_u32 s32, s46, 2')
                e('v_cmp_le_u32 vcc, s32, v2')
            if k == 2: e('v_cmp_eq_u32 vcc, 0, v2')
            e('v_mov_b32 v4, %d' % (LCNT + (16 if k == 2 else 32)))
            e('v_cndmask_b32 %s, %s, v4, vcc' % (v(64 + k), v(64 + k)))
            e('v_cndmask_b32 %s, %s, v40, vcc' % (v(60 + k), v(60 + k)))
    e('v_and_b32 v19, 3, v1')
    e('v_lshlrev_b32 v19, 6, v19')
    e = main
    side = list(sd.L); done = [0]
    def run_side(n=None, upto=None):
        stop = upto if upto is not None else min(len(side), done[0] + n)
        while done[0] < stop:
            e(side[done[0]]); done[0] += 1

    ctok = {}
    def chunk(p, per, mid=None):
        sl = SLOT * (p % 4)
        e('s_lshl_b32 s3, s43, 7')
        e('s_mul_i32 s35, s43, %d' % (64 * 3456))
        for j in range(4):
            e('s_add_u32 m0, s41, %d' % (sl + 1024 * j))
            if j: e('s_add_u32 s3, s3, 9216')
            e('buffer_load_dwordx4 v8, s[16:19], s3 offen lds')
            run_side(per)
        for j in range(5):
            if mid: mid(j)
            e('s_add_u32 m0, s42, %d' % (sl + 1024 * j))
            if j == 4: e('s_mov_b32 exec_hi, 0')
            e('buffer_load_dwordx4 %s, s[20:23], s35 offen lds' % v(9 + j))
            if j < 4: run_side(per)
        e('s_mov_b32 exec_hi, -1')
        e('s_add_u32 s43, s43, 1')
        e('s_cmp_eq_u32 s43, 9')
        e('s_cselect_b32 s43, 0, s43')
        ctok[p] = e.vm()
    stamp(1)
    chunk(0, 0, woff); chunk(1, 0)
    stamp(0)
    e.section('loader')
    def tile144(srd, vregs, soff):
        for j in range(5):
            e('s_add_u32 m0, s34, %d' % (1024 * j))
            if j == 4: e('s_mov_b32 exec_hi, 0')
            e('buffer_load_dwordx4 %s, %s, %s offen lds' % (v(vregs + j), srd, soff))
        e('s_mov_b32 exec_hi, -1')
    def wq_group(lo, n):
        for rnd in range((n + 3) // 4):
            e('s_add_u32 s35, s39, %d' % (lo + 4 * rnd))
            if 4 * rnd + 4 > n: e('s_min_u32 s35, s35, %d' % (lo + n - 1))
            e('s_lshr_b32 s32, s35, 1')
            e('s_add_u32 s32, s32, s27')
            e('s_sub_u32 s33, s32, 9')
            e('s_cmp_ge_u32 s32, 9')
            e('s_cselect_b32 s32, s33, s32')
            e('s_lshl_b32 s32, s32, 1')
            e('s_and_b32 s33, s35, 1')
            e('s_add_u32 s32, s32, s33')
            e('s_mul_i32 s32, s32, %d' % (32 * 3456))
            e('s_mul_i32 s34, s35, 4608')
            if lo + 4 * rnd + 3 >= 15:
                e('s_add_u32 s33, s34, %d' % (WQ_HI - WQ_LO - 15 * 4608))
                e('s_cmp_ge_u32 s35, 15')
                e('s_cselect_b32 s34, s33, s34')
            e('s_add_u32 s34, s34, %d' % WQ_LO)
            tile144('s[20:23]', 24, 's32')
    for p in range(9):
        e.wait_vm(ctok[p])
        e('s_barrier')
        if p in (1, 2, 3, 5, 6): stamp({1: 11, 2: 12, 3: 13, 5: 14, 6: 15}[p])
        if p == 0:
            stamp(2)
        if 't' in opts.get('horder', '') and p == int(opts.get('trig', 2)):
            e('s_or_b32 s3, s39, s2')
            e('s_cmp_ge_u32 s3, 8')
            e('s_cbranch_scc1 L_b_notrig')
            e('s_cmp_lg_u32 s39, 0')
            e('s_cbranch_scc1 L_b_notrig')
            e('s_lshl_b32 s3, s2, 2')
            e('v_mov_b32 v20, s3')
            e('v_mov_b32 v21, 1')
            e('s_mov_b64 exec, 1')
            e('global_store_dword v20, v21, s[12:13] offset:16 sc1')
            e('s_mov_b64 exec, -1')
            e.nvm -= 1
            e.label('L_b_notrig')
        if p <= 6: chunk(p + 2, 7)
        if p == 6: run_side(upto=len(side))
        if p == 7: wq_group(0, 4)
        if p == 8:
            wq_group(4, 8)
            e('s_cmp_lg_u32 s39, 0')
            e('s_cbranch_scc1 L_b_nocnt')
            e('s_mov_b64 exec, 15')
            e('global_load_dword v20, v19, s[12:13] sc1')
            e('s_mov_b64 exec, -1')
            e.label('L_b_nocnt')
            t_wq = e.vm()
            wq_group(12, 6)
    stamp(3)
    e.wait_vm(t_wq)
    e('s_cmp_lg_u32 s39, 0')
    e('s_cbranch_scc1 L_b_cntdone')
    e('s_mov_b64 exec, 15')
    e('v_cmp_gt_u32 vcc, 14, v20')
    e('s_cbranch_vccz L_b_cntdone')
    e('s_mov_b32 s44, %d' % SPIN)
    e.label('L_b_cnt')
    e('global_load_dword v20, v19, s[12:13] sc1')
    e('s_sub_u32 s44, s44, 1')
    e('s_cbranch_scc1 L_b_cntdone')
    e('s_waitcnt vmcnt(0)')
    e('v_cmp_gt_u32 vcc, 14, v20')
    e('s_cbranch_vccnz L_b_cnt')
    e.label('L_b_cntdone')
    e('s_mov_b64 exec, -1')
    e('s_waitcnt lgkmcnt(0)')
    stamp(4)
    e('s_barrier')
    stamp(5)
    e('s_setprio %d' % int(opts.get('lprio', 2)))
    tk = []
    for w in range(4):
        for k in range(4):
            e('ds_read_b128 %s, %s' % (a(16 * w + 4 * k, 4), v(64 + k)))
            if w < 3: e('v_add_u32 %s, %s, %s' % (v(64 + k), v(60 + k), v(64 + k)))
        tk.append(e.lg())
    e('v_mov_b32 v4, s47')
    e('v_mov_b32 v5, 1')
    e('ds_write_b64 v4, v[40:41] offset:760')
    DD = 68
    for w in range(4):
        e.wait_lg(tk[w])
        if w == 3:
            e('s_mov_b64 exec, 1')
            e('ds_add_u32 v55, v5')
            e('s_mov_b64 exec, -1')
        for i in range(2):
            for j in range(2):
                d = DD + 8 * i + 4 * j
                e('v_mfma_f32_16x16x32_bf16 %s, %s, %s, %s' % (v(d, 4), a(16 * w + 4 * i, 4), a(16 * w + 8 + 4 * j, 4), v(d, 4) if w else '0'))
    e('v_lshl_add_u32 v4, v1, 4, s47')
    e('v_add_u32 v16, 4096, v15')
    e('v_add_u32 v17, 8192, v15')
    for i in range(2):
        for j in range(2):
            d = DD + 8 * i + 4 * j
            o = 92 + 2 * (2 * i + j)
            for k in range(2): e('v_cvt_pk_bf16_f32 %s, %s, %s' % (v(o + k), v(d + 2 * k), v(d + 2 * k + 1)))
            e('ds_write_b64 %s, %s' % (v(45 + 2 * i + j), v(o, 2)))
    e('ds_read_b128 v[68:71], v4')
    e('s_waitcnt vmcnt(0)')
    e('s_mov_b64 exec, 1')
    e('ds_add_u32 v55, v5 offset:4')
    e('s_mov_b64 exec, -1')
    e('s_waitcnt lgkmcnt(1)')
    e('v_min_u32 v68, -2, v68')
    e('s_mov_b32 exec_hi, 0xffff')
    e('global_store_dwordx4 v14, v[68:71], s[14:15] sc1')
    e('s_mov_b32 exec_hi, -1')
    stamp(6)
    def wo_block(first, last):
        e('s_add_u32 s35, s39, %d' % first)
        if first + 3 > last: e('s_min_u32 s35, s35, %d' % last)
        e('s_lshr_b32 s32, s35, 1')
        e('s_add_u32 s32, s32, s26')
        e('s_and_b32 s32, s32, 7')
        e('s_mul_i32 s32, s32, 72')
        e('s_and_b32 s33, s35, 1')
        e('s_lshl_b32 s33, s33, 5')
        e('s_add_u32 s32, s32, s33')
        e('s_add_u32 s32, s32, 8')
        e('s_mul_i32 s32, s32, 1152')
        e('s_mul_i32 s34, s35, 4608')
        if last < 13:
            e('s_add_u32 s33, s34, %d' % (SCR - 6 * 4608))
            e('s_cmp_ge_u32 s35, 6')
            e('s_cselect_b32 s34, s33, s34')
        else:
            e('s_add_u32 s34, s34, %d' % (WQ_LO - 13 * 4608))
        tile144('s[28:31]', 29, 's32')
    e('s_mov_b32 s44, %d' % SPIN)
    e.label('L_b_lcnt')
    e('ds_read_b32 v4, v55')
    e('s_sub_u32 s44, s44, 1')
    e('s_cbranch_scc1 L_b_lcntdone')
    e('s_waitcnt lgkmcnt(0)')
    e('v_cmp_gt_u32 vcc, 4, v4')
    e('s_cbranch_vccnz L_b_lcnt')
    e.label('L_b_lcntdone')
    e('s_waitcnt lgkmcnt(0)')
    nearly = int(opts.get('woearly', 3))
    for k in range(nearly): wo_block(4 * k, 12)
    e('v_lshlrev_b32 v4, 8, v2')
    e('v_lshlrev_b32 v6, 4, v1')
    e('v_sub_u32 v5, v17, v6')
    e('v_add_u32 v4, v4, v5')
    e('s_mov_b32 s44, %d' % SPIN)
    stamp(7)
    e.label('L_b_gather')
    X = 64
    for b in range(3):
        for i in range(4): e('global_load_dwordx4 %s, %s, s[14:15] offset:%d sc1' % (v(X + 16 * b + 4 * i, 4), v(15 + b), 1024 * i))
    e('s_mov_b64 s[32:33], 0')
    for k in range(12):
        if k % 4 == 0: e('s_waitcnt vmcnt(%d)' % (8 - k))
        e('v_cmp_eq_u32 vcc, -1, %s' % v(X + 4 * k))
        e('s_or_b64 s[32:33], s[32:33], vcc')
    e('s_cmp_eq_u64 s[32:33], 0')
    e('s_cbranch_scc1 L_b_gathered')
    e('s_mov_b64 exec, 0xffff')
    e.label('L_b_kvprobe')
    e('global_load_dword v5, v4, s[14:15] sc1')
    e('s_sub_u32 s44, s44, 1')
    e('s_cbranch_scc1 L_b_gathered')
    e('s_waitcnt vmcnt(0)')
    e('v_cmp_eq_u32 vcc, -1, v5')
    e('s_cbranch_vccnz L_b_kvprobe')
    e('s_mov_b64 exec, -1')
    e('s_branch L_b_gather')
    e.label('L_b_gathered')
    e('s_mov_b64 exec, -1')
    stamp(8)
    for i in range(4):
        for b in range(3):
            e('v_mfma_f32_16x16x32_bf16 %s, v[56:59], %s, %s' % (v(8 + 4 * b, 4), v(X + 16 * b + 4 * i, 4), v(8 + 4 * b, 4) if i else '0'))
    for b in range(3):
        for k in range(2): e('v_cvt_pk_bf16_f32 %s, %s, %s' % (v(20 + 2 * b + k), v(8 + 4 * b + 2 * k), v(8 + 4 * b + 2 * k + 1)))
        e('ds_write_b64 %s, %s' % (v(51 + b), v(20 + 2 * b, 2)))
    for k in range(1, 4): e('ds_write_b64 v54, v[24:25] offset:%d' % (32 * k))
    e('s_setprio 0')
    e('s_waitcnt lgkmcnt(0)')
    stamp(9)
    e('s_barrier')
    for k in range(nearly, 3): wo_block(4 * k, 12)
    e('s_cmp_lg_u32 s39, 0')
    e('s_cbranch_scc1 L_b_wo13')
    wo_block(12, 12)
    e('s_branch L_b_wo16')
    e.label('L_b_wo13')
    wo_block(12, 15)
    e.label('L_b_wo16')
    e('s_cmp_ge_u32 s39, 2')
    e('s_cbranch_scc1 L_b_wodone')
    e('s_mul_i32 s32, s39, %d' % (288 * 1152))
    e('s_mul_i32 s34, s39, 4608')
    e('s_add_u32 s34, s34, %d' % (WQ_LO + 3 * 4608))
    tile144('s[28:31]', 34, 's32')
    e.label('L_b_wodone')
    e('s_waitcnt vmcnt(0)')
    stamp(10)
    e('s_barrier')
    e('s_endpgm')


def role_h(e, opts, stamp=None):
    stamp = stamp or (lambda i: None)
    e.label('L_roleH')
    e('s_getpc_b64 s[32:33]')
    e.label('L_h_pc')
    e('s_sub_u32 s32, s32, L_h_pc-KERNEL_START')
    e('s_subb_u32 s33, s33, 0')
    e('v_lshlrev_b32 v1, 7, v0')
    e('v_cmp_gt_u32 vcc, KERNEL_END-KERNEL_START, v1')
    e('s_and_saveexec_b64 s[34:35], vcc')
    e('s_cbranch_execz L_h_nocode')
    if int(opts.get('pfcode', 1)): e('global_load_dword v2, v1, s[32:33]')
    e.label('L_h_nocode')
    e('s_mov_b64 exec, s[34:35]')
    e('s_mov_b32 s41, s24')
    e('s_mov_b32 s42, s25')
    e('s_sub_u32 s26, s2, 224')
    e('s_sub_u32 s27, s24, 8')
    e('s_mul_i32 s27, s27, 6')
    e('s_add_u32 s27, s27, s25')
    e('s_add_u32 s27, s27, 30')
    e('s_cmp_ge_u32 s24, 12')
    e('s_cselect_b32 s26, s26, s27')
    e('s_mul_i32 s27, s26, 49152')
    e('v_lshl_add_u32 v4, v0, 4, s27')
    for k in range(4): e('v_mov_b32 %s, -1' % v(8 + k))
    e('s_and_b32 s24, s24, 3')
    e('s_mul_i32 s24, s24, 144')
    e('s_and_b32 s25, s25, 1')
    e('s_lshl_b32 s25, s25, 9')
    for k in range(2):
        e('v_add_u32 v16, %d, v0' % (512 * k))
        e('v_min_u32 v16, 719, v16')
        div_small(e, 5, 6, 16, 5, 7)
        e('v_add_u32 v5, s24, v5')
        e('v_lshl_add_u32 v6, v6, 7, s25')
        e('v_mul_u32_u24 v7, 3456, v5')
        e('v_mul_u32_u24 v5, 1152, v5')
        e('v_add_u32 %s, v7, v6' % v(14 + k))
        e('v_add_u32 %s, v5, v6' % v(12 + k))
    order = opts.get('horder', 'fwGcq')
    e('s_waitcnt lgkmcnt(0)')
    for n_, ch in enumerate(order):
        stamp(n_)
        if ch == 'w': e('s_waitcnt vmcnt(0)')
        if ch == 'f': first_touch(e, 's41', 's42', 24, 20)
        if ch == 'G': first_touch(e, 's41', 's42', 24, 21, 5)
        if ch == 'g':
            e('s_and_b32 s39, s41, 3')
            e('s_add_u32 s39, s39, 5')
            for k in range(3): touch_tiles(e, 0, 's39', 384 * k, 384, 's42', 24, 21 + k)
        if ch == 's':
            e('s_mov_b32 s28, %d' % int(opts.get('hspin', 100)))
            e.label('L_h_spin')
            e('s_sleep 1')
            e('s_sub_u32 s28, s28, 1')
            e('s_cbranch_scc0 L_h_spin')
        if ch == 't':
            e('s_and_b32 s27, s2, 7')
            e('s_lshl_b32 s27, s27, 2')
            e('v_mov_b32 v5, s27')
            e('s_mov_b32 s28, %d' % SPIN)
            e('v_readfirstlane_b32 s29, v0')
            e('s_cmp_lg_u32 s29, 0')
            e('s_cbranch_scc1 L_h_trigd')
            e('s_mov_b64 exec, 1')
            e.label('L_h_trig')
            e('global_load_dword v6, v5, s[54:55] offset:16 sc1')
            e('s_sub_u32 s28, s28, 1')
            e('s_cbranch_scc1 L_h_trigd')
            e('s_waitcnt vmcnt(0)')
            e('v_cmp_eq_u32 vcc, 0, v6')
            e('s_cbranch_vccnz L_h_trig')
            e.label('L_h_trigd')
            e('s_mov_b64 exec, -1')
            e('s_barrier')
        if ch == 'q':
            for k in range(2): e('global_load_dword %s, %s, s[48:49]' % (v(16 + k), v(14 + k)))
        if ch == 'o':
            for k in range(2): e('global_load_dword %s, %s, s[50:51]' % (v(18 + k), v(12 + k)))
        if ch == 'c':
            for k in range(6):
                e('global_store_dwordx4 v4, v[8:11], s[56:57] sc1')
                if k < 5: e('v_add_u32 v4, 8192, v4')
    e('s_and_b32 s26, s26, 3')
    e('s_lshl_b32 s26, s26, 6')
    e('v_mov_b32 v5, s26')
    e('v_mov_b32 v6, 1')
    e('v_cmp_eq_u32 vcc, 0, v0')
    stamp(8)
    e('s_waitcnt vmcnt(0)')
    stamp(9)
    e('s_barrier')
    e('s_and_saveexec_b64 s[34:35], vcc')
    e('s_cbranch_execz L_h_noadd')
    e('global_atomic_add v5, v6, s[54:55] sc1')
    e.label('L_h_noadd')
    e('s_mov_b64 exec, s[34:35]')
    if 'q' not in order:
        for k in range(2): e('global_load_dword %s, %s, s[48:49]' % (v(16 + k), v(14 + k)))
    if 'o' not in order:
        for k in range(2): e('global_load_dword %s, %s, s[50:51]' % (v(18 + k), v(12 + k)))
    if opts.get('hst'):
        e('v_lshrrev_b32 v2, 6, v0\nv_readfirstlane_b32 s24, v2\ns_branch L_dump')
    e('s_endpgm')
```

```python
import sys
from asmlib import *
import gen_a
KN = 'concat_heads__ssm_conv_s4__linear_attn_block__prompt_kernel'
HEAD = open('concat_heads__ssm_conv_s4__linear_attn_block__prompt.s.ref').read().split('; Override launch')[0]
LDS = 163840
STAMP_BASE = 64 << 20

def make(stamps=False, roles='AB', opts=None):
    opts = opts or {}
    e = Asm()
    nst = [0]
    def mk_stamp(role):
        if opts.get('at'):
            def st1(i):
                sec = [k for k, x in e.secs.items() if x is e.L][0]
                who = 'c' if sec == 'compute' else 'a' if role == 'A' else 'h' if role == 'H' else 'l'
                if opts['at'] == '%s%d' % (who, i): e('s_memrealtime s[70:71]')
            return st1
        if not stamps: return None
        def st(i):
            e('%s %s' % ('s_memrealtime' if opts.get('rt') else 's_memtime', s(64 + 2 * i, 2)))
        return st
    e.label(KN)
    probe = opts.get('probe')
    if stamps or probe:
        e('s_memrealtime s[60:61]')
        e('s_memrealtime s[62:63]' if opts.get('rt') else 's_memtime s[62:63]')
    import gen_b
    e.secs = {'head': e.L}
    e('s_load_dwordx16 s[4:19], s[0:1], 0')
    e('s_load_dwordx8 s[44:51], s[0:1], 64')
    e('s_load_dwordx4 s[52:55], s[0:1], 96')
    e('s_load_dwordx2 s[56:57], s[0:1], 112')
    e('s_cmp_ge_u32 s2, 128')
    e('s_cbranch_scc1 L_roleA')
    if 'B' in roles: gen_b.role_b(e, mk_stamp('B'), opts)
    else: e('s_branch L_exit')
    e.section('ahead', False)
    gen_a.role_a(e, mk_stamp('A'), opts)
    e.section('helper', False)
    gen_b.role_h(e, opts, mk_stamp('H') if opts.get('hst') else None)
    e.section('exit', False)
    e.label('L_exit')
    e('s_endpgm')
    order = ['head', 'ahead', 'helper', 'exit', 'amain', 'loader', 'compute', 'strict']
    assert set(e.secs) <= set(order)
    lines = sum([e.secs.get(k, []) for k in order], [])
    keep = len(e.secs['head']) + len(e.secs['ahead']) + len(e.secs['helper']) + len(e.secs['exit'])
    if 'A' not in roles:
        k = lines.index('s_cbranch_scc1 L_roleH')
        lines.insert(k + 1, 's_branch L_exit')
    if probe:
        k = [i for i, l in enumerate(lines) if l == 's_endpgm'][{'b': -1, 'l': -2, 'a': 2}[probe[0]]]
        d = Asm()
        d('s_waitcnt vmcnt(0)')
        d('s_memrealtime s[62:63]' if probe[1:] == 'rt' else 's_memtime s[64:65]')
        d('s_memrealtime s[66:67]')
        d('s_waitcnt lgkmcnt(0)')
        if probe[1:] == 'fix':
            d('s_mov_b32 s6, 2000')
        elif probe[1:] == 'rt':
            d('s_sub_u32 s6, %s, s60' % ('s70' if opts.get('at') else 's62'))
            d('s_lshl_b32 s6, s6, 2')
        else:
            d('s_sub_u32 s6, s64, s62')
            d('s_lshr_b32 s6, s6, 3')
        if opts.get('pwb'):
            d('s_mov_b32 s7, 200')
            d.label('L_pwb')
            d('s_sleep 1')
            d('s_sub_u32 s7, s7, 1')
            d('s_cbranch_scc0 L_pwb')
            d('buffer_wbl2 sc1')
            d('s_waitcnt vmcnt(0)')
        d.label('L_probe')
        d('s_memrealtime s[68:69]')
        d('s_waitcnt lgkmcnt(0)')
        d('s_sub_u32 s7, s68, s66')
        d('s_cmp_lt_u32 s7, s6')
        d('s_cbranch_scc1 L_probe')
        lines = lines[:k] + d.L + lines[k:]
    if stamps:
        out = []
        for k, l in enumerate(lines):
            if l == 's_endpgm' and k > keep: out.append('s_branch L_dump')
            else: out.append(l)
        lines = out
        d = Asm()
        d.label('L_dump')
        d('s_waitcnt vmcnt(0)')
        d('s_memrealtime s[96:97]' if opts.get('rt') else 's_memtime s[96:97]')
        d('s_memrealtime s[98:99]')
        d('s_load_dwordx2 s[4:5], s[0:1], 112')
        d('v_mbcnt_lo_u32_b32 v1, -1, 0')
        d('v_mbcnt_hi_u32_b32 v1, -1, v1')
        d('s_waitcnt lgkmcnt(0)')
        d('v_mov_b32 v2, s60')
        for i in range(17):
            d('s_sub_u32 s6, %s, s62' % s(64 + 2 * i))
            d('v_mov_b32 v3, s6')
            d('v_cmp_eq_u32 vcc, %d, v1' % (i + 2))
            d('v_cndmask_b32 v2, v2, v3, vcc')
        d('v_mov_b32 v3, s98')
        d('v_cmp_eq_u32 vcc, 1, v1')
        d('v_cndmask_b32 v2, v2, v3, vcc')
        d('s_lshl_b32 s6, s2, 3')
        d('s_add_u32 s6, s6, s24')
        d('s_lshl_b32 s6, s6, 8')
        d('s_add_u32 s6, s6, %d' % STAMP_BASE)
        d('v_lshl_add_u32 v1, v1, 2, s6')
        d('global_store_dword v1, v2, s[4:5]')
        d('s_endpgm')
        lines += d.L
    if opts.get('sys'): lines = [l.replace(' sc1', ' sc0 sc1') if ('store' in l and opts['sys'] in 'sb') or ('load' in l and opts['sys'] in 'lb') else l for l in lines]
    lines, added = pad_hazards(lines)
    lines = [l.replace('KERNEL_START', KN).replace('KERNEL_END', 'L_end') for l in lines] + ['L_end:']
    body = '\n'.join(l if l.endswith(':') else '    ' + l for l in lines)
    txt = HEAD + '; @launch grid=(256,1,1) block=(512,1,1) lds=%d\n' % LDS
    txt += '.amdgcn_target "amdgcn-amd-amdhsa--gfx950"\n.text\n.globl %s\n.p2align 8\n.type %s,@function\n' % (KN, KN)
    txt += body + '\n'
    txt += '''.section .rodata,"a"
.p2align 6
.amdhsa_kernel %s
  .amdhsa_next_free_vgpr 256
  .amdhsa_next_free_sgpr 102
  .amdhsa_accum_offset 112
  .amdhsa_group_segment_fixed_size 0
  .amdhsa_kernarg_size 120
  .amdhsa_user_sgpr_count 2
  .amdhsa_user_sgpr_kernarg_segment_ptr 1
  .amdhsa_system_sgpr_workgroup_id_x 1
.end_amdhsa_kernel
''' % KN
    return txt, added

if __name__ == '__main__':
    out = sys.argv[1]
    stamps = 'stamps' in sys.argv[2:]
    roles = [x for x in sys.argv[2:] if x in ('A', 'B', 'AB')]
    opts = dict(x.split('=') for x in sys.argv[2:] if '=' in x)
    txt, added = make(stamps, roles[0] if roles else 'AB', opts)
    open(out, 'w').write(txt)
    print('wrote', out, len(txt), 'bytes; nop states added', added)
```

```python
from asmlib import *
import math, struct

def f2u(x): return struct.unpack('<I', struct.pack('<f', x))[0]
LOG2E = f2u(math.log2(math.e)); INV2PI = f2u(1.0 / (2 * math.pi))

A_WORK = 64; A_WS = 8960
A_CMP = A_WORK + 8 * A_WS
CMPS = 3584
A_UT = A_CMP + 8 * CMPS
A_Y1 = A_UT + 8 * 4608
A_END = A_Y1 + 8 * 3072
assert A_END <= 163840
ROWB = 272
CS = 2240

def cmul(e, dst, x, y, t):
    return [lambda: e('v_pk_mul_f32 %s, %s, %s op_sel_hi:[1,0]' % (v(t, 2), v(x, 2), v(y, 2))),
            lambda: e('v_pk_fma_f32 %s, %s, %s, %s op_sel:[1,1,0] op_sel_hi:[0,1,1] neg_lo:[0,1,0]' % (v(dst, 2), v(x, 2), v(y, 2), v(t, 2)))]

def interleave(*streams):
    streams = [list(x) for x in streams]
    while any(streams):
        for st in streams:
            if st: st.pop(0)()

def role_a(e, stamp=None, opts=None):
    opts = opts or {}
    late = int(opts.get('ulate', 1))
    stamp = stamp or (lambda i: None)
    e.label('L_roleA')
    e('s_cmp_ge_u32 s2, 256')
    e('s_cbranch_scc1 L_exit')
    e('s_sub_u32 s24, s2, 128')
    e('s_and_b32 s25, s24, 7')
    e('s_lshr_b32 s24, s24, 3')
    e('s_lshr_b32 s27, s24, 2')
    e('s_lshl_b32 s27, s27, 3')
    e('s_add_u32 s27, s27, s25')
    e('s_cmp_ge_u32 s27, 18')
    e('s_cbranch_scc1 L_roleH')
    e('s_mov_b32 s41, s24')
    e('s_mov_b32 s42, s25')
    e('s_and_b32 s26, s24, 3')
    e('s_lshl_b32 s27, s25, 2')
    e('s_add_u32 s27, s27, 56')
    e('s_lshl_b32 s25, s25, 3')
    e('s_cmp_lt_u32 s24, 8')
    e('s_cselect_b32 s25, s25, s27')
    e('s_add_u32 s25, s25, s24')
    e('v_lshrrev_b32 v10, 6, v0')
    e('v_and_b32 v1, 63, v0')
    e('v_readfirstlane_b32 s24, v10')
    e('s_mov_b32 s30, 0x05040100')
    e('s_mov_b32 s31, 0x07060302')
    e('s_lshl_b32 s28, s25, 3')
    e('s_add_u32 s28, s28, s24')
    e('s_lshl_b32 s29, s28, 8')
    e('v_lshl_add_u32 v10, v1, 2, s29')
    e('s_lshl_b32 s29, s28, 1')
    e('v_mov_b32 v11, s29')
    e('v_lshlrev_b32 v12, 2, v0')
    e('v_mul_u32_u24 v13, 1152, v12')
    e('s_lshl_b32 s29, s25, 4')
    e('v_add_u32 v13, s29, v13')
    e('v_mul_u32_u24 v14, 4608, v0')
    e('v_add_u32 v14, s29, v14')
    e('s_mul_i32 s27, s24, %d' % A_WS)
    e('s_add_u32 s27, s27, %d' % A_WORK)
    e('s_mov_b32 m0, s27')
    e('s_waitcnt lgkmcnt(0)')
    e('global_load_ushort v8, v11, s[18:19]')
    for k in range(6):
        e('global_load_dword %s, v10, %s' % (v(2 + k), s(6 + 2 * k, 2)))
    e('global_load_ushort v9, v11, s[44:45]')
    t_par = e.vm()
    import gen_b
    if int(opts.get('atouch', 2)) in (1, 2):
        if opts.get('unit'): gen_b.touch_round(e, 's41', 's42', 36, 10, int(opts.get('u0', 1)), 'a0')
        else: gen_b.first_touch(e, 's41', 's42', 36, 10)
    def uload1(slots, tag):
        for sub in range(4):
            if sub < 3:
                e('s_cmp_lg_u32 s26, %d' % sub)
                e('s_cbranch_scc1 L_a_u%s_%d' % (tag, sub + 1))
            for slot in slots:
                i = (slot + sub) & 3
                e('global_load_dwordx4 %s, v13, s[4:5] offset:%d' % (v(16 + 4 * i, 4), 1152 * i))
            if sub < 3:
                e('s_branch L_a_udone%s' % tag)
                e.label('L_a_u%s_%d' % (tag, sub + 1))
    usplit = int(opts.get('usplit', 0))
    def uload(slot):
        if usplit:
            e('s_cmp_lt_u32 s24, 4')
            e('s_cbranch_scc1 L_a_uold%d' % slot)
            if slot == 1:
                e('s_cmp_lg_u32 s32, 2')
                e('s_cbranch_scc1 L_a_udone%d' % slot)
                uload1((1, 3), '%dy' % slot)
                e.label('L_a_udone%dy' % slot)
            e('s_branch L_a_udone%d' % slot)
            e.label('L_a_uold%d' % slot)
        uload1((slot,), '%d' % slot)
        e.label('L_a_udone%d' % slot)
    stamp(0)
    e.section('amain')
    e('s_mul_i32 s33, s24, 4608')
    e('s_add_u32 s33, s33, %d' % A_UT)
    e('v_lshl_add_u32 v38, v1, 3, s33')
    e('v_mov_b32 v36, 0')
    e('v_mov_b32 v37, 0')
    e('ds_write_b64 v38, v[36:37]')
    e('v_and_b32 v36, 31, v1')
    e('v_lshrrev_b32 v37, 5, v1')
    e('v_mul_u32_u24 v86, %d, v36' % ROWB)
    e('v_lshl_add_u32 v86, v37, 4, v86')
    e('v_add_u32 v86, s27, v86')
    for i in range(16): e('v_mov_b32 %s, 0' % v(96 + i))
    e('v_and_b32 v36, 15, v1')
    e('v_lshrrev_b32 v37, 4, v1')
    e('v_lshlrev_b32 v37, 3, v37')
    e('s_movk_i32 s36, 0x3f80')
    for m, (bits, ar) in enumerate(((0x1ff0, 136), (0xfe0, 140))):
        e('v_mov_b32 v38, 0x%x' % bits)
        e('v_lshlrev_b32 v38, v36, v38')
        e('v_lshrrev_b32 v38, v37, v38')
        for k in range(4):
            e('v_bfe_u32 v39, v38, %d, 1' % (2 * k))
            e('v_bfe_u32 v40, v38, %d, 1' % (2 * k + 1))
            e('v_lshl_or_b32 v39, v40, 16, v39')
            e('v_mul_u32_u24 v39, s36, v39')
            e('v_accvgpr_write_b32 %s, v39' % a(ar + k))
    e('s_mul_i32 s34, s24, %d' % CMPS)
    e('s_add_u32 s34, s34, %d' % A_CMP)
    e('v_and_b32 v36, 31, v1')
    e('v_lshrrev_b32 v37, 5, v1')
    e('v_cmp_eq_u32 vcc, 0, v37')
    e('v_lshlrev_b32 v38, 5, v36')
    e('v_lshl_add_u32 v38, v37, 4, v38')
    e('v_add_u32 v87, s34, v38')
    e('v_lshlrev_b32 v39, 4, v36')
    e('v_add_u32 v39, 1024, v39')
    e('v_lshlrev_b32 v40, 3, v36')
    e('v_add_u32 v40, 1536, v40')
    e('v_cndmask_b32 v41, v40, v39, vcc')
    e('v_add_u32 v39, 8, v39')
    e('v_add_u32 v40, 256, v40')
    e('v_cndmask_b32 v42, v40, v39, vcc')
    e('v_add_u32 v88, s34, v41')
    e('v_add_u32 v89, s34, v42')
    e('v_lshlrev_b32 v43, 9, v37')
    e('v_lshl_add_u32 v43, v36, 2, v43')
    e('s_add_u32 s35, s34, 2048')
    e('v_add_u32 v90, s35, v43')
    e('v_lshl_add_u32 v91, v1, 3, s34')
    e('v_lshl_add_u32 v92, v1, 4, s34')
    e('v_cmp_eq_u32 vcc, 0, v1')
    e('v_cndmask_b32 v46, 0, -4, vcc')
    e('v_add_u32 v93, v46, v91')
    e('v_subrev_u32 v47, 16, v92')
    e('v_cndmask_b32 v94, v47, v92, vcc')
    e('v_lshlrev_b32 v49, 4, v1')
    e('v_sub_u32 v49, s27, v49')
    e('v_lshlrev_b32 v50, 3, v1')
    e('v_sub_u32 v50, s27, v50')
    e('v_add_u32 v95, 1072, v49')
    e('v_add_u32 v12, 1592, v50')
    e('v_lshlrev_b32 v15, 3, v0')
    e('v_add_u32 v15, %d, v15' % (A_UT + 512))
    parked = []
    def park(src, home):
        e('v_accvgpr_write_b32 %s, %s' % (a(64 + len(parked)), v(src))); parked.append(home)
    def unpark(lo, hi):
        for k in range(lo, hi): e('v_accvgpr_read_b32 %s, %s' % (v(parked[k]), a(64 + k)))
    e('v_lshlrev_b32 v48, 2, v1')
    e('v_sub_u32 v48, s34, v48')
    e('v_add_u32 v48, %d, v48' % (3072 + 252)); park(48, 48)
    e('v_and_b32 v36, 7, v1')
    e('v_bfe_u32 v37, v1, 3, 2')
    e('v_mul_u32_u24 v37, %d, v37' % CS)
    e('v_min_u32 v36, 4, v36')
    e('v_lshlrev_b32 v38, 4, v36')
    e('v_cmp_lt_u32 vcc, 2, v36')
    e('v_add_u32 v39, %d, v38' % (2112 - 48))
    e('v_cndmask_b32 v38, v38, v39, vcc')
    e('v_add3_u32 v40, v38, v37, s27'); park(40, 36)
    e('v_and_b32 v36, 3, v1')
    e('v_lshl_add_u32 v40, v36, 4, s34'); park(40, 38)
    e('v_bfe_u32 v37, v1, 2, 2')
    e('v_lshlrev_b32 v38, 1, v36')
    e('v_sub_u32 v38, v37, v38')
    e('v_mul_u32_u24 v37, %d, v37' % CS)
    e('v_lshl_add_u32 v37, v36, 2, v37')
    e('v_add_u32 v37, s27, v37'); park(37, 37)
    e('v_cmp_lt_i32 s[20:21], 0, v38')
    e('v_cmp_lt_i32 s[22:23], 1, v38')
    e('v_cmp_eq_i32 s[58:59], -6, v38')
    e('v_and_b32 v36, 15, v1')
    e('v_lshrrev_b32 v37, 4, v1')
    e('v_and_b32 v38, 3, v36')
    e('v_sub_u32 v39, v36, v38')
    e('v_lshlrev_b32 v39, 1, v39')
    e('v_mul_u32_u24 v38, %d, v38' % CS)
    e('v_lshl_add_u32 v38, v37, 4, v38')
    e('v_sub_u32 v38, v38, v39')
    e('s_add_u32 s35, s27, 24')
    e('v_add_u32 v40, s35, v38'); park(40, 16)
    e('v_lshlrev_b32 v40, 4, v37')
    e('v_lshlrev_b32 v41, 2, v36')
    e('v_sub_u32 v40, v40, v41')
    e('s_add_u32 s35, s34, %d' % (3072 + 60))
    e('v_add_u32 v40, s35, v40'); park(40, 17)
    e('v_lshlrev_b32 v40, 5, v36')
    e('v_lshl_add_u32 v41, v37, 3, v40')
    e('v_lshl_add_u32 v40, v37, 4, v40')
    e('s_add_u32 s35, s33, 464')
    e('v_add_u32 v40, s35, v40'); park(40, 19)
    e('s_mul_i32 s35, s24, 3072')
    e('s_add_u32 s35, s35, %d' % A_Y1)
    e('v_add_u32 v40, s35, v41'); park(40, 22)
    e('s_add_u32 s35, s33, 512')
    e('v_add_u32 v40, s35, v41'); park(40, 21)
    e.wait_vm(t_par)
    stamp(1)
    if int(opts.get('atouch', 2)) == 3: gen_b.first_touch(e, 's41', 's42', 36, 10)
    if int(opts.get('atouch', 2)) > 1:
        if opts.get('unit'): gen_b.touch_round(e, 's41', 's42', 36, 11, int(opts.get('u0', 1)) + 16, 'a1')
        else: gen_b.first_touch(e, 's41', 's42', 36, 11, 5)
    if opts.get('aexit') == '1': e('s_branch L_exit')
    e('v_lshlrev_b32 v8, 16, v8')
    e('v_mul_f32 v8, 0x%08x, v8' % LOG2E)
    e('v_exp_f32 v8, v8')
    e('v_lshlrev_b32 v9, 16, v9')
    e('v_cvt_pk_bf16_f32 v8, v8, v8')
    e('v_cmp_eq_u32 vcc, 0, v1')
    e('v_lshlrev_b32 v32, 16, v8')
    e('v_cndmask_b32 v35, 0, v9, vcc')
    e('v_mul_f32 v33, 0x%08x, v32' % LOG2E)
    e('v_mul_f32 v34, 0x%08x, v32' % INV2PI)
    if usplit:
        e('s_cmp_lt_u32 s24, 4')
        e('s_cbranch_scc1 L_a_udonez')
        uload1((0, 2), 'z')
        e.label('L_a_udonez')
    e('s_mov_b32 s32, 2')
    e.label('L_a_pass')
    stamp(8)
    if not late: uload(0)
    stamp(9)
    for k in range(6): e('v_lshlrev_b32 %s, 16, %s' % (v(36 + k), v(2 + k)))
    for k in range(6): e('v_lshrrev_b32 %s, 16, %s' % (v(2 + k), v(2 + k)))
    e('v_mul_f32 v36, v33, v36')
    e('v_mul_f32 v37, v34, v37')
    e('v_mul_f32 v38, v32, v38')
    e('v_mul_f32 v39, v32, v39')
    e('v_mul_f32 v70, 0x43800000, v36')
    e('v_mul_f32 v71, 0x43800000, v37')
    e('v_mul_f32 v72, 0x41000000, v36')
    e('v_mul_f32 v73, 0x41000000, v37')
    e('v_fract_f32 v71, v71')
    e('v_fract_f32 v37, v37')
    e('v_fract_f32 v73, v73')
    e('v_exp_f32 v70, v70')
    e('v_cos_f32 v48, v71')
    e('v_sin_f32 v49, v71')
    e('v_exp_f32 v36, v36')
    e('v_cos_f32 v44, v37')
    e('v_sin_f32 v45, v37')
    e('v_exp_f32 v72, v72')
    e('v_cos_f32 v46, v73')
    e('v_sin_f32 v47, v73')
    if int(opts.get('vop2', 0)):
        def cm(d, x, y, ny):
            return [lambda: e('v_mul_f32 %s, %s, %s' % (v(d), v(x), v(y))),
                    lambda: e('v_mul_f32 %s, %s, %s' % (v(d + 1), v(x + 1), v(y))),
                    lambda: e('v_fmac_f32 %s, %s, %s' % (v(d), v(x + 1), v(ny))),
                    lambda: e('v_fmac_f32 %s, %s, %s' % (v(d + 1), v(x), v(y + 1)))]
        neg = lambda d, x: [lambda: e('v_sub_f32 %s, 0, %s' % (v(d), v(x)))]
        e('v_sub_f32 v74, 0, v41')
        for f in cm(42, 38, 40, 74): f()
        e('v_mul_f32 v48, v70, v48')
        e('v_mul_f32 v49, v70, v49')
        e('v_mul_f32 v44, v36, v44')
        e('v_mul_f32 v45, v36, v45')
        e('v_mul_f32 v46, v72, v46')
        e('v_mul_f32 v47, v72, v47')
        e('v_sub_f32 v36, 0, v49')
        e('v_sub_f32 v37, 0, v45')
        e('v_sub_f32 v38, 0, v47')
        cv = {}
        def put(src, row, ng, ch=0):
            cv[ch] = cv.get(ch, 0) + 1
            r = 78 + 2 * ch + (cv[ch] & 1)
            return [lambda: e('v_cvt_pk_bf16_f32 %s, %s, %s%s' % (v(r), v(src), '-' if ng else '', v(src + 1))),
                    lambda: e('ds_write_addtid_b32 %s offset:%d' % (v(r), row * ROWB))]
        chA = put(42, 0, True); src = 42
        for k, r in enumerate([8, 12, 14, 16, 17, 18, 19, 20]):
            d = 50 + 2 * (k & 1)
            chA += cm(d, src, 48, 36) + put(d, r, True); src = d
        pB = lambda x, r: put(x, r, True, 1)
        chB = cm(60, 44, 44, 37) + neg(39, 61) + cm(68, 42, 44, 37) + pB(68, 1)
        chB += cm(62, 42, 60, 39) + pB(62, 2) + cm(70, 68, 60, 39) + pB(70, 3)
        chB += cm(64, 62, 60, 39) + pB(64, 4) + cm(68, 70, 60, 39) + pB(68, 5)
        chB += cm(66, 64, 60, 39) + pB(66, 6) + cm(70, 68, 60, 39) + pB(70, 7)
        chB += cm(68, 64, 48, 36) + pB(68, 10) + cm(70, 62, 48, 36) + pB(70, 9)
        chB += cm(64, 68, 48, 36) + pB(64, 13) + cm(70, 66, 48, 36) + pB(70, 11)
        chB += cm(68, 64, 48, 36) + pB(68, 15)
        chC = cm(54, 46, 46, 38) + cm(56, 54, 46, 38) + neg(40, 55) + cm(58, 54, 54, 40) + neg(41, 59)
        stamp(10)
        interleave(chA, chB, chC)
        stamp(11)
        uload(1)
        stamp(12)
        for k in range(8): e('ds_read_b128 %s, v86 offset:%d' % (a(4 * k, 4), 32 * k))
        e('v_mov_b32 v52, 0x3f80')
        e('ds_write_addtid_b32 v52')
        for f in put(46, 1, False) + put(54, 2, False) + put(56, 3, False) + put(58, 4, False): f()
        regs = {0: (58, 50, 52), 1: (46, 60, 62), 2: (54, 64, 66), 3: (56, 68, 70)}
        chains = []
        for c in (1, 2, 3, 0):
            st = []
            src, r0, r1 = regs[c]
            for j in range(5, 32):
                if j % 4 != c: continue
                st += cm(r0, src, 58, 41) + put(r0, j, False, c); src = r0; r0, r1 = r1, r0
            chains.append(st)
        interleave(*chains)
    else:
        for f in cmul(e, 42, 38, 40, 74): f()
        e('v_mul_f32 v48, v70, v48')
        e('v_mul_f32 v49, v70, v49')
        e('v_mul_f32 v44, v36, v44')
        e('v_mul_f32 v45, v36, v45')
        e('v_mul_f32 v46, v72, v46')
        e('v_mul_f32 v47, v72, v47')
        cv = {}
        def put(src, row, neg, ch=0):
            cv[ch] = cv.get(ch, 0) + 1
            r = 78 + 2 * ch + (cv[ch] & 1)
            return [lambda: e('v_cvt_pk_bf16_f32 %s, %s, %s%s' % (v(r), v(src), '-' if neg else '', v(src + 1))),
                    lambda: e('ds_write_addtid_b32 %s offset:%d' % (v(r), row * ROWB))]
        chA = put(42, 0, True)
        rowsA = [8, 12, 14, 16, 17, 18, 19, 20]
        src = 42
        for r in rowsA:
            chA += cmul(e, 50, src, 48, 70) + put(50, r, True); src = 50
        putB = lambda x, r, n: put(x, r, n, 1)
        chB = cmul(e, 60, 44, 44, 72) + cmul(e, 68, 42, 44, 74) + putB(68, 1, True)
        chB += cmul(e, 62, 42, 60, 72) + putB(62, 2, True) + cmul(e, 68, 68, 60, 74) + putB(68, 3, True)
        chB += cmul(e, 64, 62, 60, 72) + putB(64, 4, True) + cmul(e, 68, 68, 60, 74) + putB(68, 5, True)
        chB += cmul(e, 66, 64, 60, 72) + putB(66, 6, True) + cmul(e, 68, 68, 60, 74) + putB(68, 7, True)
        chB += cmul(e, 64, 64, 48, 72) + putB(64, 10, True) + cmul(e, 62, 62, 48, 74) + putB(62, 9, True)
        chB += cmul(e, 64, 64, 48, 72) + putB(64, 13, True) + cmul(e, 66, 66, 48, 74) + putB(66, 11, True)
        chB += cmul(e, 64, 64, 48, 72) + putB(64, 15, True)
        chC = cmul(e, 54, 46, 46, 76) + cmul(e, 56, 54, 46, 76) + cmul(e, 58, 54, 54, 76)
        stamp(10)
        interleave(chA, chB, chC)
        stamp(11)
        uload(1)
        stamp(12)
        for k in range(8): e('ds_read_b128 %s, v86 offset:%d' % (a(4 * k, 4), 32 * k))
        e('v_mov_b32 v52, 0x3f80')
        e('ds_write_addtid_b32 v52')
        for f in put(46, 1, False) + put(54, 2, False) + put(56, 3, False) + put(58, 4, False): f()
        regs = {0: (58, 50), 1: (46, 52), 2: (54, 54), 3: (56, 56)}
        chains = []
        for c in (1, 2, 3, 0):
            st = []
            src, run = regs[c]
            for j in range(5, 32):
                if j % 4 != c: continue
                st += cmul(e, run, src, 58, 70 + 2 * c) + put(run, j, False, c); src = run
            chains.append(st)
        interleave(*chains)
    stamp(13)
    if late: uload(0)
    e('s_add_u32 s26, s26, 2')
    e('s_and_b32 s26, s26, 3')
    t0 = e.lg()
    for k in range(8): e('ds_read_b128 %s, v86 offset:%d' % (a(32 + 4 * k, 4), 32 * k))
    for k in range(8):
        e.wait_lg(t0 + k + 1)
        e('v_mfma_f32_32x32x16_bf16 v[96:111], %s, %s, v[96:111]' % (a(4 * k, 4), a(32 + 4 * k, 4)))
    e('s_sub_u32 s32, s32, 1')
    e('s_cmp_lg_u32 s32, 0')
    e('s_cbranch_scc1 L_a_pass')
    stamp(2)
    if int(opts.get('aq', 0)):
        e('s_cmp_ge_u32 s24, 3')
        e('s_cbranch_scc1 L_a_noq')
        gen_b.touch_cols(e, 's41', 's42', 36, 8, 's[48:49]', 3456)
        if int(opts.get('aq', 0)) == 2: gen_b.touch_cols(e, 's41', 's42', 36, 9, 's[50:51]', 1152)
        e.label('L_a_noq')
    unpark(0, 4)
    e('v_cmp_eq_u32 vcc, 0, v1')
    e('v_mov_b32 v51, s34')
    for k in range(4): e('v_mov_b32 %s, 0' % v(76 + k))
    e('ds_write_b128 v87, v[96:99]')
    e('ds_write_b64 v88, v[100:101]')
    e('ds_write_b64 v89, v[102:103]')
    e('ds_write2_b32 v90, v104, v105 offset0:0 offset1:32')
    e('ds_write2_b32 v90, v106, v107 offset0:64 offset1:96')
    t0 = e.lg()
    e('ds_read_b64 v[56:57], v91 offset:1536')
    e('ds_read_b32 v58, v91 offset:1544')
    e('ds_read_b32 v59, v93 offset:1536')
    e('ds_read_b32 v55, v93 offset:1532')
    e('ds_read_b64 v[60:61], v91 offset:1024')
    e('ds_read_b32 v62, v91 offset:1032')
    e('ds_read_b32 v63, v93 offset:1024')
    e('ds_read2_b32 v[68:69], v93 offset0:254 offset1:255')
    e('ds_read_b128 v[64:67], v92')
    e('ds_read_b128 v[72:75], v94')
    e('ds_read_b32 v52, v91 offset:2052')
    e('ds_read_b32 v53, v91 offset:2056')
    e('ds_read_b32 v70, v51 offset:2044')
    e('ds_read_b32 v71, v51 offset:2048')
    e('ds_write_b128 v36, v[76:79]')
    e('ds_write_b128 v38, v[76:79] offset:%d' % (3072 + 256))
    def pk(d, x, y): e('v_cvt_pk_bf16_f32 %s, %s, %s' % (v(d), v(x), v(y)))
    def quad(base, pairs):
        for k, (x, y) in enumerate(pairs): pk(base + k, x, y)
    e.wait_lg(t0 + 4)
    A_, B_, C_, A2, D_ = 56, 57, 58, 59, 55
    quad(96, [(C_, C_), (B_, B_), (B_, A_), (A_, A_)]); e('ds_write_b128 v95, v[96:99] offset:%d' % (3 * CS))
    quad(100, [(C_, B_), (B_, B_), (A_, A_), (A_, A_)]); e('ds_write_b128 v95, v[100:103] offset:%d' % (2 * CS))
    quad(104, [(B_, B_), (B_, A_), (A_, A_), (A_, A2)]); e('ds_write_b128 v95, v[104:107] offset:%d' % CS)
    quad(108, [(B_, B_), (A_, A_), (A_, A_), (A2, D_)]); e('ds_write_b128 v95, v[108:111]')
    e.wait_lg(t0 + 14)
    A_, B_, C_, A1, E_, F_ = 60, 61, 62, 63, 69, 68
    e('v_add_f32 v64, v64, v35')
    for k in (73, 74, 75): e('v_cndmask_b32 %s, %s, v76, vcc' % (v(k), v(k)))
    quad(96, [(C_, B_), (A_, A_)]); e('ds_write_b64 v12, v[96:97] offset:%d' % (3 * CS))
    quad(98, [(B_, A_), (A_, A1)]); e('ds_write_b64 v12, v[98:99] offset:%d' % (2 * CS))
    quad(100, [(A_, A_), (A1, E_)]); e('ds_write_b64 v12, v[100:101] offset:%d' % CS)
    quad(102, [(A_, A1), (E_, F_)]); e('ds_write_b64 v12, v[102:103]')
    quad(104, [(67, 66), (65, 64)]); e('ds_write_b64 v12, v[104:105] offset:%d' % (3 * CS + 512))
    quad(106, [(66, 65), (64, 75)]); e('ds_write_b64 v12, v[106:107] offset:%d' % (2 * CS + 512))
    quad(108, [(65, 64), (75, 74)]); e('ds_write_b64 v12, v[108:109] offset:%d' % (CS + 512))
    quad(110, [(64, 75), (74, 73)]); e('ds_write_b64 v12, v[110:111] offset:512')
    pk(54, 53, 52); e('ds_write_b32 v48, v54')
    e('v_cndmask_b32 v39, v71, v76, s[20:21]')
    e('v_cndmask_b32 v40, v71, v76, s[22:23]')
    e('v_cndmask_b32 v40, v40, v70, s[58:59]')
    pk(39, 39, 40); e('ds_write_b32 v37, v39 offset:48')
    stamp(3)
    e('s_waitcnt vmcnt(0)')
    stamp(4)
    for c in range(8):
        sel = 's31' if c & 1 else 's30'
        d = 36 + 2 * (c % 8)
        e('v_perm_b32 %s, %s, %s, %s' % (v(d), v(20 + (c >> 1)), v(16 + (c >> 1)), sel))
        e('v_perm_b32 %s, %s, %s, %s' % (v(d + 1), v(28 + (c >> 1)), v(24 + (c >> 1)), sel))
        e('ds_write_b64 v15, %s offset:%d' % (v(d, 2), c * 4608))
    unpark(4, 9)
    e('v_add_u32 v20, 16, v19')
    ACC = 64
    for i in range(16): e('v_mov_b32 %s, 0' % v(ACC + i))
    t0 = e.lg()
    for d in range(4, 8):
        o = 16 * (7 - d)
        e('ds_read2_b32 %s, v17 offset0:%d offset1:%d' % (a(96 + 4 * (d - 4), 2), o, o + 1))
        e('ds_read2_b32 %s, v17 offset0:%d offset1:%d' % (a(98 + 4 * (d - 4), 2), o + 2, o + 3))
    e('ds_read_b64 a[128:129], v16')
    e('ds_read_b64 a[130:131], v16 offset:8')
    e('s_waitcnt lgkmcnt(0)')
    e('s_barrier')
    stamp(5)
    if opts.get('aexit') == '2': e('s_branch L_exit')
    mf = lambda d, x, y, c: e('v_mfma_f32_16x16x32_bf16 %s, %s, %s, %s' % (d, x, y, c))
    G1 = int(opts.get('g1', 5))
    T1 = list(range(G1)); T2 = list(range(G1, 8))
    tok = {}
    wgrp = int(opts.get('wgrp', 2))
    def reads(bank, tiles):
        low = max(0, min(tiles) - 3)
        out = []; seen = set()
        def rd(key, txt): out.append(lambda: (e(txt), tok.__setitem__(key, e.lg())))
        for i in range(4):
            for h in range(2): rd(('A', bank, i), 'ds_read_b64 %s, v16 offset:%d' % (a(bank + 4 * i + 2 * h, 2), 2048 - 512 * i + 8 * h))
            for n in tiles:
                m = n - i
                if m >= 0 and m not in seen:
                    seen.add(m); rd(('B', bank, m), 'ds_read_b128 %s, v20 offset:%d' % (a(bank + 16 + 4 * (m - low), 4), 512 * m))
        out.append(lambda: e('v_subrev_u32 v16, 64, v16'))
        out.append(lambda: e('v_subrev_u32 v20, 64, v20'))
        return out
    def spread(nslots, fill):
        per = [len(fill) // nslots + (1 if k < len(fill) % nslots else 0) for k in range(nslots)]
        res = []; k = 0
        for p_ in per: res.append(fill[k:k + p_]); k += p_
        return res
    def half(bank, tiles, more=(), lead=0):
        low = max(0, min(tiles) - 3)
        ops = [(i, n) for i in range(4) for n in tiles if n >= i]
        rd_ = reads(48 - bank, tiles); more = list(more)
        fill = []
        while rd_ or more:
            fill += rd_[:1] + more[:lead or 1]; rd_ = rd_[1:]; more = more[lead or 1:]
        gaps = spread(len(ops), fill)
        have = -1
        for (i, n), gp in zip(ops, gaps):
            need_ = max(max(tok[('A', bank, i2)], tok[('B', bank, n2 - i2)]) for i2, n2 in ops if i2 // wgrp == i // wgrp)
            if need_ > have: e.wait_lg(need_); have = need_
            mf(v(ACC + 4 * n, 4), a(bank + 4 * i, 4), a(bank + 16 + 4 * (n - i - low), 4), v(ACC + 4 * n, 4))
            for f in gp: f()
    t0 = e.lg()
    for c in range(4):
        e('ds_read_b128 %s, v19 offset:%d' % (a(64 + 8 * c, 4), 512 * c))
        e('ds_read_b128 %s, v20 offset:%d' % (a(68 + 8 * c, 4), 512 * c))
    BX = 24
    for c in range(4):
        e.wait_lg(t0 + 2 * c + 2)
        mf(v(BX + 8 * c, 4), a(64 + 8 * c, 4), 'a[136:139]', '0')
        mf(v(BX + 8 * c + 4, 4), a(68 + 8 * c, 4), 'a[140:143]', '0')
        mf(v(ACC + 16 + 4 * c, 4), 'a[128:131]', a(68 + 8 * c, 4), '0')
        if c:
            for r in range(4): pk(BX + 8 * c - 8 + r, BX + 8 * c - 8 + r, BX + 8 * c - 4 + r)
    first = reads(0, T1)
    for c in range(4):
        if c == 1:
            for r in range(4): pk(BX + 24 + r, BX + 24 + r, BX + 28 + r)
        for n in range(4 + c, 8):
            mf(v(ACC + 4 * n, 4), v(BX + 8 * c, 4), a(96 + 4 * (n - c - 4), 4), v(ACC + 4 * n, 4))
            for f in first[:2]: f()
            first = first[2:]
    assert not first
    def loop(tiles, tag, trips, extra=None):
        e('s_mov_b32 s32, %d' % trips)
        e.label('L_a_conv%s' % tag)
        half(0, tiles)
        if extra: extra()
        half(48, tiles)
        e('s_sub_u32 s32, s32, 1')
        e('s_cmp_lg_u32 s32, 0')
        e('s_cbranch_scc1 L_a_conv%s' % tag)
    def put_y(tiles, addr):
        r = []
        for n in tiles:
            r.append(lambda n=n: pk(36 + 2 * n, ACC + 4 * n, ACC + 4 * n + 1))
            r.append(lambda n=n: pk(37 + 2 * n, ACC + 4 * n + 2, ACC + 4 * n + 3))
            r.append(lambda n=n: e('ds_write_b64 %s, %s offset:%d' % (addr, v(36 + 2 * n, 2), 512 * n)))
        return r
    def gather(rows0, rnd, base, stride):
        src = 24 + 8 * rnd if rows0 == 0 else 24
        rd_ = [lambda c=c: (e('ds_read_b32 %s, v23 offset:%d' % (v(src + c), base + c * stride + 2048 * rnd)), tok.__setitem__('y', e.lg())) for c in range(8)]
        ad = v(12 + rnd)
        rd_.append(lambda: e('s_mov_b32 s35, %d\nv_add_u32 %s, s35, v14' % ((rows0 + 1024 * rnd) * 2304, ad)))
        sh = []; st = []
        for i in range(2):
            d = 44 + 8 * rnd + 4 * i
            for c2 in range(4): sh.append(lambda d=d, c2=c2, i=i: e('v_perm_b32 %s, %s, %s, %s' % (v(d + c2), v(src + 1 + 2 * c2), v(src + 2 * c2), 's31' if i else 's30')))
            st.append('global_store_dwordx4 %s, %s, s[52:53] offset:%d' % (ad, v(d, 4), 2304 * i))
        return rd_, sh, st
    loop(T1, 'a', 4)
    stamp(14)
    e('v_add_u32 v16, 576, v16')
    e('v_add_u32 v20, 576, v20')
    for f in reads(0, T2): f()
    e('v_lshlrev_b32 v23, 2, v0')
    e('v_add_u32 v23, %d, v23' % A_UT)
    half(0, T2, put_y(T1, 'v22'))
    e('s_waitcnt lgkmcnt(0)')
    e('s_barrier')
    nr = (256 * G1 + 1023) // 1024
    gs = [gather(0, r, A_Y1 - A_UT, 3072) for r in range(nr)]
    half(48, T2, sum([g[0] for g in gs], []), lead=2)
    stamp(15)
    e.wait_lg(tok['y'])
    half(0, T2, sum([g[1] for g in gs], []))
    held = [(st, 8 if r == 0 else (256 * G1 - 1024) // 128) for r, g in enumerate(gs) for st in g[2]]
    e(held.pop(0)[0])
    half(48, T2)
    def trickle():
        e('s_cmp_lg_u32 s32, 2')
        e('s_cbranch_scc1 L_a_tr1')
        e(held[0][0])
        e('s_branch L_a_trdone')
        e.label('L_a_tr1')
        if len(held) > 1:
            e('s_cmp_ge_u32 s24, %d' % held[1][1])
            e('s_cbranch_scc1 L_a_trdone')
            for st, _ in held[1:]: e(st)
        e.label('L_a_trdone')
    loop(T2, 'b', 2, trickle)
    stamp(6)
    for f in put_y(T2, 'v21'): f()
    e('s_waitcnt lgkmcnt(0)')
    e('s_barrier')
    n2 = 2048 - 256 * G1
    if n2 < 1024:
        e('s_cmp_ge_u32 s24, %d' % (n2 // 128))
        e('s_cbranch_scc1 L_a_done')
    rd_, sh, st = gather(256 * G1, 0, 512 + 512 * G1, 4608)
    for f in rd_: f()
    e.wait_lg(tok['y'])
    for i in range(2):
        for f in sh[4 * i:4 * i + 4]: f()
        e(st[i])
    e.label('L_a_done')
    if opts.get('awb'):
        e('s_waitcnt vmcnt(0)')
        e('s_barrier')
        e('s_cmp_lg_u32 s24, 0')
        e('s_cbranch_scc1 L_a_nowb')
        e('buffer_wbl2 sc1')
        e.label('L_a_nowb')
    stamp(7)
    e('s_endpgm')
```

```python
from asmlib import *
from gen_a import f2u, LOG2E
EPS = f2u(1e-6)
SLOT = 34816; WOFF = 16384
WQ_LO = SLOT; WQ_HI = 4 * SLOT; IMG = WQ_HI + 3 * 4608
SCR = 3 * SLOT
CST = SLOT - 4096
LCNT = IMG + 9216
STG = WQ_LO + 5 * 4608
def wo_base(ks): return 4608 * ks if ks < 6 else SCR + 4608 * (ks - 6) if ks < 13 else WQ_LO + 4608 * (ks - 13)
KVP = 0; OB = 8 * 4 * 12288; HAND = OB + 16 * 8 * 18 * 1024
SPIN = 20000
def wq_base(ks): return WQ_LO + 4608 * ks if ks < 15 else WQ_HI + 4608 * (ks - 15)

def div_small(e, q, r, x, d, t):
    e('v_mul_u32_u24 %s, %d, %s' % (v(q), (1 << 16) // d + 1, v(x)))
    e('v_lshrrev_b32 %s, 16, %s' % (v(q), v(q)))
    e('v_mul_u32_u24 %s, %d, %s' % (v(t), d, v(q)))
    e('v_sub_u32 %s, %s, %s' % (v(r), v(x), v(t)))
for d in (5, 9, 18):
    assert all((x * ((1 << 16) // d + 1)) >> 16 == x // d for x in range(1024))

def phi_pair(e, x, dst, t, plain=False):
    if plain:
        return [lambda: e('v_mul_f32 %s, s36, %s' % (v(t), v(x))),
                lambda: e('v_mul_f32 %s, s36, %s' % (v(t + 1), v(x + 1))),
                lambda: e('v_max_f32 %s, s38, %s' % (v(t + 2), v(x))),
                lambda: e('v_exp_f32_e64 %s, %s clamp' % (v(t), v(t))),
                lambda: e('v_max_f32 %s, s38, %s' % (v(t + 3), v(x + 1))),
                lambda: e('v_exp_f32_e64 %s, %s clamp' % (v(t + 1), v(t + 1))),
                lambda: e('v_add_f32 %s, %s, %s' % (v(t), v(t), v(t + 2))),
                lambda: e('v_add_f32 %s, %s, %s' % (v(t + 1), v(t + 1), v(t + 3))),
                lambda: e('v_cvt_pk_bf16_f32 %s, %s, %s' % (v(dst), v(t), v(t + 1)))]
    return [lambda: e('v_pk_mul_f32 %s, %s, s[36:37]' % (v(t, 2), v(x, 2))),
            lambda: e('v_max_f32 %s, s38, %s' % (v(t + 2), v(x))),
            lambda: e('v_exp_f32_e64 %s, %s clamp' % (v(t), v(t))),
            lambda: e('v_exp_f32_e64 %s, %s clamp' % (v(t + 1), v(t + 1))),
            lambda: e('v_max_f32 %s, s38, %s' % (v(t + 3), v(x + 1))),
            lambda: e('v_pk_add_f32 %s, %s, %s' % (v(t, 2), v(t, 2), v(t + 2, 2))),
            lambda: e('v_cvt_pk_bf16_f32 %s, %s, %s' % (v(dst), v(t), v(t + 1)))]
def zipper(*streams):
    streams = [list(x) for x in streams]
    while any(streams):
        for st in streams:
            if st: st.pop(0)()

def touch_tiles(e, idx, chunk, lo, n, x_, tmp, dst):
    t0, t1, t2, t3 = tmp, tmp + 1, tmp + 2, tmp + 3
    e('v_min_u32 %s, %d, %s' % (v(t0), n - 1, v(idx)))
    e('v_add_u32 %s, %s, %s' % (v(t0), lo, v(t0)))
    e('s_lshr_b32 s36, %s, 1' % x_)
    e('s_mul_i32 s36, s36, %d' % (512 * 1152))
    e('s_lshl_b32 s37, %s, 7' % chunk)
    e('s_add_u32 s36, s36, s37')
    e('s_and_b32 s37, %s, 1' % x_)
    e('s_lshl_b32 s37, s37, 9')
    e('s_mul_i32 s38, %s, %d' % (chunk, 64 * 3456))
    e('s_add_u32 s37, s37, s38')
    e('s_add_u32 s37, s37, 1152')
    e('v_cmp_gt_u32 vcc, 512, %s' % v(t0))
    e('v_mul_u32_u24 %s, 1152, %s' % (v(t1), v(t0)))
    e('v_add_u32 %s, s36, %s' % (v(t1), v(t1)))
    e('v_subrev_u32 %s, 512, %s' % (v(t0), v(t0)))
    e('v_max_i32 %s, 0, %s' % (v(t0), v(t0)))
    div_small(e, t2, t3, t0, 5, t0 + 4)
    e('v_and_b32 %s, 1, %s' % (v(t0), v(t2)))
    e('v_lshrrev_b32 %s, 1, %s' % (v(t2), v(t2)))
    e('v_mul_u32_u24 %s, 3456, %s' % (v(t2), v(t2)))
    e('v_mul_u32_u24 %s, 1152, %s' % (v(t0), v(t0)))
    e('v_lshl_add_u32 %s, %s, 7, s37' % (v(t3), v(t3)))
    e('v_add3_u32 %s, %s, %s, %s' % (v(t2), v(t2), v(t0), v(t3)))
    e('v_mov_b32 %s, s46' % v(t0))
    e('v_mov_b32 %s, s48' % v(t3))
    e('v_cndmask_b32 %s, %s, %s, vcc' % (v(t1), v(t2), v(t1)))
    e('v_cndmask_b32 %s, %s, %s, vcc' % (v(t2), v(t3), v(t0)))
    e('v_mov_b32 %s, s47' % v(t0))
    e('v_mov_b32 %s, s49' % v(t3))
    e('v_cndmask_b32 %s, %s, %s, vcc' % (v(t3), v(t3), v(t0)))
    e('v_add_co_u32 %s, vcc, %s, %s' % (v(t2), v(t2), v(t1)))
    e('v_addc_co_u32 %s, vcc, 0, %s, vcc' % (v(t3), v(t3)))
    e('global_load_dword %s, %s, off' % (v(dst), v(t2, 2)))

PRIO = [0]
def first_touch(e, j_, x_, tmp, dst, first=1):
    if PRIO[0]:
        e('s_lshr_b32 s39, %s, 2' % j_)
        e('s_sub_u32 s39, %d, s39' % (first + 3))
        e('s_and_b32 s40, %s, 3' % j_)
    else:
        e('s_and_b32 s39, %s, 3' % j_)
        e('s_add_u32 s39, s39, %d' % first)
        e('s_lshr_b32 s40, %s, 2' % j_)
    e('s_mul_i32 s40, s40, 288')
    touch_tiles(e, 0, 's39', 's40', 288, x_, tmp, dst)

def touch_unit(e, unit, x_, tmp, dst, tag):
    t0, t1 = tmp, tmp + 1
    e('s_mul_i32 s36, %s, 43' % unit)
    e('s_lshr_b32 s36, s36, 7')
    e('s_mul_i32 s37, s36, 3')
    e('s_sub_u32 s37, %s, s37' % unit)
    e('s_cmp_lg_u32 s37, 0')
    e('s_cbranch_scc1 L_tw%s' % tag)
    e('s_lshr_b32 s37, %s, 1' % x_)
    e('s_mul_i32 s37, s37, %d' % (512 * 1152))
    e('s_lshl_b32 s36, s36, 7')
    e('s_add_u32 s36, s36, s37')
    e('v_mul_u32_u24 %s, 1152, v0' % v(t0))
    e('v_add_u32 %s, s36, %s' % (v(t0), v(t0)))
    e('global_load_dword %s, %s, s[46:47]' % (v(dst), v(t0)))
    e('s_branch L_td%s' % tag)
    e.nvm -= 1
    e.label('L_tw%s' % tag)
    e('s_lshl_b32 s36, s36, 1')
    e('s_add_u32 s36, s36, s37')
    e('s_mul_i32 s36, s36, %d' % (32 * 3456))
    e('s_and_b32 s37, %s, 1' % x_)
    e('s_lshl_b32 s37, s37, 9')
    e('s_add_u32 s36, s36, s37')
    e('s_sub_u32 s36, s36, %d' % (32 * 3456 - 1152))
    e('v_and_b32 %s, 15, v0' % v(t1))
    e('v_min_u32 %s, 9, %s' % (v(t1), v(t1)))
    e('v_lshrrev_b32 %s, 4, v0' % v(t0))
    e('v_cmp_lt_u32 vcc, 4, %s' % v(t1))
    e('v_mul_u32_u24 %s, 3456, %s' % (v(t0), v(t0)))
    e('v_lshl_add_u32 %s, %s, 7, %s' % (v(t0), v(t1), v(t0)))
    e('v_cndmask_b32 %s, 0, 4, vcc' % v(t1))
    e('v_lshl_add_u32 %s, %s, 7, s36' % (v(t1), v(t1)))
    e('v_add_u32 %s, %s, %s' % (v(t0), v(t0), v(t1)))
    e('global_load_dword %s, %s, s[48:49]' % (v(dst), v(t0)))
    e.label('L_td%s' % tag)
assert all((u * 43) >> 7 == u // 3 for u in range(40))

def touch_round(e, j_, x_, tmp, dst, first, tag):
    e('s_add_u32 s39, %s, %d' % (j_, first))
    e('s_min_u32 s39, s39, 26')
    touch_unit(e, 's39', x_, tmp, dst, tag)

def touch_cols(e, j_, x_, tmp, dst, base, pitch):
    e('v_min_u32 %s, 179, v0' % v(tmp))
    div_small(e, tmp + 1, tmp + 2, tmp, 5, tmp + 3)
    e('s_mul_i32 s36, %s, %d' % (j_, 36 * pitch))
    e('s_and_b32 s37, %s, 1' % x_)
    e('s_lshl_b32 s37, s37, 9')
    e('s_add_u32 s36, s36, s37')
    e('v_mul_u32_u24 %s, %d, %s' % (v(tmp + 1), pitch, v(tmp + 1)))
    e('v_lshl_add_u32 %s, %s, 7, s36' % (v(tmp + 2), v(tmp + 2)))
    e('v_add_u32 %s, %s, %s' % (v(tmp + 1), v(tmp + 1), v(tmp + 2)))
    e('global_load_dword %s, %s, %s' % (v(dst), v(tmp + 1), base))

def role_b(e, stamp, opts):
    stamp = stamp or (lambda i: None)
    PRIO[0] = int(opts.get('tprio', 0))
    rot = int(opts.get('rot', 0))
    e('v_lshrrev_b32 v2, 6, v0')
    e('v_and_b32 v1, 63, v0')
    e('v_readfirstlane_b32 s24, v2')
    e('s_and_b32 s32, s2, 7')
    e('s_lshr_b32 s33, s2, 3')
    e('s_and_b32 s34, s33, 3')
    e('s_lshr_b32 s33, s33, 2')
    e('s_lshr_b32 s25, s32, 1')
    e('s_lshl_b32 s25, s25, 2')
    e('s_add_u32 s25, s25, s34')
    e('s_and_b32 s26, s32, 1')
    e('s_lshl_b32 s26, s26, 2')
    e('s_add_u32 s26, s26, s33')
    if rot:
        e('s_add_u32 s27, s33, s34')
        e('s_and_b32 s27, s27, 3')
        e('s_lshl_b32 s27, s27, 1')
        e('s_lshr_b32 s35, s32, 1')
        e('s_xor_b32 s35, s35, s32')
        e('s_and_b32 s35, s35, 1')
        e('s_add_u32 s27, s27, s35')
    else:
        e('s_mov_b32 s27, 0')
    e('v_and_b32 v2, 15, v1')
    e('v_lshrrev_b32 v3, 4, v1')
    e('s_cmp_lt_u32 s24, 4')
    e('s_cbranch_scc1 L_b_compute')
    loader(e, stamp, opts)
    e.section('compute', False)
    e.label('L_b_compute')
    compute(e, stamp, opts)

def compute(e, stamp, opts):
    e.nvm = 0; e.nlg = 0
    ACC = 8; RING = 80; NR = 6; D = 4
    acc = lambda ct, rt: ACC + 8 * ct + 4 * rt
    e('s_mov_b32 s36, 0x%08x' % LOG2E)
    e('s_mov_b32 s37, s36')
    e('s_mov_b32 s38, 0x%08x' % EPS)
    e('s_lshl_b32 s32, s24, 12')
    e('v_and_b32 v104, 7, v2')
    e('v_xor_b32 v105, v3, v104')
    e('v_lshlrev_b32 v106, 7, v2')
    e('v_add_u32 v106, s32, v106')
    e('v_lshl_add_u32 v4, v105, 4, v106')
    e('v_xor_b32 v105, 4, v105')
    e('v_lshl_add_u32 v5, v105, 4, v106')
    e('v_lshrrev_b32 v104, 2, v2')
    e('v_and_b32 v105, 3, v2')
    e('v_lshlrev_b32 v105, 3, v105')
    e('v_lshl_add_u32 v106, v3, 2, v104')
    e('v_mul_u32_u24 v106, 288, v106')
    e('v_add_u32 v106, v106, v105')
    e('v_add_u32 v6, %d, v106' % WOFF)
    e('v_lshlrev_b32 v104, 1, v104')
    e('v_lshl_add_u32 v104, v3, 3, v104')
    e('v_mul_u32_u24 v104, 144, v104')
    e('v_add_u32 v104, v104, v105')
    e('v_add_u32 v7, %d, v104' % WQ_LO)
    e('v_cmp_gt_u32 vcc, 8, v2')
    for k in range(4): e('v_mov_b32 %s, s38' % v(108 + k))
    for k in range(4): e('v_cndmask_b32 %s, 0, v108, vcc' % v(104 + k))
    e('v_cmp_gt_u32 s[40:41], 2, v3')
    e('v_cmp_gt_u32 s[42:43], 3, v3')
    e('s_waitcnt lgkmcnt(0)')
    e('s_mov_b64 s[10:11], s[52:53]')
    e('s_mov_b64 s[14:15], s[56:57]')
    stamp(0)
    F = [(p, s_, ct) for p in range(8) for s_ in range(2) for ct in range(9)]
    F += [(8, s_, ct) for s_ in range(2) for ct in range(5)] + [(8, s_, ct) for s_ in range(2) for ct in range(5, 9)]
    tok = {}
    def items(f):
        p, s_, ct = F[f]
        it = []
        if ct == 0 and s_ == 0:
            pre = []
            if p:
                dl = SLOT if p % 4 else -3 * SLOT
                for r in (4, 5, 6): pre.append('v_add_u32 %s, %d, %s' % (v(r), dl, v(r)) if dl > 0 else 'v_subrev_u32 %s, %d, %s' % (v(r), -dl, v(r)))
            if p == 8: pre.append('s_waitcnt lgkmcnt(0)')
            pre.append('s_barrier')
            it.append(lambda: (e('\n'.join(pre)), stamp({0: 1, 4: 2, 8: 3}[p]) if p in (0, 4, 8) else None))
        if ct == 0:
            for rt in range(2): it.append(lambda rt=rt: e('ds_read_b128 %s, %s offset:%d' % (a(16 * p + 8 * s_ + 4 * rt, 4), v(4 + s_), 2048 * rt)))
        r = RING + 4 * (f % NR)
        for h in range(2): it.append(lambda h=h: e('ds_read_b64_tr_b16 %s, v6 offset:%d' % (v(r + 2 * h, 2), 9216 * s_ + 4608 * h + 32 * ct)))
        return it
    for f in range(D):
        for x in items(f): x()
        tok[f] = e.lg()
    def put(fi, r):
        if fi < 8: e('ds_write_b128 v4, %s offset:%d' % (v(r, 4), 1024 * fi))
        else: e('ds_write_b128 v5, %s offset:%d' % (v(r, 4), 1024 * (fi - 8)))
    def phi_tile(x, dst, t, plain):
        zz = [phi_pair(e, x[k], dst[k], t + 4 * k, plain=plain) for k in range(4)]
        return [z[k] for k in range(len(zz[0])) for z in zz]
    def handoff_setup():
        e('s_add_u32 s16, s14, %d' % OB)
        e('s_addc_u32 s17, s15, 0')
        e('s_mov_b32 s18, %d' % (HAND - OB))
        e('s_mov_b32 s19, 0x20000')
        e('s_lshl_b32 s32, s25, 3')
        e('s_lshl_b32 s33, s24, 1')
        e('s_add_u32 s32, s32, s33')
        e('s_mul_i32 s32, s32, %d' % (18 * 1024))
        e('v_lshl_add_u32 v105, v1, 4, s32')
        e('v_add_u32 v106, %d, v105' % (18 * 1024))
        e('s_lshl_b32 s20, s26, 11')
        e('s_lshr_b32 s33, s26, 2')
        e('s_lshl_b32 s33, s33, 10')
        e('s_and_b32 s34, s26, 3')
        e('s_lshl_b32 s34, s34, 8')
        e('s_add_u32 s33, s33, s34')
        e('s_add_u32 s33, s33, s32')
        e('s_add_u32 s33, s33, %d' % (16 * 1024 - 16))
        e('s_movk_i32 s21, %d' % (18 * 1024))
        e('v_lshlrev_b32 v104, 4, v2')
        e('v_lshl_add_u32 v104, v3, 3, v104')
        e('v_add_u32 v104, s33, v104')
    for f, (p, s_, ct) in enumerate(F):
        it = items(f + D) if f + D < len(F) else []
        if f == 18 - D: handoff_setup()
        e.wait_lg(tok[f])
        for rt in range(2):
            c = v(acc(ct, rt), 4) if f >= 9 else 'v[108:111]' if ct < 4 else 'v[104:107]' if ct == 4 else '0'
            e('v_mfma_f32_16x16x32_bf16 %s, %s, %s, %s' % (v(acc(ct, rt), 4), a(16 * p + 8 * s_ + 4 * rt, 4), v(RING + 4 * (f % NR), 4), c))
            h = (len(it) + 1) // 2
            for x in (it[:h] if rt == 0 else it[h:]): x()
        tok[f + D] = e.lg()
    stamp(4)
    e('s_lshl_b32 s32, s24, 13\ns_add_u32 s32, s32, %d\nv_lshl_add_u32 v4, v1, 4, s32' % SCR)
    e('s_lshl_b32 s32, s24, 12\nv_lshl_add_u32 v5, v1, 4, s32')
    for t in range(5):
        o = acc(t, 0) if t < 4 else 96
        for x in phi_tile([acc(t, 0) + 2 * k for k in range(4)], [o + k for k in range(4)], 80, False): x()
        put(t, o)
        o = acc(4 + t, 0) if t else 100
        for k in range(4): e('v_cvt_pk_bf16_f32 %s, %s, %s' % (v(o + k), v(acc(4 + t, 0) + 2 * k), v(acc(4 + t, 0) + 2 * k + 1)))
        put(5 + t, o)
    e('v_add_u32 v6, %d, v7' % (WQ_HI - WQ_LO))
    e('v_mov_b32 v5, %d' % LCNT)
    e('s_waitcnt lgkmcnt(0)')
    stamp(5)
    e('s_barrier')
    def gemm144(where, c0, G, ring, hook=None, xs=lambda ks, rt: a(8 * ks + 4 * rt, 4)):
        RG, NG, DG = ring
        tk = {}
        def iss(f, h):
            ks, ct = G[f]
            ad, off = where(ks)
            e('ds_read_b64_tr_b16 %s, %s offset:%d' % (v(RG + 4 * (f % NG) + 2 * h, 2), ad, off + 144 * h + 32 * ct))
            tk[f] = e.lg()
        for f in range(DG): iss(f, 0); iss(f, 1)
        for f, (ks, ct) in enumerate(G):
            if hook: hook(f, ks, ct, 0)
            e.wait_lg(tk[f])
            for rt in range(2):
                e('v_mfma_f32_16x16x32_bf16 %s, %s, %s, %s' % (v(acc(ct, rt), 4), v(RG + 4 * (f % NG), 4), xs(ks, rt), v(acc(ct, rt), 4) if ks else c0))
                if f + DG < len(G): iss(f + DG, rt)
                if hook: hook(f, ks, ct, 1 + rt)
    PQ = 48
    def phi_q(t, plain): return phi_tile([acc(t, k >> 1) + 2 * (k & 1) for k in range(4)], [PQ + 10 * (k >> 1) + 2 * t + (k & 1) for k in range(4)], 92 if plain else 68, plain)
    NQ = int(opts.get('nq', 5))
    rest = []
    def qhook(f, ks, ct, ph):
        if opts.get('qst') and ph == 0 and f in (1, 20, 45, 70): stamp({1: 0, 20: 2, 45: 13, 70: 15}[f])
        if f == 40 and ph == 1: e('ds_read_b32 v92, v5 offset:4')
        if f == 54 and ph == 0:
            e('s_mov_b32 s44, %d' % SPIN)
            e.label('L_b_wq')
            e('v_cmp_gt_u32 vcc, 4, v92')
            e('s_cbranch_vccz L_b_wqok')
            e('ds_read_b32 v92, v5 offset:4')
            e.nlg -= 1
            e('s_waitcnt lgkmcnt(0)')
            e('s_sub_u32 s44, s44, 1')
            e('s_cbranch_scc0 L_b_wq')
            e.label('L_b_wqok')
        if f == 18 * NQ + 1 and ph == 0:
            for t in range(NQ): rest.extend(phi_q(t, True))
        if ph and rest: rest.pop(0)()
    gemm144(lambda ks: ('v7', wq_base(ks) - WQ_LO) if ks < 15 else ('v6', wq_base(ks) - WQ_HI), 'v[108:111]',
            [(ks, ct) for ks in range(18) for ct in range(NQ)] + [(ks, ct) for ks in range(18) for ct in range(NQ, 5)], (60, 8, 5) if opts.get('qring') else (68, 6, 4), qhook)
    stamp(6)
    for x in rest: x()
    for t in range(NQ if NQ < 5 else 0, 5):
        for x in phi_q(t, False): x()
    DEN = 68
    e('v_lshlrev_b32 v4, 3, v1')
    e('v_add_u32 v4, %d, v4' % IMG)
    stamp(7)
    e('s_barrier')
    stamp(8)
    t0 = e.lg()
    for pl in list(range(13, 18)) + list(range(13)): e('ds_read_b64 %s, v4 offset:%d' % (a(2 * pl, 2), 512 * pl))
    def mm(d, pl, dt, n, rt, c):
        e('v_mfma_f32_16x16x%d_bf16 %s, %s, %s, %s' % (16 * n, v(d, 4), a(2 * pl, 2 * n), v(PQ + 10 * rt + 2 * dt, 2 * n), c))
    e.wait_lg(t0 + 5)
    for pl, dt, n in ((13, 0, 2), (15, 2, 2), (17, 4, 1)):
        for rt in range(2): mm(DEN + 4 * rt, pl, dt, n, rt, v(DEN + 4 * rt, 4) if dt else 'v[108:111]')
    OUT = PQ
    def scale(rt):
        i = DEN + 4 * rt; t = 76 + 4 * rt; o = OUT + 10 * rt
        pre = [lambda k=k: e('v_rcp_f32 %s, %s' % (v(i + k), v(i + k))) for k in range(4)]
        pre += [lambda: e('v_cndmask_b32 %s, %s, %s, s[42:43]' % (v(t), v(i + 1), v(i))),
                lambda: e('v_cndmask_b32 %s, %s, %s, s[40:41]' % (v(t + 1), v(i + 1), v(i))),
                lambda: e('v_cndmask_b32 %s, %s, %s, s[42:43]' % (v(t + 2), v(i + 2), v(i + 1))),
                lambda: e('v_cndmask_b32 %s, %s, %s, s[42:43]' % (v(t + 3), v(i + 3), v(i + 2)))]
        sc = {0: (i, i), 1: (t, t + 1), 2: (t + 2, t + 2), 3: (i + 2, t + 3), 4: (i + 3, i + 3)}
        st = []
        for u in (0, 4, 1, 2, 3):
            for k in range(2):
                f_ = sc[u][k]
                st.append(lambda u=u, k=k, f_=f_: e('v_pk_mul_f32 %s, %s, %s op_sel:[0,%d] op_sel_hi:[1,%d]' % (v(acc(u, rt) + 2 * k, 2), v(acc(u, rt) + 2 * k, 2), v(f_ & ~1, 2), f_ & 1, f_ & 1)))
        for u in (0, 4, 1, 2, 3):
            d = o + (2 * (u - 1) if u else 8)
            for k in range(2): st.append(lambda u=u, k=k, d=d: e('v_cvt_pk_bf16_f32 %s, %s, %s' % (v(d + k), v(acc(u, rt) + 2 * k), v(acc(u, rt) + 2 * k + 1))))
        for d in (o, o + 4, o + 8): st.append(lambda d=d: e('v_min_u32 %s, -2, %s' % (v(d), v(d))))
        st.append(lambda: e('buffer_store_dwordx4 %s, %s, s[16:19], s20 offen sc1' % (v(o, 4), v(105 + rt))))
        st.append(lambda: e('buffer_store_dwordx4 %s, %s, s[16:19], s20 offen offset:1024 sc1' % (v(o + 4, 4), v(105 + rt))))
        return pre, st
    (p0, s0), (p1, s1) = scale(0), scale(1)
    fill = p0 + p1
    e.wait_lg(t0 + 18)
    for rt in range(2):
        ops = [(u, 2 * u + first, first, 2, '0') for u, first in enumerate((0, 0, 1, 2, 3))]
        ops = [ops[1], ops[2], ops[3], ops[0], ops[4]] + [(u, 2 * u + first + 2, first + 2, 1, None) for u, first in ((1, 0), (2, 1), (3, 2))]
        for k, (u, pl, dt, n, c) in enumerate(ops):
            mm(acc(u, rt), pl, dt, n, rt, c or v(acc(u, rt), 4))
            if rt or k >= 2:
                for x in fill[:2]: x()
                fill = fill[2:]
    for x in fill + s0 + s1: x()
    e('s_mov_b32 exec_lo, 0')
    e('buffer_store_dwordx2 %s, v104, s[16:19], 0 offen sc1' % v(OUT + 8, 2))
    e('buffer_store_dwordx2 %s, v104, s[16:19], s21 offen sc1' % v(OUT + 18, 2))
    e('s_mov_b32 exec_lo, -1')
    stamp(9)
    e('v_subrev_u32 v7, %d, v7' % WQ_LO)
    e('v_add_u32 v6, %d, v7' % SCR)
    e('s_mov_b32 s39, 0')
    e('s_movk_i32 s23, %d' % (16 * 1024))
    e('s_barrier')
    e.label('L_b_gemm2')
    otok = {}
    AHEAD = int(opts.get('ahead', 4))
    osrc = lambda ks, rt: v(OUT + 10 * rt + 4 * ks, 4) if ks < 2 else a(8 * ks + 4 * rt, 4)
    def oload(j, rt):
        if j < 16 and rt == 0:
            e('s_add_u32 s22, s22, 1024')
            e('s_and_b32 s22, s22, 0x3fff')
        e('buffer_load_dwordx4 %s, %s, s[16:19], %s offen%s sc1' % (osrc(j, rt), v(105 + rt), 's22' if j < 16 else 's23', ' offset:1024' if j == 17 else ''))
        otok[j] = e.vm()
    pend = [(j, rt) for j in range(2, 18) for rt in range(2)]
    tail = []
    def put_out(ct):
        r = []
        for rt in range(2):
            d = 48 + 4 * ct + 2 * rt
            for k in range(2): r.append(lambda d=d, k=k, rt=rt: e('v_cvt_pk_bf16_f32 %s, %s, %s' % (v(d + k), v(acc(ct, rt) + 2 * k), v(acc(ct, rt) + 2 * k + 1))))
            r.append(lambda d=d, rt=rt: e('ds_write_b64 v4, %s offset:%d' % (v(d, 2), 2304 * rt + 32 * ct)))
        return r
    def hook(f, ks, ct, ph):
        if f == 10 and ph == 0:
            e('s_lshl_b32 s32, s25, 7')
            e('s_lshl_b32 s33, s24, 5')
            e('s_add_u32 s32, s32, s33')
            e('s_mul_i32 s32, s32, 2304')
            e('s_mul_i32 s33, s26, 144')
            e('s_add_u32 s32, s32, s33')
            e('s_add_u32 s32, s32, 1152')
            for j in range(5):
                e('v_add_u32 v48, %d, v1' % (64 * j))
                div_small(e, 49, 50, 48, 9, 51)
                e('v_mul_u32_u24 v49, 2304, v49')
                e('v_lshl_add_u32 v49, v50, 4, v49')
                e('v_add_u32 %s, s32, v49' % v(108 + j if j < 4 else 104))
            e('s_mul_i32 s33, s24, 4608')
            e('s_add_u32 s33, s33, %d' % STG)
            e('v_mul_u32_u24 v4, 144, v2')
            e('v_lshl_add_u32 v4, v3, 3, v4')
            e('v_add_u32 v4, s33, v4')
            e('v_lshl_add_u32 v5, v1, 4, s33')
            e('s_mov_b32 s44, %d' % SPIN)
            e('s_add_u32 s22, s20, 1024')
            e('v_lshlrev_b32 v107, 8, v1')
            e('v_lshlrev_b32 v48, 4, v1')
            e('v_sub_u32 v107, v107, v48')
            e('v_add_u32 v107, v107, v106')
            for _ in range(int(opts.get('pdelay', 0))): e('s_nop 15')
            e('s_mov_b64 exec, 0xff')
            e.label('L_b_probe')
            e('buffer_load_dword v68, v107, s[16:19], s23 offen offset:248 sc1')
            e('s_sub_u32 s44, s44, 1')
            e('s_cbranch_scc1 L_b_probed')
            e('s_waitcnt vmcnt(0)')
            e('v_cmp_eq_u32 vcc, -1, v68')
            e('s_cbranch_vccnz L_b_probe')
            e.label('L_b_probed')
            e('s_mov_b64 exec, -1')
            if opts.get('count'): e('s_sub_u32 s92, s62, s44\ns_add_u32 s92, s92, %d' % SPIN)
            stamp(10)
            e.nvm = 0
            for _ in range(2 * AHEAD): oload(*pend.pop(0))
            stamp(11)
        if ct == 0 and ph == 0 and 2 <= ks: e.wait_vm(otok[ks])
        if ph == 1 and pend and f >= 10 and ct in ((0, 1, 2, 3) if f < 25 else (1, 3)): oload(*pend.pop(0))
        if ks == 17:
            if ph == 0 and 2 <= ct: tail.extend(put_out(ct - 2))
            if ph:
                for x in tail[:2]: x()
                del tail[:2]
    gemm144(lambda ks: ('v6', wo_base(ks) - SCR) if 6 <= ks < 13 else ('v7', wo_base(ks)), '0',
            [(ks, ct) for ks in range(18) for ct in range(5)], (72, 8, 5), hook, osrc)
    stamp(12)
    for x in tail + put_out(3): x()
    e('s_cmp_lg_u32 s39, 0')
    e('s_cbranch_scc1 L_b_store')
    e('v_cmp_u_f32 vcc, %s, %s' % (v(acc(0, 0)), v(acc(0, 1))))
    e('s_cbranch_vccnz L_b_strict')
    e.label('L_b_store')
    e('s_mov_b32 exec_hi, 0')
    for x in put_out(4): x()
    e('s_mov_b32 exec_hi, -1')
    t0 = e.lg()
    for j in range(5): e('ds_read_b128 %s, v5 offset:%d' % (v(8 + 4 * j, 4), 1024 * j))
    for j in range(5):
        e.wait_lg(t0 + j + 1)
        if j == 4: e('s_mov_b32 exec_hi, 0')
        e('global_store_dwordx4 %s, %s, s[10:11] %s' % (v(108 + j if j < 4 else 104), v(8 + 4 * j, 4), opts.get('ost', '')))
    e('s_mov_b32 exec_hi, -1')
    if not opts.get('qst'): stamp(13)
    e('s_endpgm')
    e.section('strict', False)
    e.label('L_b_strict')
    e('s_mov_b32 s39, 1')
    e('s_mov_b32 s44, %d' % SPIN)
    e.label('L_b_strict1')
    for ks in range(18):
        e('s_movk_i32 s22, %d' % (1024 * ks))
        for rt in range(2): e('buffer_load_dwordx4 %s, %s, s[16:19], s22 offen sc1' % (a(8 * ks + 4 * rt, 4), v(105 + rt)))
    for rt in range(2):
        for k in range(2): e('buffer_load_dwordx4 %s, %s, s[16:19], s20 offen offset:%d sc1' % (v(OUT + 10 * rt + 4 * k, 4), v(105 + rt), 1024 * k))
    e('s_waitcnt vmcnt(0)')
    e('s_sub_u32 s44, s44, 1')
    e('s_cbranch_scc1 L_b_gemm2')
    e('s_mov_b64 s[32:33], 0')
    for k in range(72):
        if (k & 1) == 0 or k >= 64:
            e('v_accvgpr_read_b32 v68, %s' % a(2 * k))
            e('v_cmp_eq_u32 vcc, -1, v68')
            e('s_or_b64 s[32:33], s[32:33], vcc')
    e('s_cmp_lg_u64 s[32:33], 0')
    e('s_cbranch_scc1 L_b_strict1')
    e('s_branch L_b_gemm2')

def loader(e, stamp, opts):
    e.nvm = 0; e.nlg = 0
    if int(opts.get('lp0', 2)): e('s_setprio %d' % int(opts.get('lp0', 2)))
    e('s_sub_u32 s39, s24, 4')
    e('v_lshrrev_b32 v4, 3, v1')
    e('v_and_b32 v5, 7, v1')
    e('v_xor_b32 v5, v5, v4')
    e('s_lshl_b32 s32, s25, 7')
    e('s_lshl_b32 s33, s39, 5')
    e('s_add_u32 s32, s32, s33')
    e('v_add_u32 v4, s32, v4')
    e('v_mul_u32_u24 v4, 1152, v4')
    e('v_lshl_add_u32 v8, v5, 4, v4')
    e('s_lshr_b32 s32, s39, 1')
    e('s_lshl_b32 s32, s32, 5')
    e('s_and_b32 s33, s39, 1')
    e('s_lshl_b32 s33, s33, 2')
    e('s_add_u32 s32, s32, s33')
    e('s_mul_i32 s40, s26, 144')
    e('s_mul_i32 s32, s32, 3456')
    e('s_add_u32 s32, s32, s40')
    e('s_add_u32 s32, s32, 1152')
    def woff(j):
        e('v_add_u32 v4, %d, v1' % (64 * j))
        div_small(e, 5, 6, 4, 18, 7)
        e('v_and_b32 v4, 12, v5')
        e('v_add_u32 v4, v4, v5')
        e('v_mul_u32_u24 v4, 3456, v4')
        e('v_cmp_lt_u32 vcc, 8, v6')
        e('v_lshl_add_u32 v4, v6, 4, v4')
        e('v_add_u32 v4, s32, v4')
        e('v_add_u32 v5, 1008, v4')
        e('v_cndmask_b32 %s, v4, v5, vcc' % v(9 + j))
    e('s_lshl_b32 s41, s39, 12')
    e('s_mul_i32 s42, s39, 4608')
    e('s_add_u32 s42, s42, %d' % WOFF)
    e('s_mov_b32 s43, s27')
    e('s_mov_b32 s22, %d\ns_mov_b32 s23, 0x20000' % (576 * 3456))
    e('s_mov_b32 s30, %d\ns_mov_b32 s31, 0x20000' % (576 * 1152))
    e('s_waitcnt lgkmcnt(0)')
    e('s_mov_b64 s[16:17], s[46:47]\ns_mov_b32 s18, %d\ns_mov_b32 s19, 0x20000' % (2048 * 1152))
    e('s_mov_b64 s[20:21], s[48:49]\ns_mov_b64 s[28:29], s[50:51]\ns_mov_b64 s[12:13], s[54:55]\ns_mov_b64 s[14:15], s[56:57]')

    main = e; sd = Asm(); e = sd
    marks = {}
    e('s_lshl_b32 s32, s26, 2')
    e('s_add_u32 s32, s32, s39')
    e('s_mul_i32 s32, s32, 12288')
    e('s_add_u32 s32, s32, %d' % KVP)
    e('v_lshl_add_u32 v15, v1, 4, s32')
    e('s_lshl_b32 s33, s25, 8')
    e('s_add_u32 s32, s32, s33')
    e('v_lshlrev_b32 v14, 4, v2')
    e('v_lshl_add_u32 v14, v3, 12, v14')
    e('v_add_u32 v14, s32, v14')
    marks['clear'] = len(sd.L)
    e('s_mul_i32 s32, s39, 2304')
    e('s_add_u32 s32, s32, %d' % IMG)
    e('v_lshl_add_u32 v4, v1, 4, s32')
    for k in range(4): e('v_mov_b32 %s, 0' % v(40 + k))
    e('ds_write_b128 v4, v[40:43]')
    e('ds_write_b128 v4, v[40:43] offset:1024')
    e('v_lshl_add_u32 v4, v1, 2, s32')
    e('ds_write_b32 v4, v40 offset:2048')
    e('v_mov_b32 v55, %d' % LCNT)
    e('ds_write_b32 v55, v40')
    for j in range(5):
        e('v_add_u32 v4, %d, v1' % (64 * j))
        div_small(e, 5, 6, 4, 9, 7)
        e('v_lshlrev_b32 v6, 4, v6')
        e('v_add_u32 v6, s40, v6')
        e('v_lshrrev_b32 v4, 3, v5')
        e('v_and_b32 v7, 1, v5')
        e('v_bfe_u32 v5, v5, 1, 2')
        e('v_lshl_add_u32 v19, v7, 2, v5')
        e('v_lshl_add_u32 v39, v4, 3, v19')
        e('v_mul_u32_u24 v39, 3456, v39')
        e('v_add_u32 %s, v39, v6' % v(24 + j))
        e('v_lshl_add_u32 v39, v4, 2, v5')
        e('v_lshl_add_u32 v39, v7, 4, v39')
        e('v_mul_u32_u24 v39, 1152, v39')
        e('v_add_u32 %s, v39, v6' % v(29 + j))
        e('v_mul_u32_u24 v39, 72, v4')
        e('v_add_u32 v39, v39, v19')
        e('v_mul_u32_u24 v39, 1152, v39')
        e('v_add_u32 %s, v39, v6' % v(34 + j))
    e('s_lshr_b32 s45, s39, 1')
    e('s_lshl_b32 s46, s39, 1')
    e('s_lshl_b32 s47, s39, 10')
    e('s_add_u32 s47, s47, %d' % CST)
    e('s_add_u32 s32, s47, 768')
    e('v_lshl_add_u32 v44, v2, 3, s32')
    for i in range(2):
        e('v_add_u32 v4, %d, v3' % (4 * i))
        e('v_subrev_u32 v5, s45, v4')
        e('v_cmp_gt_u32 s[48:49], 5, v5')
        for j in range(2):
            e('v_add_u32 v6, %d, v2' % (16 * j - 8))
            e('v_subrev_u32 v6, s46, v6')
            e('v_cmp_gt_u32 vcc, 18, v6')
            e('v_mul_u32_u24 v6, 5, v6')
            e('v_add_u32 v6, v6, v5')
            e('s_and_b64 vcc, vcc, s[48:49]')
            e('v_lshl_add_u32 v6, v6, 3, s47')
            e('v_cndmask_b32 %s, v44, v6, vcc' % v(45 + 2 * i + j))
        e('v_cmp_eq_u32 vcc, 0, v2')
        e('v_add_u32 v6, 90, v5')
        e('v_lshl_add_u32 v6, v6, 3, s47')
        e('s_and_b64 vcc, vcc, s[48:49]')
        e('v_cndmask_b32 %s, %s, v6, vcc' % (v(45 + 2 * i), v(45 + 2 * i)))
    e('s_mul_i32 s32, s39, 18')
    e('s_add_u32 s32, s32, 8')
    e('s_lshl_b32 s33, s39, 2')
    e('s_add_u32 s33, s33, s45')
    e('v_cmp_gt_u32 s[48:49], 2, v3')
    for b in range(3):
        e('v_lshl_add_u32 v4, v2, 1, v3')
        e('v_add_u32 v4, %d, v4' % (32 * b))
        div_small(e, 5, 6, 4, 5, 7)
        e('v_add_u32 v6, s33, v6')
        e('v_add_u32 v7, s32, v5')
        e('v_lshrrev_b32 v19, 4, v7')
        e('v_and_b32 v7, 15, v7')
        e('v_lshrrev_b32 v39, 2, v6')
        e('v_and_b32 v6, 3, v6')
        e('v_lshl_add_u32 v19, v19, 1, v39')
        if b == 2:
            e('v_cmp_eq_u32 vcc, 18, v5')
            e('v_add_u32 v39, 13, v39')
            e('v_cndmask_b32 v19, v19, v39, vcc')
            e('v_mov_b32 v39, s39')
            e('v_cndmask_b32 v7, v7, v39, vcc')
        e('v_lshl_add_u32 v7, v6, 4, v7')
        e('v_lshlrev_b32 v7, 3, v7')
        e('v_lshl_add_u32 v7, v19, 9, v7')
        e('v_add_u32 v7, %d, v7' % IMG)
        if b == 2:
            e('s_and_b64 vcc, vcc, s[48:49]')
            e('v_cndmask_b32 v54, v44, v7, vcc')
            e('v_cmp_gt_u32 vcc, 19, v5')
            e('s_and_b64 s[48:49], vcc, s[48:49]')
        e('v_cndmask_b32 %s, v44, v7, s[48:49]' % v(51 + b))
    e('v_and_b32 v4, 1, v2')
    e('v_lshlrev_b32 v4, 4, v4')
    e('v_mov_b32 v5, 0x3f80')
    e('v_lshlrev_b32 v4, v4, v5')
    e('v_lshrrev_b32 v5, 1, v2')
    for k in range(4):
        e('v_cmp_eq_u32 vcc, %d, v5' % k)
        e('v_cndmask_b32 %s, 0, v4, vcc' % v(56 + k))
    for k in range(4): e('v_mov_b32 %s, 0x3f803f80' % v(8 + 96 + k))
    e('ds_write_b128 v55, v[104:107] offset:16')
    e('ds_write_b128 v55, v[40:43] offset:32')
    e('ds_write_b32 v55, v40 offset:4')
    for k, df in enumerate((0, 1, 5, 6)):
        e('s_add_u32 s32, s39, %d' % df)
        e('s_lshl_b32 s33, s32, 10')
        e('s_add_u32 s34, s33, %d' % SCR)
        e('s_sub_u32 s33, s33, 8192')
        e('s_movk_i32 s48, 4096')
        sd.L.append('s_cmp_lt_u32 s32, 8\ns_cselect_b32 s33, s34, s33\ns_cselect_b32 s48, 8192, s48')
        e('v_lshl_add_u32 %s, v1, 4, s33' % v(64 + k))
        e('v_mov_b32 %s, s48' % v(60 + k))
        if k < 3:
            if k == 0: e('v_cmp_gt_u32 vcc, s46, v2')
            if k == 1:
                e('s_add_u32 s32, s46, 2')
                e('v_cmp_le_u32 vcc, s32, v2')
            if k == 2: e('v_cmp_eq_u32 vcc, 0, v2')
            e('v_mov_b32 v4, %d' % (LCNT + (16 if k == 2 else 32)))
            e('v_cndmask_b32 %s, %s, v4, vcc' % (v(64 + k), v(64 + k)))
            e('v_cndmask_b32 %s, %s, v40, vcc' % (v(60 + k), v(60 + k)))
    e('s_mul_i32 s58, s39, %d' % (32 * 3456))
    e('v_and_b32 v19, 3, v1')
    e('v_lshlrev_b32 v19, 6, v19')
    e = main
    side = list(sd.L); done = [0]
    def run_side(n=None, upto=None):
        stop = upto if upto is not None else min(len(side), done[0] + n)
        while done[0] < stop:
            e(side[done[0]]); done[0] += 1

    ctok = {}
    def chunk(p, per, mid=None):
        sl = SLOT * (p % 4)
        e('s_lshl_b32 s3, s43, 7')
        e('s_mul_i32 s35, s43, %d' % (64 * 3456))
        for j in range(4):
            e('s_add_u32 m0, s41, %d' % (sl + 1024 * j))
            if j: e('s_add_u32 s3, s3, 9216')
            e('buffer_load_dwordx4 v8, s[16:19], s3 offen lds')
            run_side(per)
        for j in range(5):
            if mid: mid(j)
            e('s_add_u32 m0, s42, %d' % (sl + 1024 * j))
            if j == 4: e('s_mov_b32 exec_hi, 0')
            e('buffer_load_dwordx4 %s, s[20:23], s35 offen lds' % v(9 + j))
            if j < 4: run_side(per)
        e('s_mov_b32 exec_hi, -1')
        e('s_add_u32 s43, s43, 1')
        e('s_cmp_eq_u32 s43, 9')
        e('s_cselect_b32 s43, 0, s43')
        ctok[p] = e.vm()
    stamp(1)
    chunk(0, 0, woff)
    early = int(opts.get('early', 170))
    if early:
        e.section('loader')
        run_side(early)
    chunk(1, 0)
    stamp(0)
    if not early: e.section('loader')
    def tile144(srd, vregs, soff):
        for j in range(5):
            e('s_add_u32 m0, s34, %d' % (1024 * j))
            if j == 4: e('s_mov_b32 exec_hi, 0')
            e('buffer_load_dwordx4 %s, %s, %s offen lds' % (v(vregs + j), srd, soff))
        e('s_mov_b32 exec_hi, -1')
    def wq_group(lo, n):
        for rnd in range((n + 3) // 4):
            b0 = lo + 4 * rnd
            if int(opts.get('rot', 0)) == 0 and b0 + 3 < 15:
                e('s_add_u32 s32, s58, %d' % (b0 * 32 * 3456))
                e('s_add_u32 s34, s42, %d' % (WQ_LO + 4608 * b0 - WOFF))
                tile144('s[20:23]', 24, 's32')
                continue
            e('s_add_u32 s35, s39, %d' % (lo + 4 * rnd))
            if 4 * rnd + 4 > n: e('s_min_u32 s35, s35, %d' % (lo + n - 1))
            e('s_lshr_b32 s32, s35, 1')
            e('s_add_u32 s32, s32, s27')
            e('s_sub_u32 s33, s32, 9')
            e('s_cmp_ge_u32 s32, 9')
            e('s_cselect_b32 s32, s33, s32')
            e('s_lshl_b32 s32, s32, 1')
            e('s_and_b32 s33, s35, 1')
            e('s_add_u32 s32, s32, s33')
            e('s_mul_i32 s32, s32, %d' % (32 * 3456))
            e('s_mul_i32 s34, s35, 4608')
            if lo + 4 * rnd + 3 >= 15:
                e('s_add_u32 s33, s34, %d' % (WQ_HI - WQ_LO - 15 * 4608))
                e('s_cmp_ge_u32 s35, 15')
                e('s_cselect_b32 s34, s33, s34')
            e('s_add_u32 s34, s34, %d' % WQ_LO)
            tile144('s[20:23]', 24, 's32')
    for p in range(9):
        e.wait_vm(ctok[p])
        e('s_barrier')
        if p in (1, 2, 3, 5, 6): stamp({1: 11, 2: 12, 3: 13, 5: 14, 6: 15}[p])
        if p == 0:
            stamp(2)
        if 't' in opts.get('horder', '') and p == int(opts.get('trig', 2)):
            e('s_or_b32 s3, s39, s2')
            e('s_cmp_ge_u32 s3, 8')
            e('s_cbranch_scc1 L_b_notrig')
            e('s_cmp_lg_u32 s39, 0')
            e('s_cbranch_scc1 L_b_notrig')
            e('s_lshl_b32 s3, s2, 2')
            e('v_mov_b32 v20, s3')
            e('v_mov_b32 v21, 1')
            e('s_mov_b64 exec, 1')
            e('global_store_dword v20, v21, s[12:13] offset:16 sc1')
            e('s_mov_b64 exec, -1')
            e.nvm -= 1
            e.label('L_b_notrig')
        if p <= 6: chunk(p + 2, int(opts.get('per', 3)))
        if p == 6: run_side(upto=len(side))
        if p == 7: wq_group(0, 4)
        if p == 8:
            if opts.get('low8'): e('s_setprio 0')
            wq_group(4, 8)
            e('s_cmp_lg_u32 s39, 0')
            e('s_cbranch_scc1 L_b_nocnt')
            e('s_mov_b64 exec, 15')
            e('global_load_dword v20, v19, s[12:13] sc1')
            e('s_mov_b64 exec, -1')
            e.label('L_b_nocnt')
            t_wq = e.vm()
            wq_group(12, 6)
    stamp(3)
    e.wait_vm(t_wq)
    e('s_cmp_lg_u32 s39, 0')
    e('s_cbranch_scc1 L_b_cntdone')
    e('s_mov_b64 exec, 15')
    e('v_cmp_gt_u32 vcc, 14, v20')
    e('s_cbranch_vccz L_b_cntdone')
    e('s_mov_b32 s44, %d' % SPIN)
    e.label('L_b_cnt')
    e('global_load_dword v20, v19, s[12:13] sc1')
    e('s_sub_u32 s44, s44, 1')
    e('s_cbranch_scc1 L_b_cntdone')
    e('s_waitcnt vmcnt(0)')
    e('v_cmp_gt_u32 vcc, 14, v20')
    e('s_cbranch_vccnz L_b_cnt')
    e.label('L_b_cntdone')
    e('s_mov_b64 exec, -1')
    e('s_waitcnt lgkmcnt(0)')
    stamp(4)
    e('s_barrier')
    stamp(5)
    lp = opts.get('lpos', 'a')
    if lp == 'a': e('s_setprio %d' % int(opts.get('lprio', 2)))
    if lp == 'c': e('s_nop 15')
    tk = []
    for w in range(4):
        for k in range(4):
            e('ds_read_b128 %s, %s' % (a(16 * w + 4 * k, 4), v(64 + k)))
            if w < 3: e('v_add_u32 %s, %s, %s' % (v(64 + k), v(60 + k), v(64 + k)))
        tk.append(e.lg())
    if lp != 'a': e('s_setprio %d' % int(opts.get('lprio', 2)))
    e('v_mov_b32 v4, s47')
    e('v_mov_b32 v5, 1')
    e('ds_write_b64 v4, v[40:41] offset:760')
    DD = 68
    for w in range(4):
        e.wait_lg(tk[w])
        if w == 3:
            e('s_mov_b64 exec, 1')
            e('ds_add_u32 v55, v5')
            e('s_mov_b64 exec, -1')
        for i in range(2):
            for j in range(2):
                d = DD + 8 * i + 4 * j
                e('v_mfma_f32_16x16x32_bf16 %s, %s, %s, %s' % (v(d, 4), a(16 * w + 4 * i, 4), a(16 * w + 8 + 4 * j, 4), v(d, 4) if w else '0'))
    e('v_lshl_add_u32 v4, v1, 4, s47')
    e('v_add_u32 v16, 4096, v15')
    e('v_add_u32 v17, 8192, v15')
    for i in range(2):
        for j in range(2):
            d = DD + 8 * i + 4 * j
            o = 92 + 2 * (2 * i + j)
            for k in range(2): e('v_cvt_pk_bf16_f32 %s, %s, %s' % (v(o + k), v(d + 2 * k), v(d + 2 * k + 1)))
            e('ds_write_b64 %s, %s' % (v(45 + 2 * i + j), v(o, 2)))
    e('ds_read_b128 v[68:71], v4')
    e('s_waitcnt vmcnt(0)')
    e('s_mov_b64 exec, 1')
    e('ds_add_u32 v55, v5 offset:4')
    e('s_mov_b64 exec, -1')
    e('s_waitcnt lgkmcnt(1)')
    e('v_min_u32 v68, -2, v68')
    e('s_mov_b32 exec_hi, 0xffff')
    e('global_store_dwordx4 v14, v[68:71], s[14:15] sc1')
    e('s_mov_b32 exec_hi, -1')
    if opts.get('lowmid'): e('s_setprio 0')
    stamp(6)
    def wo_block(first, last):
        e('s_add_u32 s35, s39, %d' % first)
        if first + 3 > last: e('s_min_u32 s35, s35, %d' % last)
        e('s_lshr_b32 s32, s35, 1')
        e('s_add_u32 s32, s32, s26')
        e('s_and_b32 s32, s32, 7')
        e('s_mul_i32 s32, s32, 72')
        e('s_and_b32 s33, s35, 1')
        e('s_lshl_b32 s33, s33, 5')
        e('s_add_u32 s32, s32, s33')
        e('s_add_u32 s32, s32, 8')
        e('s_mul_i32 s32, s32, 1152')
        e('s_mul_i32 s34, s35, 4608')
        if last < 13:
            e('s_add_u32 s33, s34, %d' % (SCR - 6 * 4608))
            e('s_cmp_ge_u32 s35, 6')
            e('s_cselect_b32 s34, s33, s34')
        else:
            e('s_add_u32 s34, s34, %d' % (WQ_LO - 13 * 4608))
        tile144('s[28:31]', 29, 's32')
    e('s_mov_b32 s44, %d' % SPIN)
    e.label('L_b_lcnt')
    e('ds_read_b32 v4, v55')
    e('s_sub_u32 s44, s44, 1')
    e('s_cbranch_scc1 L_b_lcntdone')
    e('s_waitcnt lgkmcnt(0)')
    e('v_cmp_gt_u32 vcc, 4, v4')
    e('s_cbranch_vccnz L_b_lcnt')
    e.label('L_b_lcntdone')
    e('s_waitcnt lgkmcnt(0)')
    nearly = int(opts.get('woearly', 3))
    for k in range(nearly): wo_block(4 * k, 12)
    e('v_lshlrev_b32 v4, 8, v2')
    e('v_lshlrev_b32 v6, 4, v1')
    e('v_sub_u32 v5, v17, v6')
    e('v_add_u32 v4, v4, v5')
    e('s_mov_b32 s44, %d' % SPIN)
    stamp(7)
    e.label('L_b_gather')
    X = 64
    for b in range(3):
        for i in range(4): e('global_load_dwordx4 %s, %s, s[14:15] offset:%d sc1' % (v(X + 16 * b + 4 * i, 4), v(15 + b), 1024 * i))
    e('s_mov_b64 s[32:33], 0')
    for k in range(12):
        if k % 4 == 0: e('s_waitcnt vmcnt(%d)' % (8 - k))
        e('v_cmp_eq_u32 vcc, -1, %s' % v(X + 4 * k))
        e('s_or_b64 s[32:33], s[32:33], vcc')
    e('s_cmp_eq_u64 s[32:33], 0')
    e('s_cbranch_scc1 L_b_gathered')
    e('s_mov_b64 exec, 0xffff')
    e.label('L_b_kvprobe')
    e('global_load_dword v5, v4, s[14:15] sc1')
    e('s_sub_u32 s44, s44, 1')
    e('s_cbranch_scc1 L_b_gathered')
    e('s_waitcnt vmcnt(0)')
    e('v_cmp_eq_u32 vcc, -1, v5')
    e('s_cbranch_vccnz L_b_kvprobe')
    e('s_mov_b64 exec, -1')
    e('s_branch L_b_gather')
    e.label('L_b_gathered')
    e('s_mov_b64 exec, -1')
    stamp(8)
    for i in range(4):
        for b in range(3):
            e('v_mfma_f32_16x16x32_bf16 %s, v[56:59], %s, %s' % (v(8 + 4 * b, 4), v(X + 16 * b + 4 * i, 4), v(8 + 4 * b, 4) if i else '0'))
    for b in range(3):
        for k in range(2): e('v_cvt_pk_bf16_f32 %s, %s, %s' % (v(20 + 2 * b + k), v(8 + 4 * b + 2 * k), v(8 + 4 * b + 2 * k + 1)))
        e('ds_write_b64 %s, %s' % (v(51 + b), v(20 + 2 * b, 2)))
    for k in range(1, 4): e('ds_write_b64 v54, v[24:25] offset:%d' % (32 * k))
    if opts.get('lowend'): e('s_setprio 0')
    e('s_waitcnt lgkmcnt(0)')
    stamp(9)
    e('s_barrier')
    for k in range(nearly, 3): wo_block(4 * k, 12)
    e('s_cmp_lg_u32 s39, 0')
    e('s_cbranch_scc1 L_b_wo13')
    wo_block(12, 12)
    e('s_branch L_b_wo16')
    e.label('L_b_wo13')
    wo_block(12, 15)
    e.label('L_b_wo16')
    e('s_cmp_ge_u32 s39, 2')
    e('s_cbranch_scc1 L_b_wodone')
    e('s_mul_i32 s32, s39, %d' % (288 * 1152))
    e('s_mul_i32 s34, s39, 4608')
    e('s_add_u32 s34, s34, %d' % (WQ_LO + 3 * 4608))
    tile144('s[28:31]', 34, 's32')
    e.label('L_b_wodone')
    e('s_waitcnt vmcnt(0)')
    stamp(10)
    e('s_barrier')
    e('s_endpgm')


def role_h(e, opts, stamp=None):
    stamp = stamp or (lambda i: None)
    e.label('L_roleH')
    e('s_getpc_b64 s[32:33]')
    e.label('L_h_pc')
    e('s_sub_u32 s32, s32, L_h_pc-KERNEL_START')
    e('s_subb_u32 s33, s33, 0')
    if int(opts.get('pfq', 0)):
        e('s_and_b32 s26, s24, 3')
        e('s_lshl_b32 s26, s26, 7')
        e('v_lshl_add_u32 v1, v0, 9, s26')
    else:
        e('v_lshlrev_b32 v1, 7, v0')
    e('v_cmp_gt_u32 vcc, KERNEL_END-KERNEL_START, v1')
    e('s_and_saveexec_b64 s[34:35], vcc')
    e('s_cbranch_execz L_h_nocode')
    if int(opts.get('pfcode', 1)): e('global_load_dword v2, v1, s[32:33]')
    e.label('L_h_nocode')
    e('s_mov_b64 exec, s[34:35]')
    e('s_mov_b32 s41, s24')
    e('s_mov_b32 s42, s25')
    e('s_sub_u32 s26, s2, 224')
    e('s_sub_u32 s27, s24, 8')
    e('s_mul_i32 s27, s27, 6')
    e('s_add_u32 s27, s27, s25')
    e('s_add_u32 s27, s27, 30')
    e('s_cmp_ge_u32 s24, 12')
    e('s_cselect_b32 s26, s26, s27')
    e('s_mul_i32 s27, s26, 49152')
    e('v_lshl_add_u32 v4, v0, 4, s27')
    for k in range(4): e('v_mov_b32 %s, -1' % v(8 + k))
    e('s_and_b32 s24, s24, 3')
    e('s_mul_i32 s24, s24, 144')
    e('s_and_b32 s25, s25, 1')
    e('s_lshl_b32 s25, s25, 9')
    for k in range(2):
        e('v_add_u32 v16, %d, v0' % (512 * k))
        e('v_min_u32 v16, 719, v16')
        div_small(e, 5, 6, 16, 5, 7)
        e('v_add_u32 v5, s24, v5')
        e('v_lshl_add_u32 v6, v6, 7, s25')
        e('v_mul_u32_u24 v7, 3456, v5')
        e('v_mul_u32_u24 v5, 1152, v5')
        e('v_add_u32 %s, v7, v6' % v(14 + k))
        e('v_add_u32 %s, v5, v6' % v(12 + k))
    order = opts.get('horder', 'fwGc')
    e('s_waitcnt lgkmcnt(0)')
    for n_, ch in enumerate(order):
        stamp(n_)
        if ch == 'w': e('s_waitcnt vmcnt(0)')
        if ch == 'f': first_touch(e, 's41', 's42', 24, 20)
        if ch == 'u': touch_round(e, 's41', 's42', 24, 20, int(opts.get('u0', 1)), 'h0')
        if ch == 'U': touch_round(e, 's41', 's42', 24, 21, int(opts.get('u0', 1)) + 16, 'h1')
        if ch == 'Q': touch_cols(e, 's41', 's42', 24, 22, 's[48:49]', 3456)
        if ch == 'O': touch_cols(e, 's41', 's42', 24, 23, 's[50:51]', 1152)
        if ch == 'G': first_touch(e, 's41', 's42', 24, 21, 5)
        if ch == 'g':
            e('s_and_b32 s39, s41, 3')
            e('s_add_u32 s39, s39, 5')
            for k in range(3): touch_tiles(e, 0, 's39', 384 * k, 384, 's42', 24, 21 + k)
        if ch == 's':
            e('s_mov_b32 s28, %d' % int(opts.get('hspin', 100)))
            e.label('L_h_spin')
            e('s_sleep 1')
            e('s_sub_u32 s28, s28, 1')
            e('s_cbranch_scc0 L_h_spin')
        if ch == 't':
            e('s_and_b32 s27, s2, 7')
            e('s_lshl_b32 s27, s27, 2')
            e('v_mov_b32 v5, s27')
            e('s_mov_b32 s28, %d' % SPIN)
            e('v_readfirstlane_b32 s29, v0')
            e('s_cmp_lg_u32 s29, 0')
            e('s_cbranch_scc1 L_h_trigd')
            e('s_mov_b64 exec, 1')
            e.label('L_h_trig')
            e('global_load_dword v6, v5, s[54:55] offset:16 sc1')
            e('s_sub_u32 s28, s28, 1')
            e('s_cbranch_scc1 L_h_trigd')
            e('s_waitcnt vmcnt(0)')
            e('v_cmp_eq_u32 vcc, 0, v6')
            e('s_cbranch_vccnz L_h_trig')
            e.label('L_h_trigd')
            e('s_mov_b64 exec, -1')
            e('s_barrier')
        if ch == 'q':
            if int(opts.get('nodup', 1)): e('s_cmp_lt_u32 s41, 12\ns_cbranch_scc1 L_h_noq')
            for k in range(2): e('global_load_dword %s, %s, s[48:49]' % (v(16 + k), v(14 + k)))
            e.label('L_h_noq')
        if ch == 'o':
            for k in range(2): e('global_load_dword %s, %s, s[50:51]' % (v(18 + k), v(12 + k)))
        if ch == 'c':
            for k in range(6):
                e('global_store_dwordx4 v4, v[8:11], s[56:57] sc1')
                if k < 5: e('v_add_u32 v4, 8192, v4')
    e('s_and_b32 s26, s26, 3')
    e('s_lshl_b32 s26, s26, 6')
    e('v_mov_b32 v5, s26')
    e('v_mov_b32 v6, 1')
    e('v_cmp_eq_u32 vcc, 0, v0')
    stamp(8)
    e('s_waitcnt vmcnt(0)')
    stamp(9)
    e('s_barrier')
    e('s_and_saveexec_b64 s[34:35], vcc')
    e('s_cbranch_execz L_h_noadd')
    e('global_atomic_add v5, v6, s[54:55] sc1')
    e.label('L_h_noadd')
    e('s_mov_b64 exec, s[34:35]')
    if 'q' not in order.lower():
        for k in range(2): e('global_load_dword %s, %s, s[48:49]' % (v(16 + k), v(14 + k)))
    if int(opts.get('nodup', 1)): e('s_cmp_lt_u32 s41, 12\ns_cbranch_scc1 L_exit')
    if 'o' not in order.lower() and not opts.get('noo'):
        for k in range(2): e('global_load_dword %s, %s, s[50:51]' % (v(18 + k), v(12 + k)))
    if opts.get('hst'):
        e('v_lshrrev_b32 v2, 6, v0\nv_readfirstlane_b32 s24, v2\ns_branch L_dump')
    e('s_endpgm')
```

```python
import sys
from asmlib import *
import gen_a
KN = 'concat_heads__ssm_conv_s4__linear_attn_block__prompt_kernel'
HEAD = open('concat_heads__ssm_conv_s4__linear_attn_block__prompt.s.ref').read().split('; Override launch')[0]
LDS = 163840
STAMP_BASE = 64 << 20

def make(stamps=False, roles='AB', opts=None):
    opts = opts or {}
    e = Asm()
    nst = [0]
    def mk_stamp(role):
        if opts.get('at'):
            def st1(i):
                sec = [k for k, x in e.secs.items() if x is e.L][0]
                who = 'c' if sec == 'compute' else 'a' if role == 'A' else 'h' if role == 'H' else 'l'
                if opts['at'] == '%s%d' % (who, i): e('s_memrealtime s[70:71]')
            return st1
        if not stamps: return None
        def st(i):
            e('%s %s' % ('s_memrealtime' if opts.get('rt') else 's_memtime', s(64 + 2 * i, 2)))
        return st
    e.label(KN)
    probe = opts.get('probe')
    if stamps or probe:
        e('s_memrealtime s[60:61]')
        e('s_memrealtime s[62:63]' if opts.get('rt') else 's_memtime s[62:63]')
    import gen_b
    e.secs = {'head': e.L}
    if opts.get('jitter'):
        e('s_memrealtime s[58:59]')
        e('s_waitcnt lgkmcnt(0)')
        e('v_readfirstlane_b32 s59, v0')
        e('s_mul_i32 s59, s59, 40503')
        e('s_mul_i32 s58, s58, 2654435761')
        e('s_mul_i32 s3, s2, 97531')
        e('s_add_u32 s58, s58, s59')
        e('s_add_u32 s58, s58, s3')
        e('s_mul_i32 s58, s58, 2654435761')
        e('s_lshr_b32 s58, s58, %d' % (32 - int(opts['jitter'])))
        e.label('L_jit')
        e('s_sleep 2')
        e('s_sub_u32 s58, s58, 1')
        e('s_cbranch_scc0 L_jit')
    e('s_load_dwordx16 s[4:19], s[0:1], 0')
    e('s_load_dwordx8 s[44:51], s[0:1], 64')
    e('s_load_dwordx4 s[52:55], s[0:1], 96')
    e('s_load_dwordx2 s[56:57], s[0:1], 112')
    e('s_cmp_ge_u32 s2, 128')
    e('s_cbranch_scc1 L_roleA')
    if 'B' in roles: gen_b.role_b(e, mk_stamp('B'), opts)
    else: e('s_branch L_exit')
    e.section('ahead', False)
    gen_a.role_a(e, mk_stamp('A'), opts)
    e.section('helper', False)
    gen_b.role_h(e, opts, mk_stamp('H') if opts.get('hst') else None)
    e.section('exit', False)
    e.label('L_exit')
    e('s_endpgm')
    order = ['head', 'ahead', 'helper', 'exit'] + (['loader', 'amain'] if int(opts.get('lfirst', 1)) else ['amain', 'loader']) + ['compute', 'strict']
    assert set(e.secs) <= set(order)
    lines = sum([e.secs.get(k, []) for k in order], [])
    keep = len(e.secs['head']) + len(e.secs['ahead']) + len(e.secs['helper']) + len(e.secs['exit'])
    if 'A' not in roles:
        k = lines.index('s_cbranch_scc1 L_roleH')
        lines.insert(k + 1, 's_branch L_exit')
    if probe:
        k = [i for i, l in enumerate(lines) if l == 's_endpgm'][{'b': -1, 'l': 2 if int(opts.get('lfirst', 1)) else 3, 'a': 3 if int(opts.get('lfirst', 1)) else 2}[probe[0]]]
        d = Asm()
        d('s_waitcnt vmcnt(0)')
        d('s_memrealtime s[62:63]' if probe[1:] == 'rt' else 's_memtime s[64:65]')
        d('s_memrealtime s[66:67]')
        d('s_waitcnt lgkmcnt(0)')
        if probe[1:] == 'fix':
            d('s_mov_b32 s6, 2000')
        elif probe[1:] == 'rt':
            d('s_sub_u32 s6, %s, s60' % ('s70' if opts.get('at') else 's62'))
            d('s_lshl_b32 s6, s6, 2')
        else:
            d('s_sub_u32 s6, s64, s62')
            d('s_lshr_b32 s6, s6, 3')
        if opts.get('pwb'):
            d('s_mov_b32 s7, 200')
            d.label('L_pwb')
            d('s_sleep 1')
            d('s_sub_u32 s7, s7, 1')
            d('s_cbranch_scc0 L_pwb')
            d('buffer_wbl2 sc1')
            d('s_waitcnt vmcnt(0)')
        d.label('L_probe')
        d('s_memrealtime s[68:69]')
        d('s_waitcnt lgkmcnt(0)')
        d('s_sub_u32 s7, s68, s66')
        d('s_cmp_lt_u32 s7, s6')
        d('s_cbranch_scc1 L_probe')
        lines = lines[:k] + d.L + lines[k:]
    if stamps:
        out = []
        for k, l in enumerate(lines):
            if l == 's_endpgm' and k > keep: out.append('s_branch L_dump')
            else: out.append(l)
        lines = out
        d = Asm()
        d.label('L_dump')
        d('s_waitcnt vmcnt(0)')
        d('s_memrealtime s[96:97]' if opts.get('rt') else 's_memtime s[96:97]')
        d('s_memrealtime s[98:99]')
        d('s_load_dwordx2 s[4:5], s[0:1], 112')
        d('v_mbcnt_lo_u32_b32 v1, -1, 0')
        d('v_mbcnt_hi_u32_b32 v1, -1, v1')
        d('s_waitcnt lgkmcnt(0)')
        d('v_mov_b32 v2, s60')
        for i in range(17):
            d('s_sub_u32 s6, %s, s62' % s(64 + 2 * i))
            d('v_mov_b32 v3, s6')
            d('v_cmp_eq_u32 vcc, %d, v1' % (i + 2))
            d('v_cndmask_b32 v2, v2, v3, vcc')
        d('v_mov_b32 v3, s98')
        d('v_cmp_eq_u32 vcc, 1, v1')
        d('v_cndmask_b32 v2, v2, v3, vcc')
        d('s_lshl_b32 s6, s2, 3')
        d('s_add_u32 s6, s6, s24')
        d('s_lshl_b32 s6, s6, 8')
        d('s_add_u32 s6, s6, %d' % STAMP_BASE)
        d('v_lshl_add_u32 v1, v1, 2, s6')
        d('global_store_dword v1, v2, s[4:5]')
        d('s_endpgm')
        lines += d.L
    if opts.get('strip'):
        i0 = lines.index('L_a_pass:'); i1 = lines.index('s_cbranch_scc1 L_a_pass')
        pre = tuple(opts['strip'].split(','))
        lines = lines[:i0] + [l for l in lines[i0:i1] if not l.startswith(pre)] + lines[i1:]
    if opts.get('sys'): lines = [l.replace(' sc1', ' sc0 sc1') if ('store' in l and opts['sys'] in 'sb') or ('load' in l and opts['sys'] in 'lb') else l for l in lines]
    lines, added = pad_hazards(lines)
    lines = [l.replace('KERNEL_START', KN).replace('KERNEL_END', 'L_end') for l in lines] + ['L_end:']
    body = '\n'.join(l if l.endswith(':') else '    ' + l for l in lines)
    txt = HEAD + '; @launch grid=(256,1,1) block=(512,1,1) lds=%d\n' % LDS
    txt += '.amdgcn_target "amdgcn-amd-amdhsa--gfx950"\n.text\n.globl %s\n.p2align 8\n.type %s,@function\n' % (KN, KN)
    txt += body + '\n'
    txt += '''.section .rodata,"a"
.p2align 6
.amdhsa_kernel %s
  .amdhsa_next_free_vgpr 256
  .amdhsa_next_free_sgpr 102
  .amdhsa_accum_offset 112
  .amdhsa_group_segment_fixed_size 0
  .amdhsa_kernarg_size 120
  .amdhsa_user_sgpr_count 2
  .amdhsa_user_sgpr_kernarg_segment_ptr 1
  .amdhsa_system_sgpr_workgroup_id_x 1
.end_amdhsa_kernel
''' % KN
    return txt, added

if __name__ == '__main__':
    out = sys.argv[1]
    stamps = 'stamps' in sys.argv[2:]
    roles = [x for x in sys.argv[2:] if x in ('A', 'B', 'AB')]
    opts = dict(x.split('=') for x in sys.argv[2:] if '=' in x)
    txt, added = make(stamps, roles[0] if roles else 'AB', opts)
    open(out, 'w').write(txt)
    print('wrote', out, len(txt), 'bytes; nop states added', added)
```

```python
from asmlib import *
from gen_a import f2u, LOG2E
EPS = f2u(1e-6)
SLOT = 34816; WOFF = 16384
WQ_LO = SLOT; WQ_HI = 4 * SLOT; IMG = WQ_HI + 3 * 4608
SCR = 3 * SLOT
CST = SLOT - 4096
LCNT = IMG + 9216
STG = WQ_LO + 5 * 4608
def wo_base(ks): return 4608 * ks if ks < 6 else SCR + 4608 * (ks - 6) if ks < 13 else WQ_LO + 4608 * (ks - 13)
KVP = 0; OB = 8 * 4 * 12288; HAND = OB + 16 * 8 * 18 * 1024
SPIN = 20000
def wq_base(ks): return WQ_LO + 4608 * ks if ks < 15 else WQ_HI + 4608 * (ks - 15)

def div_small(e, q, r, x, d, t):
    e('v_mul_u32_u24 %s, %d, %s' % (v(q), (1 << 16) // d + 1, v(x)))
    e('v_lshrrev_b32 %s, 16, %s' % (v(q), v(q)))
    e('v_mul_u32_u24 %s, %d, %s' % (v(t), d, v(q)))
    e('v_sub_u32 %s, %s, %s' % (v(r), v(x), v(t)))
for d in (5, 9, 18):
    assert all((x * ((1 << 16) // d + 1)) >> 16 == x // d for x in range(1024))

def phi_pair(e, x, dst, t, plain=False):
    if plain:
        return [lambda: e('v_mul_f32 %s, s36, %s' % (v(t), v(x))),
                lambda: e('v_mul_f32 %s, s36, %s' % (v(t + 1), v(x + 1))),
                lambda: e('v_max_f32 %s, s38, %s' % (v(t + 2), v(x))),
                lambda: e('v_exp_f32_e64 %s, %s clamp' % (v(t), v(t))),
                lambda: e('v_max_f32 %s, s38, %s' % (v(t + 3), v(x + 1))),
                lambda: e('v_exp_f32_e64 %s, %s clamp' % (v(t + 1), v(t + 1))),
                lambda: e('v_add_f32 %s, %s, %s' % (v(t), v(t), v(t + 2))),
                lambda: e('v_add_f32 %s, %s, %s' % (v(t + 1), v(t + 1), v(t + 3))),
                lambda: e('v_cvt_pk_bf16_f32 %s, %s, %s' % (v(dst), v(t), v(t + 1)))]
    return [lambda: e('v_pk_mul_f32 %s, %s, s[36:37]' % (v(t, 2), v(x, 2))),
            lambda: e('v_max_f32 %s, s38, %s' % (v(t + 2), v(x))),
            lambda: e('v_exp_f32_e64 %s, %s clamp' % (v(t), v(t))),
            lambda: e('v_exp_f32_e64 %s, %s clamp' % (v(t + 1), v(t + 1))),
            lambda: e('v_max_f32 %s, s38, %s' % (v(t + 3), v(x + 1))),
            lambda: e('v_pk_add_f32 %s, %s, %s' % (v(t, 2), v(t, 2), v(t + 2, 2))),
            lambda: e('v_cvt_pk_bf16_f32 %s, %s, %s' % (v(dst), v(t), v(t + 1)))]
def zipper(*streams):
    streams = [list(x) for x in streams]
    while any(streams):
        for st in streams:
            if st: st.pop(0)()

def touch_tiles(e, idx, chunk, lo, n, x_, tmp, dst):
    t0, t1, t2, t3 = tmp, tmp + 1, tmp + 2, tmp + 3
    e('v_min_u32 %s, %d, %s' % (v(t0), n - 1, v(idx)))
    e('v_add_u32 %s, %s, %s' % (v(t0), lo, v(t0)))
    e('s_lshr_b32 s36, %s, 1' % x_)
    e('s_mul_i32 s36, s36, %d' % (512 * 1152))
    e('s_lshl_b32 s37, %s, 7' % chunk)
    e('s_add_u32 s36, s36, s37')
    e('s_and_b32 s37, %s, 1' % x_)
    e('s_lshl_b32 s37, s37, 9')
    e('s_mul_i32 s38, %s, %d' % (chunk, 64 * 3456))
    e('s_add_u32 s37, s37, s38')
    e('s_add_u32 s37, s37, 1152')
    e('v_cmp_gt_u32 vcc, 512, %s' % v(t0))
    e('v_mul_u32_u24 %s, 1152, %s' % (v(t1), v(t0)))
    e('v_add_u32 %s, s36, %s' % (v(t1), v(t1)))
    e('v_subrev_u32 %s, 512, %s' % (v(t0), v(t0)))
    e('v_max_i32 %s, 0, %s' % (v(t0), v(t0)))
    div_small(e, t2, t3, t0, 5, t0 + 4)
    e('v_and_b32 %s, 1, %s' % (v(t0), v(t2)))
    e('v_lshrrev_b32 %s, 1, %s' % (v(t2), v(t2)))
    e('v_mul_u32_u24 %s, 3456, %s' % (v(t2), v(t2)))
    e('v_mul_u32_u24 %s, 1152, %s' % (v(t0), v(t0)))
    e('v_lshl_add_u32 %s, %s, 7, s37' % (v(t3), v(t3)))
    e('v_add3_u32 %s, %s, %s, %s' % (v(t2), v(t2), v(t0), v(t3)))
    e('v_mov_b32 %s, s46' % v(t0))
    e('v_mov_b32 %s, s48' % v(t3))
    e('v_cndmask_b32 %s, %s, %s, vcc' % (v(t1), v(t2), v(t1)))
    e('v_cndmask_b32 %s, %s, %s, vcc' % (v(t2), v(t3), v(t0)))
    e('v_mov_b32 %s, s47' % v(t0))
    e('v_mov_b32 %s, s49' % v(t3))
    e('v_cndmask_b32 %s, %s, %s, vcc' % (v(t3), v(t3), v(t0)))
    e('v_add_co_u32 %s, vcc, %s, %s' % (v(t2), v(t2), v(t1)))
    e('v_addc_co_u32 %s, vcc, 0, %s, vcc' % (v(t3), v(t3)))
    e('global_load_dword %s, %s, off' % (v(dst), v(t2, 2)))

PRIO = [0, 0]
def first_touch(e, j_, x_, tmp, dst, first=1):
    if PRIO[0] == 2 and first > 1:
        e('s_lshr_b32 s39, %s, 2' % j_)
        e('s_add_u32 s39, s39, %d' % first)
        e('s_and_b32 s40, %s, 3' % j_)
    elif PRIO[0] == 1:
        e('s_lshr_b32 s39, %s, 2' % j_)
        e('s_sub_u32 s39, %d, s39' % (first + 3))
        e('s_and_b32 s40, %s, 3' % j_)
    else:
        e('s_and_b32 s39, %s, 3' % j_)
        e('s_add_u32 s39, s39, %d' % first)
        e('s_lshr_b32 s40, %s, 2' % j_)
    if PRIO[1]: e('s_add_u32 s39, s39, %d\ns_min_u32 s39, s39, 8' % PRIO[1])
    e('s_mul_i32 s40, s40, 288')
    touch_tiles(e, 0, 's39', 's40', 288, x_, tmp, dst)

def touch_unit(e, unit, x_, tmp, dst, tag):
    t0, t1 = tmp, tmp + 1
    e('s_mul_i32 s36, %s, 43' % unit)
    e('s_lshr_b32 s36, s36, 7')
    e('s_mul_i32 s37, s36, 3')
    e('s_sub_u32 s37, %s, s37' % unit)
    e('s_cmp_lg_u32 s37, 0')
    e('s_cbranch_scc1 L_tw%s' % tag)
    e('s_lshr_b32 s37, %s, 1' % x_)
    e('s_mul_i32 s37, s37, %d' % (512 * 1152))
    e('s_lshl_b32 s36, s36, 7')
    e('s_add_u32 s36, s36, s37')
    e('v_mul_u32_u24 %s, 1152, v0' % v(t0))
    e('v_add_u32 %s, s36, %s' % (v(t0), v(t0)))
    e('global_load_dword %s, %s, s[46:47]' % (v(dst), v(t0)))
    e('s_branch L_td%s' % tag)
    e.nvm -= 1
    e.label('L_tw%s' % tag)
    e('s_lshl_b32 s36, s36, 1')
    e('s_add_u32 s36, s36, s37')
    e('s_mul_i32 s36, s36, %d' % (32 * 3456))
    e('s_and_b32 s37, %s, 1' % x_)
    e('s_lshl_b32 s37, s37, 9')
    e('s_add_u32 s36, s36, s37')
    e('s_sub_u32 s36, s36, %d' % (32 * 3456 - 1152))
    e('v_and_b32 %s, 15, v0' % v(t1))
    e('v_min_u32 %s, 9, %s' % (v(t1), v(t1)))
    e('v_lshrrev_b32 %s, 4, v0' % v(t0))
    e('v_cmp_lt_u32 vcc, 4, %s' % v(t1))
    e('v_mul_u32_u24 %s, 3456, %s' % (v(t0), v(t0)))
    e('v_lshl_add_u32 %s, %s, 7, %s' % (v(t0), v(t1), v(t0)))
    e('v_cndmask_b32 %s, 0, 4, vcc' % v(t1))
    e('v_lshl_add_u32 %s, %s, 7, s36' % (v(t1), v(t1)))
    e('v_add_u32 %s, %s, %s' % (v(t0), v(t0), v(t1)))
    e('global_load_dword %s, %s, s[48:49]' % (v(dst), v(t0)))
    e.label('L_td%s' % tag)
assert all((u * 43) >> 7 == u // 3 for u in range(40))

def touch_round(e, j_, x_, tmp, dst, first, tag):
    e('s_add_u32 s39, %s, %d' % (j_, first))
    e('s_min_u32 s39, s39, 26')
    touch_unit(e, 's39', x_, tmp, dst, tag)

def touch_cols(e, j_, x_, tmp, dst, base, pitch):
    e('v_min_u32 %s, 179, v0' % v(tmp))
    div_small(e, tmp + 1, tmp + 2, tmp, 5, tmp + 3)
    e('s_mul_i32 s36, %s, %d' % (j_, 36 * pitch))
    e('s_and_b32 s37, %s, 1' % x_)
    e('s_lshl_b32 s37, s37, 9')
    e('s_add_u32 s36, s36, s37')
    e('v_mul_u32_u24 %s, %d, %s' % (v(tmp + 1), pitch, v(tmp + 1)))
    e('v_lshl_add_u32 %s, %s, 7, s36' % (v(tmp + 2), v(tmp + 2)))
    e('v_add_u32 %s, %s, %s' % (v(tmp + 1), v(tmp + 1), v(tmp + 2)))
    e('global_load_dword %s, %s, %s' % (v(dst), v(tmp + 1), base))

def role_b(e, stamp, opts):
    stamp = stamp or (lambda i: None)
    PRIO[0] = int(opts.get('tprio', 0)); PRIO[1] = int(opts.get('tshift', 0))
    rot = int(opts.get('rot', 0))
    e('v_lshrrev_b32 v2, 6, v0')
    e('v_and_b32 v1, 63, v0')
    e('v_readfirstlane_b32 s24, v2')
    e('s_and_b32 s32, s2, 7')
    e('s_lshr_b32 s33, s2, 3')
    e('s_and_b32 s34, s33, 3')
    e('s_lshr_b32 s33, s33, 2')
    e('s_lshr_b32 s25, s32, 1')
    e('s_lshl_b32 s25, s25, 2')
    e('s_add_u32 s25, s25, s34')
    e('s_and_b32 s26, s32, 1')
    e('s_lshl_b32 s26, s26, 2')
    e('s_add_u32 s26, s26, s33')
    if rot:
        e('s_add_u32 s27, s33, s34')
        e('s_and_b32 s27, s27, 3')
        e('s_lshl_b32 s27, s27, 1')
        e('s_lshr_b32 s35, s32, 1')
        e('s_xor_b32 s35, s35, s32')
        e('s_and_b32 s35, s35, 1')
        e('s_add_u32 s27, s27, s35')
    else:
        e('s_mov_b32 s27, 0')
    e('v_and_b32 v2, 15, v1')
    e('v_lshrrev_b32 v3, 4, v1')
    e('s_cmp_lt_u32 s24, 4')
    e('s_cbranch_scc1 L_b_compute')
    loader(e, stamp, opts)
    e.section('compute', False)
    e.label('L_b_compute')
    compute(e, stamp, opts)

def compute(e, stamp, opts):
    e.nvm = 0; e.nlg = 0
    ACC = 8; RING = 80; NR = 6; D = 4
    acc = lambda ct, rt: ACC + 8 * ct + 4 * rt
    e('s_mov_b32 s36, 0x%08x' % LOG2E)
    e('s_mov_b32 s37, s36')
    e('s_mov_b32 s38, 0x%08x' % EPS)
    e('s_lshl_b32 s32, s24, 12')
    e('v_and_b32 v104, 7, v2')
    e('v_xor_b32 v105, v3, v104')
    e('v_lshlrev_b32 v106, 7, v2')
    e('v_add_u32 v106, s32, v106')
    e('v_lshl_add_u32 v4, v105, 4, v106')
    e('v_xor_b32 v105, 4, v105')
    e('v_lshl_add_u32 v5, v105, 4, v106')
    e('v_lshrrev_b32 v104, 2, v2')
    e('v_and_b32 v105, 3, v2')
    e('v_lshlrev_b32 v105, 3, v105')
    e('v_lshl_add_u32 v106, v3, 2, v104')
    e('v_mul_u32_u24 v106, 288, v106')
    e('v_add_u32 v106, v106, v105')
    e('v_add_u32 v6, %d, v106' % WOFF)
    e('v_lshlrev_b32 v104, 1, v104')
    e('v_lshl_add_u32 v104, v3, 3, v104')
    e('v_mul_u32_u24 v104, 144, v104')
    e('v_add_u32 v104, v104, v105')
    e('v_add_u32 v7, %d, v104' % WQ_LO)
    e('v_cmp_gt_u32 vcc, 8, v2')
    for k in range(4): e('v_mov_b32 %s, s38' % v(108 + k))
    for k in range(4): e('v_cndmask_b32 %s, 0, v108, vcc' % v(104 + k))
    e('v_cmp_gt_u32 s[40:41], 2, v3')
    e('v_cmp_gt_u32 s[42:43], 3, v3')
    e('s_waitcnt lgkmcnt(0)')
    e('s_mov_b64 s[10:11], s[52:53]')
    e('s_mov_b64 s[14:15], s[56:57]')
    stamp(0)
    F = [(p, s_, ct) for p in range(8) for s_ in range(2) for ct in range(9)]
    F += [(8, s_, ct) for s_ in range(2) for ct in range(5)] + [(8, s_, ct) for s_ in range(2) for ct in range(5, 9)]
    tok = {}
    def items(f):
        p, s_, ct = F[f]
        it = []
        if ct == 0 and s_ == 0:
            pre = []
            if p:
                dl = SLOT if p % 4 else -3 * SLOT
                for r in (4, 5, 6): pre.append('v_add_u32 %s, %d, %s' % (v(r), dl, v(r)) if dl > 0 else 'v_subrev_u32 %s, %d, %s' % (v(r), -dl, v(r)))
            if p == 8: pre.append('s_waitcnt lgkmcnt(0)')
            pre.append('s_barrier')
            it.append(lambda: (e('\n'.join(pre)), stamp({0: 1, 4: 2, 8: 3}[p]) if p in (0, 4, 8) else None))
        if ct == 0:
            for rt in range(2): it.append(lambda rt=rt: e('ds_read_b128 %s, %s offset:%d' % (a(16 * p + 8 * s_ + 4 * rt, 4), v(4 + s_), 2048 * rt)))
        r = RING + 4 * (f % NR)
        for h in range(2): it.append(lambda h=h: e('ds_read_b64_tr_b16 %s, v6 offset:%d' % (v(r + 2 * h, 2), 9216 * s_ + 4608 * h + 32 * ct)))
        return it
    for f in range(D):
        for x in items(f): x()
        tok[f] = e.lg()
    def put(fi, r):
        if fi < 8: e('ds_write_b128 v4, %s offset:%d' % (v(r, 4), 1024 * fi))
        else: e('ds_write_b128 v5, %s offset:%d' % (v(r, 4), 1024 * (fi - 8)))
    def phi_tile(x, dst, t, plain):
        zz = [phi_pair(e, x[k], dst[k], t + 4 * k, plain=plain) for k in range(4)]
        return [z[k] for k in range(len(zz[0])) for z in zz]
    def handoff_setup():
        e('s_add_u32 s16, s14, %d' % OB)
        e('s_addc_u32 s17, s15, 0')
        e('s_mov_b32 s18, %d' % (HAND - OB))
        e('s_mov_b32 s19, 0x20000')
        e('s_lshl_b32 s32, s25, 3')
        e('s_lshl_b32 s33, s24, 1')
        e('s_add_u32 s32, s32, s33')
        e('s_mul_i32 s32, s32, %d' % (18 * 1024))
        e('v_lshl_add_u32 v105, v1, 4, s32')
        e('v_add_u32 v106, %d, v105' % (18 * 1024))
        e('s_lshl_b32 s20, s26, 11')
        e('s_lshr_b32 s33, s26, 2')
        e('s_lshl_b32 s33, s33, 10')
        e('s_and_b32 s34, s26, 3')
        e('s_lshl_b32 s34, s34, 8')
        e('s_add_u32 s33, s33, s34')
        e('s_add_u32 s33, s33, s32')
        e('s_add_u32 s33, s33, %d' % (16 * 1024 - 16))
        e('s_movk_i32 s21, %d' % (18 * 1024))
        e('v_lshlrev_b32 v104, 4, v2')
        e('v_lshl_add_u32 v104, v3, 3, v104')
        e('v_add_u32 v104, s33, v104')
    for f, (p, s_, ct) in enumerate(F):
        it = items(f + D) if f + D < len(F) else []
        if f == 18 - D: handoff_setup()
        e.wait_lg(tok[f])
        for rt in range(2):
            c = v(acc(ct, rt), 4) if f >= 9 else 'v[108:111]' if ct < 4 else 'v[104:107]' if ct == 4 else '0'
            e('v_mfma_f32_16x16x32_bf16 %s, %s, %s, %s' % (v(acc(ct, rt), 4), a(16 * p + 8 * s_ + 4 * rt, 4), v(RING + 4 * (f % NR), 4), c))
            h = (len(it) + 1) // 2
            for x in (it[:h] if rt == 0 else it[h:]): x()
        tok[f + D] = e.lg()
    stamp(4)
    e('s_lshl_b32 s32, s24, 13\ns_add_u32 s32, s32, %d\nv_lshl_add_u32 v4, v1, 4, s32' % SCR)
    e('s_lshl_b32 s32, s24, 12\nv_lshl_add_u32 v5, v1, 4, s32')
    for t in range(5):
        o = acc(t, 0) if t < 4 else 96
        for x in phi_tile([acc(t, 0) + 2 * k for k in range(4)], [o + k for k in range(4)], 80, False): x()
        put(t, o)
        o = acc(4 + t, 0) if t else 100
        for k in range(4): e('v_cvt_pk_bf16_f32 %s, %s, %s' % (v(o + k), v(acc(4 + t, 0) + 2 * k), v(acc(4 + t, 0) + 2 * k + 1)))
        put(5 + t, o)
    e('v_add_u32 v6, %d, v7' % (WQ_HI - WQ_LO))
    e('v_mov_b32 v5, %d' % LCNT)
    e('s_waitcnt lgkmcnt(0)')
    stamp(5)
    e('s_barrier')
    def gemm144(where, c0, G, ring, hook=None, xs=lambda ks, rt: a(8 * ks + 4 * rt, 4)):
        RG, NG, DG = ring
        tk = {}
        def iss(f, h):
            ks, ct = G[f]
            ad, off = where(ks)
            e('ds_read_b64_tr_b16 %s, %s offset:%d' % (v(RG + 4 * (f % NG) + 2 * h, 2), ad, off + 144 * h + 32 * ct))
            tk[f] = e.lg()
        for f in range(DG): iss(f, 0); iss(f, 1)
        for f, (ks, ct) in enumerate(G):
            if hook: hook(f, ks, ct, 0)
            e.wait_lg(tk[f])
            for rt in range(2):
                e('v_mfma_f32_16x16x32_bf16 %s, %s, %s, %s' % (v(acc(ct, rt), 4), v(RG + 4 * (f % NG), 4), xs(ks, rt), v(acc(ct, rt), 4) if ks else c0))
                if f + DG < len(G): iss(f + DG, rt)
                if hook: hook(f, ks, ct, 1 + rt)
    PQ = 48
    def phi_q(t, plain): return phi_tile([acc(t, k >> 1) + 2 * (k & 1) for k in range(4)], [PQ + 10 * (k >> 1) + 2 * t + (k & 1) for k in range(4)], 92 if plain else 68, plain)
    NQ = int(opts.get('nq', 5))
    rest = []
    def qhook(f, ks, ct, ph):
        if opts.get('qst') and ph == 0 and f in (1, 20, 45, 70): stamp({1: 0, 20: 2, 45: 13, 70: 15}[f])
        if f == 40 and ph == 1: e('ds_read_b32 v92, v5 offset:4')
        if f == 54 and ph == 0:
            e('s_mov_b32 s44, %d' % SPIN)
            e.label('L_b_wq')
            e('v_cmp_gt_u32 vcc, 4, v92')
            e('s_cbranch_vccz L_b_wqok')
            e('ds_read_b32 v92, v5 offset:4')
            e.nlg -= 1
            e('s_waitcnt lgkmcnt(0)')
            e('s_sub_u32 s44, s44, 1')
            e('s_cbranch_scc0 L_b_wq')
            e.label('L_b_wqok')
        if f == 18 * NQ + 1 and ph == 0:
            for t in range(NQ): rest.extend(phi_q(t, True))
        if ph and rest: rest.pop(0)()
    gemm144(lambda ks: ('v7', wq_base(ks) - WQ_LO) if ks < 15 else ('v6', wq_base(ks) - WQ_HI), 'v[108:111]',
            [(ks, ct) for ks in range(18) for ct in range(NQ)] + [(ks, ct) for ks in range(18) for ct in range(NQ, 5)], (60, 8, 5) if opts.get('qring') else (68, 6, 4), qhook)
    stamp(6)
    for x in rest: x()
    for t in range(NQ if NQ < 5 else 0, 5):
        for x in phi_q(t, False): x()
    DEN = 68
    e('v_lshlrev_b32 v4, 3, v1')
    e('v_add_u32 v4, %d, v4' % IMG)
    stamp(7)
    e('s_barrier')
    stamp(8)
    t0 = e.lg()
    for pl in list(range(13, 18)) + list(range(13)): e('ds_read_b64 %s, v4 offset:%d' % (a(2 * pl, 2), 512 * pl))
    def mm(d, pl, dt, n, rt, c):
        e('v_mfma_f32_16x16x%d_bf16 %s, %s, %s, %s' % (16 * n, v(d, 4), a(2 * pl, 2 * n), v(PQ + 10 * rt + 2 * dt, 2 * n), c))
    e.wait_lg(t0 + 5)
    for pl, dt, n in ((13, 0, 2), (15, 2, 2), (17, 4, 1)):
        for rt in range(2): mm(DEN + 4 * rt, pl, dt, n, rt, v(DEN + 4 * rt, 4) if dt else 'v[108:111]')
    OUT = PQ
    def scale(rt):
        i = DEN + 4 * rt; t = 76 + 4 * rt; o = OUT + 10 * rt
        pre = [lambda k=k: e('v_rcp_f32 %s, %s' % (v(i + k), v(i + k))) for k in range(4)]
        pre += [lambda: e('v_cndmask_b32 %s, %s, %s, s[42:43]' % (v(t), v(i + 1), v(i))),
                lambda: e('v_cndmask_b32 %s, %s, %s, s[40:41]' % (v(t + 1), v(i + 1), v(i))),
                lambda: e('v_cndmask_b32 %s, %s, %s, s[42:43]' % (v(t + 2), v(i + 2), v(i + 1))),
                lambda: e('v_cndmask_b32 %s, %s, %s, s[42:43]' % (v(t + 3), v(i + 3), v(i + 2)))]
        sc = {0: (i, i), 1: (t, t + 1), 2: (t + 2, t + 2), 3: (i + 2, t + 3), 4: (i + 3, i + 3)}
        st = []
        for u in (0, 4, 1, 2, 3):
            for k in range(2):
                f_ = sc[u][k]
                st.append(lambda u=u, k=k, f_=f_: e('v_pk_mul_f32 %s, %s, %s op_sel:[0,%d] op_sel_hi:[1,%d]' % (v(acc(u, rt) + 2 * k, 2), v(acc(u, rt) + 2 * k, 2), v(f_ & ~1, 2), f_ & 1, f_ & 1)))
        for u in (0, 4, 1, 2, 3):
            d = o + (2 * (u - 1) if u else 8)
            for k in range(2): st.append(lambda u=u, k=k, d=d: e('v_cvt_pk_bf16_f32 %s, %s, %s' % (v(d + k), v(acc(u, rt) + 2 * k), v(acc(u, rt) + 2 * k + 1))))
        for d in (o, o + 4, o + 8): st.append(lambda d=d: e('v_min_u32 %s, -2, %s' % (v(d), v(d))))
        st.append(lambda: e('buffer_store_dwordx4 %s, %s, s[16:19], s20 offen sc1' % (v(o, 4), v(105 + rt))))
        st.append(lambda: e('buffer_store_dwordx4 %s, %s, s[16:19], s20 offen offset:1024 sc1' % (v(o + 4, 4), v(105 + rt))))
        return pre, st
    (p0, s0), (p1, s1) = scale(0), scale(1)
    fill = p0 + p1
    e.wait_lg(t0 + 18)
    for rt in range(2):
        ops = [(u, 2 * u + first, first, 2, '0') for u, first in enumerate((0, 0, 1, 2, 3))]
        ops = [ops[1], ops[2], ops[3], ops[0], ops[4]] + [(u, 2 * u + first + 2, first + 2, 1, None) for u, first in ((1, 0), (2, 1), (3, 2))]
        for k, (u, pl, dt, n, c) in enumerate(ops):
            mm(acc(u, rt), pl, dt, n, rt, c or v(acc(u, rt), 4))
            if rt or k >= 2:
                for x in fill[:2]: x()
                fill = fill[2:]
    for x in fill + s0 + s1: x()
    e('s_mov_b32 exec_lo, 0')
    e('buffer_store_dwordx2 %s, v104, s[16:19], 0 offen sc1' % v(OUT + 8, 2))
    e('buffer_store_dwordx2 %s, v104, s[16:19], s21 offen sc1' % v(OUT + 18, 2))
    e('s_mov_b32 exec_lo, -1')
    stamp(9)
    e('v_subrev_u32 v7, %d, v7' % WQ_LO)
    e('v_add_u32 v6, %d, v7' % SCR)
    e('s_mov_b32 s39, 0')
    e('s_movk_i32 s23, %d' % (16 * 1024))
    e('s_barrier')
    e.label('L_b_gemm2')
    otok = {}
    AHEAD = int(opts.get('ahead', 4))
    osrc = lambda ks, rt: v(OUT + 10 * rt + 4 * ks, 4) if ks < 2 else a(8 * ks + 4 * rt, 4)
    def oload(j, rt):
        if j < 16 and rt == 0:
            e('s_add_u32 s22, s22, 1024')
            e('s_and_b32 s22, s22, 0x3fff')
        e('buffer_load_dwordx4 %s, %s, s[16:19], %s offen%s sc1' % (osrc(j, rt), v(105 + rt), 's22' if j < 16 else 's23', ' offset:1024' if j == 17 else ''))
        otok[j] = e.vm()
    pend = [(j, rt) for j in range(2, 18) for rt in range(2)]
    tail = []
    def put_out(ct):
        r = []
        for rt in range(2):
            d = 48 + 4 * ct + 2 * rt
            for k in range(2): r.append(lambda d=d, k=k, rt=rt: e('v_cvt_pk_bf16_f32 %s, %s, %s' % (v(d + k), v(acc(ct, rt) + 2 * k), v(acc(ct, rt) + 2 * k + 1))))
            r.append(lambda d=d, rt=rt: e('ds_write_b64 v4, %s offset:%d' % (v(d, 2), 2304 * rt + 32 * ct)))
        return r
    def hook(f, ks, ct, ph):
        if f == 10 and ph == 0:
            e('s_lshl_b32 s32, s25, 7')
            e('s_lshl_b32 s33, s24, 5')
            e('s_add_u32 s32, s32, s33')
            e('s_mul_i32 s32, s32, 2304')
            e('s_mul_i32 s33, s26, 144')
            e('s_add_u32 s32, s32, s33')
            e('s_add_u32 s32, s32, 1152')
            for j in range(5):
                e('v_add_u32 v48, %d, v1' % (64 * j))
                div_small(e, 49, 50, 48, 9, 51)
                e('v_mul_u32_u24 v49, 2304, v49')
                e('v_lshl_add_u32 v49, v50, 4, v49')
                e('v_add_u32 %s, s32, v49' % v(108 + j if j < 4 else 104))
            e('s_mul_i32 s33, s24, 4608')
            e('s_add_u32 s33, s33, %d' % STG)
            e('v_mul_u32_u24 v4, 144, v2')
            e('v_lshl_add_u32 v4, v3, 3, v4')
            e('v_add_u32 v4, s33, v4')
            e('v_lshl_add_u32 v5, v1, 4, s33')
            e('s_mov_b32 s44, %d' % SPIN)
            e('s_add_u32 s22, s20, 1024')
            e('v_lshlrev_b32 v107, 8, v1')
            e('v_lshlrev_b32 v48, 4, v1')
            e('v_sub_u32 v107, v107, v48')
            e('v_add_u32 v107, v107, v106')
            for _ in range(int(opts.get('pdelay', 0))): e('s_nop 15')
            e('s_mov_b64 exec, 0xff')
            e.label('L_b_probe')
            e('buffer_load_dword v68, v107, s[16:19], s23 offen offset:248 sc1')
            e('s_sub_u32 s44, s44, 1')
            e('s_cbranch_scc1 L_b_probed')
            e('s_waitcnt vmcnt(0)')
            e('v_cmp_eq_u32 vcc, -1, v68')
            e('s_cbranch_vccnz L_b_probe')
            e.label('L_b_probed')
            e('s_mov_b64 exec, -1')
            if opts.get('count'): e('s_sub_u32 s92, s62, s44\ns_add_u32 s92, s92, %d' % SPIN)
            stamp(10)
            e.nvm = 0
            for _ in range(2 * AHEAD): oload(*pend.pop(0))
            stamp(11)
        if ct == 0 and ph == 0 and 2 <= ks: e.wait_vm(otok[ks])
        if ph == 1 and pend and f >= 10 and ct in ((0, 1, 2, 3) if f < 25 else (1, 3)): oload(*pend.pop(0))
        if ks == 17:
            if ph == 0 and 2 <= ct: tail.extend(put_out(ct - 2))
            if ph:
                for x in tail[:2]: x()
                del tail[:2]
    gemm144(lambda ks: ('v6', wo_base(ks) - SCR) if 6 <= ks < 13 else ('v7', wo_base(ks)), '0',
            [(ks, ct) for ks in range(18) for ct in range(5)], (72, 8, 5), hook, osrc)
    stamp(12)
    for x in tail + put_out(3): x()
    e('s_cmp_lg_u32 s39, 0')
    e('s_cbranch_scc1 L_b_store')
    e('v_cmp_u_f32 vcc, %s, %s' % (v(acc(0, 0)), v(acc(0, 1))))
    e('s_cbranch_vccnz L_b_strict')
    e.label('L_b_store')
    e('s_mov_b32 exec_hi, 0')
    for x in put_out(4): x()
    e('s_mov_b32 exec_hi, -1')
    t0 = e.lg()
    for j in range(5): e('ds_read_b128 %s, v5 offset:%d' % (v(8 + 4 * j, 4), 1024 * j))
    for j in range(5):
        e.wait_lg(t0 + j + 1)
        if j == 4: e('s_mov_b32 exec_hi, 0')
        e('global_store_dwordx4 %s, %s, s[10:11] %s' % (v(108 + j if j < 4 else 104), v(8 + 4 * j, 4), opts.get('ost', '')))
    e('s_mov_b32 exec_hi, -1')
    if not opts.get('qst'): stamp(13)
    e('s_endpgm')
    e.section('strict', False)
    e.label('L_b_strict')
    e('s_mov_b32 s39, 1')
    e('s_mov_b32 s44, %d' % SPIN)
    e.label('L_b_strict1')
    for ks in range(18):
        e('s_movk_i32 s22, %d' % (1024 * ks))
        for rt in range(2): e('buffer_load_dwordx4 %s, %s, s[16:19], s22 offen sc1' % (a(8 * ks + 4 * rt, 4), v(105 + rt)))
    for rt in range(2):
        for k in range(2): e('buffer_load_dwordx4 %s, %s, s[16:19], s20 offen offset:%d sc1' % (v(OUT + 10 * rt + 4 * k, 4), v(105 + rt), 1024 * k))
    e('s_waitcnt vmcnt(0)')
    e('s_sub_u32 s44, s44, 1')
    e('s_cbranch_scc1 L_b_gemm2')
    e('s_mov_b64 s[32:33], 0')
    for k in range(72):
        if (k & 1) == 0 or k >= 64:
            e('v_accvgpr_read_b32 v68, %s' % a(2 * k))
            e('v_cmp_eq_u32 vcc, -1, v68')
            e('s_or_b64 s[32:33], s[32:33], vcc')
    e('s_cmp_lg_u64 s[32:33], 0')
    e('s_cbranch_scc1 L_b_strict1')
    e('s_branch L_b_gemm2')

def loader(e, stamp, opts):
    e.nvm = 0; e.nlg = 0
    if int(opts.get('lp0', 2)): e('s_setprio %d' % int(opts.get('lp0', 2)))
    e('s_sub_u32 s39, s24, 4')
    e('v_lshrrev_b32 v4, 3, v1')
    e('v_and_b32 v5, 7, v1')
    e('v_xor_b32 v5, v5, v4')
    e('s_lshl_b32 s32, s25, 7')
    e('s_lshl_b32 s33, s39, 5')
    e('s_add_u32 s32, s32, s33')
    e('v_add_u32 v4, s32, v4')
    e('v_mul_u32_u24 v4, 1152, v4')
    e('v_lshl_add_u32 v8, v5, 4, v4')
    e('s_lshr_b32 s32, s39, 1')
    e('s_lshl_b32 s32, s32, 5')
    e('s_and_b32 s33, s39, 1')
    e('s_lshl_b32 s33, s33, 2')
    e('s_add_u32 s32, s32, s33')
    e('s_mul_i32 s40, s26, 144')
    e('s_mul_i32 s32, s32, 3456')
    e('s_add_u32 s32, s32, s40')
    e('s_add_u32 s32, s32, 1152')
    def woff(j):
        e('v_add_u32 v4, %d, v1' % (64 * j))
        div_small(e, 5, 6, 4, 18, 7)
        e('v_and_b32 v4, 12, v5')
        e('v_add_u32 v4, v4, v5')
        e('v_mul_u32_u24 v4, 3456, v4')
        e('v_cmp_lt_u32 vcc, 8, v6')
        e('v_lshl_add_u32 v4, v6, 4, v4')
        e('v_add_u32 v4, s32, v4')
        e('v_add_u32 v5, 1008, v4')
        e('v_cndmask_b32 %s, v4, v5, vcc' % v(9 + j))
    e('s_lshl_b32 s41, s39, 12')
    e('s_mul_i32 s42, s39, 4608')
    e('s_add_u32 s42, s42, %d' % WOFF)
    e('s_mov_b32 s43, s27')
    e('s_mov_b32 s22, %d\ns_mov_b32 s23, 0x20000' % (576 * 3456))
    e('s_mov_b32 s30, %d\ns_mov_b32 s31, 0x20000' % (576 * 1152))
    e('s_waitcnt lgkmcnt(0)')
    e('s_mov_b64 s[16:17], s[46:47]\ns_mov_b32 s18, %d\ns_mov_b32 s19, 0x20000' % (2048 * 1152))
    e('s_mov_b64 s[20:21], s[48:49]\ns_mov_b64 s[28:29], s[50:51]\ns_mov_b64 s[12:13], s[54:55]\ns_mov_b64 s[14:15], s[56:57]')

    main = e; sd = Asm(); e = sd
    marks = {}
    e('s_lshl_b32 s32, s26, 2')
    e('s_add_u32 s32, s32, s39')
    e('s_mul_i32 s32, s32, 12288')
    e('s_add_u32 s32, s32, %d' % KVP)
    e('v_lshl_add_u32 v15, v1, 4, s32')
    e('s_lshl_b32 s33, s25, 8')
    e('s_add_u32 s32, s32, s33')
    e('v_lshlrev_b32 v14, 4, v2')
    e('v_lshl_add_u32 v14, v3, 12, v14')
    e('v_add_u32 v14, s32, v14')
    marks['clear'] = len(sd.L)
    e('s_mul_i32 s32, s39, 2304')
    e('s_add_u32 s32, s32, %d' % IMG)
    e('v_lshl_add_u32 v4, v1, 4, s32')
    for k in range(4): e('v_mov_b32 %s, 0' % v(40 + k))
    e('ds_write_b128 v4, v[40:43]')
    e('ds_write_b128 v4, v[40:43] offset:1024')
    e('v_lshl_add_u32 v4, v1, 2, s32')
    e('ds_write_b32 v4, v40 offset:2048')
    e('v_mov_b32 v55, %d' % LCNT)
    e('ds_write_b32 v55, v40')
    for j in range(5):
        e('v_add_u32 v4, %d, v1' % (64 * j))
        div_small(e, 5, 6, 4, 9, 7)
        e('v_lshlrev_b32 v6, 4, v6')
        e('v_add_u32 v6, s40, v6')
        e('v_lshrrev_b32 v4, 3, v5')
        e('v_and_b32 v7, 1, v5')
        e('v_bfe_u32 v5, v5, 1, 2')
        e('v_lshl_add_u32 v19, v7, 2, v5')
        e('v_lshl_add_u32 v39, v4, 3, v19')
        e('v_mul_u32_u24 v39, 3456, v39')
        e('v_add_u32 %s, v39, v6' % v(24 + j))
        e('v_lshl_add_u32 v39, v4, 2, v5')
        e('v_lshl_add_u32 v39, v7, 4, v39')
        e('v_mul_u32_u24 v39, 1152, v39')
        e('v_add_u32 %s, v39, v6' % v(29 + j))
        e('v_mul_u32_u24 v39, 72, v4')
        e('v_add_u32 v39, v39, v19')
        e('v_mul_u32_u24 v39, 1152, v39')
        e('v_add_u32 %s, v39, v6' % v(34 + j))
    e('s_lshr_b32 s45, s39, 1')
    e('s_lshl_b32 s46, s39, 1')
    e('s_lshl_b32 s47, s39, 10')
    e('s_add_u32 s47, s47, %d' % CST)
    e('s_add_u32 s32, s47, 768')
    e('v_lshl_add_u32 v44, v2, 3, s32')
    for i in range(2):
        e('v_add_u32 v4, %d, v3' % (4 * i))
        e('v_subrev_u32 v5, s45, v4')
        e('v_cmp_gt_u32 s[48:49], 5, v5')
        for j in range(2):
            e('v_add_u32 v6, %d, v2' % (16 * j - 8))
            e('v_subrev_u32 v6, s46, v6')
            e('v_cmp_gt_u32 vcc, 18, v6')
            e('v_mul_u32_u24 v6, 5, v6')
            e('v_add_u32 v6, v6, v5')
            e('s_and_b64 vcc, vcc, s[48:49]')
            e('v_lshl_add_u32 v6, v6, 3, s47')
            e('v_cndmask_b32 %s, v44, v6, vcc' % v(45 + 2 * i + j))
        e('v_cmp_eq_u32 vcc, 0, v2')
        e('v_add_u32 v6, 90, v5')
        e('v_lshl_add_u32 v6, v6, 3, s47')
        e('s_and_b64 vcc, vcc, s[48:49]')
        e('v_cndmask_b32 %s, %s, v6, vcc' % (v(45 + 2 * i), v(45 + 2 * i)))
    e('s_mul_i32 s32, s39, 18')
    e('s_add_u32 s32, s32, 8')
    e('s_lshl_b32 s33, s39, 2')
    e('s_add_u32 s33, s33, s45')
    e('v_cmp_gt_u32 s[48:49], 2, v3')
    for b in range(3):
        e('v_lshl_add_u32 v4, v2, 1, v3')
        e('v_add_u32 v4, %d, v4' % (32 * b))
        div_small(e, 5, 6, 4, 5, 7)
        e('v_add_u32 v6, s33, v6')
        e('v_add_u32 v7, s32, v5')
        e('v_lshrrev_b32 v19, 4, v7')
        e('v_and_b32 v7, 15, v7')
        e('v_lshrrev_b32 v39, 2, v6')
        e('v_and_b32 v6, 3, v6')
        e('v_lshl_add_u32 v19, v19, 1, v39')
        if b == 2:
            e('v_cmp_eq_u32 vcc, 18, v5')
            e('v_add_u32 v39, 13, v39')
            e('v_cndmask_b32 v19, v19, v39, vcc')
            e('v_mov_b32 v39, s39')
            e('v_cndmask_b32 v7, v7, v39, vcc')
        e('v_lshl_add_u32 v7, v6, 4, v7')
        e('v_lshlrev_b32 v7, 3, v7')
        e('v_lshl_add_u32 v7, v19, 9, v7')
        e('v_add_u32 v7, %d, v7' % IMG)
        if b == 2:
            e('s_and_b64 vcc, vcc, s[48:49]')
            e('v_cndmask_b32 v54, v44, v7, vcc')
            e('v_cmp_gt_u32 vcc, 19, v5')
            e('s_and_b64 s[48:49], vcc, s[48:49]')
        e('v_cndmask_b32 %s, v44, v7, s[48:49]' % v(51 + b))
    e('v_and_b32 v4, 1, v2')
    e('v_lshlrev_b32 v4, 4, v4')
    e('v_mov_b32 v5, 0x3f80')
    e('v_lshlrev_b32 v4, v4, v5')
    e('v_lshrrev_b32 v5, 1, v2')
    for k in range(4):
        e('v_cmp_eq_u32 vcc, %d, v5' % k)
        e('v_cndmask_b32 %s, 0, v4, vcc' % v(56 + k))
    for k in range(4): e('v_mov_b32 %s, 0x3f803f80' % v(8 + 96 + k))
    e('ds_write_b128 v55, v[104:107] offset:16')
    e('ds_write_b128 v55, v[40:43] offset:32')
    e('ds_write_b32 v55, v40 offset:4')
    for k, df in enumerate((0, 1, 5, 6)):
        e('s_add_u32 s32, s39, %d' % df)
        e('s_lshl_b32 s33, s32, 10')
        e('s_add_u32 s34, s33, %d' % SCR)
        e('s_sub_u32 s33, s33, 8192')
        e('s_movk_i32 s48, 4096')
        sd.L.append('s_cmp_lt_u32 s32, 8\ns_cselect_b32 s33, s34, s33\ns_cselect_b32 s48, 8192, s48')
        e('v_lshl_add_u32 %s, v1, 4, s33' % v(64 + k))
        e('v_mov_b32 %s, s48' % v(60 + k))
        if k < 3:
            if k == 0: e('v_cmp_gt_u32 vcc, s46, v2')
            if k == 1:
                e('s_add_u32 s32, s46, 2')
                e('v_cmp_le_u32 vcc, s32, v2')
            if k == 2: e('v_cmp_eq_u32 vcc, 0, v2')
            e('v_mov_b32 v4, %d' % (LCNT + (16 if k == 2 else 32)))
            e('v_cndmask_b32 %s, %s, v4, vcc' % (v(64 + k), v(64 + k)))
            e('v_cndmask_b32 %s, %s, v40, vcc' % (v(60 + k), v(60 + k)))
    e('s_mul_i32 s58, s39, %d' % (32 * 3456))
    e('v_and_b32 v49, 3, v1')
    e('v_lshlrev_b32 v49, 6, v49')
    e = main
    side = list(sd.L); done = [0]
    def run_side(n=None, upto=None):
        stop = upto if upto is not None else min(len(side), done[0] + n)
        while done[0] < stop:
            e(side[done[0]]); done[0] += 1

    ctok = {}
    def chunk(p, per, mid=None):
        sl = SLOT * (p % 4)
        e('s_lshl_b32 s3, s43, 7')
        e('s_mul_i32 s35, s43, %d' % (64 * 3456))
        for j in range(4):
            e('s_add_u32 m0, s41, %d' % (sl + 1024 * j))
            if j: e('s_add_u32 s3, s3, 9216')
            e('buffer_load_dwordx4 v8, s[16:19], s3 offen lds')
            run_side(per)
        for j in range(5):
            if mid: mid(j)
            e('s_add_u32 m0, s42, %d' % (sl + 1024 * j))
            if j == 4: e('s_mov_b32 exec_hi, 0')
            e('buffer_load_dwordx4 %s, s[20:23], s35 offen lds' % v(9 + j))
            if j < 4: run_side(per)
        e('s_mov_b32 exec_hi, -1')
        e('s_add_u32 s43, s43, 1')
        e('s_cmp_eq_u32 s43, 9')
        e('s_cselect_b32 s43, 0, s43')
        ctok[p] = e.vm()
    stamp(1)
    chunk(0, 0, woff)
    early = int(opts.get('early', 170))
    if early:
        e.section('loader')
        run_side(early)
    chunk(1, 0)
    stamp(0)
    if not early: e.section('loader')
    def tile144(srd, vregs, soff):
        for j in range(5):
            e('s_add_u32 m0, s34, %d' % (1024 * j))
            if j == 4: e('s_mov_b32 exec_hi, 0')
            e('buffer_load_dwordx4 %s, %s, %s offen lds' % (v(vregs + j), srd, soff))
        e('s_mov_b32 exec_hi, -1')
    def wq_group(lo, n):
        for rnd in range((n + 3) // 4):
            b0 = lo + 4 * rnd
            if int(opts.get('rot', 0)) == 0 and b0 + 3 < 15:
                e('s_add_u32 s32, s58, %d' % (b0 * 32 * 3456))
                e('s_add_u32 s34, s42, %d' % (WQ_LO + 4608 * b0 - WOFF))
                tile144('s[20:23]', 24, 's32')
                continue
            e('s_add_u32 s35, s39, %d' % (lo + 4 * rnd))
            if 4 * rnd + 4 > n: e('s_min_u32 s35, s35, %d' % (lo + n - 1))
            e('s_lshr_b32 s32, s35, 1')
            e('s_add_u32 s32, s32, s27')
            e('s_sub_u32 s33, s32, 9')
            e('s_cmp_ge_u32 s32, 9')
            e('s_cselect_b32 s32, s33, s32')
            e('s_lshl_b32 s32, s32, 1')
            e('s_and_b32 s33, s35, 1')
            e('s_add_u32 s32, s32, s33')
            e('s_mul_i32 s32, s32, %d' % (32 * 3456))
            e('s_mul_i32 s34, s35, 4608')
            if lo + 4 * rnd + 3 >= 15:
                e('s_add_u32 s33, s34, %d' % (WQ_HI - WQ_LO - 15 * 4608))
                e('s_cmp_ge_u32 s35, 15')
                e('s_cselect_b32 s34, s33, s34')
            e('s_add_u32 s34, s34, %d' % WQ_LO)
            tile144('s[20:23]', 24, 's32')
    for p in range(9):
        if opts.get('st4') and p == 5: stamp(7)
        e.wait_vm(ctok[p])
        if opts.get('st4') and p == 5: stamp(8)
        e('s_barrier')
        if p in (1, 2, 3, 5, 6): stamp({1: 11, 2: 12, 3: 13, 5: 14, 6: 15}[p])
        if opts.get('st4') and p in (4, 7): stamp({4: 0, 7: 1}[p])
        if p == 0:
            stamp(2)
        if 't' in opts.get('horder', '') and p == int(opts.get('trig', 2)):
            e('s_or_b32 s3, s39, s2')
            e('s_cmp_ge_u32 s3, 8')
            e('s_cbranch_scc1 L_b_notrig')
            e('s_cmp_lg_u32 s39, 0')
            e('s_cbranch_scc1 L_b_notrig')
            e('s_lshl_b32 s3, s2, 2')
            e('v_mov_b32 v20, s3')
            e('v_mov_b32 v21, 1')
            e('s_mov_b64 exec, 1')
            e('global_store_dword v20, v21, s[12:13] offset:16 sc1')
            e('s_mov_b64 exec, -1')
            e.nvm -= 1
            e.label('L_b_notrig')
        if p <= 6: chunk(p + 2, int(opts.get('per', 3)))
        if p == 6: run_side(upto=len(side))
        if p == 7: wq_group(0, 4)
        if p == 8:
            if opts.get('low8'): e('s_setprio 0')
            wq_group(4, 8)
            e('s_cmp_lg_u32 s39, 0')
            e('s_cbranch_scc1 L_b_nocnt')
            e('s_mov_b64 exec, 15')
            e('global_load_dword v20, v49, s[12:13] sc1')
            e('s_mov_b64 exec, -1')
            e.label('L_b_nocnt')
            t_wq = e.vm()
            wq_group(12, 6)
    stamp(3)
    e.wait_vm(t_wq)
    e('s_cmp_lg_u32 s39, 0')
    e('s_cbranch_scc1 L_b_cntdone')
    e('s_mov_b64 exec, 15')
    e('v_cmp_gt_u32 vcc, 12, v20')
    e('s_cbranch_vccz L_b_cntdone')
    e('s_mov_b32 s44, %d' % SPIN)
    e.label('L_b_cnt')
    e('global_load_dword v20, v49, s[12:13] sc1')
    e('s_sub_u32 s44, s44, 1')
    e('s_cbranch_scc1 L_b_cntdone')
    e('s_waitcnt vmcnt(0)')
    e('v_cmp_gt_u32 vcc, 12, v20')
    e('s_cbranch_vccnz L_b_cnt')
    e.label('L_b_cntdone')
    e('s_mov_b64 exec, -1')
    e('s_waitcnt lgkmcnt(0)')
    stamp(4)
    e('s_barrier')
    stamp(5)
    lp = opts.get('lpos', 'a')
    if lp == 'a': e('s_setprio %d' % int(opts.get('lprio', 2)))
    if lp == 'c': e('s_nop 15')
    tk = []
    for w in range(4):
        for k in range(4):
            e('ds_read_b128 %s, %s' % (a(16 * w + 4 * k, 4), v(64 + k)))
            if w < 3: e('v_add_u32 %s, %s, %s' % (v(64 + k), v(60 + k), v(64 + k)))
        tk.append(e.lg())
    if lp != 'a': e('s_setprio %d' % int(opts.get('lprio', 2)))
    e('v_mov_b32 v4, s47')
    e('v_mov_b32 v5, 1')
    e('ds_write_b64 v4, v[40:41] offset:760')
    DD = 68
    for w in range(4):
        e.wait_lg(tk[w])
        if w == 3:
            e('s_mov_b64 exec, 1')
            e('ds_add_u32 v55, v5')
            e('s_mov_b64 exec, -1')
        for i in range(2):
            for j in range(2):
                d = DD + 8 * i + 4 * j
                e('v_mfma_f32_16x16x32_bf16 %s, %s, %s, %s' % (v(d, 4), a(16 * w + 4 * i, 4), a(16 * w + 8 + 4 * j, 4), v(d, 4) if w else '0'))
    e('v_lshl_add_u32 v4, v1, 4, s47')
    e('v_add_u32 v16, 4096, v15')
    e('v_add_u32 v17, 8192, v15')
    for i in range(2):
        for j in range(2):
            d = DD + 8 * i + 4 * j
            o = 92 + 2 * (2 * i + j)
            for k in range(2): e('v_cvt_pk_bf16_f32 %s, %s, %s' % (v(o + k), v(d + 2 * k), v(d + 2 * k + 1)))
            e('ds_write_b64 %s, %s' % (v(45 + 2 * i + j), v(o, 2)))
    e('ds_read_b128 v[68:71], v4')
    e('s_waitcnt vmcnt(0)')
    e('s_mov_b64 exec, 1')
    e('ds_add_u32 v55, v5 offset:4')
    e('s_mov_b64 exec, -1')
    e('s_waitcnt lgkmcnt(1)')
    e('v_min_u32 v68, -2, v68')
    e('s_mov_b32 exec_hi, 0xffff')
    e('global_store_dwordx4 v14, v[68:71], s[14:15] sc1')
    e('s_mov_b32 exec_hi, -1')
    if opts.get('lowmid'): e('s_setprio 0')
    stamp(6)
    def wo_block(first, last):
        e('s_add_u32 s35, s39, %d' % first)
        if first + 3 > last: e('s_min_u32 s35, s35, %d' % last)
        e('s_lshr_b32 s32, s35, 1')
        e('s_add_u32 s32, s32, s26')
        e('s_and_b32 s32, s32, 7')
        e('s_mul_i32 s32, s32, 72')
        e('s_and_b32 s33, s35, 1')
        e('s_lshl_b32 s33, s33, 5')
        e('s_add_u32 s32, s32, s33')
        e('s_add_u32 s32, s32, 8')
        e('s_mul_i32 s32, s32, 1152')
        e('s_mul_i32 s34, s35, 4608')
        if last < 13:
            e('s_add_u32 s33, s34, %d' % (SCR - 6 * 4608))
            e('s_cmp_ge_u32 s35, 6')
            e('s_cselect_b32 s34, s33, s34')
        else:
            e('s_add_u32 s34, s34, %d' % (WQ_LO - 13 * 4608))
        tile144('s[28:31]', 29, 's32')
    e('s_mov_b32 s44, %d' % SPIN)
    e.label('L_b_lcnt')
    e('ds_read_b32 v4, v55')
    e('s_sub_u32 s44, s44, 1')
    e('s_cbranch_scc1 L_b_lcntdone')
    e('s_waitcnt lgkmcnt(0)')
    e('v_cmp_gt_u32 vcc, 4, v4')
    e('s_cbranch_vccnz L_b_lcnt')
    e.label('L_b_lcntdone')
    e('s_waitcnt lgkmcnt(0)')
    nearly = int(opts.get('woearly', 3))
    for k in range(nearly): wo_block(4 * k, 12)
    e('v_lshlrev_b32 v4, 8, v2')
    e('v_lshlrev_b32 v6, 4, v1')
    e('v_sub_u32 v5, v17, v6')
    e('v_add_u32 v4, v4, v5')
    e('s_mov_b32 s44, %d' % SPIN)
    if not opts.get('st4'): stamp(7)
    e('s_cmp_lg_u32 s39, 0')
    e('s_cbranch_scc1 L_b_gather')
    e('s_mov_b64 exec, 15')
    e('global_load_dword v50, v49, s[12:13] offset:4 sc1')
    e('s_mov_b64 exec, -1')
    e.label('L_b_gather')
    X = 64
    for b in range(3):
        for i in range(4): e('global_load_dwordx4 %s, %s, s[14:15] offset:%d sc1' % (v(X + 16 * b + 4 * i, 4), v(15 + b), 1024 * i))
    e('s_mov_b64 s[32:33], 0')
    for k in range(12):
        if k % 4 == 0: e('s_waitcnt vmcnt(%d)' % (8 - k))
        e('v_cmp_eq_u32 vcc, -1, %s' % v(X + 4 * k))
        e('s_or_b64 s[32:33], s[32:33], vcc')
    e('s_cmp_eq_u64 s[32:33], 0')
    e('s_cbranch_scc1 L_b_gathered')
    e('s_mov_b64 exec, 0xffff')
    e.label('L_b_kvprobe')
    e('global_load_dword v5, v4, s[14:15] sc1')
    e('s_sub_u32 s44, s44, 1')
    e('s_cbranch_scc1 L_b_gathered')
    e('s_waitcnt vmcnt(0)')
    e('v_cmp_eq_u32 vcc, -1, v5')
    e('s_cbranch_vccnz L_b_kvprobe')
    e('s_mov_b64 exec, -1')
    e('s_branch L_b_gather')
    e.label('L_b_gathered')
    e('s_mov_b64 exec, -1')
    if not opts.get('st4'): stamp(8)
    for i in range(4):
        for b in range(3):
            e('v_mfma_f32_16x16x32_bf16 %s, v[56:59], %s, %s' % (v(8 + 4 * b, 4), v(X + 16 * b + 4 * i, 4), v(8 + 4 * b, 4) if i else '0'))
    for b in range(3):
        for k in range(2): e('v_cvt_pk_bf16_f32 %s, %s, %s' % (v(20 + 2 * b + k), v(8 + 4 * b + 2 * k), v(8 + 4 * b + 2 * k + 1)))
        e('ds_write_b64 %s, %s' % (v(51 + b), v(20 + 2 * b, 2)))
    for k in range(1, 4): e('ds_write_b64 v54, v[24:25] offset:%d' % (32 * k))
    e('s_cmp_lg_u32 s39, 0')
    e('s_cbranch_scc1 L_b_cnt2done')
    e('s_mov_b64 exec, 15')
    e('s_mov_b32 s44, %d' % SPIN)
    e.label('L_b_cnt2')
    e('v_cmp_gt_u32 vcc, 12, v50')
    e('s_cbranch_vccz L_b_cnt2done')
    e('global_load_dword v50, v49, s[12:13] offset:4 sc1')
    e('s_waitcnt vmcnt(0)')
    e('s_sub_u32 s44, s44, 1')
    e('s_cbranch_scc0 L_b_cnt2')
    e.label('L_b_cnt2done')
    e('s_mov_b64 exec, -1')
    if opts.get('lowend'): e('s_setprio 0')
    e('s_waitcnt lgkmcnt(0)')
    stamp(9)
    e('s_barrier')
    for k in range(nearly, 3): wo_block(4 * k, 12)
    e('s_cmp_lg_u32 s39, 0')
    e('s_cbranch_scc1 L_b_wo13')
    wo_block(12, 12)
    e('s_branch L_b_wo16')
    e.label('L_b_wo13')
    wo_block(12, 15)
    e.label('L_b_wo16')
    e('s_cmp_ge_u32 s39, 2')
    e('s_cbranch_scc1 L_b_wodone')
    e('s_mul_i32 s32, s39, %d' % (288 * 1152))
    e('s_mul_i32 s34, s39, 4608')
    e('s_add_u32 s34, s34, %d' % (WQ_LO + 3 * 4608))
    tile144('s[28:31]', 34, 's32')
    e.label('L_b_wodone')
    e('s_waitcnt vmcnt(0)')
    stamp(10)
    e('s_barrier')
    e('s_endpgm')


def role_h(e, opts, stamp=None):
    stamp = stamp or (lambda i: None)
    e.label('L_roleH')
    e('s_getpc_b64 s[32:33]')
    e.label('L_h_pc')
    e('s_sub_u32 s32, s32, L_h_pc-KERNEL_START')
    e('s_subb_u32 s33, s33, 0')
    if int(opts.get('pfq', 0)):
        e('s_and_b32 s26, s24, 3')
        e('s_lshl_b32 s26, s26, 7')
        e('v_lshl_add_u32 v1, v0, 9, s26')
    else:
        e('v_lshlrev_b32 v1, 7, v0')
    e('v_cmp_gt_u32 vcc, KERNEL_END-KERNEL_START, v1')
    e('s_and_saveexec_b64 s[34:35], vcc')
    e('s_cbranch_execz L_h_nocode')
    if int(opts.get('pfcode', 1)): e('global_load_dword v2, v1, s[32:33]')
    e.label('L_h_nocode')
    e('s_mov_b64 exec, s[34:35]')
    e('s_mov_b32 s41, s24')
    e('s_mov_b32 s42, s25')
    e('s_sub_u32 s26, s2, 224')
    e('s_sub_u32 s27, s24, 8')
    e('s_mul_i32 s27, s27, 6')
    e('s_add_u32 s27, s27, s25')
    e('s_add_u32 s27, s27, 30')
    e('s_cmp_ge_u32 s24, 12')
    e('s_cselect_b32 s26, s26, s27')
    e('s_lshl_b32 s27, s26, 13')
    e('v_lshl_add_u32 v3, v0, 4, s27')
    e('s_mul_i32 s27, s26, 49152')
    e('s_add_u32 s27, s27, %d' % OB)
    e('v_lshl_add_u32 v4, v0, 4, s27')
    e('s_and_b32 s27, s26, 3')
    e('s_lshl_b32 s27, s27, 6')
    e('v_mov_b32 v30, s27')
    e('v_mov_b32 v31, 1')
    def announce(off, tag):
        e('s_waitcnt vmcnt(0)')
        e('s_barrier')
        e('s_cmp_ge_u32 s26, 48')
        e('s_cbranch_scc1 L_h_no%s' % tag)
        e('v_cmp_eq_u32 vcc, 0, v0')
        e('s_and_saveexec_b64 s[34:35], vcc')
        e('s_cbranch_execz L_h_re%s' % tag)
        e('global_atomic_add v30, v31, s[54:55] offset:%d sc1' % off)
        e.label('L_h_re%s' % tag)
        e('s_mov_b64 exec, s[34:35]')
        e.label('L_h_no%s' % tag)
    for k in range(4): e('v_mov_b32 %s, -1' % v(8 + k))
    e('s_and_b32 s24, s24, 3')
    e('s_mul_i32 s24, s24, 144')
    e('s_and_b32 s25, s25, 1')
    e('s_lshl_b32 s25, s25, 9')
    for k in range(2):
        e('v_add_u32 v16, %d, v0' % (512 * k))
        e('v_min_u32 v16, 719, v16')
        div_small(e, 5, 6, 16, 5, 7)
        e('v_add_u32 v5, s24, v5')
        e('v_lshl_add_u32 v6, v6, 7, s25')
        e('v_mul_u32_u24 v7, 3456, v5')
        e('v_mul_u32_u24 v5, 1152, v5')
        e('v_add_u32 %s, v7, v6' % v(14 + k))
        e('v_add_u32 %s, v5, v6' % v(12 + k))
    order = opts.get('horder', 'fwGqkKowc')
    e('s_waitcnt lgkmcnt(0)')
    for n_, ch in enumerate(order):
        stamp(n_)
        if ch == 'w': e('s_waitcnt vmcnt(0)')
        if ch == 'f': first_touch(e, 's41', 's42', 24, 20)
        if ch == 'u': touch_round(e, 's41', 's42', 24, 20, int(opts.get('u0', 1)), 'h0')
        if ch == 'U': touch_round(e, 's41', 's42', 24, 21, int(opts.get('u0', 1)) + 16, 'h1')
        if ch == 'Q': touch_cols(e, 's41', 's42', 24, 22, 's[48:49]', 3456)
        if ch == 'O': touch_cols(e, 's41', 's42', 24, 23, 's[50:51]', 1152)
        if ch == 'G': first_touch(e, 's41', 's42', 24, 21, 5)
        if ch == 'g':
            e('s_and_b32 s39, s41, 3')
            e('s_add_u32 s39, s39, 5')
            for k in range(3): touch_tiles(e, 0, 's39', 384 * k, 384, 's42', 24, 21 + k)
        if ch == 's':
            e('s_mov_b32 s28, %d' % int(opts.get('hspin', 100)))
            e.label('L_h_spin')
            e('s_sleep 1')
            e('s_sub_u32 s28, s28, 1')
            e('s_cbranch_scc0 L_h_spin')
        if ch == 't':
            e('s_and_b32 s27, s2, 7')
            e('s_lshl_b32 s27, s27, 2')
            e('v_mov_b32 v5, s27')
            e('s_mov_b32 s28, %d' % SPIN)
            e('v_readfirstlane_b32 s29, v0')
            e('s_cmp_lg_u32 s29, 0')
            e('s_cbranch_scc1 L_h_trigd')
            e('s_mov_b64 exec, 1')
            e.label('L_h_trig')
            e('global_load_dword v6, v5, s[54:55] offset:16 sc1')
            e('s_sub_u32 s28, s28, 1')
            e('s_cbranch_scc1 L_h_trigd')
            e('s_waitcnt vmcnt(0)')
            e('v_cmp_eq_u32 vcc, 0, v6')
            e('s_cbranch_vccnz L_h_trig')
            e.label('L_h_trigd')
            e('s_mov_b64 exec, -1')
            e('s_barrier')
        if ch == 'q':
            if int(opts.get('nodup', 1)): e('s_cmp_lt_u32 s41, 12\ns_cbranch_scc1 L_h_noq')
            for k in range(2): e('global_load_dword %s, %s, s[48:49]' % (v(16 + k), v(14 + k)))
            e.label('L_h_noq')
        if ch == 'o':
            if int(opts.get('nodup', 1)): e('s_cmp_lt_u32 s41, 12\ns_cbranch_scc1 L_h_noo')
            for k in range(2): e('global_load_dword %s, %s, s[50:51]' % (v(18 + k), v(12 + k)))
            e.label('L_h_noo')
        if ch == 'k':
            e('s_cmp_ge_u32 s26, 48')
            e('s_cbranch_scc1 L_h_nok')
            e('global_store_dwordx4 v3, v[8:11], s[56:57] sc1')
            e.label('L_h_nok')
        if ch == 'K': announce(0, 'K')
        if ch == 'c':
            e('s_cmp_ge_u32 s26, 48')
            e('s_cbranch_scc1 L_h_noc')
            for k in range(6):
                e('global_store_dwordx4 v4, v[8:11], s[56:57] sc1')
                if k < 5: e('v_add_u32 v4, 8192, v4')
            e.label('L_h_noc')
            stamp(8)
            announce(4, 'C')
            stamp(9)
    assert 'k' in order and 'K' in order and 'c' in order
    if 'q' not in order.lower():
        for k in range(2): e('global_load_dword %s, %s, s[48:49]' % (v(16 + k), v(14 + k)))
    if int(opts.get('nodup', 1)): e('s_cmp_lt_u32 s41, 12\ns_cbranch_scc1 L_exit')
    if 'o' not in order.lower() and not opts.get('noo'):
        for k in range(2): e('global_load_dword %s, %s, s[50:51]' % (v(18 + k), v(12 + k)))
    if opts.get('hst'):
        e('v_lshrrev_b32 v2, 6, v0\nv_readfirstlane_b32 s24, v2\ns_branch L_dump')
    e('s_endpgm')
```

```python
from asmlib import *
from gen_a import f2u, LOG2E
EPS = f2u(1e-6)
SLOT = 34816; WOFF = 16384
WQ_LO = SLOT; WQ_HI = 4 * SLOT; IMG = WQ_HI + 3 * 4608
SCR = 3 * SLOT
CST = SLOT - 4096
LCNT = IMG + 9216
STG = WQ_LO + 5 * 4608
def wo_base(ks): return 4608 * ks if ks < 6 else SCR + 4608 * (ks - 6) if ks < 13 else WQ_LO + 4608 * (ks - 13)
KVP = 0; OB = 8 * 4 * 12288; HAND = OB + 16 * 8 * 18 * 1024
SPIN = 20000
def wq_base(ks): return WQ_LO + 4608 * ks if ks < 15 else WQ_HI + 4608 * (ks - 15)

def div_small(e, q, r, x, d, t):
    e('v_mul_u32_u24 %s, %d, %s' % (v(q), (1 << 16) // d + 1, v(x)))
    e('v_lshrrev_b32 %s, 16, %s' % (v(q), v(q)))
    e('v_mul_u32_u24 %s, %d, %s' % (v(t), d, v(q)))
    e('v_sub_u32 %s, %s, %s' % (v(r), v(x), v(t)))
for d in (5, 9, 18):
    assert all((x * ((1 << 16) // d + 1)) >> 16 == x // d for x in range(1024))

def phi_pair(e, x, dst, t, plain=False):
    if plain:
        return [lambda: e('v_mul_f32 %s, s36, %s' % (v(t), v(x))),
                lambda: e('v_mul_f32 %s, s36, %s' % (v(t + 1), v(x + 1))),
                lambda: e('v_max_f32 %s, s38, %s' % (v(t + 2), v(x))),
                lambda: e('v_exp_f32_e64 %s, %s clamp' % (v(t), v(t))),
                lambda: e('v_max_f32 %s, s38, %s' % (v(t + 3), v(x + 1))),
                lambda: e('v_exp_f32_e64 %s, %s clamp' % (v(t + 1), v(t + 1))),
                lambda: e('v_add_f32 %s, %s, %s' % (v(t), v(t), v(t + 2))),
                lambda: e('v_add_f32 %s, %s, %s' % (v(t + 1), v(t + 1), v(t + 3))),
                lambda: e('v_cvt_pk_bf16_f32 %s, %s, %s' % (v(dst), v(t), v(t + 1)))]
    return [lambda: e('v_pk_mul_f32 %s, %s, s[36:37]' % (v(t, 2), v(x, 2))),
            lambda: e('v_max_f32 %s, s38, %s' % (v(t + 2), v(x))),
            lambda: e('v_exp_f32_e64 %s, %s clamp' % (v(t), v(t))),
            lambda: e('v_exp_f32_e64 %s, %s clamp' % (v(t + 1), v(t + 1))),
            lambda: e('v_max_f32 %s, s38, %s' % (v(t + 3), v(x + 1))),
            lambda: e('v_pk_add_f32 %s, %s, %s' % (v(t, 2), v(t, 2), v(t + 2, 2))),
            lambda: e('v_cvt_pk_bf16_f32 %s, %s, %s' % (v(dst), v(t), v(t + 1)))]
def zipper(*streams):
    streams = [list(x) for x in streams]
    while any(streams):
        for st in streams:
            if st: st.pop(0)()

def touch_tiles(e, idx, chunk, lo, n, x_, tmp, dst):
    t0, t1, t2, t3 = tmp, tmp + 1, tmp + 2, tmp + 3
    e('v_min_u32 %s, %d, %s' % (v(t0), n - 1, v(idx)))
    e('v_add_u32 %s, %s, %s' % (v(t0), lo, v(t0)))
    e('s_lshr_b32 s36, %s, 1' % x_)
    e('s_mul_i32 s36, s36, %d' % (512 * 1152))
    e('s_lshl_b32 s37, %s, 7' % chunk)
    e('s_add_u32 s36, s36, s37')
    e('s_and_b32 s37, %s, 1' % x_)
    e('s_lshl_b32 s37, s37, 9')
    e('s_mul_i32 s38, %s, %d' % (chunk, 64 * 3456))
    e('s_add_u32 s37, s37, s38')
    e('s_add_u32 s37, s37, 1152')
    e('v_cmp_gt_u32 vcc, 512, %s' % v(t0))
    e('v_mul_u32_u24 %s, 1152, %s' % (v(t1), v(t0)))
    e('v_add_u32 %s, s36, %s' % (v(t1), v(t1)))
    e('v_subrev_u32 %s, 512, %s' % (v(t0), v(t0)))
    e('v_max_i32 %s, 0, %s' % (v(t0), v(t0)))
    div_small(e, t2, t3, t0, 5, t0 + 4)
    e('v_and_b32 %s, 1, %s' % (v(t0), v(t2)))
    e('v_lshrrev_b32 %s, 1, %s' % (v(t2), v(t2)))
    e('v_mul_u32_u24 %s, 3456, %s' % (v(t2), v(t2)))
    e('v_mul_u32_u24 %s, 1152, %s' % (v(t0), v(t0)))
    e('v_lshl_add_u32 %s, %s, 7, s37' % (v(t3), v(t3)))
    e('v_add3_u32 %s, %s, %s, %s' % (v(t2), v(t2), v(t0), v(t3)))
    e('v_mov_b32 %s, s46' % v(t0))
    e('v_mov_b32 %s, s48' % v(t3))
    e('v_cndmask_b32 %s, %s, %s, vcc' % (v(t1), v(t2), v(t1)))
    e('v_cndmask_b32 %s, %s, %s, vcc' % (v(t2), v(t3), v(t0)))
    e('v_mov_b32 %s, s47' % v(t0))
    e('v_mov_b32 %s, s49' % v(t3))
    e('v_cndmask_b32 %s, %s, %s, vcc' % (v(t3), v(t3), v(t0)))
    e('v_add_co_u32 %s, vcc, %s, %s' % (v(t2), v(t2), v(t1)))
    e('v_addc_co_u32 %s, vcc, 0, %s, vcc' % (v(t3), v(t3)))
    e('global_load_dword %s, %s, off' % (v(dst), v(t2, 2)))

PRIO = [0, 0]
def first_touch(e, j_, x_, tmp, dst, first=1):
    if PRIO[0] == 2 and first > 1:
        e('s_lshr_b32 s39, %s, 2' % j_)
        e('s_add_u32 s39, s39, %d' % first)
        e('s_and_b32 s40, %s, 3' % j_)
    elif PRIO[0] == 1:
        e('s_lshr_b32 s39, %s, 2' % j_)
        e('s_sub_u32 s39, %d, s39' % (first + 3))
        e('s_and_b32 s40, %s, 3' % j_)
    else:
        e('s_and_b32 s39, %s, 3' % j_)
        e('s_add_u32 s39, s39, %d' % first)
        e('s_lshr_b32 s40, %s, 2' % j_)
    if PRIO[1]: e('s_add_u32 s39, s39, %d\ns_min_u32 s39, s39, 8' % PRIO[1])
    e('s_mul_i32 s40, s40, 288')
    touch_tiles(e, 0, 's39', 's40', 288, x_, tmp, dst)

def touch_unit(e, unit, x_, tmp, dst, tag):
    t0, t1 = tmp, tmp + 1
    e('s_mul_i32 s36, %s, 43' % unit)
    e('s_lshr_b32 s36, s36, 7')
    e('s_mul_i32 s37, s36, 3')
    e('s_sub_u32 s37, %s, s37' % unit)
    e('s_cmp_lg_u32 s37, 0')
    e('s_cbranch_scc1 L_tw%s' % tag)
    e('s_lshr_b32 s37, %s, 1' % x_)
    e('s_mul_i32 s37, s37, %d' % (512 * 1152))
    e('s_lshl_b32 s36, s36, 7')
    e('s_add_u32 s36, s36, s37')
    e('v_mul_u32_u24 %s, 1152, v0' % v(t0))
    e('v_add_u32 %s, s36, %s' % (v(t0), v(t0)))
    e('global_load_dword %s, %s, s[46:47]' % (v(dst), v(t0)))
    e('s_branch L_td%s' % tag)
    e.nvm -= 1
    e.label('L_tw%s' % tag)
    e('s_lshl_b32 s36, s36, 1')
    e('s_add_u32 s36, s36, s37')
    e('s_mul_i32 s36, s36, %d' % (32 * 3456))
    e('s_and_b32 s37, %s, 1' % x_)
    e('s_lshl_b32 s37, s37, 9')
    e('s_add_u32 s36, s36, s37')
    e('s_sub_u32 s36, s36, %d' % (32 * 3456 - 1152))
    e('v_and_b32 %s, 15, v0' % v(t1))
    e('v_min_u32 %s, 9, %s' % (v(t1), v(t1)))
    e('v_lshrrev_b32 %s, 4, v0' % v(t0))
    e('v_cmp_lt_u32 vcc, 4, %s' % v(t1))
    e('v_mul_u32_u24 %s, 3456, %s' % (v(t0), v(t0)))
    e('v_lshl_add_u32 %s, %s, 7, %s' % (v(t0), v(t1), v(t0)))
    e('v_cndmask_b32 %s, 0, 4, vcc' % v(t1))
    e('v_lshl_add_u32 %s, %s, 7, s36' % (v(t1), v(t1)))
    e('v_add_u32 %s, %s, %s' % (v(t0), v(t0), v(t1)))
    e('global_load_dword %s, %s, s[48:49]' % (v(dst), v(t0)))
    e.label('L_td%s' % tag)
assert all((u * 43) >> 7 == u // 3 for u in range(40))

def touch_round(e, j_, x_, tmp, dst, first, tag):
    e('s_add_u32 s39, %s, %d' % (j_, first))
    e('s_min_u32 s39, s39, 26')
    touch_unit(e, 's39', x_, tmp, dst, tag)

def touch_cols(e, j_, x_, tmp, dst, base, pitch):
    e('v_min_u32 %s, 179, v0' % v(tmp))
    div_small(e, tmp + 1, tmp + 2, tmp, 5, tmp + 3)
    e('s_mul_i32 s36, %s, %d' % (j_, 36 * pitch))
    e('s_and_b32 s37, %s, 1' % x_)
    e('s_lshl_b32 s37, s37, 9')
    e('s_add_u32 s36, s36, s37')
    e('v_mul_u32_u24 %s, %d, %s' % (v(tmp + 1), pitch, v(tmp + 1)))
    e('v_lshl_add_u32 %s, %s, 7, s36' % (v(tmp + 2), v(tmp + 2)))
    e('v_add_u32 %s, %s, %s' % (v(tmp + 1), v(tmp + 1), v(tmp + 2)))
    e('global_load_dword %s, %s, %s' % (v(dst), v(tmp + 1), base))

def role_b(e, stamp, opts):
    stamp = stamp or (lambda i: None)
    PRIO[0] = int(opts.get('tprio', 0)); PRIO[1] = int(opts.get('tshift', 0))
    rot = int(opts.get('rot', 0))
    e('v_lshrrev_b32 v2, 6, v0')
    e('v_and_b32 v1, 63, v0')
    e('v_readfirstlane_b32 s24, v2')
    e('s_and_b32 s32, s2, 7')
    e('s_lshr_b32 s33, s2, 3')
    e('s_and_b32 s34, s33, 3')
    e('s_lshr_b32 s33, s33, 2')
    e('s_lshr_b32 s25, s32, 1')
    e('s_lshl_b32 s25, s25, 2')
    e('s_add_u32 s25, s25, s34')
    e('s_and_b32 s26, s32, 1')
    e('s_lshl_b32 s26, s26, 2')
    e('s_add_u32 s26, s26, s33')
    if rot:
        e('s_add_u32 s27, s33, s34')
        e('s_and_b32 s27, s27, 3')
        e('s_lshl_b32 s27, s27, 1')
        e('s_lshr_b32 s35, s32, 1')
        e('s_xor_b32 s35, s35, s32')
        e('s_and_b32 s35, s35, 1')
        e('s_add_u32 s27, s27, s35')
    else:
        e('s_mov_b32 s27, 0')
    e('v_and_b32 v2, 15, v1')
    e('v_lshrrev_b32 v3, 4, v1')
    e('s_cmp_lt_u32 s24, 4')
    e('s_cbranch_scc1 L_b_compute')
    loader(e, stamp, opts)
    e.section('compute', False)
    e.label('L_b_compute')
    compute(e, stamp, opts)

MAIL = [(24, 3 * SLOT, 0), (28, 3 * SLOT, 1024), (32, 3 * SLOT, 2048), (36, 3 * SLOT, 3072),
        (44, None, 0), (48, None, 1024), (52, None, 2048), (56, None, 3072), (14, None, 4096),
        (60, 2 * SLOT, 0), (64, 2 * SLOT, 1024)]
def mailbox(e, write, mode):
    e('s_lshl_b32 s32, s39, 12')
    e('s_add_u32 s32, s32, %d' % (2 * SLOT))
    e('v_lshl_add_u32 v4, v1, 4, s32')
    e('s_mul_i32 s32, s39, 4608')
    e('s_add_u32 s32, s32, %d' % (3 * SLOT + WOFF))
    e('v_lshl_add_u32 v5, v1, 4, s32')
    e('v_lshl_add_u32 v6, v1, 3, s32')
    for r, base, off in MAIL[0 if mode == 2 else 4:]:
        n = 2 if r == 14 else 4
        ad = 'v6' if r == 14 else 'v5' if base is None else 'v4'
        o = off + (base - 2 * SLOT if base else 0)
        if write: e('ds_write_b%d %s, %s offset:%d' % (32 * n, ad, v(r, n), o))
        else: e('ds_read_b%d %s, %s offset:%d' % (32 * n, v(r, n), ad, o))

def loader_tables(e, parts='ab'):
    if 'a' in parts:
        for j in range(5):
            e('v_add_u32 v4, %d, v1' % (64 * j))
            div_small(e, 5, 6, 4, 9, 7)
            e('v_lshlrev_b32 v6, 4, v6')
            e('v_add_u32 v6, s40, v6')
            e('v_lshrrev_b32 v4, 3, v5')
            e('v_and_b32 v7, 1, v5')
            e('v_bfe_u32 v5, v5, 1, 2')
            e('v_lshl_add_u32 v19, v7, 2, v5')
            e('v_lshl_add_u32 v39, v4, 3, v19')
            e('v_mul_u32_u24 v39, 3456, v39')
            e('v_add_u32 %s, v39, v6' % v(24 + j))
            e('v_lshl_add_u32 v39, v4, 2, v5')
            e('v_lshl_add_u32 v39, v7, 4, v39')
            e('v_mul_u32_u24 v39, 1152, v39')
            e('v_add_u32 %s, v39, v6' % v(29 + j))
            e('v_mul_u32_u24 v39, 72, v4')
            e('v_add_u32 v39, v39, v19')
            e('v_mul_u32_u24 v39, 1152, v39')
            e('v_add_u32 %s, v39, v6' % v(34 + j))
    if 'b' not in parts: return
    e('s_lshl_b32 s32, s26, 2')
    e('s_add_u32 s32, s32, s39')
    e('s_mul_i32 s32, s32, 12288')
    e('s_add_u32 s32, s32, %d' % KVP)
    e('v_lshl_add_u32 v15, v1, 4, s32')
    e('s_lshl_b32 s33, s25, 8')
    e('s_add_u32 s32, s32, s33')
    e('v_lshlrev_b32 v14, 4, v2')
    e('v_lshl_add_u32 v14, v3, 12, v14')
    e('v_add_u32 v14, s32, v14')
    e('s_mul_i32 s32, s39, 2304')
    e('s_add_u32 s32, s32, %d' % IMG)
    e('v_lshl_add_u32 v4, v1, 4, s32')
    for k in range(4): e('v_mov_b32 %s, 0' % v(40 + k))
    e('ds_write_b128 v4, v[40:43]')
    e('ds_write_b128 v4, v[40:43] offset:1024')
    e('v_lshl_add_u32 v4, v1, 2, s32')
    e('ds_write_b32 v4, v40 offset:2048')
    e('v_mov_b32 v55, %d' % LCNT)
    e('ds_write_b32 v55, v40')
    e('s_lshr_b32 s45, s39, 1')
    e('s_lshl_b32 s46, s39, 1')
    e('s_lshl_b32 s47, s39, 10')
    e('s_add_u32 s47, s47, %d' % CST)
    e('s_add_u32 s32, s47, 768')
    e('v_lshl_add_u32 v44, v2, 3, s32')
    for i in range(2):
        e('v_add_u32 v4, %d, v3' % (4 * i))
        e('v_subrev_u32 v5, s45, v4')
        e('v_cmp_gt_u32 s[48:49], 5, v5')
        for j in range(2):
            e('v_add_u32 v6, %d, v2' % (16 * j - 8))
            e('v_subrev_u32 v6, s46, v6')
            e('v_cmp_gt_u32 vcc, 18, v6')
            e('v_mul_u32_u24 v6, 5, v6')
            e('v_add_u32 v6, v6, v5')
            e('s_and_b64 vcc, vcc, s[48:49]')
            e('v_lshl_add_u32 v6, v6, 3, s47')
            e('v_cndmask_b32 %s, v44, v6, vcc' % v(45 + 2 * i + j))
        e('v_cmp_eq_u32 vcc, 0, v2')
        e('v_add_u32 v6, 90, v5')
        e('v_lshl_add_u32 v6, v6, 3, s47')
        e('s_and_b64 vcc, vcc, s[48:49]')
        e('v_cndmask_b32 %s, %s, v6, vcc' % (v(45 + 2 * i), v(45 + 2 * i)))
    e('s_mul_i32 s32, s39, 18')
    e('s_add_u32 s32, s32, 8')
    e('s_lshl_b32 s33, s39, 2')
    e('s_add_u32 s33, s33, s45')
    e('v_cmp_gt_u32 s[48:49], 2, v3')
    for b in range(3):
        e('v_lshl_add_u32 v4, v2, 1, v3')
        e('v_add_u32 v4, %d, v4' % (32 * b))
        div_small(e, 5, 6, 4, 5, 7)
        e('v_add_u32 v6, s33, v6')
        e('v_add_u32 v7, s32, v5')
        e('v_lshrrev_b32 v19, 4, v7')
        e('v_and_b32 v7, 15, v7')
        e('v_lshrrev_b32 v39, 2, v6')
        e('v_and_b32 v6, 3, v6')
        e('v_lshl_add_u32 v19, v19, 1, v39')
        if b == 2:
            e('v_cmp_eq_u32 vcc, 18, v5')
            e('v_add_u32 v39, 13, v39')
            e('v_cndmask_b32 v19, v19, v39, vcc')
            e('v_mov_b32 v39, s39')
            e('v_cndmask_b32 v7, v7, v39, vcc')
        e('v_lshl_add_u32 v7, v6, 4, v7')
        e('v_lshlrev_b32 v7, 3, v7')
        e('v_lshl_add_u32 v7, v19, 9, v7')
        e('v_add_u32 v7, %d, v7' % IMG)
        if b == 2:
            e('s_and_b64 vcc, vcc, s[48:49]')
            e('v_cndmask_b32 v54, v44, v7, vcc')
            e('v_cmp_gt_u32 vcc, 19, v5')
            e('s_and_b64 s[48:49], vcc, s[48:49]')
        e('v_cndmask_b32 %s, v44, v7, s[48:49]' % v(51 + b))
    e('v_and_b32 v4, 1, v2')
    e('v_lshlrev_b32 v4, 4, v4')
    e('v_mov_b32 v5, 0x3f80')
    e('v_lshlrev_b32 v4, v4, v5')
    e('v_lshrrev_b32 v5, 1, v2')
    for k in range(4):
        e('v_cmp_eq_u32 vcc, %d, v5' % k)
        e('v_cndmask_b32 %s, 0, v4, vcc' % v(56 + k))
    for k in range(4): e('v_mov_b32 %s, 0x3f803f80' % v(8 + 96 + k))
    e('ds_write_b128 v55, v[104:107] offset:16')
    e('ds_write_b128 v55, v[40:43] offset:32')
    e('ds_write_b32 v55, v40 offset:4')
    for k, df in enumerate((0, 1, 5, 6)):
        e('s_add_u32 s32, s39, %d' % df)
        e('s_lshl_b32 s33, s32, 10')
        e('s_add_u32 s34, s33, %d' % SCR)
        e('s_sub_u32 s33, s33, 8192')
        e('s_movk_i32 s48, 4096')
        e.L.append('s_cmp_lt_u32 s32, 8\ns_cselect_b32 s33, s34, s33\ns_cselect_b32 s48, 8192, s48')
        e('v_lshl_add_u32 %s, v1, 4, s33' % v(64 + k))
        e('v_mov_b32 %s, s48' % v(60 + k))
        if k < 3:
            if k == 0: e('v_cmp_gt_u32 vcc, s46, v2')
            if k == 1:
                e('s_add_u32 s32, s46, 2')
                e('v_cmp_le_u32 vcc, s32, v2')
            if k == 2: e('v_cmp_eq_u32 vcc, 0, v2')
            e('v_mov_b32 v4, %d' % (LCNT + (16 if k == 2 else 32)))
            e('v_cndmask_b32 %s, %s, v4, vcc' % (v(64 + k), v(64 + k)))
            e('v_cndmask_b32 %s, %s, v40, vcc' % (v(60 + k), v(60 + k)))
    e('v_and_b32 v49, 3, v1')
    e('v_lshlrev_b32 v49, 6, v49')

def compute(e, stamp, opts):
    e.nvm = 0; e.nlg = 0
    ACC = 8; RING = 80; NR = 6; D = 4
    acc = lambda ct, rt: ACC + 8 * ct + 4 * rt
    if int(opts.get('mail', 1)):
        e('s_mov_b32 s39, s24')
        e('s_mul_i32 s40, s26, 144')
        e('s_waitcnt lgkmcnt(0)')
        t_ = Asm(); loader_tables(t_, 'ab' if int(opts.get('mail', 1)) == 2 else 'b')
        e('\n'.join(t_.L))
        mailbox(e, True, int(opts.get('mail', 1)))
    e('s_mov_b32 s36, 0x%08x' % LOG2E)
    e('s_mov_b32 s37, s36')
    e('s_mov_b32 s38, 0x%08x' % EPS)
    e('s_lshl_b32 s32, s24, 12')
    e('v_and_b32 v104, 7, v2')
    e('v_xor_b32 v105, v3, v104')
    e('v_lshlrev_b32 v106, 7, v2')
    e('v_add_u32 v106, s32, v106')
    e('v_lshl_add_u32 v4, v105, 4, v106')
    e('v_xor_b32 v105, 4, v105')
    e('v_lshl_add_u32 v5, v105, 4, v106')
    e('v_lshrrev_b32 v104, 2, v2')
    e('v_and_b32 v105, 3, v2')
    e('v_lshlrev_b32 v105, 3, v105')
    e('v_lshl_add_u32 v106, v3, 2, v104')
    e('v_mul_u32_u24 v106, 288, v106')
    e('v_add_u32 v106, v106, v105')
    e('v_add_u32 v6, %d, v106' % WOFF)
    e('v_lshlrev_b32 v104, 1, v104')
    e('v_lshl_add_u32 v104, v3, 3, v104')
    e('v_mul_u32_u24 v104, 144, v104')
    e('v_add_u32 v104, v104, v105')
    e('v_add_u32 v7, %d, v104' % WQ_LO)
    e('v_cmp_gt_u32 vcc, 8, v2')
    for k in range(4): e('v_mov_b32 %s, s38' % v(108 + k))
    for k in range(4): e('v_cndmask_b32 %s, 0, v108, vcc' % v(104 + k))
    e('v_cmp_gt_u32 s[40:41], 2, v3')
    e('v_cmp_gt_u32 s[42:43], 3, v3')
    e('s_waitcnt lgkmcnt(0)')
    e('s_mov_b64 s[10:11], s[52:53]')
    e('s_mov_b64 s[14:15], s[56:57]')
    stamp(0)
    e.section('cmain', bool(int(opts.get('cfirst', 1))))
    F = [(p, s_, ct) for p in range(8) for s_ in range(2) for ct in range(9)]
    F += [(8, s_, ct) for s_ in range(2) for ct in range(5)] + [(8, s_, ct) for s_ in range(2) for ct in range(5, 9)]
    tok = {}
    def items(f):
        p, s_, ct = F[f]
        it = []
        if ct == 0 and s_ == 0:
            pre = []
            if p:
                dl = SLOT if p % 4 else -3 * SLOT
                for r in (4, 5, 6): pre.append('v_add_u32 %s, %d, %s' % (v(r), dl, v(r)) if dl > 0 else 'v_subrev_u32 %s, %d, %s' % (v(r), -dl, v(r)))
            if p == 8: pre.append('s_waitcnt lgkmcnt(0)')
            pre.append('s_barrier')
            it.append(lambda: (e('\n'.join(pre)), stamp({0: 1, 4: 2, 8: 3}[p]) if p in (0, 4, 8) else None))
        if ct == 0:
            for rt in range(2): it.append(lambda rt=rt: e('ds_read_b128 %s, %s offset:%d' % (a(16 * p + 8 * s_ + 4 * rt, 4), v(4 + s_), 2048 * rt)))
        r = RING + 4 * (f % NR)
        for h in range(2): it.append(lambda h=h: e('ds_read_b64_tr_b16 %s, v6 offset:%d' % (v(r + 2 * h, 2), 9216 * s_ + 4608 * h + 32 * ct)))
        return it
    for f in range(D):
        for x in items(f): x()
        tok[f] = e.lg()
    def put(fi, r):
        if fi < 8: e('ds_write_b128 v4, %s offset:%d' % (v(r, 4), 1024 * fi))
        else: e('ds_write_b128 v5, %s offset:%d' % (v(r, 4), 1024 * (fi - 8)))
    def phi_tile(x, dst, t, plain):
        zz = [phi_pair(e, x[k], dst[k], t + 4 * k, plain=plain) for k in range(4)]
        return [z[k] for k in range(len(zz[0])) for z in zz]
    def handoff_setup():
        e('s_add_u32 s16, s14, %d' % OB)
        e('s_addc_u32 s17, s15, 0')
        e('s_mov_b32 s18, %d' % (HAND - OB))
        e('s_mov_b32 s19, 0x20000')
        e('s_lshl_b32 s32, s25, 3')
        e('s_lshl_b32 s33, s24, 1')
        e('s_add_u32 s32, s32, s33')
        e('s_mul_i32 s32, s32, %d' % (18 * 1024))
        e('v_lshl_add_u32 v105, v1, 4, s32')
        e('v_add_u32 v106, %d, v105' % (18 * 1024))
        e('s_lshl_b32 s20, s26, 11')
        e('s_lshr_b32 s33, s26, 2')
        e('s_lshl_b32 s33, s33, 10')
        e('s_and_b32 s34, s26, 3')
        e('s_lshl_b32 s34, s34, 8')
        e('s_add_u32 s33, s33, s34')
        e('s_add_u32 s33, s33, s32')
        e('s_add_u32 s33, s33, %d' % (16 * 1024 - 16))
        e('s_movk_i32 s21, %d' % (18 * 1024))
        for jj in range(1, 8):
            e('s_add_u32 %s, s20, %d' % (s(44 + jj), 2048 * jj))
            e('s_and_b32 %s, %s, 0x3fff' % (s(44 + jj), s(44 + jj)))
        e('v_lshlrev_b32 v104, 4, v2')
        e('v_lshl_add_u32 v104, v3, 3, v104')
        e('v_add_u32 v104, s33, v104')
    for f, (p, s_, ct) in enumerate(F):
        it = items(f + D) if f + D < len(F) else []
        if f == 18 - D: handoff_setup()
        e.wait_lg(tok[f])
        for rt in range(2):
            c = v(acc(ct, rt), 4) if f >= 9 else 'v[108:111]' if ct < 4 else 'v[104:107]' if ct == 4 else '0'
            e('v_mfma_f32_16x16x32_bf16 %s, %s, %s, %s' % (v(acc(ct, rt), 4), a(16 * p + 8 * s_ + 4 * rt, 4), v(RING + 4 * (f % NR), 4), c))
            h = (len(it) + 1) // 2
            for x in (it[:h] if rt == 0 else it[h:]): x()
        tok[f + D] = e.lg()
    stamp(4)
    e('s_lshl_b32 s32, s24, 13\ns_add_u32 s32, s32, %d\nv_lshl_add_u32 v4, v1, 4, s32' % SCR)
    e('s_lshl_b32 s32, s24, 12\nv_lshl_add_u32 v5, v1, 4, s32')
    for t in range(5):
        o = acc(t, 0) if t < 4 else 96
        for x in phi_tile([acc(t, 0) + 2 * k for k in range(4)], [o + k for k in range(4)], 80, False): x()
        put(t, o)
        o = acc(4 + t, 0) if t else 100
        for k in range(4): e('v_cvt_pk_bf16_f32 %s, %s, %s' % (v(o + k), v(acc(4 + t, 0) + 2 * k), v(acc(4 + t, 0) + 2 * k + 1)))
        put(5 + t, o)
    e('v_add_u32 v6, %d, v7' % (WQ_HI - WQ_LO))
    e('v_mov_b32 v5, %d' % LCNT)
    e('s_waitcnt lgkmcnt(0)')
    stamp(5)
    e('s_barrier')
    def gemm144(where, c0, G, ring, hook=None, xs=lambda ks, rt: a(8 * ks + 4 * rt, 4)):
        RG, NG, DG = ring
        tk = {}
        def iss(f, h):
            ks, ct = G[f]
            ad, off = where(ks)
            e('ds_read_b64_tr_b16 %s, %s offset:%d' % (v(RG + 4 * (f % NG) + 2 * h, 2), ad, off + 144 * h + 32 * ct))
            tk[f] = e.lg()
        for f in range(DG): iss(f, 0); iss(f, 1)
        for f, (ks, ct) in enumerate(G):
            if hook: hook(f, ks, ct, 0)
            e.wait_lg(tk[f])
            for rt in range(2):
                e('v_mfma_f32_16x16x32_bf16 %s, %s, %s, %s' % (v(acc(ct, rt), 4), v(RG + 4 * (f % NG), 4), xs(ks, rt), v(acc(ct, rt), 4) if ks else c0))
                if f + DG < len(G): iss(f + DG, rt)
                if hook: hook(f, ks, ct, 1 + rt)
    PQ = 48
    def phi_q(t, plain): return phi_tile([acc(t, k >> 1) + 2 * (k & 1) for k in range(4)], [PQ + 10 * (k >> 1) + 2 * t + (k & 1) for k in range(4)], 92 if plain else 68, plain)
    NQ = int(opts.get('nq', 5))
    rest = []
    def qhook(f, ks, ct, ph):
        if opts.get('qst') and ph == 0 and f in (1, 20, 45, 70): stamp({1: 0, 20: 2, 45: 13, 70: 15}[f])
        if f == 40 and ph == 1: e('ds_read_b32 v92, v5 offset:4')
        if f == 54 and ph == 0:
            e('s_mov_b32 s44, %d' % SPIN)
            e.label('L_b_wq')
            e('v_cmp_gt_u32 vcc, 4, v92')
            e('s_cbranch_vccz L_b_wqok')
            e('ds_read_b32 v92, v5 offset:4')
            e.nlg -= 1
            e('s_waitcnt lgkmcnt(0)')
            e('s_sub_u32 s44, s44, 1')
            e('s_cbranch_scc0 L_b_wq')
            e.label('L_b_wqok')
        if f == 18 * NQ + 1 and ph == 0:
            for t in range(NQ): rest.extend(phi_q(t, True))
        if ph and rest: rest.pop(0)()
    gemm144(lambda ks: ('v7', wq_base(ks) - WQ_LO) if ks < 15 else ('v6', wq_base(ks) - WQ_HI), 'v[108:111]',
            [(ks, ct) for ks in range(18) for ct in range(NQ)] + [(ks, ct) for ks in range(18) for ct in range(NQ, 5)], (60, 8, 5) if opts.get('qring') else (68, 6, 4), qhook)
    stamp(6)
    for x in rest: x()
    for t in range(NQ if NQ < 5 else 0, 5):
        for x in phi_q(t, False): x()
    DEN = 68
    e('v_lshlrev_b32 v4, 3, v1')
    e('v_add_u32 v4, %d, v4' % IMG)
    stamp(7)
    e('s_barrier')
    stamp(8)
    t0 = e.lg()
    for pl in list(range(13, 18)) + list(range(13)): e('ds_read_b64 %s, v4 offset:%d' % (a(2 * pl, 2), 512 * pl))
    def mm(d, pl, dt, n, rt, c):
        e('v_mfma_f32_16x16x%d_bf16 %s, %s, %s, %s' % (16 * n, v(d, 4), a(2 * pl, 2 * n), v(PQ + 10 * rt + 2 * dt, 2 * n), c))
    e.wait_lg(t0 + 5)
    for pl, dt, n in ((13, 0, 2), (15, 2, 2), (17, 4, 1)):
        for rt in range(2): mm(DEN + 4 * rt, pl, dt, n, rt, v(DEN + 4 * rt, 4) if dt else 'v[108:111]')
    OUT = PQ
    def scale(rt):
        i = DEN + 4 * rt; t = 76 + 4 * rt; o = OUT + 10 * rt
        pre = [lambda k=k: e('v_rcp_f32 %s, %s' % (v(i + k), v(i + k))) for k in range(4)]
        pre += [lambda: e('v_cndmask_b32 %s, %s, %s, s[42:43]' % (v(t), v(i + 1), v(i))),
                lambda: e('v_cndmask_b32 %s, %s, %s, s[40:41]' % (v(t + 1), v(i + 1), v(i))),
                lambda: e('v_cndmask_b32 %s, %s, %s, s[42:43]' % (v(t + 2), v(i + 2), v(i + 1))),
                lambda: e('v_cndmask_b32 %s, %s, %s, s[42:43]' % (v(t + 3), v(i + 3), v(i + 2)))]
        sc = {0: (i, i), 1: (t, t + 1), 2: (t + 2, t + 2), 3: (i + 2, t + 3), 4: (i + 3, i + 3)}
        st = []
        for u in (0, 4, 1, 2, 3):
            for k in range(2):
                f_ = sc[u][k]
                st.append(lambda u=u, k=k, f_=f_: e('v_pk_mul_f32 %s, %s, %s op_sel:[0,%d] op_sel_hi:[1,%d]' % (v(acc(u, rt) + 2 * k, 2), v(acc(u, rt) + 2 * k, 2), v(f_ & ~1, 2), f_ & 1, f_ & 1)))
        for u in (0, 4, 1, 2, 3):
            d = o + (2 * (u - 1) if u else 8)
            for k in range(2): st.append(lambda u=u, k=k, d=d: e('v_cvt_pk_bf16_f32 %s, %s, %s' % (v(d + k), v(acc(u, rt) + 2 * k), v(acc(u, rt) + 2 * k + 1))))
        for d in (o, o + 4, o + 8): st.append(lambda d=d: e('v_min_u32 %s, -2, %s' % (v(d), v(d))))
        st.append(lambda: e('buffer_store_dwordx4 %s, %s, s[16:19], s20 offen sc1' % (v(o, 4), v(105 + rt))))
        st.append(lambda: e('buffer_store_dwordx4 %s, %s, s[16:19], s20 offen offset:1024 sc1' % (v(o + 4, 4), v(105 + rt))))
        return pre, st
    (p0, s0), (p1, s1) = scale(0), scale(1)
    fill = p0 + p1
    e.wait_lg(t0 + 18)
    for rt in range(2):
        ops = [(u, 2 * u + first, first, 2, '0') for u, first in enumerate((0, 0, 1, 2, 3))]
        ops = [ops[1], ops[2], ops[3], ops[0], ops[4]] + [(u, 2 * u + first + 2, first + 2, 1, None) for u, first in ((1, 0), (2, 1), (3, 2))]
        for k, (u, pl, dt, n, c) in enumerate(ops):
            mm(acc(u, rt), pl, dt, n, rt, c or v(acc(u, rt), 4))
            if rt or k >= 2:
                for x in fill[:2]: x()
                fill = fill[2:]
    for x in fill + s0 + s1: x()
    e('s_mov_b32 exec_lo, 0')
    e('buffer_store_dwordx2 %s, v104, s[16:19], 0 offen sc1' % v(OUT + 8, 2))
    e('buffer_store_dwordx2 %s, v104, s[16:19], s21 offen sc1' % v(OUT + 18, 2))
    e('s_mov_b32 exec_lo, -1')
    stamp(9)
    e('v_subrev_u32 v7, %d, v7' % WQ_LO)
    e('v_add_u32 v6, %d, v7' % SCR)
    e('s_mov_b32 s39, 0')
    e('s_movk_i32 s23, %d' % (16 * 1024))
    e('s_barrier')
    e.label('L_b_gemm2')
    otok = {}
    AHEAD = int(opts.get('ahead', 4))
    osrc = lambda ks, rt: v(OUT + 10 * rt + 4 * ks, 4) if ks < 2 else a(8 * ks + 4 * rt, 4)
    def oload(j, rt):
        e('buffer_load_dwordx4 %s, %s, s[16:19], %s offen%s %s' % (osrc(j, rt), v(105 + rt), s(44 + (j >> 1)) if j < 16 else 's23', ' offset:1024' if j & 1 else '', opts.get('old', 'sc1').replace('_', ' ')))
        otok[j] = e.vm()
    pend = [(j, rt) for j in range(2, 18) for rt in range(2)]
    tail = []
    def put_out(ct):
        r = []
        for rt in range(2):
            d = 48 + 4 * ct + 2 * rt
            for k in range(2): r.append(lambda d=d, k=k, rt=rt: e('v_cvt_pk_bf16_f32 %s, %s, %s' % (v(d + k), v(acc(ct, rt) + 2 * k), v(acc(ct, rt) + 2 * k + 1))))
            r.append(lambda d=d, rt=rt: e('ds_write_b64 v4, %s offset:%d' % (v(d, 2), 2304 * rt + 32 * ct)))
        return r
    def hook(f, ks, ct, ph):
        if f == 10 and ph == 0:
            e('s_lshl_b32 s32, s25, 7')
            e('s_lshl_b32 s33, s24, 5')
            e('s_add_u32 s32, s32, s33')
            e('s_mul_i32 s32, s32, 2304')
            e('s_mul_i32 s33, s26, 144')
            e('s_add_u32 s32, s32, s33')
            e('s_add_u32 s32, s32, 1152')
            for j in range(5):
                e('v_add_u32 v48, %d, v1' % (64 * j))
                div_small(e, 49, 50, 48, 9, 51)
                e('v_mul_u32_u24 v49, 2304, v49')
                e('v_lshl_add_u32 v49, v50, 4, v49')
                e('v_add_u32 %s, s32, v49' % v(108 + j if j < 4 else 104))
            e('s_mul_i32 s33, s24, 4608')
            e('s_add_u32 s33, s33, %d' % STG)
            e('v_mul_u32_u24 v4, 144, v2')
            e('v_lshl_add_u32 v4, v3, 3, v4')
            e('v_add_u32 v4, s33, v4')
            e('v_lshl_add_u32 v5, v1, 4, s33')
            e('s_mov_b32 s44, %d' % SPIN)
            e('v_lshlrev_b32 v107, 8, v1')
            e('v_lshlrev_b32 v48, 4, v1')
            e('v_sub_u32 v107, v107, v48')
            e('v_add_u32 v107, v107, v106')
            for _ in range(int(opts.get('pdelay', 0))): e('s_nop 15')
            e('s_mov_b64 exec, 0xff')
            e.label('L_b_probe')
            e('buffer_load_dword v68, v107, s[16:19], s23 offen offset:248 sc1')
            e('s_sub_u32 s44, s44, 1')
            e('s_cbranch_scc1 L_b_probed')
            e('s_waitcnt vmcnt(0)')
            e('v_cmp_eq_u32 vcc, -1, v68')
            e('s_cbranch_vccnz L_b_probe')
            e.label('L_b_probed')
            e('s_mov_b64 exec, -1')
            if opts.get('count'): e('s_sub_u32 s92, s62, s44\ns_add_u32 s92, s92, %d' % SPIN)
            stamp(10)
            e.nvm = 0
            for _ in range(2 * AHEAD): oload(*pend.pop(0))
            stamp(11)
        if ct == 0 and ph == 0 and 2 <= ks: e.wait_vm(otok[ks])
        if opts.get('gst') and ct == 0 and ph == 0 and ks in (2, 6, 10, 14): stamp({2: 0, 6: 1, 10: 2, 14: 3}[ks])
        if ph == 1 and pend and f >= 10 and ct in ((0, 1, 2, 3) if f < 25 else (1, 3)): oload(*pend.pop(0))
        if ks == 17:
            if ph == 0 and 2 <= ct: tail.extend(put_out(ct - 2))
            if ph:
                for x in tail[:2]: x()
                del tail[:2]
    gemm144(lambda ks: ('v6', wo_base(ks) - SCR) if 6 <= ks < 13 else ('v7', wo_base(ks)), '0',
            [(ks, ct) for ks in range(18) for ct in range(5)], (72, 8, 5), hook, osrc)
    stamp(12)
    for x in tail + put_out(3): x()
    e('s_cmp_lg_u32 s39, 0')
    e('s_cbranch_scc1 L_b_store')
    e('v_cmp_u_f32 vcc, %s, %s' % (v(acc(0, 0)), v(acc(0, 1))))
    e('s_cbranch_vccnz L_b_strict')
    e.label('L_b_store')
    e('s_mov_b32 exec_hi, 0')
    for x in put_out(4): x()
    e('s_mov_b32 exec_hi, -1')
    t0 = e.lg()
    for j in range(5): e('ds_read_b128 %s, v5 offset:%d' % (v(8 + 4 * j, 4), 1024 * j))
    for j in range(5):
        e.wait_lg(t0 + j + 1)
        if j == 4: e('s_mov_b32 exec_hi, 0')
        e('global_store_dwordx4 %s, %s, s[10:11] %s' % (v(108 + j if j < 4 else 104), v(8 + 4 * j, 4), opts.get('ost', '')))
    e('s_mov_b32 exec_hi, -1')
    if not opts.get('qst'): stamp(13)
    e('s_endpgm')
    e.section('strict', False)
    e.label('L_b_strict')
    e('s_mov_b32 s39, 1')
    e('s_mov_b32 s44, %d' % SPIN)
    e.label('L_b_strict1')
    for ks in range(18):
        e('s_movk_i32 s22, %d' % (1024 * ks))
        for rt in range(2): e('buffer_load_dwordx4 %s, %s, s[16:19], s22 offen sc1' % (a(8 * ks + 4 * rt, 4), v(105 + rt)))
    for rt in range(2):
        for k in range(2): e('buffer_load_dwordx4 %s, %s, s[16:19], s20 offen offset:%d sc1' % (v(OUT + 10 * rt + 4 * k, 4), v(105 + rt), 1024 * k))
    e('s_waitcnt vmcnt(0)')
    e('s_sub_u32 s44, s44, 1')
    e('s_cbranch_scc1 L_b_gemm2')
    e('s_mov_b64 s[32:33], 0')
    for k in range(72):
        if (k & 1) == 0 or k >= 64:
            e('v_accvgpr_read_b32 v68, %s' % a(2 * k))
            e('v_cmp_eq_u32 vcc, -1, v68')
            e('s_or_b64 s[32:33], s[32:33], vcc')
    e('s_cmp_lg_u64 s[32:33], 0')
    e('s_cbranch_scc1 L_b_strict1')
    e('s_branch L_b_gemm2')

def loader(e, stamp, opts):
    e.nvm = 0; e.nlg = 0
    if int(opts.get('lp0', 2)): e('s_setprio %d' % int(opts.get('lp0', 2)))
    e('s_sub_u32 s39, s24, 4')
    e('v_lshrrev_b32 v4, 3, v1')
    e('v_and_b32 v5, 7, v1')
    e('v_xor_b32 v5, v5, v4')
    e('s_lshl_b32 s32, s25, 7')
    e('s_lshl_b32 s33, s39, 5')
    e('s_add_u32 s32, s32, s33')
    e('v_add_u32 v4, s32, v4')
    e('v_mul_u32_u24 v4, 1152, v4')
    e('v_lshl_add_u32 v8, v5, 4, v4')
    e('s_lshr_b32 s32, s39, 1')
    e('s_lshl_b32 s32, s32, 5')
    e('s_and_b32 s33, s39, 1')
    e('s_lshl_b32 s33, s33, 2')
    e('s_add_u32 s32, s32, s33')
    e('s_mul_i32 s40, s26, 144')
    e('s_mul_i32 s32, s32, 3456')
    e('s_add_u32 s32, s32, s40')
    e('s_add_u32 s32, s32, 1152')
    def woff(j):
        e('v_add_u32 v4, %d, v1' % (64 * j))
        div_small(e, 5, 6, 4, 18, 7)
        e('v_and_b32 v4, 12, v5')
        e('v_add_u32 v4, v4, v5')
        e('v_mul_u32_u24 v4, 3456, v4')
        e('v_cmp_lt_u32 vcc, 8, v6')
        e('v_lshl_add_u32 v4, v6, 4, v4')
        e('v_add_u32 v4, s32, v4')
        e('v_add_u32 v5, 1008, v4')
        e('v_cndmask_b32 %s, v4, v5, vcc' % v(9 + j))
    e('s_lshl_b32 s41, s39, 12')
    e('s_mul_i32 s42, s39, 4608')
    e('s_add_u32 s42, s42, %d' % WOFF)
    e('s_mov_b32 s43, s27')
    e('s_mov_b32 s22, %d\ns_mov_b32 s23, 0x20000' % (576 * 3456))
    e('s_mov_b32 s30, %d\ns_mov_b32 s31, 0x20000' % (576 * 1152))
    e('s_waitcnt lgkmcnt(0)')
    e('s_mov_b64 s[16:17], s[46:47]\ns_mov_b32 s18, %d\ns_mov_b32 s19, 0x20000' % (2048 * 1152))
    e('s_mov_b64 s[20:21], s[48:49]\ns_mov_b64 s[28:29], s[50:51]\ns_mov_b64 s[12:13], s[54:55]\ns_mov_b64 s[14:15], s[56:57]')

    mail = int(opts.get('mail', 1))
    main = e; sd = Asm()
    if mail < 2: loader_tables(sd, 'a' if mail else 'ab')
    sd('s_mul_i32 s58, s39, %d' % (32 * 3456))
    if mail:
        sd('s_lshl_b32 s47, s39, 10')
        sd('s_add_u32 s47, s47, %d' % CST)
        for k in range(2): sd('v_mov_b32 %s, 0' % v(40 + k))
    e = main
    side = list(sd.L); done = [0]
    def run_side(n=None, upto=None):
        stop = upto if upto is not None else min(len(side), done[0] + n)
        while done[0] < stop:
            e(side[done[0]]); done[0] += 1

    ctok = {}
    def chunk(p, per, mid=None):
        sl = SLOT * (p % 4)
        e('s_lshl_b32 s3, s43, 7')
        e('s_mul_i32 s35, s43, %d' % (64 * 3456))
        for j in range(4):
            e('s_add_u32 m0, s41, %d' % (sl + 1024 * j))
            if j: e('s_add_u32 s3, s3, 9216')
            e('buffer_load_dwordx4 v8, s[16:19], s3 offen lds')
            run_side(per)
        for j in range(5):
            if mid: mid(j)
            e('s_add_u32 m0, s42, %d' % (sl + 1024 * j))
            if j == 4: e('s_mov_b32 exec_hi, 0')
            e('buffer_load_dwordx4 %s, s[20:23], s35 offen lds' % v(9 + j))
            if j < 4: run_side(per)
        e('s_mov_b32 exec_hi, -1')
        e('s_add_u32 s43, s43, 1')
        e('s_cmp_eq_u32 s43, 9')
        e('s_cselect_b32 s43, 0, s43')
        ctok[p] = e.vm()
    stamp(1)
    chunk(0, 0, woff)
    early = int(opts.get('early', 170))
    if early:
        e.section('loader')
        run_side(early)
    chunk(1, 0)
    stamp(0)
    if not early: e.section('loader')
    def tile144(srd, vregs, soff):
        for j in range(5):
            e('s_add_u32 m0, s34, %d' % (1024 * j))
            if j == 4: e('s_mov_b32 exec_hi, 0')
            e('buffer_load_dwordx4 %s, %s, %s offen lds' % (v(vregs + j), srd, soff))
        e('s_mov_b32 exec_hi, -1')
    def wq_group(lo, n):
        for rnd in range((n + 3) // 4):
            b0 = lo + 4 * rnd
            if int(opts.get('rot', 0)) == 0 and b0 + 3 < 15:
                e('s_add_u32 s32, s58, %d' % (b0 * 32 * 3456))
                e('s_add_u32 s34, s42, %d' % (WQ_LO + 4608 * b0 - WOFF))
                tile144('s[20:23]', 24, 's32')
                continue
            e('s_add_u32 s35, s39, %d' % (lo + 4 * rnd))
            if 4 * rnd + 4 > n: e('s_min_u32 s35, s35, %d' % (lo + n - 1))
            e('s_lshr_b32 s32, s35, 1')
            e('s_add_u32 s32, s32, s27')
            e('s_sub_u32 s33, s32, 9')
            e('s_cmp_ge_u32 s32, 9')
            e('s_cselect_b32 s32, s33, s32')
            e('s_lshl_b32 s32, s32, 1')
            e('s_and_b32 s33, s35, 1')
            e('s_add_u32 s32, s32, s33')
            e('s_mul_i32 s32, s32, %d' % (32 * 3456))
            e('s_mul_i32 s34, s35, 4608')
            if lo + 4 * rnd + 3 >= 15:
                e('s_add_u32 s33, s34, %d' % (WQ_HI - WQ_LO - 15 * 4608))
                e('s_cmp_ge_u32 s35, 15')
                e('s_cselect_b32 s34, s33, s34')
            e('s_add_u32 s34, s34, %d' % WQ_LO)
            tile144('s[20:23]', 24, 's32')
    for p in range(9):
        if opts.get('st4') and p == 5: stamp(7)
        e.wait_vm(ctok[p])
        if opts.get('st4') and p == 5: stamp(8)
        e('s_barrier')
        if p in (1, 2, 3, 5, 6): stamp({1: 11, 2: 12, 3: 13, 5: 14, 6: 15}[p])
        if opts.get('st4') and p in (4, 7): stamp({4: 0, 7: 1}[p])
        if p == 0:
            stamp(2)
        if 't' in opts.get('horder', '') and p == int(opts.get('trig', 2)):
            e('s_or_b32 s3, s39, s2')
            e('s_cmp_ge_u32 s3, 8')
            e('s_cbranch_scc1 L_b_notrig')
            e('s_cmp_lg_u32 s39, 0')
            e('s_cbranch_scc1 L_b_notrig')
            e('s_lshl_b32 s3, s2, 2')
            e('v_mov_b32 v20, s3')
            e('v_mov_b32 v21, 1')
            e('s_mov_b64 exec, 1')
            e('global_store_dword v20, v21, s[12:13] offset:16 sc1')
            e('s_mov_b64 exec, -1')
            e.nvm -= 1
            e.label('L_b_notrig')
        if p == 0 and mail:
            mailbox(e, False, mail)
            e('s_waitcnt lgkmcnt(0)')
        if p <= 6: chunk(p + 2, int(opts.get('per', 3)))
        if p == 6: run_side(upto=len(side))
        if p == 7: wq_group(0, 4)
        if p == 8:
            if opts.get('low8'): e('s_setprio 0')
            wq_group(4, 8)
            e('s_cmp_lg_u32 s39, 0')
            e('s_cbranch_scc1 L_b_nocnt')
            e('s_mov_b64 exec, 15')
            e('global_load_dword v20, v49, s[12:13] sc1')
            e('s_mov_b64 exec, -1')
            e.label('L_b_nocnt')
            t_wq = e.vm()
            wq_group(12, 6)
    stamp(3)
    e.wait_vm(t_wq)
    e('s_cmp_lg_u32 s39, 0')
    e('s_cbranch_scc1 L_b_cntdone')
    e('s_mov_b64 exec, 15')
    e('v_cmp_gt_u32 vcc, 12, v20')
    e('s_cbranch_vccz L_b_cntdone')
    e('s_mov_b32 s44, %d' % SPIN)
    e.label('L_b_cnt')
    e('global_load_dword v20, v49, s[12:13] sc1')
    e('s_sub_u32 s44, s44, 1')
    e('s_cbranch_scc1 L_b_cntdone')
    e('s_waitcnt vmcnt(0)')
    e('v_cmp_gt_u32 vcc, 12, v20')
    e('s_cbranch_vccnz L_b_cnt')
    e.label('L_b_cntdone')
    e('s_mov_b64 exec, -1')
    e('s_waitcnt lgkmcnt(0)')
    stamp(4)
    e('s_barrier')
    stamp(5)
    lp = opts.get('lpos', 'a')
    if lp == 'a': e('s_setprio %d' % int(opts.get('lprio', 2)))
    if lp == 'c': e('s_nop 15')
    tk = []
    for w in range(4):
        for k in range(4):
            e('ds_read_b128 %s, %s' % (a(16 * w + 4 * k, 4), v(64 + k)))
            if w < 3: e('v_add_u32 %s, %s, %s' % (v(64 + k), v(60 + k), v(64 + k)))
        tk.append(e.lg())
    if lp != 'a': e('s_setprio %d' % int(opts.get('lprio', 2)))
    e('v_mov_b32 v4, s47')
    e('v_mov_b32 v5, 1')
    e('ds_write_b64 v4, v[40:41] offset:760')
    DD = 68
    for w in range(4):
        e.wait_lg(tk[w])
        if w == 3:
            e('s_mov_b64 exec, 1')
            e('ds_add_u32 v55, v5')
            e('s_mov_b64 exec, -1')
        for i in range(2):
            for j in range(2):
                d = DD + 8 * i + 4 * j
                e('v_mfma_f32_16x16x32_bf16 %s, %s, %s, %s' % (v(d, 4), a(16 * w + 4 * i, 4), a(16 * w + 8 + 4 * j, 4), v(d, 4) if w else '0'))
    e('v_lshl_add_u32 v4, v1, 4, s47')
    e('v_add_u32 v16, 4096, v15')
    e('v_add_u32 v17, 8192, v15')
    for i in range(2):
        for j in range(2):
            d = DD + 8 * i + 4 * j
            o = 92 + 2 * (2 * i + j)
            for k in range(2): e('v_cvt_pk_bf16_f32 %s, %s, %s' % (v(o + k), v(d + 2 * k), v(d + 2 * k + 1)))
            e('ds_write_b64 %s, %s' % (v(45 + 2 * i + j), v(o, 2)))
    e('ds_read_b128 v[68:71], v4')
    e('s_waitcnt vmcnt(0)')
    e('s_mov_b64 exec, 1')
    e('ds_add_u32 v55, v5 offset:4')
    e('s_mov_b64 exec, -1')
    e('s_waitcnt lgkmcnt(1)')
    e('v_min_u32 v68, -2, v68')
    e('s_mov_b32 exec_hi, 0xffff')
    e('global_store_dwordx4 v14, v[68:71], s[14:15] sc1')
    e('s_mov_b32 exec_hi, -1')
    if opts.get('lowmid'): e('s_setprio 0')
    stamp(6)
    def wo_block(first, last):
        e('s_add_u32 s35, s39, %d' % first)
        if first + 3 > last: e('s_min_u32 s35, s35, %d' % last)
        e('s_lshr_b32 s32, s35, 1')
        e('s_add_u32 s32, s32, s26')
        e('s_and_b32 s32, s32, 7')
        e('s_mul_i32 s32, s32, 72')
        e('s_and_b32 s33, s35, 1')
        e('s_lshl_b32 s33, s33, 5')
        e('s_add_u32 s32, s32, s33')
        e('s_add_u32 s32, s32, 8')
        e('s_mul_i32 s32, s32, 1152')
        e('s_mul_i32 s34, s35, 4608')
        if last < 13:
            e('s_add_u32 s33, s34, %d' % (SCR - 6 * 4608))
            e('s_cmp_ge_u32 s35, 6')
            e('s_cselect_b32 s34, s33, s34')
        else:
            e('s_add_u32 s34, s34, %d' % (WQ_LO - 13 * 4608))
        tile144('s[28:31]', 29, 's32')
    e('s_mov_b32 s44, %d' % SPIN)
    e.label('L_b_lcnt')
    e('ds_read_b32 v4, v55')
    e('s_sub_u32 s44, s44, 1')
    e('s_cbranch_scc1 L_b_lcntdone')
    e('s_waitcnt lgkmcnt(0)')
    e('v_cmp_gt_u32 vcc, 4, v4')
    e('s_cbranch_vccnz L_b_lcnt')
    e.label('L_b_lcntdone')
    e('s_waitcnt lgkmcnt(0)')
    nearly = int(opts.get('woearly', 3))
    for k in range(nearly): wo_block(4 * k, 12)
    e('v_lshlrev_b32 v4, 8, v2')
    e('v_lshlrev_b32 v6, 4, v1')
    e('v_sub_u32 v5, v17, v6')
    e('v_add_u32 v4, v4, v5')
    e('s_mov_b32 s44, %d' % SPIN)
    if not opts.get('st4'): stamp(7)
    e('s_cmp_lg_u32 s39, 0')
    e('s_cbranch_scc1 L_b_gather')
    e('s_mov_b64 exec, 15')
    e('global_load_dword v50, v49, s[12:13] offset:4 sc1')
    e('s_mov_b64 exec, -1')
    e.label('L_b_gather')
    X = 64
    for b in range(3):
        for i in range(4): e('global_load_dwordx4 %s, %s, s[14:15] offset:%d sc1' % (v(X + 16 * b + 4 * i, 4), v(15 + b), 1024 * i))
    e('s_mov_b64 s[32:33], 0')
    for k in range(12):
        if k % 4 == 0: e('s_waitcnt vmcnt(%d)' % (8 - k))
        e('v_cmp_eq_u32 vcc, -1, %s' % v(X + 4 * k))
        e('s_or_b64 s[32:33], s[32:33], vcc')
    e('s_cmp_eq_u64 s[32:33], 0')
    e('s_cbranch_scc1 L_b_gathered')
    e('s_mov_b64 exec, 0xffff')
    e.label('L_b_kvprobe')
    e('global_load_dword v5, v4, s[14:15] sc1')
    e('s_sub_u32 s44, s44, 1')
    e('s_cbranch_scc1 L_b_gathered')
    e('s_waitcnt vmcnt(0)')
    e('v_cmp_eq_u32 vcc, -1, v5')
    e('s_cbranch_vccnz L_b_kvprobe')
    e('s_mov_b64 exec, -1')
    e('s_branch L_b_gather')
    e.label('L_b_gathered')
    e('s_mov_b64 exec, -1')
    if not opts.get('st4'): stamp(8)
    for i in range(4):
        for b in range(3):
            e('v_mfma_f32_16x16x32_bf16 %s, v[56:59], %s, %s' % (v(8 + 4 * b, 4), v(X + 16 * b + 4 * i, 4), v(8 + 4 * b, 4) if i else '0'))
    for b in range(3):
        for k in range(2): e('v_cvt_pk_bf16_f32 %s, %s, %s' % (v(20 + 2 * b + k), v(8 + 4 * b + 2 * k), v(8 + 4 * b + 2 * k + 1)))
        e('ds_write_b64 %s, %s' % (v(51 + b), v(20 + 2 * b, 2)))
    for k in range(1, 4): e('ds_write_b64 v54, v[24:25] offset:%d' % (32 * k))
    e('s_cmp_lg_u32 s39, 0')
    e('s_cbranch_scc1 L_b_cnt2done')
    e('s_mov_b64 exec, 15')
    e('s_mov_b32 s44, %d' % SPIN)
    e.label('L_b_cnt2')
    e('v_cmp_gt_u32 vcc, 12, v50')
    e('s_cbranch_vccz L_b_cnt2done')
    e('global_load_dword v50, v49, s[12:13] offset:4 sc1')
    e('s_waitcnt vmcnt(0)')
    e('s_sub_u32 s44, s44, 1')
    e('s_cbranch_scc0 L_b_cnt2')
    e.label('L_b_cnt2done')
    e('s_mov_b64 exec, -1')
    if opts.get('lowend'): e('s_setprio 0')
    e('s_waitcnt lgkmcnt(0)')
    stamp(9)
    e('s_barrier')
    for k in range(nearly, 3): wo_block(4 * k, 12)
    e('s_cmp_lg_u32 s39, 0')
    e('s_cbranch_scc1 L_b_wo13')
    wo_block(12, 12)
    e('s_branch L_b_wo16')
    e.label('L_b_wo13')
    wo_block(12, 15)
    e.label('L_b_wo16')
    e('s_cmp_ge_u32 s39, 2')
    e('s_cbranch_scc1 L_b_wodone')
    e('s_mul_i32 s32, s39, %d' % (288 * 1152))
    e('s_mul_i32 s34, s39, 4608')
    e('s_add_u32 s34, s34, %d' % (WQ_LO + 3 * 4608))
    tile144('s[28:31]', 34, 's32')
    e.label('L_b_wodone')
    e('s_waitcnt vmcnt(0)')
    stamp(10)
    e('s_barrier')
    e('s_endpgm')


def role_h(e, opts, stamp=None):
    stamp = stamp or (lambda i: None)
    e.label('L_roleH')
    e('s_getpc_b64 s[32:33]')
    e.label('L_h_pc')
    e('s_sub_u32 s32, s32, L_h_pc-KERNEL_START')
    e('s_subb_u32 s33, s33, 0')
    if int(opts.get('pfq', 0)):
        e('s_and_b32 s26, s24, 3')
        e('s_lshl_b32 s26, s26, 7')
        e('v_lshl_add_u32 v1, v0, 9, s26')
    else:
        e('v_lshlrev_b32 v1, 7, v0')
    e('v_cmp_gt_u32 vcc, KERNEL_END-KERNEL_START, v1')
    e('s_and_saveexec_b64 s[34:35], vcc')
    e('s_cbranch_execz L_h_nocode')
    if int(opts.get('pfcode', 1)): e('global_load_dword v2, v1, s[32:33]')
    e.label('L_h_nocode')
    e('s_mov_b64 exec, s[34:35]')
    e('s_mov_b32 s41, s24')
    e('s_mov_b32 s42, s25')
    e('s_sub_u32 s26, s2, 224')
    e('s_sub_u32 s27, s24, 8')
    e('s_mul_i32 s27, s27, 6')
    e('s_add_u32 s27, s27, s25')
    e('s_add_u32 s27, s27, 30')
    e('s_cmp_ge_u32 s24, 12')
    e('s_cselect_b32 s26, s26, s27')
    e('s_lshl_b32 s27, s26, 13')
    e('v_lshl_add_u32 v3, v0, 4, s27')
    e('s_mul_i32 s27, s26, 49152')
    e('s_add_u32 s27, s27, %d' % OB)
    e('v_lshl_add_u32 v4, v0, 4, s27')
    e('s_and_b32 s27, s26, 3')
    e('s_lshl_b32 s27, s27, 6')
    e('v_mov_b32 v30, s27')
    e('v_mov_b32 v31, 1')
    def announce(off, tag):
        e('s_waitcnt vmcnt(0)')
        e('s_barrier')
        e('s_cmp_ge_u32 s26, 48')
        e('s_cbranch_scc1 L_h_no%s' % tag)
        e('v_cmp_eq_u32 vcc, 0, v0')
        e('s_and_saveexec_b64 s[34:35], vcc')
        e('s_cbranch_execz L_h_re%s' % tag)
        e('global_atomic_add v30, v31, s[54:55] offset:%d sc1' % off)
        e.label('L_h_re%s' % tag)
        e('s_mov_b64 exec, s[34:35]')
        e.label('L_h_no%s' % tag)
    for k in range(4): e('v_mov_b32 %s, -1' % v(8 + k))
    e('s_and_b32 s24, s24, 3')
    e('s_mul_i32 s24, s24, 144')
    e('s_and_b32 s25, s25, 1')
    e('s_lshl_b32 s25, s25, 9')
    for k in range(2):
        e('v_add_u32 v16, %d, v0' % (512 * k))
        e('v_min_u32 v16, 719, v16')
        div_small(e, 5, 6, 16, 5, 7)
        e('v_add_u32 v5, s24, v5')
        e('v_lshl_add_u32 v6, v6, 7, s25')
        e('v_mul_u32_u24 v7, 3456, v5')
        e('v_mul_u32_u24 v5, 1152, v5')
        e('v_add_u32 %s, v7, v6' % v(14 + k))
        e('v_add_u32 %s, v5, v6' % v(12 + k))
    order = opts.get('horder', 'fwGqkKowc')
    e('s_waitcnt lgkmcnt(0)')
    for n_, ch in enumerate(order):
        stamp(n_)
        if ch == 'w': e('s_waitcnt vmcnt(0)')
        if ch == 'f': first_touch(e, 's41', 's42', 24, 20)
        if ch == 'u': touch_round(e, 's41', 's42', 24, 20, int(opts.get('u0', 1)), 'h0')
        if ch == 'U': touch_round(e, 's41', 's42', 24, 21, int(opts.get('u0', 1)) + 16, 'h1')
        if ch == 'Q': touch_cols(e, 's41', 's42', 24, 22, 's[48:49]', 3456)
        if ch == 'O': touch_cols(e, 's41', 's42', 24, 23, 's[50:51]', 1152)
        if ch == 'G': first_touch(e, 's41', 's42', 24, 21, 5)
        if ch == 'g':
            e('s_and_b32 s39, s41, 3')
            e('s_add_u32 s39, s39, 5')
            for k in range(3): touch_tiles(e, 0, 's39', 384 * k, 384, 's42', 24, 21 + k)
        if ch == 's':
            e('s_mov_b32 s28, %d' % int(opts.get('hspin', 100)))
            e.label('L_h_spin')
            e('s_sleep 1')
            e('s_sub_u32 s28, s28, 1')
            e('s_cbranch_scc0 L_h_spin')
        if ch == 't':
            e('s_and_b32 s27, s2, 7')
            e('s_lshl_b32 s27, s27, 2')
            e('v_mov_b32 v5, s27')
            e('s_mov_b32 s28, %d' % SPIN)
            e('v_readfirstlane_b32 s29, v0')
            e('s_cmp_lg_u32 s29, 0')
            e('s_cbranch_scc1 L_h_trigd')
            e('s_mov_b64 exec, 1')
            e.label('L_h_trig')
            e('global_load_dword v6, v5, s[54:55] offset:16 sc1')
            e('s_sub_u32 s28, s28, 1')
            e('s_cbranch_scc1 L_h_trigd')
            e('s_waitcnt vmcnt(0)')
            e('v_cmp_eq_u32 vcc, 0, v6')
            e('s_cbranch_vccnz L_h_trig')
            e.label('L_h_trigd')
            e('s_mov_b64 exec, -1')
            e('s_barrier')
        if ch == 'q':
            if int(opts.get('nodup', 1)): e('s_cmp_lt_u32 s41, 12\ns_cbranch_scc1 L_h_noq')
            for k in range(2): e('global_load_dword %s, %s, s[48:49]' % (v(16 + k), v(14 + k)))
            e.label('L_h_noq')
        if ch == 'o':
            if int(opts.get('nodup', 1)): e('s_cmp_lt_u32 s41, 12\ns_cbranch_scc1 L_h_noo')
            for k in range(2): e('global_load_dword %s, %s, s[50:51]' % (v(18 + k), v(12 + k)))
            e.label('L_h_noo')
        if ch == 'k':
            e('s_cmp_ge_u32 s26, 48')
            e('s_cbranch_scc1 L_h_nok')
            e('global_store_dwordx4 v3, v[8:11], s[56:57] sc1')
            e.label('L_h_nok')
        if ch == 'K': announce(0, 'K')
        if ch == 'c':
            e('s_cmp_ge_u32 s26, 48')
            e('s_cbranch_scc1 L_h_noc')
            for k in range(6):
                e('global_store_dwordx4 v4, v[8:11], s[56:57] sc1')
                if k < 5: e('v_add_u32 v4, 8192, v4')
            e.label('L_h_noc')
            stamp(8)
            announce(4, 'C')
            stamp(9)
    assert 'k' in order and 'K' in order and 'c' in order
    if 'q' not in order.lower():
        for k in range(2): e('global_load_dword %s, %s, s[48:49]' % (v(16 + k), v(14 + k)))
    if int(opts.get('nodup', 1)): e('s_cmp_lt_u32 s41, 12\ns_cbranch_scc1 L_exit')
    if 'o' not in order.lower() and not opts.get('noo'):
        for k in range(2): e('global_load_dword %s, %s, s[50:51]' % (v(18 + k), v(12 + k)))
    if opts.get('hst'):
        e('v_lshrrev_b32 v2, 6, v0\nv_readfirstlane_b32 s24, v2\ns_branch L_dump')
    e('s_endpgm')
```

```python
import sys
from asmlib import *
import gen_a
KN = 'concat_heads__ssm_conv_s4__linear_attn_block__prompt_kernel'
HEAD = open('concat_heads__ssm_conv_s4__linear_attn_block__prompt.s.ref').read().split('; Override launch')[0]
LDS = 163840
STAMP_BASE = 64 << 20

def make(stamps=False, roles='AB', opts=None):
    opts = opts or {}
    e = Asm()
    nst = [0]
    def mk_stamp(role):
        if opts.get('at'):
            def st1(i):
                sec = [k for k, x in e.secs.items() if x is e.L][0]
                who = 'c' if sec in ('compute', 'cmain') else 'a' if role == 'A' else 'h' if role == 'H' else 'l'
                if opts['at'] == '%s%d' % (who, i): e('s_memrealtime s[70:71]')
            return st1
        if not stamps: return None
        def st(i):
            if opts.get('only'):
                sec = [k for k, x in e.secs.items() if x is e.L][0]
                who = 'c' if sec in ('compute', 'cmain') else 'a' if role == 'A' else 'h' if role == 'H' else 'l'
                if '%s%d' % (who, i) not in opts['only'].split(','): return
            e('%s %s' % ('s_memrealtime' if opts.get('rt') else 's_memtime', s(64 + 2 * i, 2)))
        return st
    e.label(KN)
    probe = opts.get('probe')
    if stamps or probe:
        e('s_memrealtime s[60:61]')
        e('s_memrealtime s[62:63]' if opts.get('rt') else 's_memtime s[62:63]')
    import gen_b
    e.secs = {'head': e.L}
    if opts.get('jitter'):
        e('s_memrealtime s[58:59]')
        e('s_waitcnt lgkmcnt(0)')
        e('v_readfirstlane_b32 s59, v0')
        e('s_mul_i32 s59, s59, 40503')
        e('s_mul_i32 s58, s58, 2654435761')
        e('s_mul_i32 s3, s2, 97531')
        e('s_add_u32 s58, s58, s59')
        e('s_add_u32 s58, s58, s3')
        e('s_mul_i32 s58, s58, 2654435761')
        e('s_lshr_b32 s58, s58, %d' % (32 - int(opts['jitter'])))
        e.label('L_jit')
        e('s_sleep 2')
        e('s_sub_u32 s58, s58, 1')
        e('s_cbranch_scc0 L_jit')
    e('s_load_dwordx16 s[4:19], s[0:1], 0')
    e('s_load_dwordx8 s[44:51], s[0:1], 64')
    e('s_load_dwordx4 s[52:55], s[0:1], 96')
    e('s_load_dwordx2 s[56:57], s[0:1], 112')
    e('s_cmp_ge_u32 s2, 128')
    e('s_cbranch_scc1 L_roleA')
    if 'B' in roles: gen_b.role_b(e, mk_stamp('B'), opts)
    else: e('s_branch L_exit')
    e.section('ahead', False)
    gen_a.role_a(e, mk_stamp('A'), opts)
    e.section('helper', False)
    gen_b.role_h(e, opts, mk_stamp('H') if opts.get('hst') else None)
    e.section('exit', False)
    e.label('L_exit')
    e('s_endpgm')
    order = ['head', 'ahead', 'helper', 'exit'] + (['compute', 'loader', 'amain'] if int(opts.get('cfirst', 1)) else ['loader', 'amain', 'compute']) + ['cmain', 'strict']
    assert set(e.secs) <= set(order)
    lines = sum([e.secs.get(k, []) for k in order], [])
    keep = len(e.secs['head']) + len(e.secs['ahead']) + len(e.secs['helper']) + len(e.secs['exit'])
    if 'A' not in roles:
        k = lines.index('s_cbranch_scc1 L_roleH')
        lines.insert(k + 1, 's_branch L_exit')
    if probe:
        k = [i for i, l in enumerate(lines) if l == 's_endpgm'][{'b': -1, 'l': 2 if int(opts.get('lfirst', 1)) else 3, 'a': 3 if int(opts.get('lfirst', 1)) else 2}[probe[0]]]
        d = Asm()
        d('s_waitcnt vmcnt(0)')
        d('s_memrealtime s[62:63]' if probe[1:] == 'rt' else 's_memtime s[64:65]')
        d('s_memrealtime s[66:67]')
        d('s_waitcnt lgkmcnt(0)')
        if probe[1:] == 'fix':
            d('s_mov_b32 s6, 2000')
        elif probe[1:] == 'rt':
            d('s_sub_u32 s6, %s, s60' % ('s70' if opts.get('at') else 's62'))
            d('s_lshl_b32 s6, s6, 2')
        else:
            d('s_sub_u32 s6, s64, s62')
            d('s_lshr_b32 s6, s6, 3')
        if opts.get('pwb'):
            d('s_mov_b32 s7, 200')
            d.label('L_pwb')
            d('s_sleep 1')
            d('s_sub_u32 s7, s7, 1')
            d('s_cbranch_scc0 L_pwb')
            d('buffer_wbl2 sc1')
            d('s_waitcnt vmcnt(0)')
        d.label('L_probe')
        d('s_memrealtime s[68:69]')
        d('s_waitcnt lgkmcnt(0)')
        d('s_sub_u32 s7, s68, s66')
        d('s_cmp_lt_u32 s7, s6')
        d('s_cbranch_scc1 L_probe')
        lines = lines[:k] + d.L + lines[k:]
    if stamps:
        out = []
        for k, l in enumerate(lines):
            if l == 's_endpgm' and k > keep: out.append('s_branch L_dump')
            else: out.append(l)
        lines = out
        d = Asm()
        d.label('L_dump')
        d('s_waitcnt vmcnt(0)')
        d('s_memrealtime s[96:97]' if opts.get('rt') else 's_memtime s[96:97]')
        d('s_memrealtime s[98:99]')
        d('s_load_dwordx2 s[4:5], s[0:1], 112')
        d('v_mbcnt_lo_u32_b32 v1, -1, 0')
        d('v_mbcnt_hi_u32_b32 v1, -1, v1')
        d('s_waitcnt lgkmcnt(0)')
        d('v_mov_b32 v2, s60')
        for i in range(17):
            d('s_sub_u32 s6, %s, s62' % s(64 + 2 * i))
            d('v_mov_b32 v3, s6')
            d('v_cmp_eq_u32 vcc, %d, v1' % (i + 2))
            d('v_cndmask_b32 v2, v2, v3, vcc')
        d('v_mov_b32 v3, s98')
        d('v_cmp_eq_u32 vcc, 1, v1')
        d('v_cndmask_b32 v2, v2, v3, vcc')
        d('s_lshl_b32 s6, s2, 3')
        d('s_add_u32 s6, s6, s24')
        d('s_lshl_b32 s6, s6, 8')
        d('s_add_u32 s6, s6, %d' % STAMP_BASE)
        d('v_lshl_add_u32 v1, v1, 2, s6')
        d('global_store_dword v1, v2, s[4:5]')
        d('s_endpgm')
        lines += d.L
    if opts.get('strip'):
        i0 = lines.index('L_a_pass:'); i1 = lines.index('s_cbranch_scc1 L_a_pass')
        pre = tuple(opts['strip'].split(','))
        lines = lines[:i0] + [l for l in lines[i0:i1] if not l.startswith(pre)] + lines[i1:]
    if opts.get('sys'): lines = [l.replace(' sc1', ' sc0 sc1') if ('store' in l and opts['sys'] in 'sb') or ('load' in l and opts['sys'] in 'lb') else l for l in lines]
    merged = []
    for l in sum([x.split('\n') for x in lines], []):
        if merged and l.startswith('s_waitcnt lgkmcnt') and merged[-1].startswith('s_waitcnt vmcnt') and 'lgkm' not in merged[-1]:
            merged[-1] += ' ' + l.split()[1]
        else: merged.append(l)
    lines = merged
    lines, added = pad_hazards(lines)
    lines = [l.replace('KERNEL_START', KN).replace('KERNEL_END', 'L_end') for l in lines] + ['L_end:']
    body = '\n'.join(l if l.endswith(':') else '    ' + l for l in lines)
    txt = HEAD + '; @launch grid=(256,1,1) block=(512,1,1) lds=%d\n' % LDS
    txt += '.amdgcn_target "amdgcn-amd-amdhsa--gfx950"\n.text\n.globl %s\n.p2align 8\n.type %s,@function\n' % (KN, KN)
    txt += body + '\n'
    txt += '''.section .rodata,"a"
.p2align 6
.amdhsa_kernel %s
  .amdhsa_next_free_vgpr 256
  .amdhsa_next_free_sgpr 102
  .amdhsa_accum_offset 112
  .amdhsa_group_segment_fixed_size 0
  .amdhsa_kernarg_size 120
  .amdhsa_user_sgpr_count 2
  .amdhsa_user_sgpr_kernarg_segment_ptr 1
  .amdhsa_system_sgpr_workgroup_id_x 1
.end_amdhsa_kernel
''' % KN
    return txt, added

if __name__ == '__main__':
    out = sys.argv[1]
    stamps = 'stamps' in sys.argv[2:]
    roles = [x for x in sys.argv[2:] if x in ('A', 'B', 'AB')]
    opts = dict(x.split('=') for x in sys.argv[2:] if '=' in x)
    txt, added = make(stamps, roles[0] if roles else 'AB', opts)
    open(out, 'w').write(txt)
    print('wrote', out, len(txt), 'bytes; nop states added', added)
```

```python
from asmlib import *
from gen_a import f2u, LOG2E
EPS = f2u(1e-6)
SLOT = 34816; WOFF = 16384
WQ_LO = SLOT; WQ_HI = 4 * SLOT; IMG = WQ_HI + 3 * 4608
SCR = 3 * SLOT
CST = SLOT - 4096
LCNT = IMG + 9216
STG = WQ_LO + 5 * 4608
def wo_base(ks): return 4608 * ks if ks < 6 else SCR + 4608 * (ks - 6) if ks < 13 else WQ_LO + 4608 * (ks - 13)
KVP = 0; OB = 8 * 4 * 12288; HAND = OB + 16 * 8 * 18 * 1024
SPIN = 20000
def wq_base(ks): return WQ_LO + 4608 * ks if ks < 15 else WQ_HI + 4608 * (ks - 15)

def div_small(e, q, r, x, d, t):
    e('v_mul_u32_u24 %s, %d, %s' % (v(q), (1 << 16) // d + 1, v(x)))
    e('v_lshrrev_b32 %s, 16, %s' % (v(q), v(q)))
    e('v_mul_u32_u24 %s, %d, %s' % (v(t), d, v(q)))
    e('v_sub_u32 %s, %s, %s' % (v(r), v(x), v(t)))
for d in (5, 9, 18):
    assert all((x * ((1 << 16) // d + 1)) >> 16 == x // d for x in range(1024))

def phi_pair(e, x, dst, t, plain=False):
    if plain:
        return [lambda: e('v_mul_f32 %s, s36, %s' % (v(t), v(x))),
                lambda: e('v_mul_f32 %s, s36, %s' % (v(t + 1), v(x + 1))),
                lambda: e('v_max_f32 %s, s38, %s' % (v(t + 2), v(x))),
                lambda: e('v_exp_f32_e64 %s, %s clamp' % (v(t), v(t))),
                lambda: e('v_max_f32 %s, s38, %s' % (v(t + 3), v(x + 1))),
                lambda: e('v_exp_f32_e64 %s, %s clamp' % (v(t + 1), v(t + 1))),
                lambda: e('v_add_f32 %s, %s, %s' % (v(t), v(t), v(t + 2))),
                lambda: e('v_add_f32 %s, %s, %s' % (v(t + 1), v(t + 1), v(t + 3))),
                lambda: e('v_cvt_pk_bf16_f32 %s, %s, %s' % (v(dst), v(t), v(t + 1)))]
    return [lambda: e('v_pk_mul_f32 %s, %s, s[36:37]' % (v(t, 2), v(x, 2))),
            lambda: e('v_max_f32 %s, s38, %s' % (v(t + 2), v(x))),
            lambda: e('v_exp_f32_e64 %s, %s clamp' % (v(t), v(t))),
            lambda: e('v_exp_f32_e64 %s, %s clamp' % (v(t + 1), v(t + 1))),
            lambda: e('v_max_f32 %s, s38, %s' % (v(t + 3), v(x + 1))),
            lambda: e('v_pk_add_f32 %s, %s, %s' % (v(t, 2), v(t, 2), v(t + 2, 2))),
            lambda: e('v_cvt_pk_bf16_f32 %s, %s, %s' % (v(dst), v(t), v(t + 1)))]
def zipper(*streams):
    streams = [list(x) for x in streams]
    while any(streams):
        for st in streams:
            if st: st.pop(0)()

def touch_tiles(e, idx, chunk, lo, n, x_, tmp, dst):
    t0, t1, t2, t3 = tmp, tmp + 1, tmp + 2, tmp + 3
    e('v_min_u32 %s, %d, %s' % (v(t0), n - 1, v(idx)))
    e('v_add_u32 %s, %s, %s' % (v(t0), lo, v(t0)))
    e('s_lshr_b32 s36, %s, 1' % x_)
    e('s_mul_i32 s36, s36, %d' % (512 * 1152))
    e('s_lshl_b32 s37, %s, 7' % chunk)
    e('s_add_u32 s36, s36, s37')
    e('s_and_b32 s37, %s, 1' % x_)
    e('s_lshl_b32 s37, s37, 9')
    e('s_mul_i32 s38, %s, %d' % (chunk, 64 * 3456))
    e('s_add_u32 s37, s37, s38')
    e('s_add_u32 s37, s37, 1152')
    e('v_cmp_gt_u32 vcc, 512, %s' % v(t0))
    e('v_mul_u32_u24 %s, 1152, %s' % (v(t1), v(t0)))
    e('v_add_u32 %s, s36, %s' % (v(t1), v(t1)))
    e('v_subrev_u32 %s, 512, %s' % (v(t0), v(t0)))
    e('v_max_i32 %s, 0, %s' % (v(t0), v(t0)))
    div_small(e, t2, t3, t0, 5, t0 + 4)
    e('v_and_b32 %s, 1, %s' % (v(t0), v(t2)))
    e('v_lshrrev_b32 %s, 1, %s' % (v(t2), v(t2)))
    e('v_mul_u32_u24 %s, 3456, %s' % (v(t2), v(t2)))
    e('v_mul_u32_u24 %s, 1152, %s' % (v(t0), v(t0)))
    e('v_lshl_add_u32 %s, %s, 7, s37' % (v(t3), v(t3)))
    e('v_add3_u32 %s, %s, %s, %s' % (v(t2), v(t2), v(t0), v(t3)))
    e('v_mov_b32 %s, s46' % v(t0))
    e('v_mov_b32 %s, s48' % v(t3))
    e('v_cndmask_b32 %s, %s, %s, vcc' % (v(t1), v(t2), v(t1)))
    e('v_cndmask_b32 %s, %s, %s, vcc' % (v(t2), v(t3), v(t0)))
    e('v_mov_b32 %s, s47' % v(t0))
    e('v_mov_b32 %s, s49' % v(t3))
    e('v_cndmask_b32 %s, %s, %s, vcc' % (v(t3), v(t3), v(t0)))
    e('v_add_co_u32 %s, vcc, %s, %s' % (v(t2), v(t2), v(t1)))
    e('v_addc_co_u32 %s, vcc, 0, %s, vcc' % (v(t3), v(t3)))
    e('global_load_dword %s, %s, off' % (v(dst), v(t2, 2)))

PRIO = [0, 0]
def first_touch(e, j_, x_, tmp, dst, first=1):
    if PRIO[0] == 2 and first > 1:
        e('s_lshr_b32 s39, %s, 2' % j_)
        e('s_add_u32 s39, s39, %d' % first)
        e('s_and_b32 s40, %s, 3' % j_)
    elif PRIO[0] == 1:
        e('s_lshr_b32 s39, %s, 2' % j_)
        e('s_sub_u32 s39, %d, s39' % (first + 3))
        e('s_and_b32 s40, %s, 3' % j_)
    else:
        e('s_and_b32 s39, %s, 3' % j_)
        e('s_add_u32 s39, s39, %d' % first)
        e('s_lshr_b32 s40, %s, 2' % j_)
    if PRIO[1]: e('s_add_u32 s39, s39, %d\ns_min_u32 s39, s39, 8' % PRIO[1])
    e('s_mul_i32 s40, s40, 288')
    touch_tiles(e, 0, 's39', 's40', 288, x_, tmp, dst)

def touch_unit(e, unit, x_, tmp, dst, tag):
    t0, t1 = tmp, tmp + 1
    e('s_mul_i32 s36, %s, 43' % unit)
    e('s_lshr_b32 s36, s36, 7')
    e('s_mul_i32 s37, s36, 3')
    e('s_sub_u32 s37, %s, s37' % unit)
    e('s_cmp_lg_u32 s37, 0')
    e('s_cbranch_scc1 L_tw%s' % tag)
    e('s_lshr_b32 s37, %s, 1' % x_)
    e('s_mul_i32 s37, s37, %d' % (512 * 1152))
    e('s_lshl_b32 s36, s36, 7')
    e('s_add_u32 s36, s36, s37')
    e('v_mul_u32_u24 %s, 1152, v0' % v(t0))
    e('v_add_u32 %s, s36, %s' % (v(t0), v(t0)))
    e('global_load_dword %s, %s, s[46:47]' % (v(dst), v(t0)))
    e('s_branch L_td%s' % tag)
    e.nvm -= 1
    e.label('L_tw%s' % tag)
    e('s_lshl_b32 s36, s36, 1')
    e('s_add_u32 s36, s36, s37')
    e('s_mul_i32 s36, s36, %d' % (32 * 3456))
    e('s_and_b32 s37, %s, 1' % x_)
    e('s_lshl_b32 s37, s37, 9')
    e('s_add_u32 s36, s36, s37')
    e('s_sub_u32 s36, s36, %d' % (32 * 3456 - 1152))
    e('v_and_b32 %s, 15, v0' % v(t1))
    e('v_min_u32 %s, 9, %s' % (v(t1), v(t1)))
    e('v_lshrrev_b32 %s, 4, v0' % v(t0))
    e('v_cmp_lt_u32 vcc, 4, %s' % v(t1))
    e('v_mul_u32_u24 %s, 3456, %s' % (v(t0), v(t0)))
    e('v_lshl_add_u32 %s, %s, 7, %s' % (v(t0), v(t1), v(t0)))
    e('v_cndmask_b32 %s, 0, 4, vcc' % v(t1))
    e('v_lshl_add_u32 %s, %s, 7, s36' % (v(t1), v(t1)))
    e('v_add_u32 %s, %s, %s' % (v(t0), v(t0), v(t1)))
    e('global_load_dword %s, %s, s[48:49]' % (v(dst), v(t0)))
    e.label('L_td%s' % tag)
assert all((u * 43) >> 7 == u // 3 for u in range(40))

def touch_round(e, j_, x_, tmp, dst, first, tag):
    e('s_add_u32 s39, %s, %d' % (j_, first))
    e('s_min_u32 s39, s39, 26')
    touch_unit(e, 's39', x_, tmp, dst, tag)

def touch_cols(e, j_, x_, tmp, dst, base, pitch):
    e('v_min_u32 %s, 179, v0' % v(tmp))
    div_small(e, tmp + 1, tmp + 2, tmp, 5, tmp + 3)
    e('s_mul_i32 s36, %s, %d' % (j_, 36 * pitch))
    e('s_and_b32 s37, %s, 1' % x_)
    e('s_lshl_b32 s37, s37, 9')
    e('s_add_u32 s36, s36, s37')
    e('v_mul_u32_u24 %s, %d, %s' % (v(tmp + 1), pitch, v(tmp + 1)))
    e('v_lshl_add_u32 %s, %s, 7, s36' % (v(tmp + 2), v(tmp + 2)))
    e('v_add_u32 %s, %s, %s' % (v(tmp + 1), v(tmp + 1), v(tmp + 2)))
    e('global_load_dword %s, %s, %s' % (v(dst), v(tmp + 1), base))

def role_b(e, stamp, opts):
    stamp = stamp or (lambda i: None)
    PRIO[0] = int(opts.get('tprio', 0)); PRIO[1] = int(opts.get('tshift', 0))
    rot = int(opts.get('rot', 0))
    e('v_lshrrev_b32 v2, 6, v0')
    e('v_and_b32 v1, 63, v0')
    e('v_readfirstlane_b32 s24, v2')
    e('s_and_b32 s32, s2, 7')
    e('s_lshr_b32 s33, s2, 3')
    e('s_and_b32 s34, s33, 3')
    e('s_lshr_b32 s33, s33, 2')
    e('s_lshr_b32 s25, s32, 1')
    e('s_lshl_b32 s25, s25, 2')
    e('s_add_u32 s25, s25, s34')
    e('s_and_b32 s26, s32, 1')
    e('s_lshl_b32 s26, s26, 2')
    e('s_add_u32 s26, s26, s33')
    if rot:
        e('s_add_u32 s27, s33, s34')
        e('s_and_b32 s27, s27, 3')
        e('s_lshl_b32 s27, s27, 1')
        e('s_lshr_b32 s35, s32, 1')
        e('s_xor_b32 s35, s35, s32')
        e('s_and_b32 s35, s35, 1')
        e('s_add_u32 s27, s27, s35')
    else:
        e('s_mov_b32 s27, 0')
    e('v_and_b32 v2, 15, v1')
    e('v_lshrrev_b32 v3, 4, v1')
    e('s_cmp_lt_u32 s24, 4')
    e('s_cbranch_scc1 L_b_compute')
    loader(e, stamp, opts)
    e.section('compute', False)
    e.label('L_b_compute')
    compute(e, stamp, opts)

MAIL = [(24, 3 * SLOT, 0), (28, 3 * SLOT, 1024), (32, 3 * SLOT, 2048), (36, 3 * SLOT, 3072),
        (44, None, 0), (48, None, 1024), (52, None, 2048), (56, None, 3072), (14, None, 4096),
        (60, 2 * SLOT, 0), (64, 2 * SLOT, 1024)]
def mailbox(e, write, mode):
    e('s_lshl_b32 s32, s39, 12')
    e('s_add_u32 s32, s32, %d' % (2 * SLOT))
    e('v_lshl_add_u32 v4, v1, 4, s32')
    e('s_mul_i32 s32, s39, 4608')
    e('s_add_u32 s32, s32, %d' % (3 * SLOT + WOFF))
    e('v_lshl_add_u32 v5, v1, 4, s32')
    e('v_lshl_add_u32 v6, v1, 3, s32')
    for r, base, off in MAIL[0 if mode == 2 else 4:]:
        n = 2 if r == 14 else 4
        ad = 'v6' if r == 14 else 'v5' if base is None else 'v4'
        o = off + (base - 2 * SLOT if base else 0)
        if write: e('ds_write_b%d %s, %s offset:%d' % (32 * n, ad, v(r, n), o))
        else: e('ds_read_b%d %s, %s offset:%d' % (32 * n, v(r, n), ad, o))

def loader_tables(e, parts='ab'):
    if 'a' in parts:
        for j in range(5):
            e('v_add_u32 v4, %d, v1' % (64 * j))
            div_small(e, 5, 6, 4, 9, 7)
            e('v_lshlrev_b32 v6, 4, v6')
            e('v_add_u32 v6, s40, v6')
            e('v_lshrrev_b32 v4, 3, v5')
            e('v_and_b32 v7, 1, v5')
            e('v_bfe_u32 v5, v5, 1, 2')
            e('v_lshl_add_u32 v19, v7, 2, v5')
            e('v_lshl_add_u32 v39, v4, 3, v19')
            e('v_mul_u32_u24 v39, 3456, v39')
            e('v_add_u32 %s, v39, v6' % v(24 + j))
            e('v_lshl_add_u32 v39, v4, 2, v5')
            e('v_lshl_add_u32 v39, v7, 4, v39')
            e('v_mul_u32_u24 v39, 1152, v39')
            e('v_add_u32 %s, v39, v6' % v(29 + j))
            e('v_mul_u32_u24 v39, 72, v4')
            e('v_add_u32 v39, v39, v19')
            e('v_mul_u32_u24 v39, 1152, v39')
            e('v_add_u32 %s, v39, v6' % v(34 + j))
    if 'b' not in parts: return
    e('s_lshl_b32 s32, s26, 2')
    e('s_add_u32 s32, s32, s39')
    e('s_mul_i32 s32, s32, 12288')
    e('s_add_u32 s32, s32, %d' % KVP)
    e('v_lshl_add_u32 v15, v1, 4, s32')
    e('s_lshl_b32 s33, s25, 8')
    e('s_add_u32 s32, s32, s33')
    e('v_lshlrev_b32 v14, 4, v2')
    e('v_lshl_add_u32 v14, v3, 12, v14')
    e('v_add_u32 v14, s32, v14')
    e('s_mul_i32 s32, s39, 2304')
    e('s_add_u32 s32, s32, %d' % IMG)
    e('v_lshl_add_u32 v4, v1, 4, s32')
    for k in range(4): e('v_mov_b32 %s, 0' % v(40 + k))
    e('ds_write_b128 v4, v[40:43]')
    e('ds_write_b128 v4, v[40:43] offset:1024')
    e('v_lshl_add_u32 v4, v1, 2, s32')
    e('ds_write_b32 v4, v40 offset:2048')
    e('v_mov_b32 v55, %d' % LCNT)
    e('ds_write_b32 v55, v40')
    e('s_lshr_b32 s45, s39, 1')
    e('s_lshl_b32 s46, s39, 1')
    e('s_lshl_b32 s47, s39, 10')
    e('s_add_u32 s47, s47, %d' % CST)
    e('s_add_u32 s32, s47, 768')
    e('v_lshl_add_u32 v44, v2, 3, s32')
    for i in range(2):
        e('v_add_u32 v4, %d, v3' % (4 * i))
        e('v_subrev_u32 v5, s45, v4')
        e('v_cmp_gt_u32 s[48:49], 5, v5')
        for j in range(2):
            e('v_add_u32 v6, %d, v2' % (16 * j - 8))
            e('v_subrev_u32 v6, s46, v6')
            e('v_cmp_gt_u32 vcc, 18, v6')
            e('v_mul_u32_u24 v6, 5, v6')
            e('v_add_u32 v6, v6, v5')
            e('s_and_b64 vcc, vcc, s[48:49]')
            e('v_lshl_add_u32 v6, v6, 3, s47')
            e('v_cndmask_b32 %s, v44, v6, vcc' % v(45 + 2 * i + j))
        e('v_cmp_eq_u32 vcc, 0, v2')
        e('v_add_u32 v6, 90, v5')
        e('v_lshl_add_u32 v6, v6, 3, s47')
        e('s_and_b64 vcc, vcc, s[48:49]')
        e('v_cndmask_b32 %s, %s, v6, vcc' % (v(45 + 2 * i), v(45 + 2 * i)))
    e('s_mul_i32 s32, s39, 18')
    e('s_add_u32 s32, s32, 8')
    e('s_lshl_b32 s33, s39, 2')
    e('s_add_u32 s33, s33, s45')
    e('v_cmp_gt_u32 s[48:49], 2, v3')
    for b in range(3):
        e('v_lshl_add_u32 v4, v2, 1, v3')
        e('v_add_u32 v4, %d, v4' % (32 * b))
        div_small(e, 5, 6, 4, 5, 7)
        e('v_add_u32 v6, s33, v6')
        e('v_add_u32 v7, s32, v5')
        e('v_lshrrev_b32 v19, 4, v7')
        e('v_and_b32 v7, 15, v7')
        e('v_lshrrev_b32 v39, 2, v6')
        e('v_and_b32 v6, 3, v6')
        e('v_lshl_add_u32 v19, v19, 1, v39')
        if b == 2:
            e('v_cmp_eq_u32 vcc, 18, v5')
            e('v_add_u32 v39, 13, v39')
            e('v_cndmask_b32 v19, v19, v39, vcc')
            e('v_mov_b32 v39, s39')
            e('v_cndmask_b32 v7, v7, v39, vcc')
        e('v_lshl_add_u32 v7, v6, 4, v7')
        e('v_lshlrev_b32 v7, 3, v7')
        e('v_lshl_add_u32 v7, v19, 9, v7')
        e('v_add_u32 v7, %d, v7' % IMG)
        if b == 2:
            e('s_and_b64 vcc, vcc, s[48:49]')
            e('v_cndmask_b32 v54, v44, v7, vcc')
            e('v_cmp_gt_u32 vcc, 19, v5')
            e('s_and_b64 s[48:49], vcc, s[48:49]')
        e('v_cndmask_b32 %s, v44, v7, s[48:49]' % v(51 + b))
    e('v_and_b32 v4, 1, v2')
    e('v_lshlrev_b32 v4, 4, v4')
    e('v_mov_b32 v5, 0x3f80')
    e('v_lshlrev_b32 v4, v4, v5')
    e('v_lshrrev_b32 v5, 1, v2')
    for k in range(4):
        e('v_cmp_eq_u32 vcc, %d, v5' % k)
        e('v_cndmask_b32 %s, 0, v4, vcc' % v(56 + k))
    for k in range(4): e('v_mov_b32 %s, 0x3f803f80' % v(8 + 96 + k))
    e('ds_write_b128 v55, v[104:107] offset:16')
    e('ds_write_b128 v55, v[40:43] offset:32')
    e('ds_write_b32 v55, v40 offset:4')
    for k, df in enumerate((0, 1, 5, 6)):
        e('s_add_u32 s32, s39, %d' % df)
        e('s_lshl_b32 s33, s32, 10')
        e('s_add_u32 s34, s33, %d' % SCR)
        e('s_sub_u32 s33, s33, 8192')
        e('s_movk_i32 s48, 4096')
        e.L.append('s_cmp_lt_u32 s32, 8\ns_cselect_b32 s33, s34, s33\ns_cselect_b32 s48, 8192, s48')
        e('v_lshl_add_u32 %s, v1, 4, s33' % v(64 + k))
        e('v_mov_b32 %s, s48' % v(60 + k))
        if k < 3:
            if k == 0: e('v_cmp_gt_u32 vcc, s46, v2')
            if k == 1:
                e('s_add_u32 s32, s46, 2')
                e('v_cmp_le_u32 vcc, s32, v2')
            if k == 2: e('v_cmp_eq_u32 vcc, 0, v2')
            e('v_mov_b32 v4, %d' % (LCNT + (16 if k == 2 else 32)))
            e('v_cndmask_b32 %s, %s, v4, vcc' % (v(64 + k), v(64 + k)))
            e('v_cndmask_b32 %s, %s, v40, vcc' % (v(60 + k), v(60 + k)))
    e('v_and_b32 v49, 3, v1')
    e('v_lshlrev_b32 v49, 6, v49')

def compute(e, stamp, opts):
    e.nvm = 0; e.nlg = 0
    ACC = 8; RING = 80; NR = 6; D = 4
    acc = lambda ct, rt: ACC + 8 * ct + 4 * rt
    if int(opts.get('mail', 1)):
        e('s_mov_b32 s39, s24')
        e('s_mul_i32 s40, s26, 144')
        e('s_waitcnt lgkmcnt(0)')
        t_ = Asm(); loader_tables(t_, 'ab' if int(opts.get('mail', 1)) == 2 else 'b')
        e('\n'.join(t_.L))
        mailbox(e, True, int(opts.get('mail', 1)))
    e('s_mov_b32 s36, 0x%08x' % LOG2E)
    e('s_mov_b32 s37, s36')
    e('s_mov_b32 s38, 0x%08x' % EPS)
    e('s_lshl_b32 s32, s24, 12')
    e('v_and_b32 v104, 7, v2')
    e('v_xor_b32 v105, v3, v104')
    e('v_lshlrev_b32 v106, 7, v2')
    e('v_add_u32 v106, s32, v106')
    e('v_lshl_add_u32 v4, v105, 4, v106')
    e('v_xor_b32 v105, 4, v105')
    e('v_lshl_add_u32 v5, v105, 4, v106')
    e('v_lshrrev_b32 v104, 2, v2')
    e('v_and_b32 v105, 3, v2')
    e('v_lshlrev_b32 v105, 3, v105')
    e('v_lshl_add_u32 v106, v3, 2, v104')
    e('v_mul_u32_u24 v106, 288, v106')
    e('v_add_u32 v106, v106, v105')
    e('v_add_u32 v6, %d, v106' % WOFF)
    e('v_lshlrev_b32 v104, 1, v104')
    e('v_lshl_add_u32 v104, v3, 3, v104')
    e('v_mul_u32_u24 v104, 144, v104')
    e('v_add_u32 v104, v104, v105')
    e('v_add_u32 v7, %d, v104' % WQ_LO)
    e('v_cmp_gt_u32 vcc, 8, v2')
    for k in range(4): e('v_mov_b32 %s, s38' % v(108 + k))
    for k in range(4): e('v_cndmask_b32 %s, 0, v108, vcc' % v(104 + k))
    e('v_cmp_gt_u32 s[40:41], 2, v3')
    e('v_cmp_gt_u32 s[42:43], 3, v3')
    e('s_waitcnt lgkmcnt(0)')
    e('s_mov_b64 s[10:11], s[52:53]')
    e('s_mov_b64 s[14:15], s[56:57]')
    stamp(0)
    e.section('cmain', bool(int(opts.get('cfirst', 1))))
    F = [(p, s_, ct) for p in range(8) for s_ in range(2) for ct in range(9)]
    F += [(8, s_, ct) for s_ in range(2) for ct in range(5)] + [(8, s_, ct) for s_ in range(2) for ct in range(5, 9)]
    tok = {}
    def items(f):
        p, s_, ct = F[f]
        it = []
        if ct == 0 and s_ == 0:
            pre = []
            if p:
                dl = SLOT if p % 4 else -3 * SLOT
                for r in (4, 5, 6): pre.append('v_add_u32 %s, %d, %s' % (v(r), dl, v(r)) if dl > 0 else 'v_subrev_u32 %s, %d, %s' % (v(r), -dl, v(r)))
            if p == 8: pre.append('s_waitcnt lgkmcnt(0)')
            pre.append('s_barrier')
            it.append(lambda: (e('\n'.join(pre)), stamp({0: 1, 4: 2, 8: 3}[p]) if p in (0, 4, 8) else None))
        if ct == 0:
            for rt in range(2): it.append(lambda rt=rt: e('ds_read_b128 %s, %s offset:%d' % (a(16 * p + 8 * s_ + 4 * rt, 4), v(4 + s_), 2048 * rt)))
        r = RING + 4 * (f % NR)
        for h in range(2): it.append(lambda h=h: e('ds_read_b64_tr_b16 %s, v6 offset:%d' % (v(r + 2 * h, 2), 9216 * s_ + 4608 * h + 32 * ct)))
        return it
    for f in range(D):
        for x in items(f): x()
        tok[f] = e.lg()
    def put(fi, r):
        if fi < 8: e('ds_write_b128 v4, %s offset:%d' % (v(r, 4), 1024 * fi))
        else: e('ds_write_b128 v5, %s offset:%d' % (v(r, 4), 1024 * (fi - 8)))
    def phi_tile(x, dst, t, plain):
        zz = [phi_pair(e, x[k], dst[k], t + 4 * k, plain=plain) for k in range(4)]
        return [z[k] for k in range(len(zz[0])) for z in zz]
    def handoff_setup():
        e('s_add_u32 s16, s14, %d' % OB)
        e('s_addc_u32 s17, s15, 0')
        e('s_mov_b32 s18, %d' % (HAND - OB))
        e('s_mov_b32 s19, 0x20000')
        e('s_lshl_b32 s32, s25, 3')
        e('s_lshl_b32 s33, s24, 1')
        e('s_add_u32 s32, s32, s33')
        e('s_mul_i32 s32, s32, %d' % (18 * 1024))
        e('v_lshl_add_u32 v105, v1, 4, s32')
        e('v_add_u32 v106, %d, v105' % (18 * 1024))
        e('s_lshl_b32 s20, s26, 11')
        e('s_lshr_b32 s33, s26, 2')
        e('s_lshl_b32 s33, s33, 10')
        e('s_and_b32 s34, s26, 3')
        e('s_lshl_b32 s34, s34, 8')
        e('s_add_u32 s33, s33, s34')
        e('s_add_u32 s33, s33, s32')
        e('s_add_u32 s33, s33, %d' % (16 * 1024 - 16))
        e('s_movk_i32 s21, %d' % (18 * 1024))
        for jj in range(1, 8):
            e('s_add_u32 %s, s20, %d' % (s(44 + jj), 2048 * jj))
            e('s_and_b32 %s, %s, 0x3fff' % (s(44 + jj), s(44 + jj)))
        e('v_lshlrev_b32 v104, 4, v2')
        e('v_lshl_add_u32 v104, v3, 3, v104')
        e('v_add_u32 v104, s33, v104')
    for f, (p, s_, ct) in enumerate(F):
        it = items(f + D) if f + D < len(F) else []
        if f == 18 - D: handoff_setup()
        e.wait_lg(tok[f])
        for rt in range(2):
            c = v(acc(ct, rt), 4) if f >= 9 else 'v[108:111]' if ct < 4 else 'v[104:107]' if ct == 4 else '0'
            e('v_mfma_f32_16x16x32_bf16 %s, %s, %s, %s' % (v(acc(ct, rt), 4), a(16 * p + 8 * s_ + 4 * rt, 4), v(RING + 4 * (f % NR), 4), c))
            h = (len(it) + 1) // 2
            for x in (it[:h] if rt == 0 else it[h:]): x()
        tok[f + D] = e.lg()
    stamp(4)
    e('s_lshl_b32 s32, s24, 13\ns_add_u32 s32, s32, %d\nv_lshl_add_u32 v4, v1, 4, s32' % SCR)
    e('s_lshl_b32 s32, s24, 12\nv_lshl_add_u32 v5, v1, 4, s32')
    for t in range(5):
        o = acc(t, 0) if t < 4 else 96
        for x in phi_tile([acc(t, 0) + 2 * k for k in range(4)], [o + k for k in range(4)], 80, False): x()
        put(t, o)
        o = acc(4 + t, 0) if t else 100
        for k in range(4): e('v_cvt_pk_bf16_f32 %s, %s, %s' % (v(o + k), v(acc(4 + t, 0) + 2 * k), v(acc(4 + t, 0) + 2 * k + 1)))
        put(5 + t, o)
    e('v_add_u32 v6, %d, v7' % (WQ_HI - WQ_LO))
    e('v_mov_b32 v5, %d' % LCNT)
    e('s_waitcnt lgkmcnt(0)')
    stamp(5)
    e('s_barrier')
    def gemm144(where, c0, G, ring, hook=None, xs=lambda ks, rt: a(8 * ks + 4 * rt, 4)):
        RG, NG, DG = ring
        tk = {}
        def iss(f, h):
            ks, ct = G[f]
            ad, off = where(ks)
            e('ds_read_b64_tr_b16 %s, %s offset:%d' % (v(RG + 4 * (f % NG) + 2 * h, 2), ad, off + 144 * h + 32 * ct))
            tk[f] = e.lg()
        for f in range(DG): iss(f, 0); iss(f, 1)
        for f, (ks, ct) in enumerate(G):
            if hook: hook(f, ks, ct, 0)
            e.wait_lg(tk[f])
            for rt in range(2):
                e('v_mfma_f32_16x16x32_bf16 %s, %s, %s, %s' % (v(acc(ct, rt), 4), v(RG + 4 * (f % NG), 4), xs(ks, rt), v(acc(ct, rt), 4) if ks else c0))
                if f + DG < len(G): iss(f + DG, rt)
                if hook: hook(f, ks, ct, 1 + rt)
    PQ = 48
    def phi_q(t, plain): return phi_tile([acc(t, k >> 1) + 2 * (k & 1) for k in range(4)], [PQ + 10 * (k >> 1) + 2 * t + (k & 1) for k in range(4)], 92 if plain else 68, plain)
    NQ = int(opts.get('nq', 5))
    rest = []
    def qhook(f, ks, ct, ph):
        if opts.get('qst') and ph == 0 and f in (1, 20, 45, 70): stamp({1: 0, 20: 2, 45: 13, 70: 15}[f])
        if f == 40 and ph == 1: e('ds_read_b32 v92, v5 offset:4')
        if f == 54 and ph == 0:
            e('s_mov_b32 s44, %d' % SPIN)
            e.label('L_b_wq')
            e('v_cmp_gt_u32 vcc, 4, v92')
            e('s_cbranch_vccz L_b_wqok')
            e('ds_read_b32 v92, v5 offset:4')
            e.nlg -= 1
            e('s_waitcnt lgkmcnt(0)')
            e('s_sub_u32 s44, s44, 1')
            e('s_cbranch_scc0 L_b_wq')
            e.label('L_b_wqok')
        if f == 18 * NQ + 1 and ph == 0:
            for t in range(NQ): rest.extend(phi_q(t, True))
        if ph and rest: rest.pop(0)()
    gemm144(lambda ks: ('v7', wq_base(ks) - WQ_LO) if ks < 15 else ('v6', wq_base(ks) - WQ_HI), 'v[108:111]',
            [(ks, ct) for ks in range(18) for ct in range(NQ)] + [(ks, ct) for ks in range(18) for ct in range(NQ, 5)], (60, 8, 5) if opts.get('qring') else (68, 6, 4), qhook)
    stamp(6)
    for x in rest: x()
    for t in range(NQ if NQ < 5 else 0, 5):
        for x in phi_q(t, False): x()
    DEN = 68
    e('v_lshlrev_b32 v4, 3, v1')
    e('v_add_u32 v4, %d, v4' % IMG)
    stamp(7)
    e('s_barrier')
    stamp(8)
    t0 = e.lg()
    for pl in list(range(13, 18)) + list(range(13)): e('ds_read_b64 %s, v4 offset:%d' % (a(2 * pl, 2), 512 * pl))
    def mm(d, pl, dt, n, rt, c):
        e('v_mfma_f32_16x16x%d_bf16 %s, %s, %s, %s' % (16 * n, v(d, 4), a(2 * pl, 2 * n), v(PQ + 10 * rt + 2 * dt, 2 * n), c))
    e.wait_lg(t0 + 5)
    for pl, dt, n in ((13, 0, 2), (15, 2, 2), (17, 4, 1)):
        for rt in range(2): mm(DEN + 4 * rt, pl, dt, n, rt, v(DEN + 4 * rt, 4) if dt else 'v[108:111]')
    OUT = PQ
    def scale(rt):
        i = DEN + 4 * rt; t = 76 + 4 * rt; o = OUT + 10 * rt
        pre = [lambda k=k: e('v_rcp_f32 %s, %s' % (v(i + k), v(i + k))) for k in range(4)]
        pre += [lambda: e('v_cndmask_b32 %s, %s, %s, s[42:43]' % (v(t), v(i + 1), v(i))),
                lambda: e('v_cndmask_b32 %s, %s, %s, s[40:41]' % (v(t + 1), v(i + 1), v(i))),
                lambda: e('v_cndmask_b32 %s, %s, %s, s[42:43]' % (v(t + 2), v(i + 2), v(i + 1))),
                lambda: e('v_cndmask_b32 %s, %s, %s, s[42:43]' % (v(t + 3), v(i + 3), v(i + 2)))]
        sc = {0: (i, i), 1: (t, t + 1), 2: (t + 2, t + 2), 3: (i + 2, t + 3), 4: (i + 3, i + 3)}
        st = []
        for u in (0, 4, 1, 2, 3):
            for k in range(2):
                f_ = sc[u][k]
                st.append(lambda u=u, k=k, f_=f_: e('v_pk_mul_f32 %s, %s, %s op_sel:[0,%d] op_sel_hi:[1,%d]' % (v(acc(u, rt) + 2 * k, 2), v(acc(u, rt) + 2 * k, 2), v(f_ & ~1, 2), f_ & 1, f_ & 1)))
        for u in (0, 4, 1, 2, 3):
            d = o + (2 * (u - 1) if u else 8)
            for k in range(2): st.append(lambda u=u, k=k, d=d: e('v_cvt_pk_bf16_f32 %s, %s, %s' % (v(d + k), v(acc(u, rt) + 2 * k), v(acc(u, rt) + 2 * k + 1))))
        for d in (o, o + 4, o + 8): st.append(lambda d=d: e('v_min_u32 %s, -2, %s' % (v(d), v(d))))
        st.append(lambda: e('buffer_store_dwordx4 %s, %s, s[16:19], s20 offen sc1' % (v(o, 4), v(105 + rt))))
        st.append(lambda: e('buffer_store_dwordx4 %s, %s, s[16:19], s20 offen offset:1024 sc1' % (v(o + 4, 4), v(105 + rt))))
        return pre, st
    (p0, s0), (p1, s1) = scale(0), scale(1)
    fill = p0 + p1
    e.wait_lg(t0 + 18)
    for rt in range(2):
        ops = [(u, 2 * u + first, first, 2, '0') for u, first in enumerate((0, 0, 1, 2, 3))]
        ops = [ops[1], ops[2], ops[3], ops[0], ops[4]] + [(u, 2 * u + first + 2, first + 2, 1, None) for u, first in ((1, 0), (2, 1), (3, 2))]
        for k, (u, pl, dt, n, c) in enumerate(ops):
            mm(acc(u, rt), pl, dt, n, rt, c or v(acc(u, rt), 4))
            if rt or k >= 2:
                for x in fill[:2]: x()
                fill = fill[2:]
    for x in fill + s0 + s1: x()
    e('s_mov_b32 exec_lo, 0')
    e('buffer_store_dwordx2 %s, v104, s[16:19], 0 offen sc1' % v(OUT + 8, 2))
    e('buffer_store_dwordx2 %s, v104, s[16:19], s21 offen sc1' % v(OUT + 18, 2))
    e('s_mov_b32 exec_lo, -1')
    stamp(9)
    e('v_subrev_u32 v7, %d, v7' % WQ_LO)
    e('v_add_u32 v6, %d, v7' % SCR)
    e('s_mov_b32 s39, 0')
    e('s_movk_i32 s23, %d' % (16 * 1024))
    e('s_barrier')
    e.label('L_b_gemm2')
    otok = {}
    AHEAD = int(opts.get('ahead', 4))
    osrc = lambda ks, rt: v(OUT + 10 * rt + 4 * ks, 4) if ks < 2 else a(8 * ks + 4 * rt, 4)
    def oload(j, rt):
        e('buffer_load_dwordx4 %s, %s, s[16:19], %s offen%s %s' % (osrc(j, rt), v(105 + rt), s(44 + (j >> 1)) if j < 16 else 's23', ' offset:1024' if j & 1 else '', opts.get('old', 'sc1').replace('_', ' ')))
        otok[j] = e.vm()
    pend = [(j, rt) for j in range(2, 18) for rt in range(2)]
    tail = []
    def put_out(ct):
        r = []
        for rt in range(2):
            d = 48 + 4 * ct + 2 * rt
            for k in range(2): r.append(lambda d=d, k=k, rt=rt: e('v_cvt_pk_bf16_f32 %s, %s, %s' % (v(d + k), v(acc(ct, rt) + 2 * k), v(acc(ct, rt) + 2 * k + 1))))
            r.append(lambda d=d, rt=rt: e('ds_write_b64 v4, %s offset:%d' % (v(d, 2), 2304 * rt + 32 * ct)))
        return r
    def hook(f, ks, ct, ph):
        if f == 10 and ph == 0:
            e('s_lshl_b32 s32, s25, 7')
            e('s_lshl_b32 s33, s24, 5')
            e('s_add_u32 s32, s32, s33')
            e('s_mul_i32 s32, s32, 2304')
            e('s_mul_i32 s33, s26, 144')
            e('s_add_u32 s32, s32, s33')
            e('s_add_u32 s32, s32, 1152')
            for j in range(5):
                e('v_add_u32 v48, %d, v1' % (64 * j))
                div_small(e, 49, 50, 48, 9, 51)
                e('v_mul_u32_u24 v49, 2304, v49')
                e('v_lshl_add_u32 v49, v50, 4, v49')
                e('v_add_u32 %s, s32, v49' % v(108 + j if j < 4 else 104))
            e('s_mul_i32 s33, s24, 4608')
            e('s_add_u32 s33, s33, %d' % STG)
            e('v_mul_u32_u24 v4, 144, v2')
            e('v_lshl_add_u32 v4, v3, 3, v4')
            e('v_add_u32 v4, s33, v4')
            e('v_lshl_add_u32 v5, v1, 4, s33')
            e('s_mov_b32 s44, %d' % SPIN)
            e('v_lshlrev_b32 v107, 8, v1')
            e('v_lshlrev_b32 v48, 4, v1')
            e('v_sub_u32 v107, v107, v48')
            e('v_add_u32 v107, v107, v106')
            for _ in range(int(opts.get('pdelay', 0))): e('s_nop 15')
            e('s_mov_b64 exec, 0xff')
            e.label('L_b_probe')
            e('buffer_load_dword v68, v107, s[16:19], s23 offen offset:248 sc1')
            e('s_sub_u32 s44, s44, 1')
            e('s_cbranch_scc1 L_b_probed')
            e('s_waitcnt vmcnt(0)')
            e('v_cmp_eq_u32 vcc, -1, v68')
            e('s_cbranch_vccnz L_b_probe')
            e.label('L_b_probed')
            e('s_mov_b64 exec, -1')
            if opts.get('count'): e('s_sub_u32 s92, s62, s44\ns_add_u32 s92, s92, %d' % SPIN)
            stamp(10)
            e.nvm = 0
            for _ in range(2 * AHEAD): oload(*pend.pop(0))
            stamp(11)
        if ct == 0 and ph == 0 and 2 <= ks: e.wait_vm(otok[ks])
        if opts.get('gst') and ct == 0 and ph == 0 and ks in (2, 6, 10, 14): stamp({2: 0, 6: 1, 10: 2, 14: 3}[ks])
        if ph == 1 and pend and f >= 10 and ct in ((0, 1, 2, 3) if f < 25 else (1, 3)): oload(*pend.pop(0))
        if ks == 17:
            if ph == 0 and 2 <= ct: tail.extend(put_out(ct - 2))
            if ph:
                for x in tail[:2]: x()
                del tail[:2]
    gemm144(lambda ks: ('v6', wo_base(ks) - SCR) if 6 <= ks < 13 else ('v7', wo_base(ks)), '0',
            [(ks, ct) for ks in range(18) for ct in range(5)], (72, 8, 5), hook, osrc)
    stamp(12)
    for x in tail + put_out(3): x()
    e('s_cmp_lg_u32 s39, 0')
    e('s_cbranch_scc1 L_b_store')
    e('v_cmp_u_f32 vcc, %s, %s' % (v(acc(0, 0)), v(acc(0, 1))))
    e('s_cbranch_vccnz L_b_strict')
    e.label('L_b_store')
    e('s_mov_b32 exec_hi, 0')
    for x in put_out(4): x()
    e('s_mov_b32 exec_hi, -1')
    t0 = e.lg()
    for j in range(5): e('ds_read_b128 %s, v5 offset:%d' % (v(8 + 4 * j, 4), 1024 * j))
    for j in range(5):
        e.wait_lg(t0 + j + 1)
        if j == 4: e('s_mov_b32 exec_hi, 0')
        e('global_store_dwordx4 %s, %s, s[10:11] %s' % (v(108 + j if j < 4 else 104), v(8 + 4 * j, 4), opts.get('ost', '')))
    e('s_mov_b32 exec_hi, -1')
    if not opts.get('qst'): stamp(13)
    e('s_endpgm')
    e.section('strict', False)
    e.label('L_b_strict')
    e('s_mov_b32 s39, 1')
    e('s_mov_b32 s44, %d' % SPIN)
    e.label('L_b_strict1')
    for ks in range(18):
        e('s_movk_i32 s22, %d' % (1024 * ks))
        for rt in range(2): e('buffer_load_dwordx4 %s, %s, s[16:19], s22 offen sc1' % (a(8 * ks + 4 * rt, 4), v(105 + rt)))
    for rt in range(2):
        for k in range(2): e('buffer_load_dwordx4 %s, %s, s[16:19], s20 offen offset:%d sc1' % (v(OUT + 10 * rt + 4 * k, 4), v(105 + rt), 1024 * k))
    e('s_waitcnt vmcnt(0)')
    e('s_sub_u32 s44, s44, 1')
    e('s_cbranch_scc1 L_b_gemm2')
    e('s_mov_b64 s[32:33], 0')
    for k in range(72):
        if (k & 1) == 0 or k >= 64:
            e('v_accvgpr_read_b32 v68, %s' % a(2 * k))
            e('v_cmp_eq_u32 vcc, -1, v68')
            e('s_or_b64 s[32:33], s[32:33], vcc')
    e('s_cmp_lg_u64 s[32:33], 0')
    e('s_cbranch_scc1 L_b_strict1')
    e('s_branch L_b_gemm2')

def loader(e, stamp, opts):
    e.nvm = 0; e.nlg = 0
    if int(opts.get('lp0', 2)): e('s_setprio %d' % int(opts.get('lp0', 2)))
    e('s_sub_u32 s39, s24, 4')
    e('v_lshrrev_b32 v4, 3, v1')
    e('v_and_b32 v5, 7, v1')
    e('v_xor_b32 v5, v5, v4')
    e('s_lshl_b32 s32, s25, 7')
    e('s_lshl_b32 s33, s39, 5')
    e('s_add_u32 s32, s32, s33')
    e('v_add_u32 v4, s32, v4')
    e('v_mul_u32_u24 v4, 1152, v4')
    e('v_lshl_add_u32 v8, v5, 4, v4')
    e('s_lshr_b32 s32, s39, 1')
    e('s_lshl_b32 s32, s32, 5')
    e('s_and_b32 s33, s39, 1')
    e('s_lshl_b32 s33, s33, 2')
    e('s_add_u32 s32, s32, s33')
    e('s_mul_i32 s40, s26, 144')
    e('s_mul_i32 s32, s32, 3456')
    e('s_add_u32 s32, s32, s40')
    e('s_add_u32 s32, s32, 1152')
    def woff(j):
        e('v_add_u32 v4, %d, v1' % (64 * j))
        div_small(e, 5, 6, 4, 18, 7)
        e('v_and_b32 v4, 12, v5')
        e('v_add_u32 v4, v4, v5')
        e('v_mul_u32_u24 v4, 3456, v4')
        e('v_cmp_lt_u32 vcc, 8, v6')
        e('v_lshl_add_u32 v4, v6, 4, v4')
        e('v_add_u32 v4, s32, v4')
        e('v_add_u32 v5, 1008, v4')
        e('v_cndmask_b32 %s, v4, v5, vcc' % v(9 + j))
    e('s_lshl_b32 s41, s39, 12')
    e('s_mul_i32 s42, s39, 4608')
    e('s_add_u32 s42, s42, %d' % WOFF)
    e('s_mov_b32 s43, s27')
    e('s_mov_b32 s22, %d\ns_mov_b32 s23, 0x20000' % (576 * 3456))
    e('s_mov_b32 s30, %d\ns_mov_b32 s31, 0x20000' % (576 * 1152))
    e('s_waitcnt lgkmcnt(0)')
    e('s_mov_b64 s[16:17], s[46:47]\ns_mov_b32 s18, %d\ns_mov_b32 s19, 0x20000' % (2048 * 1152))
    e('s_mov_b64 s[20:21], s[48:49]\ns_mov_b64 s[28:29], s[50:51]\ns_mov_b64 s[12:13], s[54:55]\ns_mov_b64 s[14:15], s[56:57]')

    mail = int(opts.get('mail', 1))
    main = e; sd = Asm()
    if mail < 2: loader_tables(sd, 'a' if mail else 'ab')
    sd('s_mul_i32 s58, s39, %d' % (32 * 3456))
    if mail:
        sd('s_lshl_b32 s47, s39, 10')
        sd('s_add_u32 s47, s47, %d' % CST)
        for k in range(2): sd('v_mov_b32 %s, 0' % v(40 + k))
    e = main
    side = list(sd.L); done = [0]
    def run_side(n=None, upto=None):
        stop = upto if upto is not None else min(len(side), done[0] + n)
        while done[0] < stop:
            e(side[done[0]]); done[0] += 1

    ctok = {}
    def chunk(p, per, mid=None):
        sl = SLOT * (p % 4)
        e('s_lshl_b32 s3, s43, 7')
        e('s_mul_i32 s35, s43, %d' % (64 * 3456))
        for j in range(4):
            e('s_add_u32 m0, s41, %d' % (sl + 1024 * j))
            if j: e('s_add_u32 s3, s3, 9216')
            e('buffer_load_dwordx4 v8, s[16:19], s3 offen lds')
            run_side(per)
        for j in range(5):
            if mid: mid(j)
            e('s_add_u32 m0, s42, %d' % (sl + 1024 * j))
            if j == 4: e('s_mov_b32 exec_hi, 0')
            e('buffer_load_dwordx4 %s, s[20:23], s35 offen lds' % v(9 + j))
            if j < 4: run_side(per)
        e('s_mov_b32 exec_hi, -1')
        e('s_add_u32 s43, s43, 1')
        e('s_cmp_eq_u32 s43, 9')
        e('s_cselect_b32 s43, 0, s43')
        ctok[p] = e.vm()
    stamp(1)
    chunk(0, 0, woff)
    early = int(opts.get('early', 170))
    if early:
        e.section('loader')
        run_side(early)
    chunk(1, 0)
    stamp(0)
    if not early: e.section('loader')
    def tile144(srd, vregs, soff):
        for j in range(5):
            e('s_add_u32 m0, s34, %d' % (1024 * j))
            if j == 4: e('s_mov_b32 exec_hi, 0')
            e('buffer_load_dwordx4 %s, %s, %s offen lds' % (v(vregs + j), srd, soff))
        e('s_mov_b32 exec_hi, -1')
    def wq_group(lo, n):
        for rnd in range((n + 3) // 4):
            b0 = lo + 4 * rnd
            if int(opts.get('rot', 0)) == 0 and b0 + 3 < 15:
                e('s_add_u32 s32, s58, %d' % (b0 * 32 * 3456))
                e('s_add_u32 s34, s42, %d' % (WQ_LO + 4608 * b0 - WOFF))
                tile144('s[20:23]', 24, 's32')
                continue
            e('s_add_u32 s35, s39, %d' % (lo + 4 * rnd))
            if 4 * rnd + 4 > n: e('s_min_u32 s35, s35, %d' % (lo + n - 1))
            e('s_lshr_b32 s32, s35, 1')
            e('s_add_u32 s32, s32, s27')
            e('s_sub_u32 s33, s32, 9')
            e('s_cmp_ge_u32 s32, 9')
            e('s_cselect_b32 s32, s33, s32')
            e('s_lshl_b32 s32, s32, 1')
            e('s_and_b32 s33, s35, 1')
            e('s_add_u32 s32, s32, s33')
            e('s_mul_i32 s32, s32, %d' % (32 * 3456))
            e('s_mul_i32 s34, s35, 4608')
            if lo + 4 * rnd + 3 >= 15:
                e('s_add_u32 s33, s34, %d' % (WQ_HI - WQ_LO - 15 * 4608))
                e('s_cmp_ge_u32 s35, 15')
                e('s_cselect_b32 s34, s33, s34')
            e('s_add_u32 s34, s34, %d' % WQ_LO)
            tile144('s[20:23]', 24, 's32')
    wqlate = int(opts.get('wqlate', 0))
    for p in range(9):
        if opts.get('st4') and p == 5: stamp(7)
        e.wait_vm(ctok[p])
        if opts.get('st4') and p == 5: stamp(8)
        e('s_barrier')
        if p in (1, 2, 3, 5, 6): stamp({1: 11, 2: 12, 3: 13, 5: 14, 6: 15}[p])
        if opts.get('st4') and p in (4, 7): stamp({4: 0, 7: 1}[p])
        if p == 0:
            stamp(2)
        if 't' in opts.get('horder', '') and p == int(opts.get('trig', 2)):
            e('s_or_b32 s3, s39, s2')
            e('s_cmp_ge_u32 s3, 8')
            e('s_cbranch_scc1 L_b_notrig')
            e('s_cmp_lg_u32 s39, 0')
            e('s_cbranch_scc1 L_b_notrig')
            e('s_lshl_b32 s3, s2, 2')
            e('v_mov_b32 v20, s3')
            e('v_mov_b32 v21, 1')
            e('s_mov_b64 exec, 1')
            e('global_store_dword v20, v21, s[12:13] offset:16 sc1')
            e('s_mov_b64 exec, -1')
            e.nvm -= 1
            e.label('L_b_notrig')
        if p == 0 and mail:
            mailbox(e, False, mail)
            e('s_waitcnt lgkmcnt(0)')
        if p <= 6: chunk(p + 2, int(opts.get('per', 3)))
        if p == 6: run_side(upto=len(side))
        if p == 7: wq_group(0, 4)
        if p == 8:
            if opts.get('low8'): e('s_setprio 0')
            wq_group(4, 8)
            e('s_cmp_lg_u32 s39, 0')
            e('s_cbranch_scc1 L_b_nocnt')
            e('s_mov_b64 exec, 15')
            e('global_load_dword v20, v49, s[12:13] sc1')
            e('s_mov_b64 exec, -1')
            e.label('L_b_nocnt')
            t_wq = e.vm()
            if not wqlate: wq_group(12, 6)
    stamp(3)
    e.wait_vm(t_wq)
    e('s_cmp_lg_u32 s39, 0')
    e('s_cbranch_scc1 L_b_cntdone')
    e('s_mov_b64 exec, 15')
    e('v_cmp_gt_u32 vcc, 12, v20')
    e('s_cbranch_vccz L_b_cntdone')
    e('s_mov_b32 s44, %d' % SPIN)
    e.label('L_b_cnt')
    e('global_load_dword v20, v49, s[12:13] sc1')
    e('s_sub_u32 s44, s44, 1')
    e('s_cbranch_scc1 L_b_cntdone')
    e('s_waitcnt vmcnt(0)')
    e('v_cmp_gt_u32 vcc, 12, v20')
    e('s_cbranch_vccnz L_b_cnt')
    e.label('L_b_cntdone')
    e('s_mov_b64 exec, -1')
    e('s_waitcnt lgkmcnt(0)')
    stamp(4)
    e('s_barrier')
    stamp(5)
    lp = opts.get('lpos', 'a')
    if lp == 'a': e('s_setprio %d' % int(opts.get('lprio', 2)))
    if lp == 'c': e('s_nop 15')
    tk = []
    for w in range(4):
        for k in range(4):
            e('ds_read_b128 %s, %s' % (a(16 * w + 4 * k, 4), v(64 + k)))
            if w < 3: e('v_add_u32 %s, %s, %s' % (v(64 + k), v(60 + k), v(64 + k)))
        tk.append(e.lg())
    if lp != 'a': e('s_setprio %d' % int(opts.get('lprio', 2)))
    e('v_mov_b32 v4, s47')
    e('v_mov_b32 v5, 1')
    e('ds_write_b64 v4, v[40:41] offset:760')
    if wqlate: wq_group(12, 6)
    DD = 68
    for w in range(4):
        e.wait_lg(tk[w])
        if w == 3:
            e('s_mov_b64 exec, 1')
            e('ds_add_u32 v55, v5')
            e('s_mov_b64 exec, -1')
        for i in range(2):
            for j in range(2):
                d = DD + 8 * i + 4 * j
                e('v_mfma_f32_16x16x32_bf16 %s, %s, %s, %s' % (v(d, 4), a(16 * w + 4 * i, 4), a(16 * w + 8 + 4 * j, 4), v(d, 4) if w else '0'))
    e('v_lshl_add_u32 v4, v1, 4, s47')
    e('v_add_u32 v16, 4096, v15')
    e('v_add_u32 v17, 8192, v15')
    for i in range(2):
        for j in range(2):
            d = DD + 8 * i + 4 * j
            o = 92 + 2 * (2 * i + j)
            for k in range(2): e('v_cvt_pk_bf16_f32 %s, %s, %s' % (v(o + k), v(d + 2 * k), v(d + 2 * k + 1)))
            e('ds_write_b64 %s, %s' % (v(45 + 2 * i + j), v(o, 2)))
    e('ds_read_b128 v[68:71], v4')
    flag = 's_mov_b64 exec, 1\nds_add_u32 v55, v5 offset:4\ns_mov_b64 exec, -1'
    if not wqlate: e('s_waitcnt vmcnt(0)\n' + flag + '\ns_waitcnt lgkmcnt(1)')
    else: e('s_waitcnt lgkmcnt(0)')
    e('v_min_u32 v68, -2, v68')
    e('s_mov_b32 exec_hi, 0xffff')
    e('global_store_dwordx4 v14, v[68:71], s[14:15] sc1')
    e('s_mov_b32 exec_hi, -1')
    if wqlate: e('s_waitcnt vmcnt(1)\n' + flag)
    if opts.get('lowmid'): e('s_setprio 0')
    stamp(6)
    def wo_block(first, last):
        e('s_add_u32 s35, s39, %d' % first)
        if first + 3 > last: e('s_min_u32 s35, s35, %d' % last)
        e('s_lshr_b32 s32, s35, 1')
        e('s_add_u32 s32, s32, s26')
        e('s_and_b32 s32, s32, 7')
        e('s_mul_i32 s32, s32, 72')
        e('s_and_b32 s33, s35, 1')
        e('s_lshl_b32 s33, s33, 5')
        e('s_add_u32 s32, s32, s33')
        e('s_add_u32 s32, s32, 8')
        e('s_mul_i32 s32, s32, 1152')
        e('s_mul_i32 s34, s35, 4608')
        if last < 13:
            e('s_add_u32 s33, s34, %d' % (SCR - 6 * 4608))
            e('s_cmp_ge_u32 s35, 6')
            e('s_cselect_b32 s34, s33, s34')
        else:
            e('s_add_u32 s34, s34, %d' % (WQ_LO - 13 * 4608))
        tile144('s[28:31]', 29, 's32')
    e('s_mov_b32 s44, %d' % SPIN)
    e.label('L_b_lcnt')
    e('ds_read_b32 v4, v55')
    e('s_sub_u32 s44, s44, 1')
    e('s_cbranch_scc1 L_b_lcntdone')
    e('s_waitcnt lgkmcnt(0)')
    e('v_cmp_gt_u32 vcc, 4, v4')
    e('s_cbranch_vccnz L_b_lcnt')
    e.label('L_b_lcntdone')
    e('s_waitcnt lgkmcnt(0)')
    nearly = int(opts.get('woearly', 3))
    for k in range(nearly): wo_block(4 * k, 12)
    e('v_lshlrev_b32 v4, 8, v2')
    e('v_lshlrev_b32 v6, 4, v1')
    e('v_sub_u32 v5, v17, v6')
    e('v_add_u32 v4, v4, v5')
    e('s_mov_b32 s44, %d' % SPIN)
    if not opts.get('st4'): stamp(7)
    e('s_cmp_lg_u32 s39, 0')
    e('s_cbranch_scc1 L_b_gather')
    e('s_mov_b64 exec, 15')
    e('global_load_dword v50, v49, s[12:13] offset:4 sc1')
    e('s_mov_b64 exec, -1')
    e.label('L_b_gather')
    X = 64
    for b in range(3):
        for i in range(4): e('global_load_dwordx4 %s, %s, s[14:15] offset:%d sc1' % (v(X + 16 * b + 4 * i, 4), v(15 + b), 1024 * i))
    nanchk = int(opts.get('nanchk', 0))
    def markers():
        e('s_mov_b64 s[32:33], 0')
        for k in range(12):
            if k % 4 == 0 and not nanchk: e('s_waitcnt vmcnt(%d)' % (8 - k))
            e('v_cmp_eq_u32 vcc, -1, %s' % v(X + 4 * k))
            e('s_or_b64 s[32:33], s[32:33], vcc')
        e('s_cmp_eq_u64 s[32:33], 0')
        e('s_cbranch_scc1 L_b_gathered')
        e('s_mov_b64 exec, 0xffff')
        e.label('L_b_kvprobe')
        e('global_load_dword v5, v4, s[14:15] sc1')
        e('s_sub_u32 s44, s44, 1')
        e('s_cbranch_scc1 L_b_gathered')
        e('s_waitcnt vmcnt(0)')
        e('v_cmp_eq_u32 vcc, -1, v5')
        e('s_cbranch_vccnz L_b_kvprobe')
        e('s_mov_b64 exec, -1')
        e('s_branch L_b_gather')
    def sums():
        for b in range(3):
            if nanchk: e('s_waitcnt vmcnt(%d)' % (8 - 4 * b))
            for i in range(4):
                e('v_mfma_f32_16x16x32_bf16 %s, v[56:59], %s, %s' % (v(SUM[b], 4), v(X + 16 * b + 4 * i, 4), v(SUM[b], 4) if i else '0'))
    SUM = (8, 24, 44); PK = (20, 22, 12)
    if nanchk:
        sums()
        e('v_cmp_u_f32 vcc, v8, v24')
        e('v_cmp_u_f32 s[32:33], v44, v44')
        e('s_or_b64 vcc, vcc, s[32:33]')
        e('s_cbranch_vccnz L_b_markers')
        e.label('L_b_gathered')
        e('s_mov_b64 exec, -1')
        keep = e.L; e.section('strict', False); e.label('L_b_markers'); markers(); e.L = keep
        if not opts.get('st4'): stamp(8)
    else:
        markers()
        e.label('L_b_gathered')
        e('s_mov_b64 exec, -1')
        if not opts.get('st4'): stamp(8)
        sums()
    for b in range(3):
        for k in range(2): e('v_cvt_pk_bf16_f32 %s, %s, %s' % (v(PK[b] + k), v(SUM[b] + 2 * k), v(SUM[b] + 2 * k + 1)))
        e('ds_write_b64 %s, %s' % (v(51 + b), v(PK[b], 2)))
    for k in range(1, 4): e('ds_write_b64 v54, v[12:13] offset:%d' % (32 * k))
    e('s_cmp_lg_u32 s39, 0')
    e('s_cbranch_scc1 L_b_cnt2done')
    e('s_mov_b64 exec, 15')
    e('s_mov_b32 s44, %d' % SPIN)
    e.label('L_b_cnt2')
    e('v_cmp_gt_u32 vcc, 12, v50')
    e('s_cbranch_vccz L_b_cnt2done')
    e('global_load_dword v50, v49, s[12:13] offset:4 sc1')
    e('s_waitcnt vmcnt(0)')
    e('s_sub_u32 s44, s44, 1')
    e('s_cbranch_scc0 L_b_cnt2')
    e.label('L_b_cnt2done')
    e('s_mov_b64 exec, -1')
    if opts.get('lowend'): e('s_setprio 0')
    e('s_waitcnt lgkmcnt(0)')
    stamp(9)
    e('s_barrier')
    for k in range(nearly, 3): wo_block(4 * k, 12)
    e('s_cmp_lg_u32 s39, 0')
    e('s_cbranch_scc1 L_b_wo13')
    wo_block(12, 12)
    e('s_branch L_b_wo16')
    e.label('L_b_wo13')
    wo_block(12, 15)
    e.label('L_b_wo16')
    e('s_cmp_ge_u32 s39, 2')
    e('s_cbranch_scc1 L_b_wodone')
    e('s_mul_i32 s32, s39, %d' % (288 * 1152))
    e('s_mul_i32 s34, s39, 4608')
    e('s_add_u32 s34, s34, %d' % (WQ_LO + 3 * 4608))
    tile144('s[28:31]', 34, 's32')
    e.label('L_b_wodone')
    e('s_waitcnt vmcnt(0)')
    stamp(10)
    e('s_barrier')
    e('s_endpgm')


def role_h(e, opts, stamp=None):
    stamp = stamp or (lambda i: None)
    e.label('L_roleH')
    e('s_getpc_b64 s[32:33]')
    e.label('L_h_pc')
    e('s_sub_u32 s32, s32, L_h_pc-KERNEL_START')
    e('s_subb_u32 s33, s33, 0')
    if int(opts.get('pfq', 0)):
        e('s_and_b32 s26, s24, 3')
        e('s_lshl_b32 s26, s26, 7')
        e('v_lshl_add_u32 v1, v0, 9, s26')
    else:
        e('v_lshlrev_b32 v1, 7, v0')
    e('v_cmp_gt_u32 vcc, KERNEL_END-KERNEL_START, v1')
    e('s_and_saveexec_b64 s[34:35], vcc')
    e('s_cbranch_execz L_h_nocode')
    if int(opts.get('pfcode', 1)): e('global_load_dword v2, v1, s[32:33]')
    e.label('L_h_nocode')
    e('s_mov_b64 exec, s[34:35]')
    e('s_mov_b32 s41, s24')
    e('s_mov_b32 s42, s25')
    e('s_sub_u32 s26, s2, 224')
    e('s_sub_u32 s27, s24, 8')
    e('s_mul_i32 s27, s27, 6')
    e('s_add_u32 s27, s27, s25')
    e('s_add_u32 s27, s27, 30')
    e('s_cmp_ge_u32 s24, 12')
    e('s_cselect_b32 s26, s26, s27')
    e('s_lshl_b32 s27, s26, 13')
    e('v_lshl_add_u32 v3, v0, 4, s27')
    e('s_mul_i32 s27, s26, 49152')
    e('s_add_u32 s27, s27, %d' % OB)
    e('v_lshl_add_u32 v4, v0, 4, s27')
    e('s_and_b32 s27, s26, 3')
    e('s_lshl_b32 s27, s27, 6')
    e('v_mov_b32 v30, s27')
    e('v_mov_b32 v31, 1')
    def announce(off, tag):
        e('s_waitcnt vmcnt(0)')
        e('s_barrier')
        e('s_cmp_ge_u32 s26, 48')
        e('s_cbranch_scc1 L_h_no%s' % tag)
        e('v_cmp_eq_u32 vcc, 0, v0')
        e('s_and_saveexec_b64 s[34:35], vcc')
        e('s_cbranch_execz L_h_re%s' % tag)
        e('global_atomic_add v30, v31, s[54:55] offset:%d sc1' % off)
        e.label('L_h_re%s' % tag)
        e('s_mov_b64 exec, s[34:35]')
        e.label('L_h_no%s' % tag)
    for k in range(4): e('v_mov_b32 %s, -1' % v(8 + k))
    e('s_and_b32 s24, s24, 3')
    e('s_mul_i32 s24, s24, 144')
    e('s_and_b32 s25, s25, 1')
    e('s_lshl_b32 s25, s25, 9')
    for k in range(2):
        e('v_add_u32 v16, %d, v0' % (512 * k))
        e('v_min_u32 v16, 719, v16')
        div_small(e, 5, 6, 16, 5, 7)
        e('v_add_u32 v5, s24, v5')
        e('v_lshl_add_u32 v6, v6, 7, s25')
        e('v_mul_u32_u24 v7, 3456, v5')
        e('v_mul_u32_u24 v5, 1152, v5')
        e('v_add_u32 %s, v7, v6' % v(14 + k))
        e('v_add_u32 %s, v5, v6' % v(12 + k))
    order = opts.get('horder', 'fwGqkKowc')
    e('s_waitcnt lgkmcnt(0)')
    for n_, ch in enumerate(order):
        stamp(n_)
        if ch == 'w': e('s_waitcnt vmcnt(0)')
        if ch == 'f': first_touch(e, 's41', 's42', 24, 20)
        if ch == 'u': touch_round(e, 's41', 's42', 24, 20, int(opts.get('u0', 1)), 'h0')
        if ch == 'U': touch_round(e, 's41', 's42', 24, 21, int(opts.get('u0', 1)) + 16, 'h1')
        if ch == 'Q': touch_cols(e, 's41', 's42', 24, 22, 's[48:49]', 3456)
        if ch == 'O': touch_cols(e, 's41', 's42', 24, 23, 's[50:51]', 1152)
        if ch == 'G': first_touch(e, 's41', 's42', 24, 21, 5)
        if ch == 'g':
            e('s_and_b32 s39, s41, 3')
            e('s_add_u32 s39, s39, 5')
            for k in range(3): touch_tiles(e, 0, 's39', 384 * k, 384, 's42', 24, 21 + k)
        if ch == 's':
            e('s_mov_b32 s28, %d' % int(opts.get('hspin', 100)))
            e.label('L_h_spin')
            e('s_sleep 1')
            e('s_sub_u32 s28, s28, 1')
            e('s_cbranch_scc0 L_h_spin')
        if ch == 't':
            e('s_and_b32 s27, s2, 7')
            e('s_lshl_b32 s27, s27, 2')
            e('v_mov_b32 v5, s27')
            e('s_mov_b32 s28, %d' % SPIN)
            e('v_readfirstlane_b32 s29, v0')
            e('s_cmp_lg_u32 s29, 0')
            e('s_cbranch_scc1 L_h_trigd')
            e('s_mov_b64 exec, 1')
            e.label('L_h_trig')
            e('global_load_dword v6, v5, s[54:55] offset:16 sc1')
            e('s_sub_u32 s28, s28, 1')
            e('s_cbranch_scc1 L_h_trigd')
            e('s_waitcnt vmcnt(0)')
            e('v_cmp_eq_u32 vcc, 0, v6')
            e('s_cbranch_vccnz L_h_trig')
            e.label('L_h_trigd')
            e('s_mov_b64 exec, -1')
            e('s_barrier')
        if ch == 'q':
            if int(opts.get('nodup', 1)): e('s_cmp_lt_u32 s41, 12\ns_cbranch_scc1 L_h_noq')
            for k in range(2): e('global_load_dword %s, %s, s[48:49]' % (v(16 + k), v(14 + k)))
            e.label('L_h_noq')
        if ch == 'o':
            if int(opts.get('nodup', 1)): e('s_cmp_lt_u32 s41, 12\ns_cbranch_scc1 L_h_noo')
            for k in range(2): e('global_load_dword %s, %s, s[50:51]' % (v(18 + k), v(12 + k)))
            e.label('L_h_noo')
        if ch == 'k':
            e('s_cmp_ge_u32 s26, 48')
            e('s_cbranch_scc1 L_h_nok')
            e('global_store_dwordx4 v3, v[8:11], s[56:57] sc1')
            e.label('L_h_nok')
        if ch == 'K': announce(0, 'K')
        if ch == 'c':
            e('s_cmp_ge_u32 s26, 48')
            e('s_cbranch_scc1 L_h_noc')
            for k in range(6):
                e('global_store_dwordx4 v4, v[8:11], s[56:57] sc1')
                if k < 5: e('v_add_u32 v4, 8192, v4')
            e.label('L_h_noc')
            stamp(8)
            announce(4, 'C')
            stamp(9)
    assert 'k' in order and 'K' in order and 'c' in order
    if 'q' not in order.lower():
        for k in range(2): e('global_load_dword %s, %s, s[48:49]' % (v(16 + k), v(14 + k)))
    if int(opts.get('nodup', 1)): e('s_cmp_lt_u32 s41, 12\ns_cbranch_scc1 L_exit')
    if 'o' not in order.lower() and not opts.get('noo'):
        for k in range(2): e('global_load_dword %s, %s, s[50:51]' % (v(18 + k), v(12 + k)))
    if opts.get('hst'):
        e('v_lshrrev_b32 v2, 6, v0\nv_readfirstlane_b32 s24, v2\ns_branch L_dump')
    e('s_endpgm')
```

```python
from asmlib import *
import math, struct

def f2u(x): return struct.unpack('<I', struct.pack('<f', x))[0]
LOG2E = f2u(math.log2(math.e)); INV2PI = f2u(1.0 / (2 * math.pi))

A_WORK = 64; A_WS = 8960
A_CMP = A_WORK + 8 * A_WS
CMPS = 3584
A_UT = A_CMP + 8 * CMPS
A_Y1 = A_UT + 8 * 4608
A_END = A_Y1 + 8 * 3072
assert A_END <= 163840
ROWB = 272
CS = 2240

def cmul(e, dst, x, y, t):
    return [lambda: e('v_pk_mul_f32 %s, %s, %s op_sel_hi:[1,0]' % (v(t, 2), v(x, 2), v(y, 2))),
            lambda: e('v_pk_fma_f32 %s, %s, %s, %s op_sel:[1,1,0] op_sel_hi:[0,1,1] neg_lo:[0,1,0]' % (v(dst, 2), v(x, 2), v(y, 2), v(t, 2)))]

def interleave(*streams):
    streams = [list(x) for x in streams]
    while any(streams):
        for st in streams:
            if st: st.pop(0)()

def role_a(e, stamp=None, opts=None):
    opts = opts or {}
    late = int(opts.get('ulate', 1))
    stamp = stamp or (lambda i: None)
    e.label('L_roleA')
    e('s_cmp_ge_u32 s2, 256')
    e('s_cbranch_scc1 L_exit')
    e('s_sub_u32 s24, s2, 128')
    e('s_and_b32 s25, s24, 7')
    e('s_lshr_b32 s24, s24, 3')
    e('s_lshr_b32 s27, s24, 2')
    e('s_lshl_b32 s27, s27, 3')
    e('s_add_u32 s27, s27, s25')
    e('s_cmp_ge_u32 s27, 18')
    e('s_cbranch_scc1 L_roleH')
    e('s_mov_b32 s41, s24')
    e('s_mov_b32 s42, s25')
    e('s_and_b32 s26, s24, 3')
    e('s_lshl_b32 s27, s25, 2')
    e('s_add_u32 s27, s27, 56')
    e('s_lshl_b32 s25, s25, 3')
    e('s_cmp_lt_u32 s24, 8')
    e('s_cselect_b32 s25, s25, s27')
    e('s_add_u32 s25, s25, s24')
    e('v_lshrrev_b32 v10, 6, v0')
    e('v_and_b32 v1, 63, v0')
    e('v_readfirstlane_b32 s24, v10')
    e('s_mov_b32 s30, 0x05040100')
    e('s_mov_b32 s31, 0x07060302')
    e('s_lshl_b32 s28, s25, 3')
    e('s_add_u32 s28, s28, s24')
    e('s_lshl_b32 s29, s28, 8')
    e('v_lshl_add_u32 v10, v1, 2, s29')
    e('s_lshl_b32 s29, s28, 1')
    e('v_mov_b32 v11, s29')
    uold = int(opts.get('uold', 0))
    e('v_lshlrev_b32 v12, %d, v0' % (3 if uold else 2))
    e('v_mul_u32_u24 v13, 1152, v12')
    e('s_lshl_b32 s29, s25, 4')
    e('v_add_u32 v13, s29, v13')
    e('v_mul_u32_u24 v14, 4608, v0')
    e('v_add_u32 v14, s29, v14')
    e('s_mul_i32 s27, s24, %d' % A_WS)
    e('s_add_u32 s27, s27, %d' % A_WORK)
    e('s_mov_b32 m0, s27')
    e('s_waitcnt lgkmcnt(0)')
    e('global_load_ushort v8, v11, s[18:19]')
    for k in range(6):
        e('global_load_dword %s, v10, %s' % (v(2 + k), s(6 + 2 * k, 2)))
    e('global_load_ushort v9, v11, s[44:45]')
    t_par = e.vm()
    import gen_b
    if int(opts.get('atouch', 2)) in (1, 2):
        if opts.get('unit'): gen_b.touch_round(e, 's41', 's42', 36, 10, int(opts.get('u0', 1)), 'a0')
        else: gen_b.first_touch(e, 's41', 's42', 36, 10)
    def uload1(slots, tag, second=False):
        for sub in range(4):
            if sub < 3:
                e('s_cmp_lg_u32 s26, %d' % sub)
                e('s_cbranch_scc1 L_a_u%s_%d' % (tag, sub + 1))
            for slot in slots:
                i = (slot + sub) & 3
                e('global_load_dwordx4 %s, v13, s[4:5] offset:%d' % (a(96 + 4 * i, 4) if second else v(16 + 4 * i, 4), 1152 * i))
            if sub < 3:
                e('s_branch L_a_udone%s' % tag)
                e.label('L_a_u%s_%d' % (tag, sub + 1))
    usplit = int(opts.get('usplit', 0))
    def uload(slot):
        if usplit:
            e('s_cmp_lt_u32 s24, 4')
            e('s_cbranch_scc1 L_a_uold%d' % slot)
            if slot == 1:
                e('s_cmp_lg_u32 s32, 2')
                e('s_cbranch_scc1 L_a_udone%d' % slot)
                uload1((1, 3), '%dy' % slot)
                e.label('L_a_udone%dy' % slot)
            e('s_branch L_a_udone%d' % slot)
            e.label('L_a_uold%d' % slot)
        if uold:
            e('s_cmp_ge_u32 s24, 4')
            e('s_cbranch_scc1 L_a_udone%d' % slot)
        uload1((slot,), '%d' % slot)
        e.label('L_a_udone%d' % slot)
    stamp(0)
    e.section('amain')
    e('s_mul_i32 s33, s24, 4608')
    e('s_add_u32 s33, s33, %d' % A_UT)
    e('v_lshl_add_u32 v38, v1, 3, s33')
    e('v_mov_b32 v36, 0')
    e('v_mov_b32 v37, 0')
    e('ds_write_b64 v38, v[36:37]')
    e('v_and_b32 v36, 31, v1')
    e('v_lshrrev_b32 v37, 5, v1')
    e('v_mul_u32_u24 v86, %d, v36' % ROWB)
    e('v_lshl_add_u32 v86, v37, 4, v86')
    e('v_add_u32 v86, s27, v86')
    for i in range(16): e('v_mov_b32 %s, 0' % v(96 + i))
    e('v_and_b32 v36, 15, v1')
    e('v_lshrrev_b32 v37, 4, v1')
    e('v_lshlrev_b32 v37, 3, v37')
    e('s_movk_i32 s36, 0x3f80')
    for m, (bits, ar) in enumerate(((0x1ff0, 136), (0xfe0, 140))):
        e('v_mov_b32 v38, 0x%x' % bits)
        e('v_lshlrev_b32 v38, v36, v38')
        e('v_lshrrev_b32 v38, v37, v38')
        for k in range(4):
            e('v_bfe_u32 v39, v38, %d, 1' % (2 * k))
            e('v_bfe_u32 v40, v38, %d, 1' % (2 * k + 1))
            e('v_lshl_or_b32 v39, v40, 16, v39')
            e('v_mul_u32_u24 v39, s36, v39')
            e('v_accvgpr_write_b32 %s, v39' % a(ar + k))
    e('s_mul_i32 s34, s24, %d' % CMPS)
    e('s_add_u32 s34, s34, %d' % A_CMP)
    e('v_and_b32 v36, 31, v1')
    e('v_lshrrev_b32 v37, 5, v1')
    e('v_cmp_eq_u32 vcc, 0, v37')
    e('v_lshlrev_b32 v38, 5, v36')
    e('v_lshl_add_u32 v38, v37, 4, v38')
    e('v_add_u32 v87, s34, v38')
    e('v_lshlrev_b32 v39, 4, v36')
    e('v_add_u32 v39, 1024, v39')
    e('v_lshlrev_b32 v40, 3, v36')
    e('v_add_u32 v40, 1536, v40')
    e('v_cndmask_b32 v41, v40, v39, vcc')
    e('v_add_u32 v39, 8, v39')
    e('v_add_u32 v40, 256, v40')
    e('v_cndmask_b32 v42, v40, v39, vcc')
    e('v_add_u32 v88, s34, v41')
    e('v_add_u32 v89, s34, v42')
    e('v_lshlrev_b32 v43, 9, v37')
    e('v_lshl_add_u32 v43, v36, 2, v43')
    e('s_add_u32 s35, s34, 2048')
    e('v_add_u32 v90, s35, v43')
    e('v_lshl_add_u32 v91, v1, 3, s34')
    e('v_lshl_add_u32 v92, v1, 4, s34')
    e('v_cmp_eq_u32 vcc, 0, v1')
    e('v_cndmask_b32 v46, 0, -4, vcc')
    e('v_add_u32 v93, v46, v91')
    e('v_subrev_u32 v47, 16, v92')
    e('v_cndmask_b32 v94, v47, v92, vcc')
    e('v_lshlrev_b32 v49, 4, v1')
    e('v_sub_u32 v49, s27, v49')
    e('v_lshlrev_b32 v50, 3, v1')
    e('v_sub_u32 v50, s27, v50')
    e('v_add_u32 v95, 1072, v49')
    e('v_add_u32 v12, 1592, v50')
    e('v_lshlrev_b32 v15, %d, v0' % (4 if uold else 3))
    e('v_add_u32 v15, %d, v15' % (A_UT + 512))
    parked = []
    def park(src, home):
        e('v_accvgpr_write_b32 %s, %s' % (a(64 + len(parked)), v(src))); parked.append(home)
    def unpark(lo, hi):
        for k in range(lo, hi): e('v_accvgpr_read_b32 %s, %s' % (v(parked[k]), a(64 + k)))
    e('v_lshlrev_b32 v48, 2, v1')
    e('v_sub_u32 v48, s34, v48')
    e('v_add_u32 v48, %d, v48' % (3072 + 252)); park(48, 48)
    e('v_and_b32 v36, 7, v1')
    e('v_bfe_u32 v37, v1, 3, 2')
    e('v_mul_u32_u24 v37, %d, v37' % CS)
    e('v_min_u32 v36, 4, v36')
    e('v_lshlrev_b32 v38, 4, v36')
    e('v_cmp_lt_u32 vcc, 2, v36')
    e('v_add_u32 v39, %d, v38' % (2112 - 48))
    e('v_cndmask_b32 v38, v38, v39, vcc')
    e('v_add3_u32 v40, v38, v37, s27'); park(40, 36)
    e('v_and_b32 v36, 3, v1')
    e('v_lshl_add_u32 v40, v36, 4, s34'); park(40, 38)
    e('v_bfe_u32 v37, v1, 2, 2')
    e('v_lshlrev_b32 v38, 1, v36')
    e('v_sub_u32 v38, v37, v38')
    e('v_mul_u32_u24 v37, %d, v37' % CS)
    e('v_lshl_add_u32 v37, v36, 2, v37')
    e('v_add_u32 v37, s27, v37'); park(37, 37)
    e('v_cmp_lt_i32 s[20:21], 0, v38')
    e('v_cmp_lt_i32 s[22:23], 1, v38')
    e('v_cmp_eq_i32 s[58:59], -6, v38')
    e('v_and_b32 v36, 15, v1')
    e('v_lshrrev_b32 v37, 4, v1')
    e('v_and_b32 v38, 3, v36')
    e('v_sub_u32 v39, v36, v38')
    e('v_lshlrev_b32 v39, 1, v39')
    e('v_mul_u32_u24 v38, %d, v38' % CS)
    e('v_lshl_add_u32 v38, v37, 4, v38')
    e('v_sub_u32 v38, v38, v39')
    e('s_add_u32 s35, s27, 24')
    e('v_add_u32 v40, s35, v38'); park(40, 16)
    e('v_lshlrev_b32 v40, 4, v37')
    e('v_lshlrev_b32 v41, 2, v36')
    e('v_sub_u32 v40, v40, v41')
    e('s_add_u32 s35, s34, %d' % (3072 + 60))
    e('v_add_u32 v40, s35, v40'); park(40, 17)
    e('v_lshlrev_b32 v40, 5, v36')
    e('v_lshl_add_u32 v41, v37, 3, v40')
    e('v_lshl_add_u32 v40, v37, 4, v40')
    e('s_add_u32 s35, s33, 464')
    e('v_add_u32 v40, s35, v40'); park(40, 19)
    e('s_mul_i32 s35, s24, 3072')
    e('s_add_u32 s35, s35, %d' % A_Y1)
    e('v_add_u32 v40, s35, v41'); park(40, 22)
    e('s_add_u32 s35, s33, 512')
    e('v_add_u32 v40, s35, v41'); park(40, 21)
    e.wait_vm(t_par)
    stamp(1)
    if int(opts.get('atouch', 2)) == 3: gen_b.first_touch(e, 's41', 's42', 36, 10)
    if int(opts.get('atouch', 2)) > 1:
        if opts.get('unit'): gen_b.touch_round(e, 's41', 's42', 36, 11, int(opts.get('u0', 1)) + 16, 'a1')
        else: gen_b.first_touch(e, 's41', 's42', 36, 11, 5)
    if opts.get('aexit') == '1': e('s_branch L_exit')
    e('v_lshlrev_b32 v8, 16, v8')
    e('v_mul_f32 v8, 0x%08x, v8' % LOG2E)
    e('v_exp_f32 v8, v8')
    e('v_lshlrev_b32 v9, 16, v9')
    e('v_cvt_pk_bf16_f32 v8, v8, v8')
    e('v_cmp_eq_u32 vcc, 0, v1')
    e('v_lshlrev_b32 v32, 16, v8')
    e('v_cndmask_b32 v35, 0, v9, vcc')
    e('v_mul_f32 v33, 0x%08x, v32' % LOG2E)
    e('v_mul_f32 v34, 0x%08x, v32' % INV2PI)
    if usplit:
        e('s_cmp_lt_u32 s24, 4')
        e('s_cbranch_scc1 L_a_udonez')
        uload1((0, 2), 'z')
        e.label('L_a_udonez')
    e('s_mov_b32 s32, 2')
    e.label('L_a_pass')
    stamp(8)
    if not late: uload(0)
    stamp(9)
    for k in range(6): e('v_lshlrev_b32 %s, 16, %s' % (v(36 + k), v(2 + k)))
    for k in range(6): e('v_lshrrev_b32 %s, 16, %s' % (v(2 + k), v(2 + k)))
    e('v_mul_f32 v36, v33, v36')
    e('v_mul_f32 v37, v34, v37')
    e('v_mul_f32 v38, v32, v38')
    e('v_mul_f32 v39, v32, v39')
    e('v_mul_f32 v70, 0x43800000, v36')
    e('v_mul_f32 v71, 0x43800000, v37')
    e('v_mul_f32 v72, 0x41000000, v36')
    e('v_mul_f32 v73, 0x41000000, v37')
    e('v_fract_f32 v71, v71')
    e('v_fract_f32 v37, v37')
    e('v_fract_f32 v73, v73')
    e('v_exp_f32 v70, v70')
    e('v_cos_f32 v48, v71')
    e('v_sin_f32 v49, v71')
    e('v_exp_f32 v36, v36')
    e('v_cos_f32 v44, v37')
    e('v_sin_f32 v45, v37')
    e('v_exp_f32 v72, v72')
    e('v_cos_f32 v46, v73')
    e('v_sin_f32 v47, v73')
    if int(opts.get('vop2', 0)):
        def cm(d, x, y, ny):
            return [lambda: e('v_mul_f32 %s, %s, %s' % (v(d), v(x), v(y))),
                    lambda: e('v_mul_f32 %s, %s, %s' % (v(d + 1), v(x + 1), v(y))),
                    lambda: e('v_fmac_f32 %s, %s, %s' % (v(d), v(x + 1), v(ny))),
                    lambda: e('v_fmac_f32 %s, %s, %s' % (v(d + 1), v(x), v(y + 1)))]
        neg = lambda d, x: [lambda: e('v_sub_f32 %s, 0, %s' % (v(d), v(x)))]
        e('v_sub_f32 v74, 0, v41')
        for f in cm(42, 38, 40, 74): f()
        e('v_mul_f32 v48, v70, v48')
        e('v_mul_f32 v49, v70, v49')
        e('v_mul_f32 v44, v36, v44')
        e('v_mul_f32 v45, v36, v45')
        e('v_mul_f32 v46, v72, v46')
        e('v_mul_f32 v47, v72, v47')
        e('v_sub_f32 v36, 0, v49')
        e('v_sub_f32 v37, 0, v45')
        e('v_sub_f32 v38, 0, v47')
        cv = {}
        def put(src, row, ng, ch=0):
            cv[ch] = cv.get(ch, 0) + 1
            r = 78 + 2 * ch + (cv[ch] & 1)
            return [lambda: e('v_cvt_pk_bf16_f32 %s, %s, %s%s' % (v(r), v(src), '-' if ng else '', v(src + 1))),
                    lambda: e('ds_write_addtid_b32 %s offset:%d' % (v(r), row * ROWB))]
        chA = put(42, 0, True); src = 42
        for k, r in enumerate([8, 12, 14, 16, 17, 18, 19, 20]):
            d = 50 + 2 * (k & 1)
            chA += cm(d, src, 48, 36) + put(d, r, True); src = d
        pB = lambda x, r: put(x, r, True, 1)
        chB = cm(60, 44, 44, 37) + neg(39, 61) + cm(68, 42, 44, 37) + pB(68, 1)
        chB += cm(62, 42, 60, 39) + pB(62, 2) + cm(70, 68, 60, 39) + pB(70, 3)
        chB += cm(64, 62, 60, 39) + pB(64, 4) + cm(68, 70, 60, 39) + pB(68, 5)
        chB += cm(66, 64, 60, 39) + pB(66, 6) + cm(70, 68, 60, 39) + pB(70, 7)
        chB += cm(68, 64, 48, 36) + pB(68, 10) + cm(70, 62, 48, 36) + pB(70, 9)
        chB += cm(64, 68, 48, 36) + pB(64, 13) + cm(70, 66, 48, 36) + pB(70, 11)
        chB += cm(68, 64, 48, 36) + pB(68, 15)
        chC = cm(54, 46, 46, 38) + cm(56, 54, 46, 38) + neg(40, 55) + cm(58, 54, 54, 40) + neg(41, 59)
        stamp(10)
        interleave(chA, chB, chC)
        stamp(11)
        uload(1)
        stamp(12)
        for k in range(8): e('ds_read_b128 %s, v86 offset:%d' % (a(4 * k, 4), 32 * k))
        e('v_mov_b32 v52, 0x3f80')
        e('ds_write_addtid_b32 v52')
        for f in put(46, 1, False) + put(54, 2, False) + put(56, 3, False) + put(58, 4, False): f()
        regs = {0: (58, 50, 52), 1: (46, 60, 62), 2: (54, 64, 66), 3: (56, 68, 70)}
        chains = []
        for c in (1, 2, 3, 0):
            st = []
            src, r0, r1 = regs[c]
            for j in range(5, 32):
                if j % 4 != c: continue
                st += cm(r0, src, 58, 41) + put(r0, j, False, c); src = r0; r0, r1 = r1, r0
            chains.append(st)
        interleave(*chains)
    else:
        for f in cmul(e, 42, 38, 40, 74): f()
        e('v_mul_f32 v48, v70, v48')
        e('v_mul_f32 v49, v70, v49')
        e('v_mul_f32 v44, v36, v44')
        e('v_mul_f32 v45, v36, v45')
        e('v_mul_f32 v46, v72, v46')
        e('v_mul_f32 v47, v72, v47')
        cv = {}
        def put(src, row, neg, ch=0):
            cv[ch] = cv.get(ch, 0) + 1
            r = 78 + 2 * ch + (cv[ch] & 1)
            return [lambda: e('v_cvt_pk_bf16_f32 %s, %s, %s%s' % (v(r), v(src), '-' if neg else '', v(src + 1))),
                    lambda: e('ds_write_addtid_b32 %s offset:%d' % (v(r), row * ROWB))]
        chA = put(42, 0, True)
        rowsA = [8, 12, 14, 16, 17, 18, 19, 20]
        src = 42
        for r in rowsA:
            chA += cmul(e, 50, src, 48, 70) + put(50, r, True); src = 50
        putB = lambda x, r, n: put(x, r, n, 1)
        chB = cmul(e, 60, 44, 44, 72) + cmul(e, 68, 42, 44, 74) + putB(68, 1, True)
        chB += cmul(e, 62, 42, 60, 72) + putB(62, 2, True) + cmul(e, 68, 68, 60, 74) + putB(68, 3, True)
        chB += cmul(e, 64, 62, 60, 72) + putB(64, 4, True) + cmul(e, 68, 68, 60, 74) + putB(68, 5, True)
        chB += cmul(e, 66, 64, 60, 72) + putB(66, 6, True) + cmul(e, 68, 68, 60, 74) + putB(68, 7, True)
        chB += cmul(e, 64, 64, 48, 72) + putB(64, 10, True) + cmul(e, 62, 62, 48, 74) + putB(62, 9, True)
        chB += cmul(e, 64, 64, 48, 72) + putB(64, 13, True) + cmul(e, 66, 66, 48, 74) + putB(66, 11, True)
        chB += cmul(e, 64, 64, 48, 72) + putB(64, 15, True)
        chC = cmul(e, 54, 46, 46, 76) + cmul(e, 56, 54, 46, 76) + cmul(e, 58, 54, 54, 76)
        stamp(10)
        interleave(chA, chB, chC)
        stamp(11)
        uload(1)
        stamp(12)
        for k in range(8): e('ds_read_b128 %s, v86 offset:%d' % (a(4 * k, 4), 32 * k))
        e('v_mov_b32 v52, 0x3f80')
        e('ds_write_addtid_b32 v52')
        for f in put(46, 1, False) + put(54, 2, False) + put(56, 3, False) + put(58, 4, False): f()
        regs = {0: (58, 50), 1: (46, 52), 2: (54, 54), 3: (56, 56)}
        chains = []
        for c in (1, 2, 3, 0):
            st = []
            src, run = regs[c]
            for j in range(5, 32):
                if j % 4 != c: continue
                st += cmul(e, run, src, 58, 70 + 2 * c) + put(run, j, False, c); src = run
            chains.append(st)
        interleave(*chains)
    stamp(13)
    if late: uload(0)
    e('s_add_u32 s26, s26, 2')
    e('s_and_b32 s26, s26, 3')
    t0 = e.lg()
    for k in range(8): e('ds_read_b128 %s, v86 offset:%d' % (a(32 + 4 * k, 4), 32 * k))
    for k in range(8):
        e.wait_lg(t0 + k + 1)
        e('v_mfma_f32_32x32x16_bf16 v[96:111], %s, %s, v[96:111]' % (a(4 * k, 4), a(32 + 4 * k, 4)))
    e('s_sub_u32 s32, s32, 1')
    e('s_cmp_lg_u32 s32, 0')
    e('s_cbranch_scc1 L_a_pass')
    stamp(2)
    if uold:
        e('s_cmp_ge_u32 s24, 4')
        e('s_cbranch_scc1 L_a_udones')
        e('v_add_u32 v13, 4608, v13')
        uload1((0, 1, 2, 3), 's', True)
        e.label('L_a_udones')
    if int(opts.get('aq', 0)):
        e('s_cmp_ge_u32 s24, 3')
        e('s_cbranch_scc1 L_a_noq')
        gen_b.touch_cols(e, 's41', 's42', 36, 8, 's[48:49]', 3456)
        if int(opts.get('aq', 0)) == 2: gen_b.touch_cols(e, 's41', 's42', 36, 9, 's[50:51]', 1152)
        e.label('L_a_noq')
    unpark(0, 4)
    e('v_cmp_eq_u32 vcc, 0, v1')
    e('v_mov_b32 v51, s34')
    for k in range(4): e('v_mov_b32 %s, 0' % v(76 + k))
    e('ds_write_b128 v87, v[96:99]')
    e('ds_write_b64 v88, v[100:101]')
    e('ds_write_b64 v89, v[102:103]')
    e('ds_write2_b32 v90, v104, v105 offset0:0 offset1:32')
    e('ds_write2_b32 v90, v106, v107 offset0:64 offset1:96')
    t0 = e.lg()
    e('ds_read_b64 v[56:57], v91 offset:1536')
    e('ds_read_b32 v58, v91 offset:1544')
    e('ds_read_b32 v59, v93 offset:1536')
    e('ds_read_b32 v55, v93 offset:1532')
    e('ds_read_b64 v[60:61], v91 offset:1024')
    e('ds_read_b32 v62, v91 offset:1032')
    e('ds_read_b32 v63, v93 offset:1024')
    e('ds_read2_b32 v[68:69], v93 offset0:254 offset1:255')
    e('ds_read_b128 v[64:67], v92')
    e('ds_read_b128 v[72:75], v94')
    e('ds_read_b32 v52, v91 offset:2052')
    e('ds_read_b32 v53, v91 offset:2056')
    e('ds_read_b32 v70, v51 offset:2044')
    e('ds_read_b32 v71, v51 offset:2048')
    e('ds_write_b128 v36, v[76:79]')
    e('ds_write_b128 v38, v[76:79] offset:%d' % (3072 + 256))
    def pk(d, x, y): e('v_cvt_pk_bf16_f32 %s, %s, %s' % (v(d), v(x), v(y)))
    def quad(base, pairs):
        for k, (x, y) in enumerate(pairs): pk(base + k, x, y)
    e.wait_lg(t0 + 4)
    A_, B_, C_, A2, D_ = 56, 57, 58, 59, 55
    quad(96, [(C_, C_), (B_, B_), (B_, A_), (A_, A_)]); e('ds_write_b128 v95, v[96:99] offset:%d' % (3 * CS))
    quad(100, [(C_, B_), (B_, B_), (A_, A_), (A_, A_)]); e('ds_write_b128 v95, v[100:103] offset:%d' % (2 * CS))
    quad(104, [(B_, B_), (B_, A_), (A_, A_), (A_, A2)]); e('ds_write_b128 v95, v[104:107] offset:%d' % CS)
    quad(108, [(B_, B_), (A_, A_), (A_, A_), (A2, D_)]); e('ds_write_b128 v95, v[108:111]')
    e.wait_lg(t0 + 14)
    A_, B_, C_, A1, E_, F_ = 60, 61, 62, 63, 69, 68
    e('v_add_f32 v64, v64, v35')
    for k in (73, 74, 75): e('v_cndmask_b32 %s, %s, v76, vcc' % (v(k), v(k)))
    quad(96, [(C_, B_), (A_, A_)]); e('ds_write_b64 v12, v[96:97] offset:%d' % (3 * CS))
    quad(98, [(B_, A_), (A_, A1)]); e('ds_write_b64 v12, v[98:99] offset:%d' % (2 * CS))
    quad(100, [(A_, A_), (A1, E_)]); e('ds_write_b64 v12, v[100:101] offset:%d' % CS)
    quad(102, [(A_, A1), (E_, F_)]); e('ds_write_b64 v12, v[102:103]')
    quad(104, [(67, 66), (65, 64)]); e('ds_write_b64 v12, v[104:105] offset:%d' % (3 * CS + 512))
    quad(106, [(66, 65), (64, 75)]); e('ds_write_b64 v12, v[106:107] offset:%d' % (2 * CS + 512))
    quad(108, [(65, 64), (75, 74)]); e('ds_write_b64 v12, v[108:109] offset:%d' % (CS + 512))
    quad(110, [(64, 75), (74, 73)]); e('ds_write_b64 v12, v[110:111] offset:512')
    pk(54, 53, 52); e('ds_write_b32 v48, v54')
    e('v_cndmask_b32 v39, v71, v76, s[20:21]')
    e('v_cndmask_b32 v40, v71, v76, s[22:23]')
    e('v_cndmask_b32 v40, v40, v70, s[58:59]')
    pk(39, 39, 40); e('ds_write_b32 v37, v39 offset:48')
    stamp(3)
    e('s_waitcnt vmcnt(0)')
    stamp(4)
    if uold:
        e('s_cmp_ge_u32 s24, 4')
        e('s_cbranch_scc1 L_a_notr')
        for k in range(16): e('v_accvgpr_read_b32 %s, %s' % (v(36 + k), a(96 + k)))
        for c in range(8):
            sel = 's31' if c & 1 else 's30'
            d = 52 + 4 * (c % 4)
            for k, r in enumerate((16, 24, 36, 44)): e('v_perm_b32 %s, %s, %s, %s' % (v(d + k), v(r + 4 + (c >> 1)), v(r + (c >> 1)), sel))
            e('ds_write_b128 v15, %s offset:%d' % (v(d, 4), c * 4608))
        e.label('L_a_notr')
    else:
        for c in range(8):
            sel = 's31' if c & 1 else 's30'
            d = 36 + 2 * (c % 8)
            e('v_perm_b32 %s, %s, %s, %s' % (v(d), v(20 + (c >> 1)), v(16 + (c >> 1)), sel))
            e('v_perm_b32 %s, %s, %s, %s' % (v(d + 1), v(28 + (c >> 1)), v(24 + (c >> 1)), sel))
            e('ds_write_b64 v15, %s offset:%d' % (v(d, 2), c * 4608))
    unpark(4, 9)
    e('v_add_u32 v20, 16, v19')
    ACC = 64
    for i in range(16): e('v_mov_b32 %s, 0' % v(ACC + i))
    t0 = e.lg()
    for d in range(4, 8):
        o = 16 * (7 - d)
        e('ds_read2_b32 %s, v17 offset0:%d offset1:%d' % (a(96 + 4 * (d - 4), 2), o, o + 1))
        e('ds_read2_b32 %s, v17 offset0:%d offset1:%d' % (a(98 + 4 * (d - 4), 2), o + 2, o + 3))
    e('ds_read_b64 a[128:129], v16')
    e('ds_read_b64 a[130:131], v16 offset:8')
    e('s_waitcnt lgkmcnt(0)')
    e('s_barrier')
    stamp(5)
    if opts.get('aexit') == '2': e('s_branch L_exit')
    mf = lambda d, x, y, c: e('v_mfma_f32_16x16x32_bf16 %s, %s, %s, %s' % (d, x, y, c))
    G1 = int(opts.get('g1', 5))
    T1 = list(range(G1)); T2 = list(range(G1, 8))
    tok = {}
    wgrp = int(opts.get('wgrp', 2))
    def reads(bank, tiles):
        low = max(0, min(tiles) - 3)
        out = []; seen = set()
        def rd(key, txt): out.append(lambda: (e(txt), tok.__setitem__(key, e.lg())))
        for i in range(4):
            for h in range(2): rd(('A', bank, i), 'ds_read_b64 %s, v16 offset:%d' % (a(bank + 4 * i + 2 * h, 2), 2048 - 512 * i + 8 * h))
            for n in tiles:
                m = n - i
                if m >= 0 and m not in seen:
                    seen.add(m); rd(('B', bank, m), 'ds_read_b128 %s, v20 offset:%d' % (a(bank + 16 + 4 * (m - low), 4), 512 * m))
        out.append(lambda: e('v_subrev_u32 v16, 64, v16'))
        out.append(lambda: e('v_subrev_u32 v20, 64, v20'))
        return out
    def spread(nslots, fill):
        per = [len(fill) // nslots + (1 if k < len(fill) % nslots else 0) for k in range(nslots)]
        res = []; k = 0
        for p_ in per: res.append(fill[k:k + p_]); k += p_
        return res
    def half(bank, tiles, more=(), lead=0):
        low = max(0, min(tiles) - 3)
        ops = [(i, n) for i in range(4) for n in tiles if n >= i]
        rd_ = reads(48 - bank, tiles); more = list(more)
        fill = []
        while rd_ or more:
            fill += rd_[:1] + more[:lead or 1]; rd_ = rd_[1:]; more = more[lead or 1:]
        gaps = spread(len(ops), fill)
        have = -1
        for (i, n), gp in zip(ops, gaps):
            need_ = max(max(tok[('A', bank, i2)], tok[('B', bank, n2 - i2)]) for i2, n2 in ops if i2 // wgrp == i // wgrp)
            if need_ > have: e.wait_lg(need_); have = need_
            mf(v(ACC + 4 * n, 4), a(bank + 4 * i, 4), a(bank + 16 + 4 * (n - i - low), 4), v(ACC + 4 * n, 4))
            for f in gp: f()
    t0 = e.lg()
    for c in range(4):
        e('ds_read_b128 %s, v19 offset:%d' % (a(64 + 8 * c, 4), 512 * c))
        e('ds_read_b128 %s, v20 offset:%d' % (a(68 + 8 * c, 4), 512 * c))
    BX = 24
    for c in range(4):
        e.wait_lg(t0 + 2 * c + 2)
        mf(v(BX + 8 * c, 4), a(64 + 8 * c, 4), 'a[136:139]', '0')
        mf(v(BX + 8 * c + 4, 4), a(68 + 8 * c, 4), 'a[140:143]', '0')
        mf(v(ACC + 16 + 4 * c, 4), 'a[128:131]', a(68 + 8 * c, 4), '0')
        if c:
            for r in range(4): pk(BX + 8 * c - 8 + r, BX + 8 * c - 8 + r, BX + 8 * c - 4 + r)
    first = reads(0, T1)
    for c in range(4):
        if c == 1:
            for r in range(4): pk(BX + 24 + r, BX + 24 + r, BX + 28 + r)
        for n in range(4 + c, 8):
            mf(v(ACC + 4 * n, 4), v(BX + 8 * c, 4), a(96 + 4 * (n - c - 4), 4), v(ACC + 4 * n, 4))
            for f in first[:2]: f()
            first = first[2:]
    assert not first
    def loop(tiles, tag, trips, extra=None):
        e('s_mov_b32 s32, %d' % trips)
        e.label('L_a_conv%s' % tag)
        half(0, tiles)
        if extra: extra()
        half(48, tiles)
        e('s_sub_u32 s32, s32, 1')
        e('s_cmp_lg_u32 s32, 0')
        e('s_cbranch_scc1 L_a_conv%s' % tag)
    def put_y(tiles, addr):
        r = []
        for n in tiles:
            r.append(lambda n=n: pk(36 + 2 * n, ACC + 4 * n, ACC + 4 * n + 1))
            r.append(lambda n=n: pk(37 + 2 * n, ACC + 4 * n + 2, ACC + 4 * n + 3))
            r.append(lambda n=n: e('ds_write_b64 %s, %s offset:%d' % (addr, v(36 + 2 * n, 2), 512 * n)))
        return r
    def gather(rows0, rnd, base, stride):
        src = 24 + 8 * rnd if rows0 == 0 else 24
        rd_ = [lambda c=c: (e('ds_read_b32 %s, v23 offset:%d' % (v(src + c), base + c * stride + 2048 * rnd)), tok.__setitem__('y', e.lg())) for c in range(8)]
        ad = v(12 + rnd)
        rd_.append(lambda: e('s_mov_b32 s35, %d\nv_add_u32 %s, s35, v14' % ((rows0 + 1024 * rnd) * 2304, ad)))
        sh = []; st = []
        for i in range(2):
            d = 44 + 8 * rnd + 4 * i
            for c2 in range(4): sh.append(lambda d=d, c2=c2, i=i: e('v_perm_b32 %s, %s, %s, %s' % (v(d + c2), v(src + 1 + 2 * c2), v(src + 2 * c2), 's31' if i else 's30')))
            st.append('global_store_dwordx4 %s, %s, s[52:53] offset:%d' % (ad, v(d, 4), 2304 * i))
        return rd_, sh, st
    loop(T1, 'a', 4)
    stamp(14)
    e('v_add_u32 v16, 576, v16')
    e('v_add_u32 v20, 576, v20')
    for f in reads(0, T2): f()
    e('v_lshlrev_b32 v23, 2, v0')
    e('v_add_u32 v23, %d, v23' % A_UT)
    half(0, T2, put_y(T1, 'v22'))
    e('s_waitcnt lgkmcnt(0)')
    e('s_barrier')
    nr = (256 * G1 + 1023) // 1024
    gs = [gather(0, r, A_Y1 - A_UT, 3072) for r in range(nr)]
    half(48, T2, sum([g[0] for g in gs], []), lead=2)
    stamp(15)
    e.wait_lg(tok['y'])
    half(0, T2, sum([g[1] for g in gs], []))
    held = [(st, 8 if r == 0 else (256 * G1 - 1024) // 128) for r, g in enumerate(gs) for st in g[2]]
    e(held.pop(0)[0])
    half(48, T2)
    def trickle():
        e('s_cmp_lg_u32 s32, 2')
        e('s_cbranch_scc1 L_a_tr1')
        e(held[0][0])
        e('s_branch L_a_trdone')
        e.label('L_a_tr1')
        if len(held) > 1:
            e('s_cmp_ge_u32 s24, %d' % held[1][1])
            e('s_cbranch_scc1 L_a_trdone')
            for st, _ in held[1:]: e(st)
        e.label('L_a_trdone')
    loop(T2, 'b', 2, trickle)
    stamp(6)
    for f in put_y(T2, 'v21'): f()
    e('s_waitcnt lgkmcnt(0)')
    e('s_barrier')
    n2 = 2048 - 256 * G1
    if n2 < 1024:
        e('s_cmp_ge_u32 s24, %d' % (n2 // 128))
        e('s_cbranch_scc1 L_a_done')
    rd_, sh, st = gather(256 * G1, 0, 512 + 512 * G1, 4608)
    for f in rd_: f()
    e.wait_lg(tok['y'])
    for i in range(2):
        for f in sh[4 * i:4 * i + 4]: f()
        e(st[i])
    e.label('L_a_done')
    if opts.get('awb'):
        e('s_waitcnt vmcnt(0)')
        e('s_barrier')
        e('s_cmp_lg_u32 s24, 0')
        e('s_cbranch_scc1 L_a_nowb')
        e('buffer_wbl2 sc1')
        e.label('L_a_nowb')
    stamp(7)
    e('s_endpgm')
```

```python
import sys
from asmlib import *
import gen_a
KN = 'concat_heads__ssm_conv_s4__linear_attn_block__prompt_kernel'
HEAD = open('concat_heads__ssm_conv_s4__linear_attn_block__prompt.s.ref').read().split('; Override launch')[0]
LDS = 163840
DOC = """;
;  0..127  linear attention, 128 rows x 4 heads each. Waves 4-7 stream x / wqkv / wo tiles into LDS, waves 0-3 multiply.
;          k,v projection -> phi(k)^T v partial sums handed over through d_ws (16 row blocks per head group) while q is
;  72 of 128..255  S4 convolution, 8 channels each (one per wave). The kernel values at the 641 distinct bf16-rounded
;          time indices come from one matrix product of two short tables of powers; lags below 1029 are applied as
; Hand-offs: sc1 stores and loads; a consumer trusts a piece only once it differs from the marker; every wait is bounded.
"""
STAMP_BASE = 64 << 20

def make(stamps=False, roles='AB', opts=None):
    opts = opts or {}
    e = Asm()
    nst = [0]
    def mk_stamp(role):
        if opts.get('at'):
            def st1(i):
                sec = [k for k, x in e.secs.items() if x is e.L][0]
                who = 'c' if sec in ('compute', 'cmain') else 'a' if role == 'A' else 'h' if role == 'H' else 'l'
                if opts['at'] == '%s%d' % (who, i): e('s_memrealtime s[70:71]')
            return st1
        if not stamps: return None
        def st(i):
            if opts.get('only'):
                sec = [k for k, x in e.secs.items() if x is e.L][0]
                who = 'c' if sec in ('compute', 'cmain') else 'a' if role == 'A' else 'h' if role == 'H' else 'l'
                if '%s%d' % (who, i) not in opts['only'].split(','): return
            e('%s %s' % ('s_memrealtime' if opts.get('rt') else 's_memtime', s(64 + 2 * i, 2)))
        return st
    e.label(KN)
    probe = opts.get('probe')
    if stamps or probe:
        e('s_memrealtime s[60:61]')
        e('s_memrealtime s[62:63]' if opts.get('rt') else 's_memtime s[62:63]')
    import gen_b
    e.secs = {'head': e.L}
    if opts.get('jitter'):
        e('s_memrealtime s[58:59]')
        e('s_waitcnt lgkmcnt(0)')
        e('v_readfirstlane_b32 s59, v0')
        e('s_mul_i32 s59, s59, 40503')
        e('s_mul_i32 s58, s58, 2654435761')
        e('s_mul_i32 s3, s2, 97531')
        e('s_add_u32 s58, s58, s59')
        e('s_add_u32 s58, s58, s3')
        e('s_mul_i32 s58, s58, 2654435761')
        e('s_lshr_b32 s58, s58, %d' % (32 - int(opts['jitter'])))
        e.label('L_jit')
        e('s_sleep 2')
        e('s_sub_u32 s58, s58, 1')
        e('s_cbranch_scc0 L_jit')
    e('s_load_dwordx16 s[4:19], s[0:1], 0')
    e('s_load_dwordx8 s[44:51], s[0:1], 64')
    e('s_load_dwordx4 s[52:55], s[0:1], 96')
    e('s_load_dwordx2 s[56:57], s[0:1], 112')
    e('s_cmp_ge_u32 s2, 128')
    e('s_cbranch_scc1 L_roleA')
    if 'B' in roles: gen_b.role_b(e, mk_stamp('B'), opts)
    else: e('s_branch L_exit')
    e.section('ahead', False)
    gen_a.role_a(e, mk_stamp('A'), opts)
    e.section('helper', False)
    gen_b.role_h(e, opts, mk_stamp('H') if opts.get('hst') else None)
    e.section('exit', False)
    e.label('L_exit')
    e('s_endpgm')
    order = ['head', 'ahead', 'helper', 'exit'] + (['compute', 'loader', 'amain'] if int(opts.get('cfirst', 1)) else ['loader', 'amain', 'compute']) + ['cmain', 'strict']
    assert set(e.secs) <= set(order)
    lines = sum([e.secs.get(k, []) for k in order], [])
    keep = len(e.secs['head']) + len(e.secs['ahead']) + len(e.secs['helper']) + len(e.secs['exit'])
    if 'A' not in roles:
        k = lines.index('s_cbranch_scc1 L_roleH')
        lines.insert(k + 1, 's_branch L_exit')
    if probe:
        k = [i for i, l in enumerate(lines) if l == 's_endpgm'][{'b': -1, 'l': 2 if int(opts.get('lfirst', 1)) else 3, 'a': 3 if int(opts.get('lfirst', 1)) else 2}[probe[0]]]
        d = Asm()
        d('s_waitcnt vmcnt(0)')
        d('s_memrealtime s[62:63]' if probe[1:] == 'rt' else 's_memtime s[64:65]')
        d('s_memrealtime s[66:67]')
        d('s_waitcnt lgkmcnt(0)')
        if probe[1:] == 'fix':
            d('s_mov_b32 s6, 2000')
        elif probe[1:] == 'rt':
            d('s_sub_u32 s6, %s, s60' % ('s70' if opts.get('at') else 's62'))
            d('s_lshl_b32 s6, s6, 2')
        else:
            d('s_sub_u32 s6, s64, s62')
            d('s_lshr_b32 s6, s6, 3')
        if opts.get('pwb'):
            d('s_mov_b32 s7, 200')
            d.label('L_pwb')
            d('s_sleep 1')
            d('s_sub_u32 s7, s7, 1')
            d('s_cbranch_scc0 L_pwb')
            d('buffer_wbl2 sc1')
            d('s_waitcnt vmcnt(0)')
        d.label('L_probe')
        d('s_memrealtime s[68:69]')
        d('s_waitcnt lgkmcnt(0)')
        d('s_sub_u32 s7, s68, s66')
        d('s_cmp_lt_u32 s7, s6')
        d('s_cbranch_scc1 L_probe')
        lines = lines[:k] + d.L + lines[k:]
    if stamps:
        out = []
        for k, l in enumerate(lines):
            if l == 's_endpgm' and k > keep: out.append('s_branch L_dump')
            else: out.append(l)
        lines = out
        d = Asm()
        d.label('L_dump')
        d('s_waitcnt vmcnt(0)')
        d('s_memrealtime s[96:97]' if opts.get('rt') else 's_memtime s[96:97]')
        d('s_memrealtime s[98:99]')
        d('s_load_dwordx2 s[4:5], s[0:1], 112')
        d('v_mbcnt_lo_u32_b32 v1, -1, 0')
        d('v_mbcnt_hi_u32_b32 v1, -1, v1')
        d('s_waitcnt lgkmcnt(0)')
        d('v_mov_b32 v2, s60')
        for i in range(17):
            d('s_sub_u32 s6, %s, s62' % s(64 + 2 * i))
            d('v_mov_b32 v3, s6')
            d('v_cmp_eq_u32 vcc, %d, v1' % (i + 2))
            d('v_cndmask_b32 v2, v2, v3, vcc')
        d('v_mov_b32 v3, s98')
        d('v_cmp_eq_u32 vcc, 1, v1')
        d('v_cndmask_b32 v2, v2, v3, vcc')
        d('s_lshl_b32 s6, s2, 3')
        d('s_add_u32 s6, s6, s24')
        d('s_lshl_b32 s6, s6, 8')
        d('s_add_u32 s6, s6, %d' % STAMP_BASE)
        d('v_lshl_add_u32 v1, v1, 2, s6')
        d('global_store_dword v1, v2, s[4:5]')
        d('s_endpgm')
        lines += d.L
    if opts.get('strip'):
        i0 = lines.index('L_a_pass:'); i1 = lines.index('s_cbranch_scc1 L_a_pass')
        pre = tuple(opts['strip'].split(','))
        lines = lines[:i0] + [l for l in lines[i0:i1] if not l.startswith(pre)] + lines[i1:]
    if opts.get('sys'): lines = [l.replace(' sc1', ' sc0 sc1') if ('store' in l and opts['sys'] in 'sb') or ('load' in l and opts['sys'] in 'lb') else l for l in lines]
    merged = []
    for l in sum([x.split('\n') for x in lines], []):
        if merged and l.startswith('s_waitcnt lgkmcnt') and merged[-1].startswith('s_waitcnt vmcnt') and 'lgkm' not in merged[-1]:
            merged[-1] += ' ' + l.split()[1]
        else: merged.append(l)
    lines = merged
    lines, added = pad_hazards(lines)
    lines = [l.replace('KERNEL_START', KN).replace('KERNEL_END', 'L_end') for l in lines] + ['L_end:']
    body = '\n'.join(l if l.endswith(':') else '    ' + l for l in lines)
    txt = HEAD + '; @launch grid=(256,1,1) block=(512,1,1) lds=%d\n' % LDS
    txt += DOC
    txt += '.amdgcn_target "amdgcn-amd-amdhsa--gfx950"\n.text\n.globl %s\n.p2align 8\n.type %s,@function\n' % (KN, KN)
    txt += body + '\n'
    txt += '''.section .rodata,"a"
.p2align 6
.amdhsa_kernel %s
  .amdhsa_next_free_vgpr 256
  .amdhsa_next_free_sgpr 102
  .amdhsa_accum_offset 112
  .amdhsa_group_segment_fixed_size 0
  .amdhsa_kernarg_size 120
  .amdhsa_user_sgpr_count 2
  .amdhsa_user_sgpr_kernarg_segment_ptr 1
  .amdhsa_system_sgpr_workgroup_id_x 1
.end_amdhsa_kernel
''' % KN
    return txt, added

if __name__ == '__main__':
    out = sys.argv[1]
    stamps = 'stamps' in sys.argv[2:]
    roles = [x for x in sys.argv[2:] if x in ('A', 'B', 'AB')]
    opts = dict(x.split('=') for x in sys.argv[2:] if '=' in x)
    txt, added = make(stamps, roles[0] if roles else 'AB', opts)
    open(out, 'w').write(txt)
    print('wrote', out, len(txt), 'bytes; nop states added', added)
```

```python
from asmlib import *
from gen_a import f2u, LOG2E
EPS = f2u(1e-6)
SLOT = 34816; WOFF = 16384
WQ_LO = SLOT; WQ_HI = 4 * SLOT; IMG = WQ_HI + 3 * 4608
SCR = 3 * SLOT
CST = SLOT - 4096
LCNT = IMG + 9216
STG = WQ_LO + 5 * 4608
def wo_base(ks): return 4608 * ks if ks < 6 else SCR + 4608 * (ks - 6) if ks < 13 else WQ_LO + 4608 * (ks - 13)
KVP = 0; OB = KVP + 8 * 4 * 12288; HAND = OB + 16 * 8 * 18 * 1024
SPIN = 20000
def wq_base(ks): return WQ_LO + 4608 * ks if ks < 15 else WQ_HI + 4608 * (ks - 15)

def div_small(e, q, r, x, d, t):
    e('v_mul_u32_u24 %s, %d, %s' % (v(q), (1 << 16) // d + 1, v(x)))
    e('v_lshrrev_b32 %s, 16, %s' % (v(q), v(q)))
    e('v_mul_u32_u24 %s, %d, %s' % (v(t), d, v(q)))
    e('v_sub_u32 %s, %s, %s' % (v(r), v(x), v(t)))
for d in (5, 9, 18):
    assert all((x * ((1 << 16) // d + 1)) >> 16 == x // d for x in range(1024))

def phi_pair(e, x, dst, t, plain=False):
    if plain:
        return [lambda: e('v_mul_f32 %s, s36, %s' % (v(t), v(x))),
                lambda: e('v_mul_f32 %s, s36, %s' % (v(t + 1), v(x + 1))),
                lambda: e('v_max_f32 %s, s38, %s' % (v(t + 2), v(x))),
                lambda: e('v_exp_f32_e64 %s, %s clamp' % (v(t), v(t))),
                lambda: e('v_max_f32 %s, s38, %s' % (v(t + 3), v(x + 1))),
                lambda: e('v_exp_f32_e64 %s, %s clamp' % (v(t + 1), v(t + 1))),
                lambda: e('v_add_f32 %s, %s, %s' % (v(t), v(t), v(t + 2))),
                lambda: e('v_add_f32 %s, %s, %s' % (v(t + 1), v(t + 1), v(t + 3))),
                lambda: e('v_cvt_pk_bf16_f32 %s, %s, %s' % (v(dst), v(t), v(t + 1)))]
    return [lambda: e('v_pk_mul_f32 %s, %s, s[36:37]' % (v(t, 2), v(x, 2))),
            lambda: e('v_max_f32 %s, s38, %s' % (v(t + 2), v(x))),
            lambda: e('v_exp_f32_e64 %s, %s clamp' % (v(t), v(t))),
            lambda: e('v_exp_f32_e64 %s, %s clamp' % (v(t + 1), v(t + 1))),
            lambda: e('v_max_f32 %s, s38, %s' % (v(t + 3), v(x + 1))),
            lambda: e('v_pk_add_f32 %s, %s, %s' % (v(t, 2), v(t, 2), v(t + 2, 2))),
            lambda: e('v_cvt_pk_bf16_f32 %s, %s, %s' % (v(dst), v(t), v(t + 1)))]
def zipper(*streams):
    streams = [list(x) for x in streams]
    while any(streams):
        for st in streams:
            if st: st.pop(0)()

def touch_tiles(e, idx, chunk, lo, n, x_, tmp, dst):
    t0, t1, t2, t3 = tmp, tmp + 1, tmp + 2, tmp + 3
    e('v_min_u32 %s, %d, %s' % (v(t0), n - 1, v(idx)))
    e('v_add_u32 %s, %s, %s' % (v(t0), lo, v(t0)))
    e('s_lshr_b32 s36, %s, 1' % x_)
    e('s_mul_i32 s36, s36, %d' % (512 * 1152))
    e('s_lshl_b32 s37, %s, 7' % chunk)
    e('s_add_u32 s36, s36, s37')
    e('s_and_b32 s37, %s, 1' % x_)
    e('s_lshl_b32 s37, s37, 9')
    e('s_mul_i32 s38, %s, %d' % (chunk, 64 * 3456))
    e('s_add_u32 s37, s37, s38')
    e('s_add_u32 s37, s37, 1152')
    e('v_cmp_gt_u32 vcc, 512, %s' % v(t0))
    e('v_mul_u32_u24 %s, 1152, %s' % (v(t1), v(t0)))
    e('v_add_u32 %s, s36, %s' % (v(t1), v(t1)))
    e('v_subrev_u32 %s, 512, %s' % (v(t0), v(t0)))
    e('v_max_i32 %s, 0, %s' % (v(t0), v(t0)))
    div_small(e, t2, t3, t0, 5, t0 + 4)
    e('v_and_b32 %s, 1, %s' % (v(t0), v(t2)))
    e('v_lshrrev_b32 %s, 1, %s' % (v(t2), v(t2)))
    e('v_mul_u32_u24 %s, 3456, %s' % (v(t2), v(t2)))
    e('v_mul_u32_u24 %s, 1152, %s' % (v(t0), v(t0)))
    e('v_lshl_add_u32 %s, %s, 7, s37' % (v(t3), v(t3)))
    e('v_add3_u32 %s, %s, %s, %s' % (v(t2), v(t2), v(t0), v(t3)))
    e('v_mov_b32 %s, s46' % v(t0))
    e('v_mov_b32 %s, s48' % v(t3))
    e('v_cndmask_b32 %s, %s, %s, vcc' % (v(t1), v(t2), v(t1)))
    e('v_cndmask_b32 %s, %s, %s, vcc' % (v(t2), v(t3), v(t0)))
    e('v_mov_b32 %s, s47' % v(t0))
    e('v_mov_b32 %s, s49' % v(t3))
    e('v_cndmask_b32 %s, %s, %s, vcc' % (v(t3), v(t3), v(t0)))
    e('v_add_co_u32 %s, vcc, %s, %s' % (v(t2), v(t2), v(t1)))
    e('v_addc_co_u32 %s, vcc, 0, %s, vcc' % (v(t3), v(t3)))
    e('global_load_dword %s, %s, off' % (v(dst), v(t2, 2)))

PRIO = [0, 0]
def first_touch(e, j_, x_, tmp, dst, first=1):
    if PRIO[0] == 2 and first > 1:
        e('s_lshr_b32 s39, %s, 2' % j_)
        e('s_add_u32 s39, s39, %d' % first)
        e('s_and_b32 s40, %s, 3' % j_)
    elif PRIO[0] == 1:
        e('s_lshr_b32 s39, %s, 2' % j_)
        e('s_sub_u32 s39, %d, s39' % (first + 3))
        e('s_and_b32 s40, %s, 3' % j_)
    else:
        e('s_and_b32 s39, %s, 3' % j_)
        e('s_add_u32 s39, s39, %d' % first)
        e('s_lshr_b32 s40, %s, 2' % j_)
    if PRIO[1]: e('s_add_u32 s39, s39, %d\ns_min_u32 s39, s39, 8' % PRIO[1])
    e('s_mul_i32 s40, s40, 288')
    touch_tiles(e, 0, 's39', 's40', 288, x_, tmp, dst)

def touch_unit(e, unit, x_, tmp, dst, tag):
    t0, t1 = tmp, tmp + 1
    e('s_mul_i32 s36, %s, 43' % unit)
    e('s_lshr_b32 s36, s36, 7')
    e('s_mul_i32 s37, s36, 3')
    e('s_sub_u32 s37, %s, s37' % unit)
    e('s_cmp_lg_u32 s37, 0')
    e('s_cbranch_scc1 L_tw%s' % tag)
    e('s_lshr_b32 s37, %s, 1' % x_)
    e('s_mul_i32 s37, s37, %d' % (512 * 1152))
    e('s_lshl_b32 s36, s36, 7')
    e('s_add_u32 s36, s36, s37')
    e('v_mul_u32_u24 %s, 1152, v0' % v(t0))
    e('v_add_u32 %s, s36, %s' % (v(t0), v(t0)))
    e('global_load_dword %s, %s, s[46:47]' % (v(dst), v(t0)))
    e('s_branch L_td%s' % tag)
    e.nvm -= 1
    e.label('L_tw%s' % tag)
    e('s_lshl_b32 s36, s36, 1')
    e('s_add_u32 s36, s36, s37')
    e('s_mul_i32 s36, s36, %d' % (32 * 3456))
    e('s_and_b32 s37, %s, 1' % x_)
    e('s_lshl_b32 s37, s37, 9')
    e('s_add_u32 s36, s36, s37')
    e('s_sub_u32 s36, s36, %d' % (32 * 3456 - 1152))
    e('v_and_b32 %s, 15, v0' % v(t1))
    e('v_min_u32 %s, 9, %s' % (v(t1), v(t1)))
    e('v_lshrrev_b32 %s, 4, v0' % v(t0))
    e('v_cmp_lt_u32 vcc, 4, %s' % v(t1))
    e('v_mul_u32_u24 %s, 3456, %s' % (v(t0), v(t0)))
    e('v_lshl_add_u32 %s, %s, 7, %s' % (v(t0), v(t1), v(t0)))
    e('v_cndmask_b32 %s, 0, 4, vcc' % v(t1))
    e('v_lshl_add_u32 %s, %s, 7, s36' % (v(t1), v(t1)))
    e('v_add_u32 %s, %s, %s' % (v(t0), v(t0), v(t1)))
    e('global_load_dword %s, %s, s[48:49]' % (v(dst), v(t0)))
    e.label('L_td%s' % tag)
assert all((u * 43) >> 7 == u // 3 for u in range(40))

def touch_round(e, j_, x_, tmp, dst, first, tag):
    e('s_add_u32 s39, %s, %d' % (j_, first))
    e('s_min_u32 s39, s39, 26')
    touch_unit(e, 's39', x_, tmp, dst, tag)

def touch_cols(e, j_, x_, tmp, dst, base, pitch):
    e('v_min_u32 %s, 179, v0' % v(tmp))
    div_small(e, tmp + 1, tmp + 2, tmp, 5, tmp + 3)
    e('s_mul_i32 s36, %s, %d' % (j_, 36 * pitch))
    e('s_and_b32 s37, %s, 1' % x_)
    e('s_lshl_b32 s37, s37, 9')
    e('s_add_u32 s36, s36, s37')
    e('v_mul_u32_u24 %s, %d, %s' % (v(tmp + 1), pitch, v(tmp + 1)))
    e('v_lshl_add_u32 %s, %s, 7, s36' % (v(tmp + 2), v(tmp + 2)))
    e('v_add_u32 %s, %s, %s' % (v(tmp + 1), v(tmp + 1), v(tmp + 2)))
    e('global_load_dword %s, %s, %s' % (v(dst), v(tmp + 1), base))

def role_b(e, stamp, opts):
    stamp = stamp or (lambda i: None)
    PRIO[0] = int(opts.get('tprio', 0)); PRIO[1] = int(opts.get('tshift', 0))
    rot = int(opts.get('rot', 0))
    e('v_lshrrev_b32 v2, 6, v0')
    e('v_and_b32 v1, 63, v0')
    e('v_readfirstlane_b32 s24, v2')
    e('s_and_b32 s32, s2, 7')
    e('s_lshr_b32 s33, s2, 3')
    e('s_and_b32 s34, s33, 3')
    e('s_lshr_b32 s33, s33, 2')
    e('s_lshr_b32 s25, s32, 1')
    e('s_lshl_b32 s25, s25, 2')
    e('s_add_u32 s25, s25, s34')
    e('s_and_b32 s26, s32, 1')
    e('s_lshl_b32 s26, s26, 2')
    e('s_add_u32 s26, s26, s33')
    if rot:
        e('s_add_u32 s27, s33, s34')
        e('s_and_b32 s27, s27, 3')
        e('s_lshl_b32 s27, s27, 1')
        e('s_lshr_b32 s35, s32, 1')
        e('s_xor_b32 s35, s35, s32')
        e('s_and_b32 s35, s35, 1')
        e('s_add_u32 s27, s27, s35')
    else:
        e('s_mov_b32 s27, 0')
    e('v_and_b32 v2, 15, v1')
    e('v_lshrrev_b32 v3, 4, v1')
    e('s_cmp_lt_u32 s24, 4')
    e('s_cbranch_scc1 L_b_compute')
    loader(e, stamp, opts)
    e.section('compute', False)
    e.label('L_b_compute')
    compute(e, stamp, opts)

MAIL = [(24, 3 * SLOT, 0), (28, 3 * SLOT, 1024), (32, 3 * SLOT, 2048), (36, 3 * SLOT, 3072),
        (44, None, 0), (48, None, 1024), (52, None, 2048), (56, None, 3072), (14, None, 4096),
        (60, 2 * SLOT, 0), (64, 2 * SLOT, 1024)]
def mailbox(e, write, mode):
    e('s_lshl_b32 s32, s39, 12')
    e('s_add_u32 s32, s32, %d' % (2 * SLOT))
    e('v_lshl_add_u32 v4, v1, 4, s32')
    e('s_mul_i32 s32, s39, 4608')
    e('s_add_u32 s32, s32, %d' % (3 * SLOT + WOFF))
    e('v_lshl_add_u32 v5, v1, 4, s32')
    e('v_lshl_add_u32 v6, v1, 3, s32')
    for r, base, off in MAIL[0 if mode == 2 else 4:]:
        n = 2 if r == 14 else 4
        ad = 'v6' if r == 14 else 'v5' if base is None else 'v4'
        o = off + (base - 2 * SLOT if base else 0)
        if write: e('ds_write_b%d %s, %s offset:%d' % (32 * n, ad, v(r, n), o))
        else: e('ds_read_b%d %s, %s offset:%d' % (32 * n, v(r, n), ad, o))

def loader_tables(e, parts='ab'):
    if 'a' in parts:
        for j in range(5):
            e('v_add_u32 v4, %d, v1' % (64 * j))
            div_small(e, 5, 6, 4, 9, 7)
            e('v_lshlrev_b32 v6, 4, v6')
            e('v_add_u32 v6, s40, v6')
            e('v_lshrrev_b32 v4, 3, v5')
            e('v_and_b32 v7, 1, v5')
            e('v_bfe_u32 v5, v5, 1, 2')
            e('v_lshl_add_u32 v19, v7, 2, v5')
            e('v_lshl_add_u32 v39, v4, 3, v19')
            e('v_mul_u32_u24 v39, 3456, v39')
            e('v_add_u32 %s, v39, v6' % v(24 + j))
            e('v_lshl_add_u32 v39, v4, 2, v5')
            e('v_lshl_add_u32 v39, v7, 4, v39')
            e('v_mul_u32_u24 v39, 1152, v39')
            e('v_add_u32 %s, v39, v6' % v(29 + j))
            e('v_mul_u32_u24 v39, 72, v4')
            e('v_add_u32 v39, v39, v19')
            e('v_mul_u32_u24 v39, 1152, v39')
            e('v_add_u32 %s, v39, v6' % v(34 + j))
    if 'b' not in parts: return
    e('s_lshl_b32 s32, s26, 2')
    e('s_add_u32 s32, s32, s39')
    e('s_mul_i32 s32, s32, 12288')
    e('s_add_u32 s32, s32, %d' % KVP)
    e('v_lshl_add_u32 v15, v1, 4, s32')
    e('s_lshl_b32 s33, s25, 8')
    e('s_add_u32 s32, s32, s33')
    e('v_lshlrev_b32 v14, 4, v2')
    e('v_lshl_add_u32 v14, v3, 12, v14')
    e('v_add_u32 v14, s32, v14')
    e('s_mul_i32 s32, s39, 2304')
    e('s_add_u32 s32, s32, %d' % IMG)
    e('v_lshl_add_u32 v4, v1, 4, s32')
    for k in range(4): e('v_mov_b32 %s, 0' % v(40 + k))
    e('ds_write_b128 v4, v[40:43]')
    e('ds_write_b128 v4, v[40:43] offset:1024')
    e('v_lshl_add_u32 v4, v1, 2, s32')
    e('ds_write_b32 v4, v40 offset:2048')
    e('v_mov_b32 v55, %d' % LCNT)
    e('ds_write_b32 v55, v40')
    e('s_lshr_b32 s45, s39, 1')
    e('s_lshl_b32 s46, s39, 1')
    e('s_lshl_b32 s47, s39, 10')
    e('s_add_u32 s47, s47, %d' % CST)
    e('s_add_u32 s32, s47, 768')
    e('v_lshl_add_u32 v44, v2, 3, s32')
    for i in range(2):
        e('v_add_u32 v4, %d, v3' % (4 * i))
        e('v_subrev_u32 v5, s45, v4')
        e('v_cmp_gt_u32 s[48:49], 5, v5')
        for j in range(2):
            e('v_add_u32 v6, %d, v2' % (16 * j - 8))
            e('v_subrev_u32 v6, s46, v6')
            e('v_cmp_gt_u32 vcc, 18, v6')
            e('v_mul_u32_u24 v6, 5, v6')
            e('v_add_u32 v6, v6, v5')
            e('s_and_b64 vcc, vcc, s[48:49]')
            e('v_lshl_add_u32 v6, v6, 3, s47')
            e('v_cndmask_b32 %s, v44, v6, vcc' % v(45 + 2 * i + j))
        e('v_cmp_eq_u32 vcc, 0, v2')
        e('v_add_u32 v6, 90, v5')
        e('v_lshl_add_u32 v6, v6, 3, s47')
        e('s_and_b64 vcc, vcc, s[48:49]')
        e('v_cndmask_b32 %s, %s, v6, vcc' % (v(45 + 2 * i), v(45 + 2 * i)))
    e('s_mul_i32 s32, s39, 18')
    e('s_add_u32 s32, s32, 8')
    e('s_lshl_b32 s33, s39, 2')
    e('s_add_u32 s33, s33, s45')
    e('v_cmp_gt_u32 s[48:49], 2, v3')
    for b in range(3):
        e('v_lshl_add_u32 v4, v2, 1, v3')
        e('v_add_u32 v4, %d, v4' % (32 * b))
        div_small(e, 5, 6, 4, 5, 7)
        e('v_add_u32 v6, s33, v6')
        e('v_add_u32 v7, s32, v5')
        e('v_lshrrev_b32 v19, 4, v7')
        e('v_and_b32 v7, 15, v7')
        e('v_lshrrev_b32 v39, 2, v6')
        e('v_and_b32 v6, 3, v6')
        e('v_lshl_add_u32 v19, v19, 1, v39')
        if b == 2:
            e('v_cmp_eq_u32 vcc, 18, v5')
            e('v_add_u32 v39, 13, v39')
            e('v_cndmask_b32 v19, v19, v39, vcc')
            e('v_mov_b32 v39, s39')
            e('v_cndmask_b32 v7, v7, v39, vcc')
        e('v_lshl_add_u32 v7, v6, 4, v7')
        e('v_lshlrev_b32 v7, 3, v7')
        e('v_lshl_add_u32 v7, v19, 9, v7')
        e('v_add_u32 v7, %d, v7' % IMG)
        if b == 2:
            e('s_and_b64 vcc, vcc, s[48:49]')
            e('v_cndmask_b32 v54, v44, v7, vcc')
            e('v_cmp_gt_u32 vcc, 19, v5')
            e('s_and_b64 s[48:49], vcc, s[48:49]')
        e('v_cndmask_b32 %s, v44, v7, s[48:49]' % v(51 + b))
    e('v_and_b32 v4, 1, v2')
    e('v_lshlrev_b32 v4, 4, v4')
    e('v_mov_b32 v5, 0x3f80')
    e('v_lshlrev_b32 v4, v4, v5')
    e('v_lshrrev_b32 v5, 1, v2')
    for k in range(4):
        e('v_cmp_eq_u32 vcc, %d, v5' % k)
        e('v_cndmask_b32 %s, 0, v4, vcc' % v(56 + k))
    for k in range(4): e('v_mov_b32 %s, 0x3f803f80' % v(8 + 96 + k))
    e('ds_write_b128 v55, v[104:107] offset:16')
    e('ds_write_b128 v55, v[40:43] offset:32')
    e('ds_write_b32 v55, v40 offset:4')
    for k, df in enumerate((0, 1, 5, 6)):
        e('s_add_u32 s32, s39, %d' % df)
        e('s_lshl_b32 s33, s32, 10')
        e('s_add_u32 s34, s33, %d' % SCR)
        e('s_sub_u32 s33, s33, 8192')
        e('s_movk_i32 s48, 4096')
        e.L.append('s_cmp_lt_u32 s32, 8\ns_cselect_b32 s33, s34, s33\ns_cselect_b32 s48, 8192, s48')
        e('v_lshl_add_u32 %s, v1, 4, s33' % v(64 + k))
        e('v_mov_b32 %s, s48' % v(60 + k))
        if k < 3:
            if k == 0: e('v_cmp_gt_u32 vcc, s46, v2')
            if k == 1:
                e('s_add_u32 s32, s46, 2')
                e('v_cmp_le_u32 vcc, s32, v2')
            if k == 2: e('v_cmp_eq_u32 vcc, 0, v2')
            e('v_mov_b32 v4, %d' % (LCNT + (16 if k == 2 else 32)))
            e('v_cndmask_b32 %s, %s, v4, vcc' % (v(64 + k), v(64 + k)))
            e('v_cndmask_b32 %s, %s, v40, vcc' % (v(60 + k), v(60 + k)))
    e('v_and_b32 v49, 3, v1')
    e('v_lshlrev_b32 v49, 6, v49')

def compute(e, stamp, opts):
    e.nvm = 0; e.nlg = 0
    ACC = 8; RING = 80; NR = 6; D = 4
    acc = lambda ct, rt: ACC + 8 * ct + 4 * rt
    if int(opts.get('mail', 1)):
        e('s_mov_b32 s39, s24')
        e('s_mul_i32 s40, s26, 144')
        e('s_waitcnt lgkmcnt(0)')
        t_ = Asm(); loader_tables(t_, 'ab' if int(opts.get('mail', 1)) == 2 else 'b')
        e('\n'.join(t_.L))
        mailbox(e, True, int(opts.get('mail', 1)))
    e('s_mov_b32 s36, 0x%08x' % LOG2E)
    e('s_mov_b32 s37, s36')
    e('s_mov_b32 s38, 0x%08x' % EPS)
    e('s_lshl_b32 s32, s24, 12')
    e('v_and_b32 v104, 7, v2')
    e('v_xor_b32 v105, v3, v104')
    e('v_lshlrev_b32 v106, 7, v2')
    e('v_add_u32 v106, s32, v106')
    e('v_lshl_add_u32 v4, v105, 4, v106')
    e('v_xor_b32 v105, 4, v105')
    e('v_lshl_add_u32 v5, v105, 4, v106')
    e('v_lshrrev_b32 v104, 2, v2')
    e('v_and_b32 v105, 3, v2')
    e('v_lshlrev_b32 v105, 3, v105')
    e('v_lshl_add_u32 v106, v3, 2, v104')
    e('v_mul_u32_u24 v106, 288, v106')
    e('v_add_u32 v106, v106, v105')
    e('v_add_u32 v6, %d, v106' % WOFF)
    e('v_lshlrev_b32 v104, 1, v104')
    e('v_lshl_add_u32 v104, v3, 3, v104')
    e('v_mul_u32_u24 v104, 144, v104')
    e('v_add_u32 v104, v104, v105')
    e('v_add_u32 v7, %d, v104' % WQ_LO)
    e('v_cmp_gt_u32 vcc, 8, v2')
    for k in range(4): e('v_mov_b32 %s, s38' % v(108 + k))
    for k in range(4): e('v_cndmask_b32 %s, 0, v108, vcc' % v(104 + k))
    e('v_cmp_gt_u32 s[40:41], 2, v3')
    e('v_cmp_gt_u32 s[42:43], 3, v3')
    e('s_waitcnt lgkmcnt(0)')
    e('s_mov_b64 s[10:11], s[52:53]')
    e('s_mov_b64 s[14:15], s[56:57]')
    stamp(0)
    e.section('cmain', bool(int(opts.get('cfirst', 1))))
    F = [(p, s_, ct) for p in range(8) for s_ in range(2) for ct in range(9)]
    F += [(8, s_, ct) for s_ in range(2) for ct in range(5)] + [(8, s_, ct) for s_ in range(2) for ct in range(5, 9)]
    tok = {}
    def items(f):
        p, s_, ct = F[f]
        it = []
        if ct == 0 and s_ == 0:
            pre = []
            if p:
                dl = SLOT if p % 4 else -3 * SLOT
                for r in (4, 5, 6): pre.append('v_add_u32 %s, %d, %s' % (v(r), dl, v(r)) if dl > 0 else 'v_subrev_u32 %s, %d, %s' % (v(r), -dl, v(r)))
            if p == 8: pre.append('s_waitcnt lgkmcnt(0)')
            pre.append('s_barrier')
            it.append(lambda: (e('\n'.join(pre)), stamp({0: 1, 4: 2, 8: 3}[p]) if p in (0, 4, 8) else None))
        if ct == 0:
            for rt in range(2): it.append(lambda rt=rt: e('ds_read_b128 %s, %s offset:%d' % (a(16 * p + 8 * s_ + 4 * rt, 4), v(4 + s_), 2048 * rt)))
        r = RING + 4 * (f % NR)
        for h in range(2): it.append(lambda h=h: e('ds_read_b64_tr_b16 %s, v6 offset:%d' % (v(r + 2 * h, 2), 9216 * s_ + 4608 * h + 32 * ct)))
        return it
    for f in range(D):
        for x in items(f): x()
        tok[f] = e.lg()
    def put(fi, r):
        if fi < 8: e('ds_write_b128 v4, %s offset:%d' % (v(r, 4), 1024 * fi))
        else: e('ds_write_b128 v5, %s offset:%d' % (v(r, 4), 1024 * (fi - 8)))
    def phi_tile(x, dst, t, plain):
        zz = [phi_pair(e, x[k], dst[k], t + 4 * k, plain=plain) for k in range(4)]
        return [z[k] for k in range(len(zz[0])) for z in zz]
    def handoff_setup():
        e('s_add_u32 s16, s14, %d' % OB)
        e('s_addc_u32 s17, s15, 0')
        e('s_mov_b32 s18, %d' % (HAND - OB))
        e('s_mov_b32 s19, 0x20000')
        e('s_lshl_b32 s32, s25, 3')
        e('s_lshl_b32 s33, s24, 1')
        e('s_add_u32 s32, s32, s33')
        e('s_mul_i32 s32, s32, %d' % (18 * 1024))
        e('v_lshl_add_u32 v105, v1, 4, s32')
        e('v_add_u32 v106, %d, v105' % (18 * 1024))
        e('s_lshl_b32 s20, s26, 11')
        e('s_lshr_b32 s33, s26, 2')
        e('s_lshl_b32 s33, s33, 10')
        e('s_and_b32 s34, s26, 3')
        e('s_lshl_b32 s34, s34, 8')
        e('s_add_u32 s33, s33, s34')
        e('s_add_u32 s33, s33, s32')
        e('s_add_u32 s33, s33, %d' % (16 * 1024 - 16))
        e('s_movk_i32 s21, %d' % (18 * 1024))
        for jj in range(1, 8):
            e('s_add_u32 %s, s20, %d' % (s(44 + jj), 2048 * jj))
            e('s_and_b32 %s, %s, 0x3fff' % (s(44 + jj), s(44 + jj)))
        e('v_lshlrev_b32 v104, 4, v2')
        e('v_lshl_add_u32 v104, v3, 3, v104')
        e('v_add_u32 v104, s33, v104')
    for f, (p, s_, ct) in enumerate(F):
        it = items(f + D) if f + D < len(F) else []
        if f == 18 - D: handoff_setup()
        e.wait_lg(tok[f])
        for rt in range(2):
            c = v(acc(ct, rt), 4) if f >= 9 else 'v[108:111]' if ct < 4 else 'v[104:107]' if ct == 4 else '0'
            e('v_mfma_f32_16x16x32_bf16 %s, %s, %s, %s' % (v(acc(ct, rt), 4), a(16 * p + 8 * s_ + 4 * rt, 4), v(RING + 4 * (f % NR), 4), c))
            h = (len(it) + 1) // 2
            for x in (it[:h] if rt == 0 else it[h:]): x()
        tok[f + D] = e.lg()
    stamp(4)
    e('s_lshl_b32 s32, s24, 13\ns_add_u32 s32, s32, %d\nv_lshl_add_u32 v4, v1, 4, s32' % SCR)
    e('s_lshl_b32 s32, s24, 12\nv_lshl_add_u32 v5, v1, 4, s32')
    for t in range(5):
        o = acc(t, 0) if t < 4 else 96
        for x in phi_tile([acc(t, 0) + 2 * k for k in range(4)], [o + k for k in range(4)], 80, False): x()
        put(t, o)
        o = acc(4 + t, 0) if t else 100
        for k in range(4): e('v_cvt_pk_bf16_f32 %s, %s, %s' % (v(o + k), v(acc(4 + t, 0) + 2 * k), v(acc(4 + t, 0) + 2 * k + 1)))
        put(5 + t, o)
    e('v_add_u32 v6, %d, v7' % (WQ_HI - WQ_LO))
    e('v_mov_b32 v5, %d' % LCNT)
    e('s_waitcnt lgkmcnt(0)')
    stamp(5)
    e('s_barrier')
    def gemm144(where, c0, G, ring, hook=None, xs=lambda ks, rt: a(8 * ks + 4 * rt, 4)):
        RG, NG, DG = ring
        tk = {}
        def iss(f, h):
            ks, ct = G[f]
            ad, off = where(ks)
            e('ds_read_b64_tr_b16 %s, %s offset:%d' % (v(RG + 4 * (f % NG) + 2 * h, 2), ad, off + 144 * h + 32 * ct))
            tk[f] = e.lg()
        for f in range(DG): iss(f, 0); iss(f, 1)
        for f, (ks, ct) in enumerate(G):
            if hook: hook(f, ks, ct, 0)
            e.wait_lg(tk[f])
            for rt in range(2):
                e('v_mfma_f32_16x16x32_bf16 %s, %s, %s, %s' % (v(acc(ct, rt), 4), v(RG + 4 * (f % NG), 4), xs(ks, rt), v(acc(ct, rt), 4) if ks else c0))
                if f + DG < len(G): iss(f + DG, rt)
                if hook: hook(f, ks, ct, 1 + rt)
    PQ = 48
    def phi_q(t, plain): return phi_tile([acc(t, k >> 1) + 2 * (k & 1) for k in range(4)], [PQ + 10 * (k >> 1) + 2 * t + (k & 1) for k in range(4)], 92 if plain else 68, plain)
    NQ = int(opts.get('nq', 5))
    rest = []
    def qhook(f, ks, ct, ph):
        if opts.get('qst') and ph == 0 and f in (1, 20, 45, 70): stamp({1: 0, 20: 2, 45: 13, 70: 15}[f])
        if f == 40 and ph == 1: e('ds_read_b32 v92, v5 offset:4')
        if f == 54 and ph == 0:
            e('s_mov_b32 s44, %d' % SPIN)
            e.label('L_b_wq')
            e('v_cmp_gt_u32 vcc, 4, v92')
            e('s_cbranch_vccz L_b_wqok')
            e('ds_read_b32 v92, v5 offset:4')
            e.nlg -= 1
            e('s_waitcnt lgkmcnt(0)')
            e('s_sub_u32 s44, s44, 1')
            e('s_cbranch_scc0 L_b_wq')
            e.label('L_b_wqok')
        if f == 18 * NQ + 1 and ph == 0:
            for t in range(NQ): rest.extend(phi_q(t, True))
        if ph and rest: rest.pop(0)()
    gemm144(lambda ks: ('v7', wq_base(ks) - WQ_LO) if ks < 15 else ('v6', wq_base(ks) - WQ_HI), 'v[108:111]',
            [(ks, ct) for ks in range(18) for ct in range(NQ)] + [(ks, ct) for ks in range(18) for ct in range(NQ, 5)], (60, 8, 5) if opts.get('qring') else (68, 6, 4), qhook)
    stamp(6)
    for x in rest: x()
    for t in range(NQ if NQ < 5 else 0, 5):
        for x in phi_q(t, False): x()
    DEN = 68
    e('v_lshlrev_b32 v4, 3, v1')
    e('v_add_u32 v4, %d, v4' % IMG)
    stamp(7)
    e('s_barrier')
    stamp(8)
    t0 = e.lg()
    for pl in list(range(13, 18)) + list(range(13)): e('ds_read_b64 %s, v4 offset:%d' % (a(2 * pl, 2), 512 * pl))
    def mm(d, pl, dt, n, rt, c):
        e('v_mfma_f32_16x16x%d_bf16 %s, %s, %s, %s' % (16 * n, v(d, 4), a(2 * pl, 2 * n), v(PQ + 10 * rt + 2 * dt, 2 * n), c))
    e.wait_lg(t0 + 5)
    for pl, dt, n in ((13, 0, 2), (15, 2, 2), (17, 4, 1)):
        for rt in range(2): mm(DEN + 4 * rt, pl, dt, n, rt, v(DEN + 4 * rt, 4) if dt else 'v[108:111]')
    OUT = PQ
    def scale(rt):
        i = DEN + 4 * rt; t = 76 + 4 * rt; o = OUT + 10 * rt
        pre = [lambda k=k: e('v_rcp_f32 %s, %s' % (v(i + k), v(i + k))) for k in range(4)]
        pre += [lambda: e('v_cndmask_b32 %s, %s, %s, s[42:43]' % (v(t), v(i + 1), v(i))),
                lambda: e('v_cndmask_b32 %s, %s, %s, s[40:41]' % (v(t + 1), v(i + 1), v(i))),
                lambda: e('v_cndmask_b32 %s, %s, %s, s[42:43]' % (v(t + 2), v(i + 2), v(i + 1))),
                lambda: e('v_cndmask_b32 %s, %s, %s, s[42:43]' % (v(t + 3), v(i + 3), v(i + 2)))]
        sc = {0: (i, i), 1: (t, t + 1), 2: (t + 2, t + 2), 3: (i + 2, t + 3), 4: (i + 3, i + 3)}
        st = []
        for u in (0, 4, 1, 2, 3):
            for k in range(2):
                f_ = sc[u][k]
                st.append(lambda u=u, k=k, f_=f_: e('v_pk_mul_f32 %s, %s, %s op_sel:[0,%d] op_sel_hi:[1,%d]' % (v(acc(u, rt) + 2 * k, 2), v(acc(u, rt) + 2 * k, 2), v(f_ & ~1, 2), f_ & 1, f_ & 1)))
        for u in (0, 4, 1, 2, 3):
            d = o + (2 * (u - 1) if u else 8)
            for k in range(2): st.append(lambda u=u, k=k, d=d: e('v_cvt_pk_bf16_f32 %s, %s, %s' % (v(d + k), v(acc(u, rt) + 2 * k), v(acc(u, rt) + 2 * k + 1))))
        for d in (o, o + 4, o + 8): st.append(lambda d=d: e('v_min_u32 %s, -2, %s' % (v(d), v(d))))
        st.append(lambda: e('buffer_store_dwordx4 %s, %s, s[16:19], s20 offen sc1' % (v(o, 4), v(105 + rt))))
        st.append(lambda: e('buffer_store_dwordx4 %s, %s, s[16:19], s20 offen offset:1024 sc1' % (v(o + 4, 4), v(105 + rt))))
        return pre, st
    (p0, s0), (p1, s1) = scale(0), scale(1)
    fill = p0 + p1
    e.wait_lg(t0 + 18)
    for rt in range(2):
        ops = [(u, 2 * u + first, first, 2, '0') for u, first in enumerate((0, 0, 1, 2, 3))]
        ops = [ops[1], ops[2], ops[3], ops[0], ops[4]] + [(u, 2 * u + first + 2, first + 2, 1, None) for u, first in ((1, 0), (2, 1), (3, 2))]
        for k, (u, pl, dt, n, c) in enumerate(ops):
            mm(acc(u, rt), pl, dt, n, rt, c or v(acc(u, rt), 4))
            if rt or k >= 2:
                for x in fill[:2]: x()
                fill = fill[2:]
    for x in fill + s0 + s1: x()
    e('s_mov_b32 exec_lo, 0')
    e('buffer_store_dwordx2 %s, v104, s[16:19], 0 offen sc1' % v(OUT + 8, 2))
    e('buffer_store_dwordx2 %s, v104, s[16:19], s21 offen sc1' % v(OUT + 18, 2))
    e('s_mov_b32 exec_lo, -1')
    stamp(9)
    e('v_subrev_u32 v7, %d, v7' % WQ_LO)
    e('v_add_u32 v6, %d, v7' % SCR)
    e('s_mov_b32 s39, 0')
    e('s_movk_i32 s23, %d' % (16 * 1024))
    e('s_barrier')
    e.label('L_b_gemm2')
    otok = {}
    AHEAD = int(opts.get('ahead', 4))
    osrc = lambda ks, rt: v(OUT + 10 * rt + 4 * ks, 4) if ks < 2 else a(8 * ks + 4 * rt, 4)
    def oload(j, rt):
        e('buffer_load_dwordx4 %s, %s, s[16:19], %s offen%s %s' % (osrc(j, rt), v(105 + rt), s(44 + (j >> 1)) if j < 16 else 's23', ' offset:1024' if j & 1 else '', opts.get('old', 'sc1').replace('_', ' ')))
        otok[j] = e.vm()
    pend = [(j, rt) for j in range(2, 18) for rt in range(2)]
    tail = []
    def put_out(ct):
        r = []
        for rt in range(2):
            d = 48 + 4 * ct + 2 * rt
            for k in range(2): r.append(lambda d=d, k=k, rt=rt: e('v_cvt_pk_bf16_f32 %s, %s, %s' % (v(d + k), v(acc(ct, rt) + 2 * k), v(acc(ct, rt) + 2 * k + 1))))
            r.append(lambda d=d, rt=rt: e('ds_write_b64 v4, %s offset:%d' % (v(d, 2), 2304 * rt + 32 * ct)))
        return r
    def hook(f, ks, ct, ph):
        if f == 10 and ph == 0:
            e('s_lshl_b32 s32, s25, 7')
            e('s_lshl_b32 s33, s24, 5')
            e('s_add_u32 s32, s32, s33')
            e('s_mul_i32 s32, s32, 2304')
            e('s_mul_i32 s33, s26, 144')
            e('s_add_u32 s32, s32, s33')
            e('s_add_u32 s32, s32, 1152')
            for j in range(5):
                e('v_add_u32 v48, %d, v1' % (64 * j))
                div_small(e, 49, 50, 48, 9, 51)
                e('v_mul_u32_u24 v49, 2304, v49')
                e('v_lshl_add_u32 v49, v50, 4, v49')
                e('v_add_u32 %s, s32, v49' % v(108 + j if j < 4 else 104))
            e('s_mul_i32 s33, s24, 4608')
            e('s_add_u32 s33, s33, %d' % STG)
            e('v_mul_u32_u24 v4, 144, v2')
            e('v_lshl_add_u32 v4, v3, 3, v4')
            e('v_add_u32 v4, s33, v4')
            e('v_lshl_add_u32 v5, v1, 4, s33')
            e('s_mov_b32 s44, %d' % SPIN)
            e('v_lshlrev_b32 v107, 8, v1')
            e('v_lshlrev_b32 v48, 4, v1')
            e('v_sub_u32 v107, v107, v48')
            e('v_add_u32 v107, v107, v106')
            for _ in range(int(opts.get('pdelay', 0))): e('s_nop 15')
            e('s_mov_b64 exec, 0xff')
            e.label('L_b_probe')
            e('buffer_load_dword v68, v107, s[16:19], s23 offen offset:248 sc1')
            e('s_sub_u32 s44, s44, 1')
            e('s_cbranch_scc1 L_b_probed')
            e('s_waitcnt vmcnt(0)')
            e('v_cmp_eq_u32 vcc, -1, v68')
            e('s_cbranch_vccnz L_b_probe')
            e.label('L_b_probed')
            e('s_mov_b64 exec, -1')
            if opts.get('count'): e('s_sub_u32 s92, s62, s44\ns_add_u32 s92, s92, %d' % SPIN)
            stamp(10)
            e.nvm = 0
            for _ in range(2 * AHEAD): oload(*pend.pop(0))
            stamp(11)
        if ct == 0 and ph == 0 and 2 <= ks: e.wait_vm(otok[ks])
        if opts.get('gst') and ct == 0 and ph == 0 and ks in (2, 6, 10, 14): stamp({2: 0, 6: 1, 10: 2, 14: 3}[ks])
        if ph == 1 and pend and f >= 10 and ct in ((0, 1, 2, 3) if f < 25 else (1, 3)): oload(*pend.pop(0))
        if ks == 17:
            if ph == 0 and 2 <= ct: tail.extend(put_out(ct - 2))
            if ph:
                for x in tail[:2]: x()
                del tail[:2]
    gemm144(lambda ks: ('v6', wo_base(ks) - SCR) if 6 <= ks < 13 else ('v7', wo_base(ks)), '0',
            [(ks, ct) for ks in range(18) for ct in range(5)], (72, 8, 5), hook, osrc)
    stamp(12)
    for x in tail + put_out(3): x()
    e('s_cmp_lg_u32 s39, 0')
    e('s_cbranch_scc1 L_b_store')
    e('v_cmp_u_f32 vcc, %s, %s' % (v(acc(0, 0)), v(acc(0, 1))))
    e('s_cbranch_vccnz L_b_strict')
    e.label('L_b_store')
    e('s_mov_b32 exec_hi, 0')
    for x in put_out(4): x()
    e('s_mov_b32 exec_hi, -1')
    t0 = e.lg()
    for j in range(5): e('ds_read_b128 %s, v5 offset:%d' % (v(8 + 4 * j, 4), 1024 * j))
    for j in range(5):
        e.wait_lg(t0 + j + 1)
        if j == 4: e('s_mov_b32 exec_hi, 0')
        e('global_store_dwordx4 %s, %s, s[10:11] %s' % (v(108 + j if j < 4 else 104), v(8 + 4 * j, 4), opts.get('ost', '')))
    e('s_mov_b32 exec_hi, -1')
    if not opts.get('qst'): stamp(13)
    e('s_endpgm')
    e.section('strict', False)
    e.label('L_b_strict')
    e('s_mov_b32 s39, 1')
    e('s_mov_b32 s44, %d' % SPIN)
    e.label('L_b_strict1')
    for ks in range(18):
        e('s_movk_i32 s22, %d' % (1024 * ks))
        for rt in range(2): e('buffer_load_dwordx4 %s, %s, s[16:19], s22 offen sc1' % (a(8 * ks + 4 * rt, 4), v(105 + rt)))
    for rt in range(2):
        for k in range(2): e('buffer_load_dwordx4 %s, %s, s[16:19], s20 offen offset:%d sc1' % (v(OUT + 10 * rt + 4 * k, 4), v(105 + rt), 1024 * k))
    e('s_waitcnt vmcnt(0)')
    e('s_sub_u32 s44, s44, 1')
    e('s_cbranch_scc1 L_b_gemm2')
    e('s_mov_b64 s[32:33], 0')
    for k in range(72):
        if (k & 1) == 0 or k >= 64:
            e('v_accvgpr_read_b32 v68, %s' % a(2 * k))
            e('v_cmp_eq_u32 vcc, -1, v68')
            e('s_or_b64 s[32:33], s[32:33], vcc')
    e('s_cmp_lg_u64 s[32:33], 0')
    e('s_cbranch_scc1 L_b_strict1')
    e('s_branch L_b_gemm2')

def loader(e, stamp, opts):
    e.nvm = 0; e.nlg = 0
    if int(opts.get('lp0', 2)): e('s_setprio %d' % int(opts.get('lp0', 2)))
    e('s_sub_u32 s39, s24, 4')
    e('v_lshrrev_b32 v4, 3, v1')
    e('v_and_b32 v5, 7, v1')
    e('v_xor_b32 v5, v5, v4')
    e('s_lshl_b32 s32, s25, 7')
    e('s_lshl_b32 s33, s39, 5')
    e('s_add_u32 s32, s32, s33')
    e('v_add_u32 v4, s32, v4')
    e('v_mul_u32_u24 v4, 1152, v4')
    e('v_lshl_add_u32 v8, v5, 4, v4')
    e('s_lshr_b32 s32, s39, 1')
    e('s_lshl_b32 s32, s32, 5')
    e('s_and_b32 s33, s39, 1')
    e('s_lshl_b32 s33, s33, 2')
    e('s_add_u32 s32, s32, s33')
    e('s_mul_i32 s40, s26, 144')
    e('s_mul_i32 s32, s32, 3456')
    e('s_add_u32 s32, s32, s40')
    e('s_add_u32 s32, s32, 1152')
    def woff(j):
        e('v_add_u32 v4, %d, v1' % (64 * j))
        div_small(e, 5, 6, 4, 18, 7)
        e('v_and_b32 v4, 12, v5')
        e('v_add_u32 v4, v4, v5')
        e('v_mul_u32_u24 v4, 3456, v4')
        e('v_cmp_lt_u32 vcc, 8, v6')
        e('v_lshl_add_u32 v4, v6, 4, v4')
        e('v_add_u32 v4, s32, v4')
        e('v_add_u32 v5, 1008, v4')
        e('v_cndmask_b32 %s, v4, v5, vcc' % v(9 + j))
    e('s_lshl_b32 s41, s39, 12')
    e('s_mul_i32 s42, s39, 4608')
    e('s_add_u32 s42, s42, %d' % WOFF)
    e('s_mov_b32 s43, s27')
    e('s_mov_b32 s22, %d\ns_mov_b32 s23, 0x20000' % (576 * 3456))
    e('s_mov_b32 s30, %d\ns_mov_b32 s31, 0x20000' % (576 * 1152))
    e('s_waitcnt lgkmcnt(0)')
    e('s_mov_b64 s[16:17], s[46:47]\ns_mov_b32 s18, %d\ns_mov_b32 s19, 0x20000' % (2048 * 1152))
    e('s_mov_b64 s[20:21], s[48:49]\ns_mov_b64 s[28:29], s[50:51]\ns_mov_b64 s[12:13], s[54:55]\ns_mov_b64 s[14:15], s[56:57]')

    mail = int(opts.get('mail', 1))
    main = e; sd = Asm()
    if mail < 2: loader_tables(sd, 'a' if mail else 'ab')
    sd('s_mul_i32 s58, s39, %d' % (32 * 3456))
    if mail:
        sd('s_lshl_b32 s47, s39, 10')
        sd('s_add_u32 s47, s47, %d' % CST)
        for k in range(2): sd('v_mov_b32 %s, 0' % v(40 + k))
    e = main
    side = list(sd.L); done = [0]
    def run_side(n=None, upto=None):
        stop = upto if upto is not None else min(len(side), done[0] + n)
        while done[0] < stop:
            e(side[done[0]]); done[0] += 1

    ctok = {}
    def chunk(p, per, mid=None):
        sl = SLOT * (p % 4)
        e('s_lshl_b32 s3, s43, 7')
        e('s_mul_i32 s35, s43, %d' % (64 * 3456))
        for j in range(4):
            e('s_add_u32 m0, s41, %d' % (sl + 1024 * j))
            if j: e('s_add_u32 s3, s3, 9216')
            e('buffer_load_dwordx4 v8, s[16:19], s3 offen lds')
            run_side(per)
        for j in range(5):
            if mid: mid(j)
            e('s_add_u32 m0, s42, %d' % (sl + 1024 * j))
            if j == 4: e('s_mov_b32 exec_hi, 0')
            e('buffer_load_dwordx4 %s, s[20:23], s35 offen lds' % v(9 + j))
            if j < 4: run_side(per)
        e('s_mov_b32 exec_hi, -1')
        e('s_add_u32 s43, s43, 1')
        e('s_cmp_eq_u32 s43, 9')
        e('s_cselect_b32 s43, 0, s43')
        ctok[p] = e.vm()
    stamp(1)
    chunk(0, 0, woff)
    early = int(opts.get('early', 170))
    if early:
        e.section('loader')
        run_side(early)
    chunk(1, 0)
    stamp(0)
    if not early: e.section('loader')
    def tile144(srd, vregs, soff):
        for j in range(5):
            e('s_add_u32 m0, s34, %d' % (1024 * j))
            if j == 4: e('s_mov_b32 exec_hi, 0')
            e('buffer_load_dwordx4 %s, %s, %s offen lds' % (v(vregs + j), srd, soff))
        e('s_mov_b32 exec_hi, -1')
    def wq_group(lo, n):
        for rnd in range((n + 3) // 4):
            b0 = lo + 4 * rnd
            if int(opts.get('rot', 0)) == 0 and b0 + 3 < 15:
                e('s_add_u32 s32, s58, %d' % (b0 * 32 * 3456))
                e('s_add_u32 s34, s42, %d' % (WQ_LO + 4608 * b0 - WOFF))
                tile144('s[20:23]', 24, 's32')
                continue
            e('s_add_u32 s35, s39, %d' % (lo + 4 * rnd))
            if 4 * rnd + 4 > n: e('s_min_u32 s35, s35, %d' % (lo + n - 1))
            e('s_lshr_b32 s32, s35, 1')
            e('s_add_u32 s32, s32, s27')
            e('s_sub_u32 s33, s32, 9')
            e('s_cmp_ge_u32 s32, 9')
            e('s_cselect_b32 s32, s33, s32')
            e('s_lshl_b32 s32, s32, 1')
            e('s_and_b32 s33, s35, 1')
            e('s_add_u32 s32, s32, s33')
            e('s_mul_i32 s32, s32, %d' % (32 * 3456))
            e('s_mul_i32 s34, s35, 4608')
            if lo + 4 * rnd + 3 >= 15:
                e('s_add_u32 s33, s34, %d' % (WQ_HI - WQ_LO - 15 * 4608))
                e('s_cmp_ge_u32 s35, 15')
                e('s_cselect_b32 s34, s33, s34')
            e('s_add_u32 s34, s34, %d' % WQ_LO)
            tile144('s[20:23]', 24, 's32')
    wqlate = int(opts.get('wqlate', 0))
    for p in range(9):
        if opts.get('st4') and p == 5: stamp(7)
        e.wait_vm(ctok[p])
        if opts.get('st4') and p == 5: stamp(8)
        e('s_barrier')
        if p in (1, 2, 3, 5, 6): stamp({1: 11, 2: 12, 3: 13, 5: 14, 6: 15}[p])
        if opts.get('st4') and p in (4, 7): stamp({4: 0, 7: 1}[p])
        if p == 0:
            stamp(2)
        if 't' in opts.get('horder', '') and p == int(opts.get('trig', 2)):
            e('s_or_b32 s3, s39, s2')
            e('s_cmp_ge_u32 s3, 8')
            e('s_cbranch_scc1 L_b_notrig')
            e('s_cmp_lg_u32 s39, 0')
            e('s_cbranch_scc1 L_b_notrig')
            e('s_lshl_b32 s3, s2, 2')
            e('v_mov_b32 v20, s3')
            e('v_mov_b32 v21, 1')
            e('s_mov_b64 exec, 1')
            e('global_store_dword v20, v21, s[12:13] offset:16 sc1')
            e('s_mov_b64 exec, -1')
            e.nvm -= 1
            e.label('L_b_notrig')
        if p == 0 and mail:
            mailbox(e, False, mail)
            e('s_waitcnt lgkmcnt(0)')
        if p <= 6: chunk(p + 2, int(opts.get('per', 3)))
        if p == 6: run_side(upto=len(side))
        if p == 3 and opts.get('wtouch'):
            e('s_mov_b64 exec, 3')
            e('v_mul_u32_u24 v4, %d, v1' % HAND)
            e('global_load_dword v6, v4, s[14:15]')
            e('s_mov_b64 exec, -1')
        if p == 7: wq_group(0, 4)
        if p == 8:
            if opts.get('low8'): e('s_setprio 0')
            wq_group(4, 8)
            e('s_cmp_lg_u32 s39, 0')
            e('s_cbranch_scc1 L_b_nocnt')
            e('s_mov_b64 exec, 15')
            e('global_load_dword v20, v49, s[12:13] sc1')
            e('s_mov_b64 exec, -1')
            e.label('L_b_nocnt')
            t_wq = e.vm()
            if not wqlate: wq_group(12, 6)
    stamp(3)
    e.wait_vm(t_wq)
    e('s_cmp_lg_u32 s39, 0')
    e('s_cbranch_scc1 L_b_cntdone')
    e('s_mov_b64 exec, 15')
    e('v_cmp_gt_u32 vcc, 12, v20')
    e('s_cbranch_vccz L_b_cntdone')
    e('s_mov_b32 s44, %d' % SPIN)
    e.label('L_b_cnt')
    e('global_load_dword v20, v49, s[12:13] sc1')
    e('s_sub_u32 s44, s44, 1')
    e('s_cbranch_scc1 L_b_cntdone')
    e('s_waitcnt vmcnt(0)')
    e('v_cmp_gt_u32 vcc, 12, v20')
    e('s_cbranch_vccnz L_b_cnt')
    e.label('L_b_cntdone')
    e('s_mov_b64 exec, -1')
    e('s_waitcnt lgkmcnt(0)')
    stamp(4)
    e('s_barrier')
    stamp(5)
    lp = opts.get('lpos', 'a')
    if lp == 'a': e('s_setprio %d' % int(opts.get('lprio', 2)))
    if lp == 'c': e('s_nop 15')
    tk = []
    for w in range(4):
        for k in range(4):
            e('ds_read_b128 %s, %s' % (a(16 * w + 4 * k, 4), v(64 + k)))
            if w < 3: e('v_add_u32 %s, %s, %s' % (v(64 + k), v(60 + k), v(64 + k)))
        tk.append(e.lg())
    if lp != 'a': e('s_setprio %d' % int(opts.get('lprio', 2)))
    e('v_mov_b32 v4, s47')
    e('v_mov_b32 v5, 1')
    e('ds_write_b64 v4, v[40:41] offset:760')
    if wqlate: wq_group(12, 6)
    DD = 68
    for w in range(4):
        e.wait_lg(tk[w])
        if w == 3:
            e('s_mov_b64 exec, 1')
            e('ds_add_u32 v55, v5')
            e('s_mov_b64 exec, -1')
        for i in range(2):
            for j in range(2):
                d = DD + 8 * i + 4 * j
                e('v_mfma_f32_16x16x32_bf16 %s, %s, %s, %s' % (v(d, 4), a(16 * w + 4 * i, 4), a(16 * w + 8 + 4 * j, 4), v(d, 4) if w else '0'))
    e('v_lshl_add_u32 v4, v1, 4, s47')
    e('v_add_u32 v16, 4096, v15')
    e('v_add_u32 v17, 8192, v15')
    for i in range(2):
        for j in range(2):
            d = DD + 8 * i + 4 * j
            o = 92 + 2 * (2 * i + j)
            for k in range(2): e('v_cvt_pk_bf16_f32 %s, %s, %s' % (v(o + k), v(d + 2 * k), v(d + 2 * k + 1)))
            e('ds_write_b64 %s, %s' % (v(45 + 2 * i + j), v(o, 2)))
    e('ds_read_b128 v[68:71], v4')
    flag = 's_mov_b64 exec, 1\nds_add_u32 v55, v5 offset:4\ns_mov_b64 exec, -1'
    if not wqlate: e('s_waitcnt vmcnt(0)\n' + flag + '\ns_waitcnt lgkmcnt(1)')
    else: e('s_waitcnt lgkmcnt(0)')
    e('v_min_u32 v68, -2, v68')
    e('s_mov_b32 exec_hi, 0xffff')
    e('global_store_dwordx4 v14, v[68:71], s[14:15] sc1')
    e('s_mov_b32 exec_hi, -1')
    if wqlate: e('s_waitcnt vmcnt(1)\n' + flag)
    if opts.get('lowmid'): e('s_setprio 0')
    stamp(6)
    def wo_block(first, last):
        e('s_add_u32 s35, s39, %d' % first)
        if first + 3 > last: e('s_min_u32 s35, s35, %d' % last)
        e('s_lshr_b32 s32, s35, 1')
        e('s_add_u32 s32, s32, s26')
        e('s_and_b32 s32, s32, 7')
        e('s_mul_i32 s32, s32, 72')
        e('s_and_b32 s33, s35, 1')
        e('s_lshl_b32 s33, s33, 5')
        e('s_add_u32 s32, s32, s33')
        e('s_add_u32 s32, s32, 8')
        e('s_mul_i32 s32, s32, 1152')
        e('s_mul_i32 s34, s35, 4608')
        if last < 13:
            e('s_add_u32 s33, s34, %d' % (SCR - 6 * 4608))
            e('s_cmp_ge_u32 s35, 6')
            e('s_cselect_b32 s34, s33, s34')
        else:
            e('s_add_u32 s34, s34, %d' % (WQ_LO - 13 * 4608))
        tile144('s[28:31]', 29, 's32')
    e('s_mov_b32 s44, %d' % SPIN)
    e.label('L_b_lcnt')
    e('ds_read_b32 v4, v55')
    e('s_sub_u32 s44, s44, 1')
    e('s_cbranch_scc1 L_b_lcntdone')
    e('s_waitcnt lgkmcnt(0)')
    e('v_cmp_gt_u32 vcc, 4, v4')
    e('s_cbranch_vccnz L_b_lcnt')
    e.label('L_b_lcntdone')
    e('s_waitcnt lgkmcnt(0)')
    nearly = int(opts.get('woearly', 3))
    for k in range(nearly): wo_block(4 * k, 12)
    e('v_lshlrev_b32 v4, 8, v2')
    e('v_lshlrev_b32 v6, 4, v1')
    e('v_sub_u32 v5, v17, v6')
    e('v_add_u32 v4, v4, v5')
    e('s_mov_b32 s44, %d' % SPIN)
    if not opts.get('st4'): stamp(7)
    e('s_cmp_lg_u32 s39, 0')
    e('s_cbranch_scc1 L_b_gather')
    e('s_mov_b64 exec, 15')
    e('global_load_dword v50, v49, s[12:13] offset:4 sc1')
    e('s_mov_b64 exec, -1')
    e.label('L_b_gather')
    X = 64
    for b in range(3):
        for i in range(4): e('global_load_dwordx4 %s, %s, s[14:15] offset:%d sc1' % (v(X + 16 * b + 4 * i, 4), v(15 + b), 1024 * i))
    nanchk = int(opts.get('nanchk', 0))
    def markers():
        e('s_mov_b64 s[32:33], 0')
        for k in range(12):
            if k % 4 == 0 and not nanchk: e('s_waitcnt vmcnt(%d)' % (8 - k))
            e('v_cmp_eq_u32 vcc, -1, %s' % v(X + 4 * k))
            e('s_or_b64 s[32:33], s[32:33], vcc')
        e('s_cmp_eq_u64 s[32:33], 0')
        e('s_cbranch_scc1 L_b_gathered')
        e('s_mov_b64 exec, 0xffff')
        e.label('L_b_kvprobe')
        e('global_load_dword v5, v4, s[14:15] sc1')
        e('s_sub_u32 s44, s44, 1')
        e('s_cbranch_scc1 L_b_gathered')
        e('s_waitcnt vmcnt(0)')
        e('v_cmp_eq_u32 vcc, -1, v5')
        e('s_cbranch_vccnz L_b_kvprobe')
        e('s_mov_b64 exec, -1')
        e('s_branch L_b_gather')
    def sums():
        for b in range(3):
            if nanchk: e('s_waitcnt vmcnt(%d)' % (8 - 4 * b))
            for i in range(4):
                e('v_mfma_f32_16x16x32_bf16 %s, v[56:59], %s, %s' % (v(SUM[b], 4), v(X + 16 * b + 4 * i, 4), v(SUM[b], 4) if i else '0'))
    SUM = (8, 24, 44); PK = (20, 22, 12)
    if nanchk:
        sums()
        e('v_cmp_u_f32 vcc, v8, v24')
        e('v_cmp_u_f32 s[32:33], v44, v44')
        e('s_or_b64 vcc, vcc, s[32:33]')
        e('s_cbranch_vccnz L_b_markers')
        e.label('L_b_gathered')
        e('s_mov_b64 exec, -1')
        keep = e.L; e.section('strict', False); e.label('L_b_markers'); markers(); e.L = keep
        if not opts.get('st4'): stamp(8)
    else:
        markers()
        e.label('L_b_gathered')
        e('s_mov_b64 exec, -1')
        if not opts.get('st4'): stamp(8)
        sums()
    for b in range(3):
        for k in range(2): e('v_cvt_pk_bf16_f32 %s, %s, %s' % (v(PK[b] + k), v(SUM[b] + 2 * k), v(SUM[b] + 2 * k + 1)))
        e('ds_write_b64 %s, %s' % (v(51 + b), v(PK[b], 2)))
    for k in range(1, 4): e('ds_write_b64 v54, v[12:13] offset:%d' % (32 * k))
    e('s_cmp_lg_u32 s39, 0')
    e('s_cbranch_scc1 L_b_cnt2done')
    e('s_mov_b64 exec, 15')
    e('s_mov_b32 s44, %d' % SPIN)
    e.label('L_b_cnt2')
    e('v_cmp_gt_u32 vcc, 12, v50')
    e('s_cbranch_vccz L_b_cnt2done')
    e('global_load_dword v50, v49, s[12:13] offset:4 sc1')
    e('s_waitcnt vmcnt(0)')
    e('s_sub_u32 s44, s44, 1')
    e('s_cbranch_scc0 L_b_cnt2')
    e.label('L_b_cnt2done')
    e('s_mov_b64 exec, -1')
    if opts.get('lowend'): e('s_setprio 0')
    e('s_waitcnt lgkmcnt(0)')
    stamp(9)
    e('s_barrier')
    for k in range(nearly, 3): wo_block(4 * k, 12)
    e('s_cmp_lg_u32 s39, 0')
    e('s_cbranch_scc1 L_b_wo13')
    wo_block(12, 12)
    e('s_branch L_b_wo16')
    e.label('L_b_wo13')
    wo_block(12, 15)
    e.label('L_b_wo16')
    e('s_cmp_ge_u32 s39, 2')
    e('s_cbranch_scc1 L_b_wodone')
    e('s_mul_i32 s32, s39, %d' % (288 * 1152))
    e('s_mul_i32 s34, s39, 4608')
    e('s_add_u32 s34, s34, %d' % (WQ_LO + 3 * 4608))
    tile144('s[28:31]', 34, 's32')
    e.label('L_b_wodone')
    e('s_waitcnt vmcnt(0)')
    stamp(10)
    e('s_barrier')
    if opts.get('otouch'):
        e('s_lshl_b32 s32, s25, 7')
        e('s_lshl_b32 s33, s39, 5')
        e('s_add_u32 s32, s32, s33')
        e('s_mul_i32 s32, s32, 2304')
        e('s_add_u32 s32, s32, s40')
        e('s_add_u32 s32, s32, 1152')
        e('v_lshrrev_b32 v4, 1, v1')
        e('v_mul_u32_u24 v4, 2304, v4')
        e('v_and_b32 v5, 1, v1')
        e('v_mul_u32_u24 v5, 140, v5')
        e('v_add3_u32 v4, v4, v5, s32')
        if opts['otouch'] == '1': e('s_mov_b64 exec, 1')
        e('global_load_dword v5, v4, s[52:53]')
        e('s_mov_b64 exec, -1')
    e('s_endpgm')


def role_h(e, opts, stamp=None):
    stamp = stamp or (lambda i: None)
    e.label('L_roleH')
    e('s_getpc_b64 s[32:33]')
    e.label('L_h_pc')
    e('s_sub_u32 s32, s32, L_h_pc-KERNEL_START')
    e('s_subb_u32 s33, s33, 0')
    if int(opts.get('pfq', 0)):
        e('s_and_b32 s26, s24, 3')
        e('s_lshl_b32 s26, s26, 7')
        e('v_lshl_add_u32 v1, v0, 9, s26')
    else:
        e('v_lshlrev_b32 v1, 7, v0')
    e('v_cmp_gt_u32 vcc, KERNEL_END-KERNEL_START, v1')
    e('s_and_saveexec_b64 s[34:35], vcc')
    e('s_cbranch_execz L_h_nocode')
    if int(opts.get('pfcode', 1)): e('global_load_dword v2, v1, s[32:33]')
    e.label('L_h_nocode')
    e('s_mov_b64 exec, s[34:35]')
    e('s_mov_b32 s41, s24')
    e('s_mov_b32 s42, s25')
    e('s_sub_u32 s26, s2, 224')
    e('s_sub_u32 s27, s24, 8')
    e('s_mul_i32 s27, s27, 6')
    e('s_add_u32 s27, s27, s25')
    e('s_add_u32 s27, s27, 30')
    e('s_cmp_ge_u32 s24, 12')
    e('s_cselect_b32 s26, s26, s27')
    e('s_lshl_b32 s27, s26, 13')
    e('s_add_u32 s27, s27, %d' % KVP)
    e('v_lshl_add_u32 v3, v0, 4, s27')
    e('s_mul_i32 s27, s26, 49152')
    e('s_add_u32 s27, s27, %d' % OB)
    e('v_lshl_add_u32 v4, v0, 4, s27')
    e('s_and_b32 s27, s26, 3')
    e('s_lshl_b32 s27, s27, 6')
    e('v_mov_b32 v30, s27')
    e('v_mov_b32 v31, 1')
    def announce(off, tag):
        e('s_waitcnt vmcnt(0)')
        e('s_barrier')
        e('s_cmp_ge_u32 s26, 48')
        e('s_cbranch_scc1 L_h_no%s' % tag)
        e('v_cmp_eq_u32 vcc, 0, v0')
        e('s_and_saveexec_b64 s[34:35], vcc')
        e('s_cbranch_execz L_h_re%s' % tag)
        e('global_atomic_add v30, v31, s[54:55] offset:%d sc1' % off)
        e.label('L_h_re%s' % tag)
        e('s_mov_b64 exec, s[34:35]')
        e.label('L_h_no%s' % tag)
    for k in range(4): e('v_mov_b32 %s, -1' % v(8 + k))
    e('s_and_b32 s24, s24, 3')
    e('s_mul_i32 s24, s24, 144')
    e('s_and_b32 s25, s25, 1')
    e('s_lshl_b32 s25, s25, 9')
    for k in range(2):
        e('v_add_u32 v16, %d, v0' % (512 * k))
        e('v_min_u32 v16, 719, v16')
        div_small(e, 5, 6, 16, 5, 7)
        e('v_add_u32 v5, s24, v5')
        e('v_lshl_add_u32 v6, v6, 7, s25')
        e('v_mul_u32_u24 v7, 3456, v5')
        e('v_mul_u32_u24 v5, 1152, v5')
        e('v_add_u32 %s, v7, v6' % v(14 + k))
        e('v_add_u32 %s, v5, v6' % v(12 + k))
    order = opts.get('horder', 'fwGqkKowc')
    e('s_waitcnt lgkmcnt(0)')
    for n_, ch in enumerate(order):
        stamp(n_)
        if ch == 'w': e('s_waitcnt vmcnt(0)')
        if ch == 'f': first_touch(e, 's41', 's42', 24, 20)
        if ch == 'u': touch_round(e, 's41', 's42', 24, 20, int(opts.get('u0', 1)), 'h0')
        if ch == 'U': touch_round(e, 's41', 's42', 24, 21, int(opts.get('u0', 1)) + 16, 'h1')
        if ch == 'Q': touch_cols(e, 's41', 's42', 24, 22, 's[48:49]', 3456)
        if ch == 'O': touch_cols(e, 's41', 's42', 24, 23, 's[50:51]', 1152)
        if ch == 'G': first_touch(e, 's41', 's42', 24, 21, 5)
        if ch == 'g':
            e('s_and_b32 s39, s41, 3')
            e('s_add_u32 s39, s39, 5')
            for k in range(3): touch_tiles(e, 0, 's39', 384 * k, 384, 's42', 24, 21 + k)
        if ch == 's':
            e('s_mov_b32 s28, %d' % int(opts.get('hspin', 100)))
            e.label('L_h_spin')
            e('s_sleep 1')
            e('s_sub_u32 s28, s28, 1')
            e('s_cbranch_scc0 L_h_spin')
        if ch == 't':
            e('s_and_b32 s27, s2, 7')
            e('s_lshl_b32 s27, s27, 2')
            e('v_mov_b32 v5, s27')
            e('s_mov_b32 s28, %d' % SPIN)
            e('v_readfirstlane_b32 s29, v0')
            e('s_cmp_lg_u32 s29, 0')
            e('s_cbranch_scc1 L_h_trigd')
            e('s_mov_b64 exec, 1')
            e.label('L_h_trig')
            e('global_load_dword v6, v5, s[54:55] offset:16 sc1')
            e('s_sub_u32 s28, s28, 1')
            e('s_cbranch_scc1 L_h_trigd')
            e('s_waitcnt vmcnt(0)')
            e('v_cmp_eq_u32 vcc, 0, v6')
            e('s_cbranch_vccnz L_h_trig')
            e.label('L_h_trigd')
            e('s_mov_b64 exec, -1')
            e('s_barrier')
        if ch == 'q':
            if int(opts.get('nodup', 1)): e('s_cmp_lt_u32 s41, 12\ns_cbranch_scc1 L_h_noq')
            for k in range(2): e('global_load_dword %s, %s, s[48:49]' % (v(16 + k), v(14 + k)))
            e.label('L_h_noq')
        if ch == 'o':
            if int(opts.get('nodup', 1)): e('s_cmp_lt_u32 s41, 12\ns_cbranch_scc1 L_h_noo')
            for k in range(2): e('global_load_dword %s, %s, s[50:51]' % (v(18 + k), v(12 + k)))
            e.label('L_h_noo')
        if ch == 'k':
            e('s_cmp_ge_u32 s26, 48')
            e('s_cbranch_scc1 L_h_nok')
            e('global_store_dwordx4 v3, v[8:11], s[56:57] sc1')
            e.label('L_h_nok')
        if ch == 'K': announce(0, 'K')
        if ch == 'c':
            e('s_cmp_ge_u32 s26, 48')
            e('s_cbranch_scc1 L_h_noc')
            for k in range(6):
                e('global_store_dwordx4 v4, v[8:11], s[56:57] sc1')
                if k < 5: e('v_add_u32 v4, 8192, v4')
            e.label('L_h_noc')
            stamp(8)
            announce(4, 'C')
            stamp(9)
    assert 'k' in order and 'K' in order and 'c' in order
    if 'q' not in order.lower():
        for k in range(2): e('global_load_dword %s, %s, s[48:49]' % (v(16 + k), v(14 + k)))
    if int(opts.get('nodup', 1)): e('s_cmp_lt_u32 s41, 12\ns_cbranch_scc1 L_exit')
    if 'o' not in order.lower() and not opts.get('noo'):
        for k in range(2): e('global_load_dword %s, %s, s[50:51]' % (v(18 + k), v(12 + k)))
    if opts.get('hst'):
        e('v_lshrrev_b32 v2, 6, v0\nv_readfirstlane_b32 s24, v2\ns_branch L_dump')
    e('s_endpgm')
```

```python
from asmlib import *
import math, struct

def f2u(x): return struct.unpack('<I', struct.pack('<f', x))[0]
LOG2E = f2u(math.log2(math.e)); INV2PI = f2u(1.0 / (2 * math.pi))

A_WORK = 64; A_WS = 8960
A_CMP = A_WORK + 8 * A_WS
CMPS = 3584
A_UT = A_CMP + 8 * CMPS
A_Y1 = A_UT + 8 * 4608
A_END = A_Y1 + 8 * 3072
assert A_END <= 163840
ROWB = 272
CS = 2240

def cmul(e, dst, x, y, t):
    return [lambda: e('v_pk_mul_f32 %s, %s, %s op_sel_hi:[1,0]' % (v(t, 2), v(x, 2), v(y, 2))),
            lambda: e('v_pk_fma_f32 %s, %s, %s, %s op_sel:[1,1,0] op_sel_hi:[0,1,1] neg_lo:[0,1,0]' % (v(dst, 2), v(x, 2), v(y, 2), v(t, 2)))]

def interleave(*streams):
    streams = [list(x) for x in streams]
    while any(streams):
        for st in streams:
            if st: st.pop(0)()

def role_a(e, stamp=None, opts=None):
    opts = opts or {}
    late = int(opts.get('ulate', 1))
    stamp = stamp or (lambda i: None)
    e.label('L_roleA')
    e('s_cmp_ge_u32 s2, 256')
    e('s_cbranch_scc1 L_exit')
    e('s_sub_u32 s24, s2, 128')
    e('s_and_b32 s25, s24, 7')
    e('s_lshr_b32 s24, s24, 3')
    e('s_lshr_b32 s27, s24, 2')
    e('s_lshl_b32 s27, s27, 3')
    e('s_add_u32 s27, s27, s25')
    e('s_cmp_ge_u32 s27, 18')
    e('s_cbranch_scc1 L_roleH')
    e('s_mov_b32 s41, s24')
    e('s_mov_b32 s42, s25')
    e('s_and_b32 s26, s24, 3')
    e('s_lshl_b32 s27, s25, 2')
    e('s_add_u32 s27, s27, 56')
    e('s_lshl_b32 s25, s25, 3')
    e('s_cmp_lt_u32 s24, 8')
    e('s_cselect_b32 s25, s25, s27')
    e('s_add_u32 s25, s25, s24')
    e('v_lshrrev_b32 v10, 6, v0')
    e('v_and_b32 v1, 63, v0')
    e('v_readfirstlane_b32 s24, v10')
    e('s_mov_b32 s30, 0x05040100')
    e('s_mov_b32 s31, 0x07060302')
    e('s_lshl_b32 s28, s25, 3')
    e('s_add_u32 s28, s28, s24')
    e('s_lshl_b32 s29, s28, 8')
    e('v_lshl_add_u32 v10, v1, 2, s29')
    e('s_lshl_b32 s29, s28, 1')
    e('v_mov_b32 v11, s29')
    uold = int(opts.get('uold', 0))
    e('v_lshlrev_b32 v12, %d, v0' % (3 if uold else 2))
    e('v_mul_u32_u24 v13, 1152, v12')
    e('s_lshl_b32 s29, s25, 4')
    e('v_add_u32 v13, s29, v13')
    e('v_mul_u32_u24 v14, 4608, v0')
    e('v_add_u32 v14, s29, v14')
    e('s_mul_i32 s27, s24, %d' % A_WS)
    e('s_add_u32 s27, s27, %d' % A_WORK)
    e('s_mov_b32 m0, s27')
    e('s_waitcnt lgkmcnt(0)')
    e('global_load_ushort v8, v11, s[18:19]')
    for k in range(6):
        e('global_load_dword %s, v10, %s' % (v(2 + k), s(6 + 2 * k, 2)))
    e('global_load_ushort v9, v11, s[44:45]')
    t_par = e.vm()
    import gen_b
    if int(opts.get('atouch', 5)) in (1, 2, 4, 5):
        if opts.get('unit'): gen_b.touch_round(e, 's41', 's42', 36, 10, int(opts.get('u0', 1)), 'a0')
        else: gen_b.first_touch(e, 's41', 's42', 36, 10)
        if int(opts.get('atouch', 5)) == 5: gen_b.first_touch(e, 's41', 's42', 36, 11, 5)
    def uload1(slots, tag, second=False):
        for sub in range(4):
            if sub < 3:
                e('s_cmp_lg_u32 s26, %d' % sub)
                e('s_cbranch_scc1 L_a_u%s_%d' % (tag, sub + 1))
            for slot in slots:
                i = (slot + sub) & 3
                e('global_load_dwordx4 %s, v13, s[4:5] offset:%d' % (a(96 + 4 * i, 4) if second else v(16 + 4 * i, 4), 1152 * i))
            if sub < 3:
                e('s_branch L_a_udone%s' % tag)
                e.label('L_a_u%s_%d' % (tag, sub + 1))
    usplit = int(opts.get('usplit', 0))
    def uload(slot):
        if usplit:
            e('s_cmp_lt_u32 s24, 4')
            e('s_cbranch_scc1 L_a_uold%d' % slot)
            if slot == 1:
                e('s_cmp_lg_u32 s32, 2')
                e('s_cbranch_scc1 L_a_udone%d' % slot)
                uload1((1, 3), '%dy' % slot)
                e.label('L_a_udone%dy' % slot)
            e('s_branch L_a_udone%d' % slot)
            e.label('L_a_uold%d' % slot)
        if uold:
            e('s_cmp_ge_u32 s24, 4')
            e('s_cbranch_scc1 L_a_udone%d' % slot)
        uload1((slot,), '%d' % slot)
        e.label('L_a_udone%d' % slot)
    stamp(0)
    e.section('amain')
    e('s_mul_i32 s33, s24, 4608')
    e('s_add_u32 s33, s33, %d' % A_UT)
    e('v_lshl_add_u32 v38, v1, 3, s33')
    e('v_mov_b32 v36, 0')
    e('v_mov_b32 v37, 0')
    e('ds_write_b64 v38, v[36:37]')
    e('v_and_b32 v36, 31, v1')
    e('v_lshrrev_b32 v37, 5, v1')
    e('v_mul_u32_u24 v86, %d, v36' % ROWB)
    e('v_lshl_add_u32 v86, v37, 4, v86')
    e('v_add_u32 v86, s27, v86')
    for i in range(16): e('v_mov_b32 %s, 0' % v(96 + i))
    e('v_and_b32 v36, 15, v1')
    e('v_lshrrev_b32 v37, 4, v1')
    e('v_lshlrev_b32 v37, 3, v37')
    e('s_movk_i32 s36, 0x3f80')
    for m, (bits, ar) in enumerate(((0x1ff0, 136), (0xfe0, 140))):
        e('v_mov_b32 v38, 0x%x' % bits)
        e('v_lshlrev_b32 v38, v36, v38')
        e('v_lshrrev_b32 v38, v37, v38')
        for k in range(4):
            e('v_bfe_u32 v39, v38, %d, 1' % (2 * k))
            e('v_bfe_u32 v40, v38, %d, 1' % (2 * k + 1))
            e('v_lshl_or_b32 v39, v40, 16, v39')
            e('v_mul_u32_u24 v39, s36, v39')
            e('v_accvgpr_write_b32 %s, v39' % a(ar + k))
    e('s_mul_i32 s34, s24, %d' % CMPS)
    e('s_add_u32 s34, s34, %d' % A_CMP)
    e('v_and_b32 v36, 31, v1')
    e('v_lshrrev_b32 v37, 5, v1')
    e('v_cmp_eq_u32 vcc, 0, v37')
    e('v_lshlrev_b32 v38, 5, v36')
    e('v_lshl_add_u32 v38, v37, 4, v38')
    e('v_add_u32 v87, s34, v38')
    e('v_lshlrev_b32 v39, 4, v36')
    e('v_add_u32 v39, 1024, v39')
    e('v_lshlrev_b32 v40, 3, v36')
    e('v_add_u32 v40, 1536, v40')
    e('v_cndmask_b32 v41, v40, v39, vcc')
    e('v_add_u32 v39, 8, v39')
    e('v_add_u32 v40, 256, v40')
    e('v_cndmask_b32 v42, v40, v39, vcc')
    e('v_add_u32 v88, s34, v41')
    e('v_add_u32 v89, s34, v42')
    e('v_lshlrev_b32 v43, 9, v37')
    e('v_lshl_add_u32 v43, v36, 2, v43')
    e('s_add_u32 s35, s34, 2048')
    e('v_add_u32 v90, s35, v43')
    e('v_lshl_add_u32 v91, v1, 3, s34')
    e('v_lshl_add_u32 v92, v1, 4, s34')
    e('v_cmp_eq_u32 vcc, 0, v1')
    e('v_cndmask_b32 v46, 0, -4, vcc')
    e('v_add_u32 v93, v46, v91')
    e('v_subrev_u32 v47, 16, v92')
    e('v_cndmask_b32 v94, v47, v92, vcc')
    e('v_lshlrev_b32 v49, 4, v1')
    e('v_sub_u32 v49, s27, v49')
    e('v_lshlrev_b32 v50, 3, v1')
    e('v_sub_u32 v50, s27, v50')
    e('v_add_u32 v95, 1072, v49')
    e('v_add_u32 v12, 1592, v50')
    e('v_lshlrev_b32 v15, %d, v0' % (4 if uold else 3))
    e('v_add_u32 v15, %d, v15' % (A_UT + 512))
    parked = []
    def park(src, home):
        e('v_accvgpr_write_b32 %s, %s' % (a(64 + len(parked)), v(src))); parked.append(home)
    def unpark(lo, hi):
        for k in range(lo, hi): e('v_accvgpr_read_b32 %s, %s' % (v(parked[k]), a(64 + k)))
    e('v_lshlrev_b32 v48, 2, v1')
    e('v_sub_u32 v48, s34, v48')
    e('v_add_u32 v48, %d, v48' % (3072 + 252)); park(48, 48)
    e('v_and_b32 v36, 7, v1')
    e('v_bfe_u32 v37, v1, 3, 2')
    e('v_mul_u32_u24 v37, %d, v37' % CS)
    e('v_min_u32 v36, 4, v36')
    e('v_lshlrev_b32 v38, 4, v36')
    e('v_cmp_lt_u32 vcc, 2, v36')
    e('v_add_u32 v39, %d, v38' % (2112 - 48))
    e('v_cndmask_b32 v38, v38, v39, vcc')
    e('v_add3_u32 v40, v38, v37, s27'); park(40, 36)
    e('v_and_b32 v36, 3, v1')
    e('v_lshl_add_u32 v40, v36, 4, s34'); park(40, 38)
    e('v_bfe_u32 v37, v1, 2, 2')
    e('v_lshlrev_b32 v38, 1, v36')
    e('v_sub_u32 v38, v37, v38')
    e('v_mul_u32_u24 v37, %d, v37' % CS)
    e('v_lshl_add_u32 v37, v36, 2, v37')
    e('v_add_u32 v37, s27, v37'); park(37, 37)
    e('v_cmp_lt_i32 s[20:21], 0, v38')
    e('v_cmp_lt_i32 s[22:23], 1, v38')
    e('v_cmp_eq_i32 s[58:59], -6, v38')
    e('v_and_b32 v36, 15, v1')
    e('v_lshrrev_b32 v37, 4, v1')
    e('v_and_b32 v38, 3, v36')
    e('v_sub_u32 v39, v36, v38')
    e('v_lshlrev_b32 v39, 1, v39')
    e('v_mul_u32_u24 v38, %d, v38' % CS)
    e('v_lshl_add_u32 v38, v37, 4, v38')
    e('v_sub_u32 v38, v38, v39')
    e('s_add_u32 s35, s27, 24')
    e('v_add_u32 v40, s35, v38'); park(40, 16)
    e('v_lshlrev_b32 v40, 4, v37')
    e('v_lshlrev_b32 v41, 2, v36')
    e('v_sub_u32 v40, v40, v41')
    e('s_add_u32 s35, s34, %d' % (3072 + 60))
    e('v_add_u32 v40, s35, v40'); park(40, 17)
    e('v_lshlrev_b32 v40, 5, v36')
    e('v_lshl_add_u32 v41, v37, 3, v40')
    e('v_lshl_add_u32 v40, v37, 4, v40')
    e('s_add_u32 s35, s33, 464')
    e('v_add_u32 v40, s35, v40'); park(40, 19)
    e('s_mul_i32 s35, s24, 3072')
    e('s_add_u32 s35, s35, %d' % A_Y1)
    e('v_add_u32 v40, s35, v41'); park(40, 22)
    e('s_add_u32 s35, s33, 512')
    e('v_add_u32 v40, s35, v41'); park(40, 21)
    e.wait_vm(t_par)
    stamp(1)
    if int(opts.get('atouch', 5)) == 3: gen_b.first_touch(e, 's41', 's42', 36, 10)
    if int(opts.get('atouch', 5)) in (2, 3):
        if opts.get('unit'): gen_b.touch_round(e, 's41', 's42', 36, 11, int(opts.get('u0', 1)) + 16, 'a1')
        else: gen_b.first_touch(e, 's41', 's42', 36, 11, 5)
    if opts.get('aexit') == '1': e('s_branch L_exit')
    e('v_lshlrev_b32 v8, 16, v8')
    e('v_mul_f32 v8, 0x%08x, v8' % LOG2E)
    e('v_exp_f32 v8, v8')
    e('v_lshlrev_b32 v9, 16, v9')
    e('v_cvt_pk_bf16_f32 v8, v8, v8')
    e('v_cmp_eq_u32 vcc, 0, v1')
    e('v_lshlrev_b32 v32, 16, v8')
    e('v_cndmask_b32 v35, 0, v9, vcc')
    e('v_mul_f32 v33, 0x%08x, v32' % LOG2E)
    e('v_mul_f32 v34, 0x%08x, v32' % INV2PI)
    if usplit:
        e('s_cmp_lt_u32 s24, 4')
        e('s_cbranch_scc1 L_a_udonez')
        uload1((0, 2), 'z')
        e.label('L_a_udonez')
    e('s_mov_b32 s32, 2')
    e.label('L_a_pass')
    stamp(8)
    if not late: uload(0)
    stamp(9)
    for k in range(6): e('v_lshlrev_b32 %s, 16, %s' % (v(36 + k), v(2 + k)))
    for k in range(6): e('v_lshrrev_b32 %s, 16, %s' % (v(2 + k), v(2 + k)))
    e('v_mul_f32 v36, v33, v36')
    e('v_mul_f32 v37, v34, v37')
    e('v_mul_f32 v38, v32, v38')
    e('v_mul_f32 v39, v32, v39')
    e('v_mul_f32 v70, 0x43800000, v36')
    e('v_mul_f32 v71, 0x43800000, v37')
    e('v_mul_f32 v72, 0x41000000, v36')
    e('v_mul_f32 v73, 0x41000000, v37')
    e('v_fract_f32 v71, v71')
    e('v_fract_f32 v37, v37')
    e('v_fract_f32 v73, v73')
    e('v_exp_f32 v70, v70')
    e('v_cos_f32 v48, v71')
    e('v_sin_f32 v49, v71')
    e('v_exp_f32 v36, v36')
    e('v_cos_f32 v44, v37')
    e('v_sin_f32 v45, v37')
    e('v_exp_f32 v72, v72')
    e('v_cos_f32 v46, v73')
    e('v_sin_f32 v47, v73')
    if int(opts.get('vop2', 0)):
        def cm(d, x, y, ny):
            return [lambda: e('v_mul_f32 %s, %s, %s' % (v(d), v(x), v(y))),
                    lambda: e('v_mul_f32 %s, %s, %s' % (v(d + 1), v(x + 1), v(y))),
                    lambda: e('v_fmac_f32 %s, %s, %s' % (v(d), v(x + 1), v(ny))),
                    lambda: e('v_fmac_f32 %s, %s, %s' % (v(d + 1), v(x), v(y + 1)))]
        neg = lambda d, x: [lambda: e('v_sub_f32 %s, 0, %s' % (v(d), v(x)))]
        e('v_sub_f32 v74, 0, v41')
        for f in cm(42, 38, 40, 74): f()
        e('v_mul_f32 v48, v70, v48')
        e('v_mul_f32 v49, v70, v49')
        e('v_mul_f32 v44, v36, v44')
        e('v_mul_f32 v45, v36, v45')
        e('v_mul_f32 v46, v72, v46')
        e('v_mul_f32 v47, v72, v47')
        e('v_sub_f32 v36, 0, v49')
        e('v_sub_f32 v37, 0, v45')
        e('v_sub_f32 v38, 0, v47')
        cv = {}
        def put(src, row, ng, ch=0):
            cv[ch] = cv.get(ch, 0) + 1
            r = 78 + 2 * ch + (cv[ch] & 1)
            return [lambda: e('v_cvt_pk_bf16_f32 %s, %s, %s%s' % (v(r), v(src), '-' if ng else '', v(src + 1))),
                    lambda: e('ds_write_addtid_b32 %s offset:%d' % (v(r), row * ROWB))]
        chA = put(42, 0, True); src = 42
        for k, r in enumerate([8, 12, 14, 16, 17, 18, 19, 20]):
            d = 50 + 2 * (k & 1)
            chA += cm(d, src, 48, 36) + put(d, r, True); src = d
        pB = lambda x, r: put(x, r, True, 1)
        chB = cm(60, 44, 44, 37) + neg(39, 61) + cm(68, 42, 44, 37) + pB(68, 1)
        chB += cm(62, 42, 60, 39) + pB(62, 2) + cm(70, 68, 60, 39) + pB(70, 3)
        chB += cm(64, 62, 60, 39) + pB(64, 4) + cm(68, 70, 60, 39) + pB(68, 5)
        chB += cm(66, 64, 60, 39) + pB(66, 6) + cm(70, 68, 60, 39) + pB(70, 7)
        chB += cm(68, 64, 48, 36) + pB(68, 10) + cm(70, 62, 48, 36) + pB(70, 9)
        chB += cm(64, 68, 48, 36) + pB(64, 13) + cm(70, 66, 48, 36) + pB(70, 11)
        chB += cm(68, 64, 48, 36) + pB(68, 15)
        chC = cm(54, 46, 46, 38) + cm(56, 54, 46, 38) + neg(40, 55) + cm(58, 54, 54, 40) + neg(41, 59)
        stamp(10)
        interleave(chA, chB, chC)
        stamp(11)
        uload(1)
        stamp(12)
        for k in range(8): e('ds_read_b128 %s, v86 offset:%d' % (a(4 * k, 4), 32 * k))
        e('v_mov_b32 v52, 0x3f80')
        e('ds_write_addtid_b32 v52')
        for f in put(46, 1, False) + put(54, 2, False) + put(56, 3, False) + put(58, 4, False): f()
        regs = {0: (58, 50, 52), 1: (46, 60, 62), 2: (54, 64, 66), 3: (56, 68, 70)}
        chains = []
        for c in (1, 2, 3, 0):
            st = []
            src, r0, r1 = regs[c]
            for j in range(5, 32):
                if j % 4 != c: continue
                st += cm(r0, src, 58, 41) + put(r0, j, False, c); src = r0; r0, r1 = r1, r0
            chains.append(st)
        interleave(*chains)
    else:
        for f in cmul(e, 42, 38, 40, 74): f()
        e('v_mul_f32 v48, v70, v48')
        e('v_mul_f32 v49, v70, v49')
        e('v_mul_f32 v44, v36, v44')
        e('v_mul_f32 v45, v36, v45')
        e('v_mul_f32 v46, v72, v46')
        e('v_mul_f32 v47, v72, v47')
        cv = {}
        def put(src, row, neg, ch=0):
            cv[ch] = cv.get(ch, 0) + 1
            r = 78 + 2 * ch + (cv[ch] & 1)
            return [lambda: e('v_cvt_pk_bf16_f32 %s, %s, %s%s' % (v(r), v(src), '-' if neg else '', v(src + 1))),
                    lambda: e('ds_write_addtid_b32 %s offset:%d' % (v(r), row * ROWB))]
        chA = put(42, 0, True)
        rowsA = [8, 12, 14, 16, 17, 18, 19, 20]
        src = 42
        for r in rowsA:
            chA += cmul(e, 50, src, 48, 70) + put(50, r, True); src = 50
        putB = lambda x, r, n: put(x, r, n, 1)
        chB = cmul(e, 60, 44, 44, 72) + cmul(e, 68, 42, 44, 74) + putB(68, 1, True)
        chB += cmul(e, 62, 42, 60, 72) + putB(62, 2, True) + cmul(e, 68, 68, 60, 74) + putB(68, 3, True)
        chB += cmul(e, 64, 62, 60, 72) + putB(64, 4, True) + cmul(e, 68, 68, 60, 74) + putB(68, 5, True)
        chB += cmul(e, 66, 64, 60, 72) + putB(66, 6, True) + cmul(e, 68, 68, 60, 74) + putB(68, 7, True)
        chB += cmul(e, 64, 64, 48, 72) + putB(64, 10, True) + cmul(e, 62, 62, 48, 74) + putB(62, 9, True)
        chB += cmul(e, 64, 64, 48, 72) + putB(64, 13, True) + cmul(e, 66, 66, 48, 74) + putB(66, 11, True)
        chB += cmul(e, 64, 64, 48, 72) + putB(64, 15, True)
        chC = cmul(e, 54, 46, 46, 76) + cmul(e, 56, 54, 46, 76) + cmul(e, 58, 54, 54, 76)
        stamp(10)
        interleave(chA, chB, chC)
        stamp(11)
        uload(1)
        stamp(12)
        for k in range(8): e('ds_read_b128 %s, v86 offset:%d' % (a(4 * k, 4), 32 * k))
        e('v_mov_b32 v52, 0x3f80')
        e('ds_write_addtid_b32 v52')
        for f in put(46, 1, False) + put(54, 2, False) + put(56, 3, False) + put(58, 4, False): f()
        regs = {0: (58, 50), 1: (46, 52), 2: (54, 54), 3: (56, 56)}
        chains = []
        for c in (1, 2, 3, 0):
            st = []
            src, run = regs[c]
            for j in range(5, 32):
                if j % 4 != c: continue
                st += cmul(e, run, src, 58, 70 + 2 * c) + put(run, j, False, c); src = run
            chains.append(st)
        interleave(*chains)
    stamp(13)
    if int(opts.get('atouch', 5)) == 4:
        e('s_cmp_lg_u32 s32, 2')
        e('s_cbranch_scc1 L_a_nog')
        gen_b.first_touch(e, 's41', 's42', 36, 11, 5)
        e.label('L_a_nog')
    if late: uload(0)
    e('s_add_u32 s26, s26, 2')
    e('s_and_b32 s26, s26, 3')
    t0 = e.lg()
    for k in range(8): e('ds_read_b128 %s, v86 offset:%d' % (a(32 + 4 * k, 4), 32 * k))
    for k in range(8):
        e.wait_lg(t0 + k + 1)
        e('v_mfma_f32_32x32x16_bf16 v[96:111], %s, %s, v[96:111]' % (a(4 * k, 4), a(32 + 4 * k, 4)))
    e('s_sub_u32 s32, s32, 1')
    e('s_cmp_lg_u32 s32, 0')
    e('s_cbranch_scc1 L_a_pass')
    stamp(2)
    if uold:
        e('s_cmp_ge_u32 s24, 4')
        e('s_cbranch_scc1 L_a_udones')
        e('v_add_u32 v13, 4608, v13')
        uload1((0, 1, 2, 3), 's', True)
        e.label('L_a_udones')
    if int(opts.get('aq', 0)):
        e('s_cmp_ge_u32 s24, 3')
        e('s_cbranch_scc1 L_a_noq')
        gen_b.touch_cols(e, 's41', 's42', 36, 8, 's[48:49]', 3456)
        if int(opts.get('aq', 0)) == 2: gen_b.touch_cols(e, 's41', 's42', 36, 9, 's[50:51]', 1152)
        e.label('L_a_noq')
    unpark(0, 4)
    e('v_cmp_eq_u32 vcc, 0, v1')
    e('v_mov_b32 v51, s34')
    for k in range(4): e('v_mov_b32 %s, 0' % v(76 + k))
    e('ds_write_b128 v87, v[96:99]')
    e('ds_write_b64 v88, v[100:101]')
    e('ds_write_b64 v89, v[102:103]')
    e('ds_write2_b32 v90, v104, v105 offset0:0 offset1:32')
    e('ds_write2_b32 v90, v106, v107 offset0:64 offset1:96')
    t0 = e.lg()
    e('ds_read_b64 v[56:57], v91 offset:1536')
    e('ds_read_b32 v58, v91 offset:1544')
    e('ds_read_b32 v59, v93 offset:1536')
    e('ds_read_b32 v55, v93 offset:1532')
    e('ds_read_b64 v[60:61], v91 offset:1024')
    e('ds_read_b32 v62, v91 offset:1032')
    e('ds_read_b32 v63, v93 offset:1024')
    e('ds_read2_b32 v[68:69], v93 offset0:254 offset1:255')
    e('ds_read_b128 v[64:67], v92')
    e('ds_read_b128 v[72:75], v94')
    e('ds_read_b32 v52, v91 offset:2052')
    e('ds_read_b32 v53, v91 offset:2056')
    e('ds_read_b32 v70, v51 offset:2044')
    e('ds_read_b32 v71, v51 offset:2048')
    e('ds_write_b128 v36, v[76:79]')
    e('ds_write_b128 v38, v[76:79] offset:%d' % (3072 + 256))
    def pk(d, x, y): e('v_cvt_pk_bf16_f32 %s, %s, %s' % (v(d), v(x), v(y)))
    def quad(base, pairs):
        for k, (x, y) in enumerate(pairs): pk(base + k, x, y)
    e.wait_lg(t0 + 4)
    A_, B_, C_, A2, D_ = 56, 57, 58, 59, 55
    quad(96, [(C_, C_), (B_, B_), (B_, A_), (A_, A_)]); e('ds_write_b128 v95, v[96:99] offset:%d' % (3 * CS))
    quad(100, [(C_, B_), (B_, B_), (A_, A_), (A_, A_)]); e('ds_write_b128 v95, v[100:103] offset:%d' % (2 * CS))
    quad(104, [(B_, B_), (B_, A_), (A_, A_), (A_, A2)]); e('ds_write_b128 v95, v[104:107] offset:%d' % CS)
    quad(108, [(B_, B_), (A_, A_), (A_, A_), (A2, D_)]); e('ds_write_b128 v95, v[108:111]')
    e.wait_lg(t0 + 14)
    A_, B_, C_, A1, E_, F_ = 60, 61, 62, 63, 69, 68
    e('v_add_f32 v64, v64, v35')
    for k in (73, 74, 75): e('v_cndmask_b32 %s, %s, v76, vcc' % (v(k), v(k)))
    quad(96, [(C_, B_), (A_, A_)]); e('ds_write_b64 v12, v[96:97] offset:%d' % (3 * CS))
    quad(98, [(B_, A_), (A_, A1)]); e('ds_write_b64 v12, v[98:99] offset:%d' % (2 * CS))
    quad(100, [(A_, A_), (A1, E_)]); e('ds_write_b64 v12, v[100:101] offset:%d' % CS)
    quad(102, [(A_, A1), (E_, F_)]); e('ds_write_b64 v12, v[102:103]')
    quad(104, [(67, 66), (65, 64)]); e('ds_write_b64 v12, v[104:105] offset:%d' % (3 * CS + 512))
    quad(106, [(66, 65), (64, 75)]); e('ds_write_b64 v12, v[106:107] offset:%d' % (2 * CS + 512))
    quad(108, [(65, 64), (75, 74)]); e('ds_write_b64 v12, v[108:109] offset:%d' % (CS + 512))
    quad(110, [(64, 75), (74, 73)]); e('ds_write_b64 v12, v[110:111] offset:512')
    pk(54, 53, 52); e('ds_write_b32 v48, v54')
    e('v_cndmask_b32 v39, v71, v76, s[20:21]')
    e('v_cndmask_b32 v40, v71, v76, s[22:23]')
    e('v_cndmask_b32 v40, v40, v70, s[58:59]')
    pk(39, 39, 40); e('ds_write_b32 v37, v39 offset:48')
    stamp(3)
    e('s_waitcnt vmcnt(0)')
    stamp(4)
    if uold:
        e('s_cmp_ge_u32 s24, 4')
        e('s_cbranch_scc1 L_a_notr')
        for k in range(16): e('v_accvgpr_read_b32 %s, %s' % (v(36 + k), a(96 + k)))
        for c in range(8):
            sel = 's31' if c & 1 else 's30'
            d = 52 + 4 * (c % 4)
            for k, r in enumerate((16, 24, 36, 44)): e('v_perm_b32 %s, %s, %s, %s' % (v(d + k), v(r + 4 + (c >> 1)), v(r + (c >> 1)), sel))
            e('ds_write_b128 v15, %s offset:%d' % (v(d, 4), c * 4608))
        e.label('L_a_notr')
    else:
        for c in range(8):
            sel = 's31' if c & 1 else 's30'
            d = 36 + 2 * (c % 8)
            e('v_perm_b32 %s, %s, %s, %s' % (v(d), v(20 + (c >> 1)), v(16 + (c >> 1)), sel))
            e('v_perm_b32 %s, %s, %s, %s' % (v(d + 1), v(28 + (c >> 1)), v(24 + (c >> 1)), sel))
            e('ds_write_b64 v15, %s offset:%d' % (v(d, 2), c * 4608))
    unpark(4, 9)
    e('v_add_u32 v20, 16, v19')
    ACC = 64
    for i in range(16): e('v_mov_b32 %s, 0' % v(ACC + i))
    t0 = e.lg()
    for d in range(4, 8):
        o = 16 * (7 - d)
        e('ds_read2_b32 %s, v17 offset0:%d offset1:%d' % (a(96 + 4 * (d - 4), 2), o, o + 1))
        e('ds_read2_b32 %s, v17 offset0:%d offset1:%d' % (a(98 + 4 * (d - 4), 2), o + 2, o + 3))
    e('ds_read_b64 a[128:129], v16')
    e('ds_read_b64 a[130:131], v16 offset:8')
    e('s_waitcnt lgkmcnt(0)')
    e('s_barrier')
    stamp(5)
    if opts.get('aexit') == '2': e('s_branch L_exit')
    mf = lambda d, x, y, c: e('v_mfma_f32_16x16x32_bf16 %s, %s, %s, %s' % (d, x, y, c))
    G1 = int(opts.get('g1', 5))
    T1 = list(range(G1)); T2 = list(range(G1, 8))
    tok = {}
    wgrp = int(opts.get('wgrp', 2))
    def reads(bank, tiles):
        low = max(0, min(tiles) - 3)
        out = []; seen = set()
        def rd(key, txt): out.append(lambda: (e(txt), tok.__setitem__(key, e.lg())))
        for i in range(4):
            for h in range(2): rd(('A', bank, i), 'ds_read_b64 %s, v16 offset:%d' % (a(bank + 4 * i + 2 * h, 2), 2048 - 512 * i + 8 * h))
            for n in tiles:
                m = n - i
                if m >= 0 and m not in seen:
                    seen.add(m); rd(('B', bank, m), 'ds_read_b128 %s, v20 offset:%d' % (a(bank + 16 + 4 * (m - low), 4), 512 * m))
        out.append(lambda: e('v_subrev_u32 v16, 64, v16'))
        out.append(lambda: e('v_subrev_u32 v20, 64, v20'))
        return out
    def spread(nslots, fill):
        per = [len(fill) // nslots + (1 if k < len(fill) % nslots else 0) for k in range(nslots)]
        res = []; k = 0
        for p_ in per: res.append(fill[k:k + p_]); k += p_
        return res
    def half(bank, tiles, more=(), lead=0):
        low = max(0, min(tiles) - 3)
        ops = [(i, n) for i in range(4) for n in tiles if n >= i]
        rd_ = reads(48 - bank, tiles); more = list(more)
        fill = []
        while rd_ or more:
            fill += rd_[:1] + more[:lead or 1]; rd_ = rd_[1:]; more = more[lead or 1:]
        gaps = spread(len(ops), fill)
        have = -1
        for (i, n), gp in zip(ops, gaps):
            need_ = max(max(tok[('A', bank, i2)], tok[('B', bank, n2 - i2)]) for i2, n2 in ops if i2 // wgrp == i // wgrp)
            if need_ > have: e.wait_lg(need_); have = need_
            mf(v(ACC + 4 * n, 4), a(bank + 4 * i, 4), a(bank + 16 + 4 * (n - i - low), 4), v(ACC + 4 * n, 4))
            for f in gp: f()
    t0 = e.lg()
    for c in range(4):
        e('ds_read_b128 %s, v19 offset:%d' % (a(64 + 8 * c, 4), 512 * c))
        e('ds_read_b128 %s, v20 offset:%d' % (a(68 + 8 * c, 4), 512 * c))
    BX = 24
    for c in range(4):
        e.wait_lg(t0 + 2 * c + 2)
        mf(v(BX + 8 * c, 4), a(64 + 8 * c, 4), 'a[136:139]', '0')
        mf(v(BX + 8 * c + 4, 4), a(68 + 8 * c, 4), 'a[140:143]', '0')
        mf(v(ACC + 16 + 4 * c, 4), 'a[128:131]', a(68 + 8 * c, 4), '0')
        if c:
            for r in range(4): pk(BX + 8 * c - 8 + r, BX + 8 * c - 8 + r, BX + 8 * c - 4 + r)
    first = reads(0, T1)
    for c in range(4):
        if c == 1:
            for r in range(4): pk(BX + 24 + r, BX + 24 + r, BX + 28 + r)
        for n in range(4 + c, 8):
            mf(v(ACC + 4 * n, 4), v(BX + 8 * c, 4), a(96 + 4 * (n - c - 4), 4), v(ACC + 4 * n, 4))
            for f in first[:2]: f()
            first = first[2:]
    assert not first
    def loop(tiles, tag, trips, extra=None):
        e('s_mov_b32 s32, %d' % trips)
        e.label('L_a_conv%s' % tag)
        half(0, tiles)
        if extra: extra()
        half(48, tiles)
        e('s_sub_u32 s32, s32, 1')
        e('s_cmp_lg_u32 s32, 0')
        e('s_cbranch_scc1 L_a_conv%s' % tag)
    def put_y(tiles, addr):
        r = []
        for n in tiles:
            r.append(lambda n=n: pk(36 + 2 * n, ACC + 4 * n, ACC + 4 * n + 1))
            r.append(lambda n=n: pk(37 + 2 * n, ACC + 4 * n + 2, ACC + 4 * n + 3))
            r.append(lambda n=n: e('ds_write_b64 %s, %s offset:%d' % (addr, v(36 + 2 * n, 2), 512 * n)))
        return r
    def gather(rows0, rnd, base, stride):
        src = 24 + 8 * rnd if rows0 == 0 else 24
        rd_ = [lambda c=c: (e('ds_read_b32 %s, v23 offset:%d' % (v(src + c), base + c * stride + 2048 * rnd)), tok.__setitem__('y', e.lg())) for c in range(8)]
        ad = v(12 + rnd)
        rd_.append(lambda: e('s_mov_b32 s35, %d\nv_add_u32 %s, s35, v14' % ((rows0 + 1024 * rnd) * 2304, ad)))
        sh = []; st = []
        for i in range(2):
            d = 44 + 8 * rnd + 4 * i
            for c2 in range(4): sh.append(lambda d=d, c2=c2, i=i: e('v_perm_b32 %s, %s, %s, %s' % (v(d + c2), v(src + 1 + 2 * c2), v(src + 2 * c2), 's31' if i else 's30')))
            st.append('global_store_dwordx4 %s, %s, s[52:53] offset:%d' % (ad, v(d, 4), 2304 * i))
        return rd_, sh, st
    loop(T1, 'a', 4)
    stamp(14)
    e('v_add_u32 v16, 576, v16')
    e('v_add_u32 v20, 576, v20')
    for f in reads(0, T2): f()
    e('v_lshlrev_b32 v23, 2, v0')
    e('v_add_u32 v23, %d, v23' % A_UT)
    half(0, T2, put_y(T1, 'v22'))
    e('s_waitcnt lgkmcnt(0)')
    e('s_barrier')
    nr = (256 * G1 + 1023) // 1024
    gs = [gather(0, r, A_Y1 - A_UT, 3072) for r in range(nr)]
    half(48, T2, sum([g[0] for g in gs], []), lead=2)
    stamp(15)
    e.wait_lg(tok['y'])
    half(0, T2, sum([g[1] for g in gs], []))
    held = [(st, 8 if r == 0 else (256 * G1 - 1024) // 128) for r, g in enumerate(gs) for st in g[2]]
    e(held.pop(0)[0])
    half(48, T2)
    def trickle():
        e('s_cmp_lg_u32 s32, 2')
        e('s_cbranch_scc1 L_a_tr1')
        e(held[0][0])
        e('s_branch L_a_trdone')
        e.label('L_a_tr1')
        if len(held) > 1:
            e('s_cmp_ge_u32 s24, %d' % held[1][1])
            e('s_cbranch_scc1 L_a_trdone')
            for st, _ in held[1:]: e(st)
        e.label('L_a_trdone')
    loop(T2, 'b', 2, trickle)
    stamp(6)
    for f in put_y(T2, 'v21'): f()
    e('s_waitcnt lgkmcnt(0)')
    e('s_barrier')
    n2 = 2048 - 256 * G1
    if n2 < 1024:
        e('s_cmp_ge_u32 s24, %d' % (n2 // 128))
        e('s_cbranch_scc1 L_a_done')
    rd_, sh, st = gather(256 * G1, 0, 512 + 512 * G1, 4608)
    for f in rd_: f()
    e.wait_lg(tok['y'])
    for i in range(2):
        for f in sh[4 * i:4 * i + 4]: f()
        e(st[i])
    e.label('L_a_done')
    if opts.get('awb'):
        e('s_waitcnt vmcnt(0)')
        e('s_barrier')
        e('s_cmp_lg_u32 s24, 0')
        e('s_cbranch_scc1 L_a_nowb')
        e('buffer_wbl2 sc1')
        e.label('L_a_nowb')
    stamp(7)
    e('s_endpgm')
```

```python
from asmlib import *
from gen_a import f2u, LOG2E
EPS = f2u(1e-6)
SLOT = 34816; WOFF = 16384
WQ_LO = SLOT; WQ_HI = 4 * SLOT; IMG = WQ_HI + 3 * 4608
SCR = 3 * SLOT
CST = SLOT - 4096
LCNT = IMG + 9216
STG = WQ_LO + 5 * 4608
def wo_base(ks): return 4608 * ks if ks < 6 else SCR + 4608 * (ks - 6) if ks < 13 else WQ_LO + 4608 * (ks - 13)
KVP = 0; OB = KVP + 8 * 4 * 12288; HAND = OB + 16 * 8 * 18 * 1024
SPIN = 20000
def wq_base(ks): return WQ_LO + 4608 * ks if ks < 15 else WQ_HI + 4608 * (ks - 15)

def div_small(e, q, r, x, d, t):
    e('v_mul_u32_u24 %s, %d, %s' % (v(q), (1 << 16) // d + 1, v(x)))
    e('v_lshrrev_b32 %s, 16, %s' % (v(q), v(q)))
    e('v_mul_u32_u24 %s, %d, %s' % (v(t), d, v(q)))
    e('v_sub_u32 %s, %s, %s' % (v(r), v(x), v(t)))
for d in (5, 9, 18):
    assert all((x * ((1 << 16) // d + 1)) >> 16 == x // d for x in range(1024))

def phi_pair(e, x, dst, t, plain=False):
    if plain:
        return [lambda: e('v_mul_f32 %s, s36, %s' % (v(t), v(x))),
                lambda: e('v_mul_f32 %s, s36, %s' % (v(t + 1), v(x + 1))),
                lambda: e('v_max_f32 %s, s38, %s' % (v(t + 2), v(x))),
                lambda: e('v_exp_f32_e64 %s, %s clamp' % (v(t), v(t))),
                lambda: e('v_max_f32 %s, s38, %s' % (v(t + 3), v(x + 1))),
                lambda: e('v_exp_f32_e64 %s, %s clamp' % (v(t + 1), v(t + 1))),
                lambda: e('v_add_f32 %s, %s, %s' % (v(t), v(t), v(t + 2))),
                lambda: e('v_add_f32 %s, %s, %s' % (v(t + 1), v(t + 1), v(t + 3))),
                lambda: e('v_cvt_pk_bf16_f32 %s, %s, %s' % (v(dst), v(t), v(t + 1)))]
    return [lambda: e('v_pk_mul_f32 %s, %s, s[36:37]' % (v(t, 2), v(x, 2))),
            lambda: e('v_max_f32 %s, s38, %s' % (v(t + 2), v(x))),
            lambda: e('v_exp_f32_e64 %s, %s clamp' % (v(t), v(t))),
            lambda: e('v_exp_f32_e64 %s, %s clamp' % (v(t + 1), v(t + 1))),
            lambda: e('v_max_f32 %s, s38, %s' % (v(t + 3), v(x + 1))),
            lambda: e('v_pk_add_f32 %s, %s, %s' % (v(t, 2), v(t, 2), v(t + 2, 2))),
            lambda: e('v_cvt_pk_bf16_f32 %s, %s, %s' % (v(dst), v(t), v(t + 1)))]
def zipper(*streams):
    streams = [list(x) for x in streams]
    while any(streams):
        for st in streams:
            if st: st.pop(0)()

def touch_tiles(e, idx, chunk, lo, n, x_, tmp, dst):
    t0, t1, t2, t3 = tmp, tmp + 1, tmp + 2, tmp + 3
    e('v_min_u32 %s, %d, %s' % (v(t0), n - 1, v(idx)))
    e('v_add_u32 %s, %s, %s' % (v(t0), lo, v(t0)))
    e('s_lshr_b32 s36, %s, 1' % x_)
    e('s_mul_i32 s36, s36, %d' % (512 * 1152))
    e('s_lshl_b32 s37, %s, 7' % chunk)
    e('s_add_u32 s36, s36, s37')
    e('s_and_b32 s37, %s, 1' % x_)
    e('s_lshl_b32 s37, s37, 9')
    e('s_mul_i32 s38, %s, %d' % (chunk, 64 * 3456))
    e('s_add_u32 s37, s37, s38')
    e('s_add_u32 s37, s37, 1152')
    e('v_cmp_gt_u32 vcc, 512, %s' % v(t0))
    e('v_mul_u32_u24 %s, 1152, %s' % (v(t1), v(t0)))
    e('v_add_u32 %s, s36, %s' % (v(t1), v(t1)))
    e('v_subrev_u32 %s, 512, %s' % (v(t0), v(t0)))
    e('v_max_i32 %s, 0, %s' % (v(t0), v(t0)))
    div_small(e, t2, t3, t0, 5, t0 + 4)
    e('v_and_b32 %s, 1, %s' % (v(t0), v(t2)))
    e('v_lshrrev_b32 %s, 1, %s' % (v(t2), v(t2)))
    e('v_mul_u32_u24 %s, 3456, %s' % (v(t2), v(t2)))
    e('v_mul_u32_u24 %s, 1152, %s' % (v(t0), v(t0)))
    e('v_lshl_add_u32 %s, %s, 7, s37' % (v(t3), v(t3)))
    e('v_add3_u32 %s, %s, %s, %s' % (v(t2), v(t2), v(t0), v(t3)))
    e('v_mov_b32 %s, s46' % v(t0))
    e('v_mov_b32 %s, s48' % v(t3))
    e('v_cndmask_b32 %s, %s, %s, vcc' % (v(t1), v(t2), v(t1)))
    e('v_cndmask_b32 %s, %s, %s, vcc' % (v(t2), v(t3), v(t0)))
    e('v_mov_b32 %s, s47' % v(t0))
    e('v_mov_b32 %s, s49' % v(t3))
    e('v_cndmask_b32 %s, %s, %s, vcc' % (v(t3), v(t3), v(t0)))
    e('v_add_co_u32 %s, vcc, %s, %s' % (v(t2), v(t2), v(t1)))
    e('v_addc_co_u32 %s, vcc, 0, %s, vcc' % (v(t3), v(t3)))
    e('global_load_dword %s, %s, off' % (v(dst), v(t2, 2)))

PRIO = [0, 0]
def first_touch(e, j_, x_, tmp, dst, first=1):
    if PRIO[0] == 2 and first > 1:
        e('s_lshr_b32 s39, %s, 2' % j_)
        e('s_add_u32 s39, s39, %d' % first)
        e('s_and_b32 s40, %s, 3' % j_)
    elif PRIO[0] == 1:
        e('s_lshr_b32 s39, %s, 2' % j_)
        e('s_sub_u32 s39, %d, s39' % (first + 3))
        e('s_and_b32 s40, %s, 3' % j_)
    else:
        e('s_and_b32 s39, %s, 3' % j_)
        e('s_add_u32 s39, s39, %d' % first)
        e('s_lshr_b32 s40, %s, 2' % j_)
    if PRIO[1]: e('s_add_u32 s39, s39, %d\ns_min_u32 s39, s39, 8' % PRIO[1])
    e('s_mul_i32 s40, s40, 288')
    touch_tiles(e, 0, 's39', 's40', 288, x_, tmp, dst)

def touch_unit(e, unit, x_, tmp, dst, tag):
    t0, t1 = tmp, tmp + 1
    e('s_mul_i32 s36, %s, 43' % unit)
    e('s_lshr_b32 s36, s36, 7')
    e('s_mul_i32 s37, s36, 3')
    e('s_sub_u32 s37, %s, s37' % unit)
    e('s_cmp_lg_u32 s37, 0')
    e('s_cbranch_scc1 L_tw%s' % tag)
    e('s_lshr_b32 s37, %s, 1' % x_)
    e('s_mul_i32 s37, s37, %d' % (512 * 1152))
    e('s_lshl_b32 s36, s36, 7')
    e('s_add_u32 s36, s36, s37')
    e('v_mul_u32_u24 %s, 1152, v0' % v(t0))
    e('v_add_u32 %s, s36, %s' % (v(t0), v(t0)))
    e('global_load_dword %s, %s, s[46:47]' % (v(dst), v(t0)))
    e('s_branch L_td%s' % tag)
    e.nvm -= 1
    e.label('L_tw%s' % tag)
    e('s_lshl_b32 s36, s36, 1')
    e('s_add_u32 s36, s36, s37')
    e('s_mul_i32 s36, s36, %d' % (32 * 3456))
    e('s_and_b32 s37, %s, 1' % x_)
    e('s_lshl_b32 s37, s37, 9')
    e('s_add_u32 s36, s36, s37')
    e('s_sub_u32 s36, s36, %d' % (32 * 3456 - 1152))
    e('v_and_b32 %s, 15, v0' % v(t1))
    e('v_min_u32 %s, 9, %s' % (v(t1), v(t1)))
    e('v_lshrrev_b32 %s, 4, v0' % v(t0))
    e('v_cmp_lt_u32 vcc, 4, %s' % v(t1))
    e('v_mul_u32_u24 %s, 3456, %s' % (v(t0), v(t0)))
    e('v_lshl_add_u32 %s, %s, 7, %s' % (v(t0), v(t1), v(t0)))
    e('v_cndmask_b32 %s, 0, 4, vcc' % v(t1))
    e('v_lshl_add_u32 %s, %s, 7, s36' % (v(t1), v(t1)))
    e('v_add_u32 %s, %s, %s' % (v(t0), v(t0), v(t1)))
    e('global_load_dword %s, %s, s[48:49]' % (v(dst), v(t0)))
    e.label('L_td%s' % tag)
assert all((u * 43) >> 7 == u // 3 for u in range(40))

def touch_round(e, j_, x_, tmp, dst, first, tag):
    e('s_add_u32 s39, %s, %d' % (j_, first))
    e('s_min_u32 s39, s39, 26')
    touch_unit(e, 's39', x_, tmp, dst, tag)

def touch_cols(e, j_, x_, tmp, dst, base, pitch):
    e('v_min_u32 %s, 179, v0' % v(tmp))
    div_small(e, tmp + 1, tmp + 2, tmp, 5, tmp + 3)
    e('s_mul_i32 s36, %s, %d' % (j_, 36 * pitch))
    e('s_and_b32 s37, %s, 1' % x_)
    e('s_lshl_b32 s37, s37, 9')
    e('s_add_u32 s36, s36, s37')
    e('v_mul_u32_u24 %s, %d, %s' % (v(tmp + 1), pitch, v(tmp + 1)))
    e('v_lshl_add_u32 %s, %s, 7, s36' % (v(tmp + 2), v(tmp + 2)))
    e('v_add_u32 %s, %s, %s' % (v(tmp + 1), v(tmp + 1), v(tmp + 2)))
    e('global_load_dword %s, %s, %s' % (v(dst), v(tmp + 1), base))

def role_b(e, stamp, opts):
    stamp = stamp or (lambda i: None)
    PRIO[0] = int(opts.get('tprio', 2)); PRIO[1] = int(opts.get('tshift', 0))
    rot = int(opts.get('rot', 0))
    e('v_lshrrev_b32 v2, 6, v0')
    e('v_and_b32 v1, 63, v0')
    e('v_readfirstlane_b32 s24, v2')
    e('s_and_b32 s32, s2, 7')
    e('s_lshr_b32 s33, s2, 3')
    e('s_and_b32 s34, s33, 3')
    e('s_lshr_b32 s33, s33, 2')
    e('s_lshr_b32 s25, s32, 1')
    e('s_lshl_b32 s25, s25, 2')
    e('s_add_u32 s25, s25, s34')
    e('s_and_b32 s26, s32, 1')
    e('s_lshl_b32 s26, s26, 2')
    e('s_add_u32 s26, s26, s33')
    if rot:
        e('s_add_u32 s27, s33, s34')
        e('s_and_b32 s27, s27, 3')
        e('s_lshl_b32 s27, s27, 1')
        e('s_lshr_b32 s35, s32, 1')
        e('s_xor_b32 s35, s35, s32')
        e('s_and_b32 s35, s35, 1')
        e('s_add_u32 s27, s27, s35')
    else:
        e('s_mov_b32 s27, 0')
    e('v_and_b32 v2, 15, v1')
    e('v_lshrrev_b32 v3, 4, v1')
    e('s_cmp_lt_u32 s24, 4')
    e('s_cbranch_scc1 L_b_compute')
    loader(e, stamp, opts)
    e.section('compute', False)
    e.label('L_b_compute')
    compute(e, stamp, opts)

MAIL = [(24, 3 * SLOT, 0), (28, 3 * SLOT, 1024), (32, 3 * SLOT, 2048), (36, 3 * SLOT, 3072),
        (44, None, 0), (48, None, 1024), (52, None, 2048), (56, None, 3072), (14, None, 4096),
        (60, 2 * SLOT, 0), (64, 2 * SLOT, 1024)]
def mailbox(e, write, mode):
    e('s_lshl_b32 s32, s39, 12')
    e('s_add_u32 s32, s32, %d' % (2 * SLOT))
    e('v_lshl_add_u32 v4, v1, 4, s32')
    e('s_mul_i32 s32, s39, 4608')
    e('s_add_u32 s32, s32, %d' % (3 * SLOT + WOFF))
    e('v_lshl_add_u32 v5, v1, 4, s32')
    e('v_lshl_add_u32 v6, v1, 3, s32')
    for r, base, off in MAIL[0 if mode == 2 else 4:]:
        n = 2 if r == 14 else 4
        ad = 'v6' if r == 14 else 'v5' if base is None else 'v4'
        o = off + (base - 2 * SLOT if base else 0)
        if write: e('ds_write_b%d %s, %s offset:%d' % (32 * n, ad, v(r, n), o))
        else: e('ds_read_b%d %s, %s offset:%d' % (32 * n, v(r, n), ad, o))

def loader_tables(e, parts='ab'):
    if 'a' in parts:
        for j in range(5):
            e('v_add_u32 v4, %d, v1' % (64 * j))
            div_small(e, 5, 6, 4, 9, 7)
            e('v_lshlrev_b32 v6, 4, v6')
            e('v_add_u32 v6, s40, v6')
            e('v_lshrrev_b32 v4, 3, v5')
            e('v_and_b32 v7, 1, v5')
            e('v_bfe_u32 v5, v5, 1, 2')
            e('v_lshl_add_u32 v19, v7, 2, v5')
            e('v_lshl_add_u32 v39, v4, 3, v19')
            e('v_mul_u32_u24 v39, 3456, v39')
            e('v_add_u32 %s, v39, v6' % v(24 + j))
            e('v_lshl_add_u32 v39, v4, 2, v5')
            e('v_lshl_add_u32 v39, v7, 4, v39')
            e('v_mul_u32_u24 v39, 1152, v39')
            e('v_add_u32 %s, v39, v6' % v(29 + j))
            e('v_mul_u32_u24 v39, 72, v4')
            e('v_add_u32 v39, v39, v19')
            e('v_mul_u32_u24 v39, 1152, v39')
            e('v_add_u32 %s, v39, v6' % v(34 + j))
    if 'b' not in parts: return
    e('s_lshl_b32 s32, s26, 2')
    e('s_add_u32 s32, s32, s39')
    e('s_mul_i32 s32, s32, 12288')
    e('s_add_u32 s32, s32, %d' % KVP)
    e('v_lshl_add_u32 v15, v1, 4, s32')
    e('s_lshl_b32 s33, s25, 8')
    e('s_add_u32 s32, s32, s33')
    e('v_lshlrev_b32 v14, 4, v2')
    e('v_lshl_add_u32 v14, v3, 12, v14')
    e('v_add_u32 v14, s32, v14')
    e('s_mul_i32 s32, s39, 2304')
    e('s_add_u32 s32, s32, %d' % IMG)
    e('v_lshl_add_u32 v4, v1, 4, s32')
    for k in range(4): e('v_mov_b32 %s, 0' % v(40 + k))
    e('ds_write_b128 v4, v[40:43]')
    e('ds_write_b128 v4, v[40:43] offset:1024')
    e('v_lshl_add_u32 v4, v1, 2, s32')
    e('ds_write_b32 v4, v40 offset:2048')
    e('v_mov_b32 v55, %d' % LCNT)
    e('ds_write_b32 v55, v40')
    e('s_lshr_b32 s45, s39, 1')
    e('s_lshl_b32 s46, s39, 1')
    e('s_lshl_b32 s47, s39, 10')
    e('s_add_u32 s47, s47, %d' % CST)
    e('s_add_u32 s32, s47, 768')
    e('v_lshl_add_u32 v44, v2, 3, s32')
    for i in range(2):
        e('v_add_u32 v4, %d, v3' % (4 * i))
        e('v_subrev_u32 v5, s45, v4')
        e('v_cmp_gt_u32 s[48:49], 5, v5')
        for j in range(2):
            e('v_add_u32 v6, %d, v2' % (16 * j - 8))
            e('v_subrev_u32 v6, s46, v6')
            e('v_cmp_gt_u32 vcc, 18, v6')
            e('v_mul_u32_u24 v6, 5, v6')
            e('v_add_u32 v6, v6, v5')
            e('s_and_b64 vcc, vcc, s[48:49]')
            e('v_lshl_add_u32 v6, v6, 3, s47')
            e('v_cndmask_b32 %s, v44, v6, vcc' % v(45 + 2 * i + j))
        e('v_cmp_eq_u32 vcc, 0, v2')
        e('v_add_u32 v6, 90, v5')
        e('v_lshl_add_u32 v6, v6, 3, s47')
        e('s_and_b64 vcc, vcc, s[48:49]')
        e('v_cndmask_b32 %s, %s, v6, vcc' % (v(45 + 2 * i), v(45 + 2 * i)))
    e('s_mul_i32 s32, s39, 18')
    e('s_add_u32 s32, s32, 8')
    e('s_lshl_b32 s33, s39, 2')
    e('s_add_u32 s33, s33, s45')
    e('v_cmp_gt_u32 s[48:49], 2, v3')
    for b in range(3):
        e('v_lshl_add_u32 v4, v2, 1, v3')
        e('v_add_u32 v4, %d, v4' % (32 * b))
        div_small(e, 5, 6, 4, 5, 7)
        e('v_add_u32 v6, s33, v6')
        e('v_add_u32 v7, s32, v5')
        e('v_lshrrev_b32 v19, 4, v7')
        e('v_and_b32 v7, 15, v7')
        e('v_lshrrev_b32 v39, 2, v6')
        e('v_and_b32 v6, 3, v6')
        e('v_lshl_add_u32 v19, v19, 1, v39')
        if b == 2:
            e('v_cmp_eq_u32 vcc, 18, v5')
            e('v_add_u32 v39, 13, v39')
            e('v_cndmask_b32 v19, v19, v39, vcc')
            e('v_mov_b32 v39, s39')
            e('v_cndmask_b32 v7, v7, v39, vcc')
        e('v_lshl_add_u32 v7, v6, 4, v7')
        e('v_lshlrev_b32 v7, 3, v7')
        e('v_lshl_add_u32 v7, v19, 9, v7')
        e('v_add_u32 v7, %d, v7' % IMG)
        if b == 2:
            e('s_and_b64 vcc, vcc, s[48:49]')
            e('v_cndmask_b32 v54, v44, v7, vcc')
            e('v_cmp_gt_u32 vcc, 19, v5')
            e('s_and_b64 s[48:49], vcc, s[48:49]')
        e('v_cndmask_b32 %s, v44, v7, s[48:49]' % v(51 + b))
    e('v_and_b32 v4, 1, v2')
    e('v_lshlrev_b32 v4, 4, v4')
    e('v_mov_b32 v5, 0x3f80')
    e('v_lshlrev_b32 v4, v4, v5')
    e('v_lshrrev_b32 v5, 1, v2')
    for k in range(4):
        e('v_cmp_eq_u32 vcc, %d, v5' % k)
        e('v_cndmask_b32 %s, 0, v4, vcc' % v(56 + k))
    for k in range(4): e('v_mov_b32 %s, 0x3f803f80' % v(8 + 96 + k))
    e('ds_write_b128 v55, v[104:107] offset:16')
    e('ds_write_b128 v55, v[40:43] offset:32')
    e('ds_write_b32 v55, v40 offset:4')
    for k, df in enumerate((0, 1, 5, 6)):
        e('s_add_u32 s32, s39, %d' % df)
        e('s_lshl_b32 s33, s32, 10')
        e('s_add_u32 s34, s33, %d' % SCR)
        e('s_sub_u32 s33, s33, 8192')
        e('s_movk_i32 s48, 4096')
        e.L.append('s_cmp_lt_u32 s32, 8\ns_cselect_b32 s33, s34, s33\ns_cselect_b32 s48, 8192, s48')
        e('v_lshl_add_u32 %s, v1, 4, s33' % v(64 + k))
        e('v_mov_b32 %s, s48' % v(60 + k))
        if k < 3:
            if k == 0: e('v_cmp_gt_u32 vcc, s46, v2')
            if k == 1:
                e('s_add_u32 s32, s46, 2')
                e('v_cmp_le_u32 vcc, s32, v2')
            if k == 2: e('v_cmp_eq_u32 vcc, 0, v2')
            e('v_mov_b32 v4, %d' % (LCNT + (16 if k == 2 else 32)))
            e('v_cndmask_b32 %s, %s, v4, vcc' % (v(64 + k), v(64 + k)))
            e('v_cndmask_b32 %s, %s, v40, vcc' % (v(60 + k), v(60 + k)))
    e('v_and_b32 v49, 3, v1')
    e('v_lshlrev_b32 v49, 6, v49')

def compute(e, stamp, opts):
    e.nvm = 0; e.nlg = 0
    ACC = 8; RING = 80; NR = 6; D = 4
    acc = lambda ct, rt: ACC + 8 * ct + 4 * rt
    if int(opts.get('mail', 1)):
        e('s_mov_b32 s39, s24')
        e('s_mul_i32 s40, s26, 144')
        e('s_waitcnt lgkmcnt(0)')
        t_ = Asm(); loader_tables(t_, 'ab' if int(opts.get('mail', 1)) == 2 else 'b')
        e('\n'.join(t_.L))
        mailbox(e, True, int(opts.get('mail', 1)))
    e('s_mov_b32 s36, 0x%08x' % LOG2E)
    e('s_mov_b32 s37, s36')
    e('s_mov_b32 s38, 0x%08x' % EPS)
    e('s_lshl_b32 s32, s24, 12')
    e('v_and_b32 v104, 7, v2')
    e('v_xor_b32 v105, v3, v104')
    e('v_lshlrev_b32 v106, 7, v2')
    e('v_add_u32 v106, s32, v106')
    e('v_lshl_add_u32 v4, v105, 4, v106')
    e('v_xor_b32 v105, 4, v105')
    e('v_lshl_add_u32 v5, v105, 4, v106')
    e('v_lshrrev_b32 v104, 2, v2')
    e('v_and_b32 v105, 3, v2')
    e('v_lshlrev_b32 v105, 3, v105')
    e('v_lshl_add_u32 v106, v3, 2, v104')
    e('v_mul_u32_u24 v106, 288, v106')
    e('v_add_u32 v106, v106, v105')
    e('v_add_u32 v6, %d, v106' % WOFF)
    e('v_lshlrev_b32 v104, 1, v104')
    e('v_lshl_add_u32 v104, v3, 3, v104')
    e('v_mul_u32_u24 v104, 144, v104')
    e('v_add_u32 v104, v104, v105')
    e('v_add_u32 v7, %d, v104' % WQ_LO)
    e('v_cmp_gt_u32 vcc, 8, v2')
    for k in range(4): e('v_mov_b32 %s, s38' % v(108 + k))
    for k in range(4): e('v_cndmask_b32 %s, 0, v108, vcc' % v(104 + k))
    e('v_cmp_gt_u32 s[40:41], 2, v3')
    e('v_cmp_gt_u32 s[42:43], 3, v3')
    e('s_waitcnt lgkmcnt(0)')
    e('s_mov_b64 s[10:11], s[52:53]')
    e('s_mov_b64 s[14:15], s[56:57]')
    stamp(0)
    e.section('cmain', bool(int(opts.get('cfirst', 1))))
    F = [(p, s_, ct) for p in range(8) for s_ in range(2) for ct in range(9)]
    F += [(8, s_, ct) for s_ in range(2) for ct in range(5)] + [(8, s_, ct) for s_ in range(2) for ct in range(5, 9)]
    tok = {}
    def items(f):
        p, s_, ct = F[f]
        it = []
        if ct == 0 and s_ == 0:
            pre = []
            if p:
                dl = SLOT if p % 4 else -3 * SLOT
                for r in (4, 5, 6): pre.append('v_add_u32 %s, %d, %s' % (v(r), dl, v(r)) if dl > 0 else 'v_subrev_u32 %s, %d, %s' % (v(r), -dl, v(r)))
            if p == 8: pre.append('s_waitcnt lgkmcnt(0)')
            pre.append('s_barrier')
            it.append(lambda: (e('\n'.join(pre)), stamp({0: 1, 4: 2, 8: 3}[p]) if p in (0, 4, 8) else None))
        if ct == 0:
            for rt in range(2): it.append(lambda rt=rt: e('ds_read_b128 %s, %s offset:%d' % (a(16 * p + 8 * s_ + 4 * rt, 4), v(4 + s_), 2048 * rt)))
        r = RING + 4 * (f % NR)
        for h in range(2): it.append(lambda h=h: e('ds_read_b64_tr_b16 %s, v6 offset:%d' % (v(r + 2 * h, 2), 9216 * s_ + 4608 * h + 32 * ct)))
        return it
    for f in range(D):
        for x in items(f): x()
        tok[f] = e.lg()
    def put(fi, r):
        if fi < 8: e('ds_write_b128 v4, %s offset:%d' % (v(r, 4), 1024 * fi))
        else: e('ds_write_b128 v5, %s offset:%d' % (v(r, 4), 1024 * (fi - 8)))
    def phi_tile(x, dst, t, plain):
        zz = [phi_pair(e, x[k], dst[k], t + 4 * k, plain=plain) for k in range(4)]
        return [z[k] for k in range(len(zz[0])) for z in zz]
    def handoff_setup():
        e('s_add_u32 s16, s14, %d' % OB)
        e('s_addc_u32 s17, s15, 0')
        e('s_mov_b32 s18, %d' % (HAND - OB))
        e('s_mov_b32 s19, 0x20000')
        e('s_lshl_b32 s32, s25, 3')
        e('s_lshl_b32 s33, s24, 1')
        e('s_add_u32 s32, s32, s33')
        e('s_mul_i32 s32, s32, %d' % (18 * 1024))
        e('v_lshl_add_u32 v105, v1, 4, s32')
        e('v_add_u32 v106, %d, v105' % (18 * 1024))
        e('s_lshl_b32 s20, s26, 11')
        e('s_lshr_b32 s33, s26, 2')
        e('s_lshl_b32 s33, s33, 10')
        e('s_and_b32 s34, s26, 3')
        e('s_lshl_b32 s34, s34, 8')
        e('s_add_u32 s33, s33, s34')
        e('s_add_u32 s33, s33, s32')
        e('s_add_u32 s33, s33, %d' % (16 * 1024 - 16))
        e('s_movk_i32 s21, %d' % (18 * 1024))
        for jj in range(1, 8):
            e('s_add_u32 %s, s20, %d' % (s(44 + jj), 2048 * jj))
            e('s_and_b32 %s, %s, 0x3fff' % (s(44 + jj), s(44 + jj)))
        e('v_lshlrev_b32 v104, 4, v2')
        e('v_lshl_add_u32 v104, v3, 3, v104')
        e('v_add_u32 v104, s33, v104')
    for f, (p, s_, ct) in enumerate(F):
        it = items(f + D) if f + D < len(F) else []
        if f == 18 - D: handoff_setup()
        e.wait_lg(tok[f])
        for rt in range(2):
            c = v(acc(ct, rt), 4) if f >= 9 else 'v[108:111]' if ct < 4 else 'v[104:107]' if ct == 4 else '0'
            e('v_mfma_f32_16x16x32_bf16 %s, %s, %s, %s' % (v(acc(ct, rt), 4), a(16 * p + 8 * s_ + 4 * rt, 4), v(RING + 4 * (f % NR), 4), c))
            h = (len(it) + 1) // 2
            for x in (it[:h] if rt == 0 else it[h:]): x()
        tok[f + D] = e.lg()
    stamp(4)
    e('s_lshl_b32 s32, s24, 13\ns_add_u32 s32, s32, %d\nv_lshl_add_u32 v4, v1, 4, s32' % SCR)
    e('s_lshl_b32 s32, s24, 12\nv_lshl_add_u32 v5, v1, 4, s32')
    for t in range(5):
        o = acc(t, 0) if t < 4 else 96
        for x in phi_tile([acc(t, 0) + 2 * k for k in range(4)], [o + k for k in range(4)], 80, False): x()
        put(t, o)
        o = acc(4 + t, 0) if t else 100
        for k in range(4): e('v_cvt_pk_bf16_f32 %s, %s, %s' % (v(o + k), v(acc(4 + t, 0) + 2 * k), v(acc(4 + t, 0) + 2 * k + 1)))
        put(5 + t, o)
    e('v_add_u32 v6, %d, v7' % (WQ_HI - WQ_LO))
    e('v_mov_b32 v5, %d' % LCNT)
    e('s_waitcnt lgkmcnt(0)')
    stamp(5)
    e('s_barrier')
    def gemm144(where, c0, G, ring, hook=None, xs=lambda ks, rt: a(8 * ks + 4 * rt, 4)):
        RG, NG, DG = ring
        tk = {}
        def iss(f, h):
            ks, ct = G[f]
            ad, off = where(ks)
            e('ds_read_b64_tr_b16 %s, %s offset:%d' % (v(RG + 4 * (f % NG) + 2 * h, 2), ad, off + 144 * h + 32 * ct))
            tk[f] = e.lg()
        for f in range(DG): iss(f, 0); iss(f, 1)
        for f, (ks, ct) in enumerate(G):
            if hook: hook(f, ks, ct, 0)
            e.wait_lg(tk[f])
            for rt in range(2):
                e('v_mfma_f32_16x16x32_bf16 %s, %s, %s, %s' % (v(acc(ct, rt), 4), v(RG + 4 * (f % NG), 4), xs(ks, rt), v(acc(ct, rt), 4) if ks else c0))
                if f + DG < len(G): iss(f + DG, rt)
                if hook: hook(f, ks, ct, 1 + rt)
    PQ = 48
    def phi_q(t, plain): return phi_tile([acc(t, k >> 1) + 2 * (k & 1) for k in range(4)], [PQ + 10 * (k >> 1) + 2 * t + (k & 1) for k in range(4)], 92 if plain else 68, plain)
    NQ = int(opts.get('nq', 5))
    rest = []
    def qhook(f, ks, ct, ph):
        if opts.get('qst') and ph == 0 and f in (1, 20, 45, 70): stamp({1: 0, 20: 2, 45: 13, 70: 15}[f])
        if f == 40 and ph == 1: e('ds_read_b32 v92, v5 offset:4')
        if f == 54 and ph == 0:
            e('s_mov_b32 s44, %d' % SPIN)
            e.label('L_b_wq')
            e('v_cmp_gt_u32 vcc, 4, v92')
            e('s_cbranch_vccz L_b_wqok')
            e('ds_read_b32 v92, v5 offset:4')
            e.nlg -= 1
            e('s_waitcnt lgkmcnt(0)')
            e('s_sub_u32 s44, s44, 1')
            e('s_cbranch_scc0 L_b_wq')
            e.label('L_b_wqok')
        if f == 18 * NQ + 1 and ph == 0:
            for t in range(NQ): rest.extend(phi_q(t, True))
        if ph and rest: rest.pop(0)()
    gemm144(lambda ks: ('v7', wq_base(ks) - WQ_LO) if ks < 15 else ('v6', wq_base(ks) - WQ_HI), 'v[108:111]',
            [(ks, ct) for ks in range(18) for ct in range(NQ)] + [(ks, ct) for ks in range(18) for ct in range(NQ, 5)], (60, 8, 5) if opts.get('qring') else (68, 6, 4), qhook)
    stamp(6)
    for x in rest: x()
    for t in range(NQ if NQ < 5 else 0, 5):
        for x in phi_q(t, False): x()
    DEN = 68
    e('v_lshlrev_b32 v4, 3, v1')
    e('v_add_u32 v4, %d, v4' % IMG)
    stamp(7)
    e('s_barrier')
    stamp(8)
    t0 = e.lg()
    for pl in list(range(13, 18)) + list(range(13)): e('ds_read_b64 %s, v4 offset:%d' % (a(2 * pl, 2), 512 * pl))
    def mm(d, pl, dt, n, rt, c):
        e('v_mfma_f32_16x16x%d_bf16 %s, %s, %s, %s' % (16 * n, v(d, 4), a(2 * pl, 2 * n), v(PQ + 10 * rt + 2 * dt, 2 * n), c))
    e.wait_lg(t0 + 5)
    for pl, dt, n in ((13, 0, 2), (15, 2, 2), (17, 4, 1)):
        for rt in range(2): mm(DEN + 4 * rt, pl, dt, n, rt, v(DEN + 4 * rt, 4) if dt else 'v[108:111]')
    OUT = PQ
    def scale(rt):
        i = DEN + 4 * rt; t = 76 + 4 * rt; o = OUT + 10 * rt
        pre = [lambda k=k: e('v_rcp_f32 %s, %s' % (v(i + k), v(i + k))) for k in range(4)]
        pre += [lambda: e('v_cndmask_b32 %s, %s, %s, s[42:43]' % (v(t), v(i + 1), v(i))),
                lambda: e('v_cndmask_b32 %s, %s, %s, s[40:41]' % (v(t + 1), v(i + 1), v(i))),
                lambda: e('v_cndmask_b32 %s, %s, %s, s[42:43]' % (v(t + 2), v(i + 2), v(i + 1))),
                lambda: e('v_cndmask_b32 %s, %s, %s, s[42:43]' % (v(t + 3), v(i + 3), v(i + 2)))]
        sc = {0: (i, i), 1: (t, t + 1), 2: (t + 2, t + 2), 3: (i + 2, t + 3), 4: (i + 3, i + 3)}
        st = []
        for u in (0, 4, 1, 2, 3):
            for k in range(2):
                f_ = sc[u][k]
                st.append(lambda u=u, k=k, f_=f_: e('v_pk_mul_f32 %s, %s, %s op_sel:[0,%d] op_sel_hi:[1,%d]' % (v(acc(u, rt) + 2 * k, 2), v(acc(u, rt) + 2 * k, 2), v(f_ & ~1, 2), f_ & 1, f_ & 1)))
        for u in (0, 4, 1, 2, 3):
            d = o + (2 * (u - 1) if u else 8)
            for k in range(2): st.append(lambda u=u, k=k, d=d: e('v_cvt_pk_bf16_f32 %s, %s, %s' % (v(d + k), v(acc(u, rt) + 2 * k), v(acc(u, rt) + 2 * k + 1))))
        for d in (o, o + 4, o + 8): st.append(lambda d=d: e('v_min_u32 %s, -2, %s' % (v(d), v(d))))
        st.append(lambda: e('buffer_store_dwordx4 %s, %s, s[16:19], s20 offen sc1' % (v(o, 4), v(105 + rt))))
        st.append(lambda: e('buffer_store_dwordx4 %s, %s, s[16:19], s20 offen offset:1024 sc1' % (v(o + 4, 4), v(105 + rt))))
        return pre, st
    (p0, s0), (p1, s1) = scale(0), scale(1)
    fill = p0 + p1
    e.wait_lg(t0 + 18)
    for rt in range(2):
        ops = [(u, 2 * u + first, first, 2, '0') for u, first in enumerate((0, 0, 1, 2, 3))]
        ops = [ops[1], ops[2], ops[3], ops[0], ops[4]] + [(u, 2 * u + first + 2, first + 2, 1, None) for u, first in ((1, 0), (2, 1), (3, 2))]
        for k, (u, pl, dt, n, c) in enumerate(ops):
            mm(acc(u, rt), pl, dt, n, rt, c or v(acc(u, rt), 4))
            if rt or k >= 2:
                for x in fill[:2]: x()
                fill = fill[2:]
    for x in fill + s0 + s1: x()
    e('s_mov_b32 exec_lo, 0')
    e('buffer_store_dwordx2 %s, v104, s[16:19], 0 offen sc1' % v(OUT + 8, 2))
    e('buffer_store_dwordx2 %s, v104, s[16:19], s21 offen sc1' % v(OUT + 18, 2))
    e('s_mov_b32 exec_lo, -1')
    stamp(9)
    e('v_subrev_u32 v7, %d, v7' % WQ_LO)
    e('v_add_u32 v6, %d, v7' % SCR)
    e('s_mov_b32 s39, 0')
    e('s_movk_i32 s23, %d' % (16 * 1024))
    e('s_barrier')
    e.label('L_b_gemm2')
    otok = {}
    AHEAD = int(opts.get('ahead', 4))
    osrc = lambda ks, rt: v(OUT + 10 * rt + 4 * ks, 4) if ks < 2 else a(8 * ks + 4 * rt, 4)
    def oload(j, rt):
        e('buffer_load_dwordx4 %s, %s, s[16:19], %s offen%s %s' % (osrc(j, rt), v(105 + rt), s(44 + (j >> 1)) if j < 16 else 's23', ' offset:1024' if j & 1 else '', opts.get('old', 'sc1').replace('_', ' ')))
        otok[j] = e.vm()
    pend = [(j, rt) for j in range(2, 18) for rt in range(2)]
    tail = []
    def put_out(ct):
        r = []
        for rt in range(2):
            d = 48 + 4 * ct + 2 * rt
            for k in range(2): r.append(lambda d=d, k=k, rt=rt: e('v_cvt_pk_bf16_f32 %s, %s, %s' % (v(d + k), v(acc(ct, rt) + 2 * k), v(acc(ct, rt) + 2 * k + 1))))
            r.append(lambda d=d, rt=rt: e('ds_write_b64 v4, %s offset:%d' % (v(d, 2), 2304 * rt + 32 * ct)))
        return r
    def hook(f, ks, ct, ph):
        if f == 10 and ph == 0:
            e('s_lshl_b32 s32, s25, 7')
            e('s_lshl_b32 s33, s24, 5')
            e('s_add_u32 s32, s32, s33')
            e('s_mul_i32 s32, s32, 2304')
            e('s_mul_i32 s33, s26, 144')
            e('s_add_u32 s32, s32, s33')
            e('s_add_u32 s32, s32, 1152')
            for j in range(5):
                e('v_add_u32 v48, %d, v1' % (64 * j))
                div_small(e, 49, 50, 48, 9, 51)
                e('v_mul_u32_u24 v49, 2304, v49')
                e('v_lshl_add_u32 v49, v50, 4, v49')
                e('v_add_u32 %s, s32, v49' % v(108 + j if j < 4 else 104))
            e('s_mul_i32 s33, s24, 4608')
            e('s_add_u32 s33, s33, %d' % STG)
            e('v_mul_u32_u24 v4, 144, v2')
            e('v_lshl_add_u32 v4, v3, 3, v4')
            e('v_add_u32 v4, s33, v4')
            e('v_lshl_add_u32 v5, v1, 4, s33')
            e('s_mov_b32 s44, %d' % SPIN)
            e('v_lshlrev_b32 v107, 8, v1')
            e('v_lshlrev_b32 v48, 4, v1')
            e('v_sub_u32 v107, v107, v48')
            e('v_add_u32 v107, v107, v106')
            for _ in range(int(opts.get('pdelay', 0))): e('s_nop 15')
            e('s_mov_b64 exec, 0xff')
            e.label('L_b_probe')
            e('buffer_load_dword v68, v107, s[16:19], s23 offen offset:248 sc1')
            e('s_sub_u32 s44, s44, 1')
            e('s_cbranch_scc1 L_b_probed')
            e('s_waitcnt vmcnt(0)')
            e('v_cmp_eq_u32 vcc, -1, v68')
            e('s_cbranch_vccnz L_b_probe')
            e.label('L_b_probed')
            e('s_mov_b64 exec, -1')
            if opts.get('count'): e('s_sub_u32 s92, s62, s44\ns_add_u32 s92, s92, %d' % SPIN)
            stamp(10)
            e.nvm = 0
            for _ in range(2 * AHEAD): oload(*pend.pop(0))
            stamp(11)
        if ct == 0 and ph == 0 and 2 <= ks: e.wait_vm(otok[ks])
        if opts.get('gst') and ct == 0 and ph == 0 and ks in (2, 6, 10, 14): stamp({2: 0, 6: 1, 10: 2, 14: 3}[ks])
        if ph == 1 and pend and f >= 10 and ct in ((0, 1, 2, 3) if f < 25 else (1, 3)): oload(*pend.pop(0))
        if ks == 17:
            if ph == 0 and 2 <= ct: tail.extend(put_out(ct - 2))
            if ph:
                for x in tail[:2]: x()
                del tail[:2]
    gemm144(lambda ks: ('v6', wo_base(ks) - SCR) if 6 <= ks < 13 else ('v7', wo_base(ks)), '0',
            [(ks, ct) for ks in range(18) for ct in range(5)], (72, 8, 5), hook, osrc)
    stamp(12)
    for x in tail + put_out(3): x()
    e('s_cmp_lg_u32 s39, 0')
    e('s_cbranch_scc1 L_b_store')
    e('v_cmp_u_f32 vcc, %s, %s' % (v(acc(0, 0)), v(acc(0, 1))))
    e('s_cbranch_vccnz L_b_strict')
    e.label('L_b_store')
    e('s_mov_b32 exec_hi, 0')
    for x in put_out(4): x()
    e('s_mov_b32 exec_hi, -1')
    t0 = e.lg()
    for j in range(5): e('ds_read_b128 %s, v5 offset:%d' % (v(8 + 4 * j, 4), 1024 * j))
    for j in range(5):
        e.wait_lg(t0 + j + 1)
        if j == 4: e('s_mov_b32 exec_hi, 0')
        e('global_store_dwordx4 %s, %s, s[10:11] %s' % (v(108 + j if j < 4 else 104), v(8 + 4 * j, 4), opts.get('ost', '')))
    e('s_mov_b32 exec_hi, -1')
    if not opts.get('qst'): stamp(13)
    e('s_endpgm')
    e.section('strict', False)
    e.label('L_b_strict')
    e('s_mov_b32 s39, 1')
    e('s_mov_b32 s44, %d' % SPIN)
    e.label('L_b_strict1')
    for ks in range(18):
        e('s_movk_i32 s22, %d' % (1024 * ks))
        for rt in range(2): e('buffer_load_dwordx4 %s, %s, s[16:19], s22 offen sc1' % (a(8 * ks + 4 * rt, 4), v(105 + rt)))
    for rt in range(2):
        for k in range(2): e('buffer_load_dwordx4 %s, %s, s[16:19], s20 offen offset:%d sc1' % (v(OUT + 10 * rt + 4 * k, 4), v(105 + rt), 1024 * k))
    e('s_waitcnt vmcnt(0)')
    e('s_sub_u32 s44, s44, 1')
    e('s_cbranch_scc1 L_b_gemm2')
    e('s_mov_b64 s[32:33], 0')
    for k in range(72):
        if (k & 1) == 0 or k >= 64:
            e('v_accvgpr_read_b32 v68, %s' % a(2 * k))
            e('v_cmp_eq_u32 vcc, -1, v68')
            e('s_or_b64 s[32:33], s[32:33], vcc')
    e('s_cmp_lg_u64 s[32:33], 0')
    e('s_cbranch_scc1 L_b_strict1')
    e('s_branch L_b_gemm2')

def loader(e, stamp, opts):
    e.nvm = 0; e.nlg = 0
    if int(opts.get('lp0', 2)): e('s_setprio %d' % int(opts.get('lp0', 2)))
    e('s_sub_u32 s39, s24, 4')
    e('v_lshrrev_b32 v4, 3, v1')
    e('v_and_b32 v5, 7, v1')
    e('v_xor_b32 v5, v5, v4')
    e('s_lshl_b32 s32, s25, 7')
    e('s_lshl_b32 s33, s39, 5')
    e('s_add_u32 s32, s32, s33')
    e('v_add_u32 v4, s32, v4')
    e('v_mul_u32_u24 v4, 1152, v4')
    e('v_lshl_add_u32 v8, v5, 4, v4')
    e('s_lshr_b32 s32, s39, 1')
    e('s_lshl_b32 s32, s32, 5')
    e('s_and_b32 s33, s39, 1')
    e('s_lshl_b32 s33, s33, 2')
    e('s_add_u32 s32, s32, s33')
    e('s_mul_i32 s40, s26, 144')
    e('s_mul_i32 s32, s32, 3456')
    e('s_add_u32 s32, s32, s40')
    e('s_add_u32 s32, s32, 1152')
    def woff(j):
        e('v_add_u32 v4, %d, v1' % (64 * j))
        div_small(e, 5, 6, 4, 18, 7)
        e('v_and_b32 v4, 12, v5')
        e('v_add_u32 v4, v4, v5')
        e('v_mul_u32_u24 v4, 3456, v4')
        e('v_cmp_lt_u32 vcc, 8, v6')
        e('v_lshl_add_u32 v4, v6, 4, v4')
        e('v_add_u32 v4, s32, v4')
        e('v_add_u32 v5, 1008, v4')
        e('v_cndmask_b32 %s, v4, v5, vcc' % v(9 + j))
    e('s_lshl_b32 s41, s39, 12')
    e('s_mul_i32 s42, s39, 4608')
    e('s_add_u32 s42, s42, %d' % WOFF)
    e('s_mov_b32 s43, s27')
    e('s_mov_b32 s22, %d\ns_mov_b32 s23, 0x20000' % (576 * 3456))
    e('s_mov_b32 s30, %d\ns_mov_b32 s31, 0x20000' % (576 * 1152))
    e('s_waitcnt lgkmcnt(0)')
    e('s_mov_b64 s[16:17], s[46:47]\ns_mov_b32 s18, %d\ns_mov_b32 s19, 0x20000' % (2048 * 1152))
    e('s_mov_b64 s[20:21], s[48:49]\ns_mov_b64 s[28:29], s[50:51]\ns_mov_b64 s[12:13], s[54:55]\ns_mov_b64 s[14:15], s[56:57]')

    mail = int(opts.get('mail', 1))
    main = e; sd = Asm()
    if mail < 2: loader_tables(sd, 'a' if mail else 'ab')
    sd('s_mul_i32 s58, s39, %d' % (32 * 3456))
    if mail:
        sd('s_lshl_b32 s47, s39, 10')
        sd('s_add_u32 s47, s47, %d' % CST)
        for k in range(2): sd('v_mov_b32 %s, 0' % v(40 + k))
    e = main
    side = list(sd.L); done = [0]
    def run_side(n=None, upto=None):
        stop = upto if upto is not None else min(len(side), done[0] + n)
        while done[0] < stop:
            e(side[done[0]]); done[0] += 1

    ctok = {}
    def chunk(p, per, mid=None):
        sl = SLOT * (p % 4)
        e('s_lshl_b32 s3, s43, 7')
        e('s_mul_i32 s35, s43, %d' % (64 * 3456))
        for j in range(4):
            e('s_add_u32 m0, s41, %d' % (sl + 1024 * j))
            if j: e('s_add_u32 s3, s3, 9216')
            e('buffer_load_dwordx4 v8, s[16:19], s3 offen lds')
            run_side(per)
        for j in range(5):
            if mid: mid(j)
            e('s_add_u32 m0, s42, %d' % (sl + 1024 * j))
            if j == 4: e('s_mov_b32 exec_hi, 0')
            e('buffer_load_dwordx4 %s, s[20:23], s35 offen lds' % v(9 + j))
            if j < 4: run_side(per)
        e('s_mov_b32 exec_hi, -1')
        e('s_add_u32 s43, s43, 1')
        e('s_cmp_eq_u32 s43, 9')
        e('s_cselect_b32 s43, 0, s43')
        ctok[p] = e.vm()
    stamp(1)
    chunk(0, 0, woff)
    early = int(opts.get('early', 170))
    if early:
        e.section('loader')
        run_side(early)
    chunk(1, 0)
    stamp(0)
    if not early: e.section('loader')
    def tile144(srd, vregs, soff):
        for j in range(5):
            e('s_add_u32 m0, s34, %d' % (1024 * j))
            if j == 4: e('s_mov_b32 exec_hi, 0')
            e('buffer_load_dwordx4 %s, %s, %s offen lds' % (v(vregs + j), srd, soff))
        e('s_mov_b32 exec_hi, -1')
    def wq_group(lo, n):
        for rnd in range((n + 3) // 4):
            b0 = lo + 4 * rnd
            if int(opts.get('rot', 0)) == 0 and b0 + 3 < 15:
                e('s_add_u32 s32, s58, %d' % (b0 * 32 * 3456))
                e('s_add_u32 s34, s42, %d' % (WQ_LO + 4608 * b0 - WOFF))
                tile144('s[20:23]', 24, 's32')
                continue
            e('s_add_u32 s35, s39, %d' % (lo + 4 * rnd))
            if 4 * rnd + 4 > n: e('s_min_u32 s35, s35, %d' % (lo + n - 1))
            e('s_lshr_b32 s32, s35, 1')
            e('s_add_u32 s32, s32, s27')
            e('s_sub_u32 s33, s32, 9')
            e('s_cmp_ge_u32 s32, 9')
            e('s_cselect_b32 s32, s33, s32')
            e('s_lshl_b32 s32, s32, 1')
            e('s_and_b32 s33, s35, 1')
            e('s_add_u32 s32, s32, s33')
            e('s_mul_i32 s32, s32, %d' % (32 * 3456))
            e('s_mul_i32 s34, s35, 4608')
            if lo + 4 * rnd + 3 >= 15:
                e('s_add_u32 s33, s34, %d' % (WQ_HI - WQ_LO - 15 * 4608))
                e('s_cmp_ge_u32 s35, 15')
                e('s_cselect_b32 s34, s33, s34')
            e('s_add_u32 s34, s34, %d' % WQ_LO)
            tile144('s[20:23]', 24, 's32')
    wqlate = int(opts.get('wqlate', 0))
    for p in range(9):
        if opts.get('st4') and p == int(opts['st4']): stamp(7)
        e.wait_vm(ctok[p])
        if opts.get('st4') and p == int(opts['st4']): stamp(8)
        e('s_barrier')
        if p in (1, 2, 3, 5, 6): stamp({1: 11, 2: 12, 3: 13, 5: 14, 6: 15}[p])
        if opts.get('st4') and p in (4, 7): stamp({4: 0, 7: 1}[p])
        if p == 0:
            stamp(2)
        if 't' in opts.get('horder', '') and p == int(opts.get('trig', 2)):
            e('s_or_b32 s3, s39, s2')
            e('s_cmp_ge_u32 s3, 8')
            e('s_cbranch_scc1 L_b_notrig')
            e('s_cmp_lg_u32 s39, 0')
            e('s_cbranch_scc1 L_b_notrig')
            e('s_lshl_b32 s3, s2, 2')
            e('v_mov_b32 v20, s3')
            e('v_mov_b32 v21, 1')
            e('s_mov_b64 exec, 1')
            e('global_store_dword v20, v21, s[12:13] offset:16 sc1')
            e('s_mov_b64 exec, -1')
            e.nvm -= 1
            e.label('L_b_notrig')
        if p == 0 and mail:
            mailbox(e, False, mail)
            e('s_waitcnt lgkmcnt(0)')
        if p <= 6: chunk(p + 2, int(opts.get('per', 3)))
        if p == 6: run_side(upto=len(side))
        if p == 3 and opts.get('wtouch'):
            e('s_mov_b64 exec, 3')
            e('v_mul_u32_u24 v4, %d, v1' % HAND)
            e('global_load_dword v6, v4, s[14:15]')
            e('s_mov_b64 exec, -1')
        if p == 7: wq_group(0, 4)
        if p == 8:
            if opts.get('low8'): e('s_setprio 0')
            wq_group(4, 8)
            e('s_cmp_lg_u32 s39, 0')
            e('s_cbranch_scc1 L_b_nocnt')
            e('s_mov_b64 exec, 15')
            e('global_load_dword v20, v49, s[12:13] sc1')
            e('s_mov_b64 exec, -1')
            e.label('L_b_nocnt')
            t_wq = e.vm()
            if not wqlate: wq_group(12, 6)
    stamp(3)
    e.wait_vm(t_wq)
    e('s_cmp_lg_u32 s39, 0')
    e('s_cbranch_scc1 L_b_cntdone')
    e('s_mov_b64 exec, 15')
    e('v_cmp_gt_u32 vcc, 12, v20')
    e('s_cbranch_vccz L_b_cntdone')
    e('s_mov_b32 s44, %d' % SPIN)
    e.label('L_b_cnt')
    e('global_load_dword v20, v49, s[12:13] sc1')
    e('s_sub_u32 s44, s44, 1')
    e('s_cbranch_scc1 L_b_cntdone')
    e('s_waitcnt vmcnt(0)')
    e('v_cmp_gt_u32 vcc, 12, v20')
    e('s_cbranch_vccnz L_b_cnt')
    e.label('L_b_cntdone')
    e('s_mov_b64 exec, -1')
    e('s_waitcnt lgkmcnt(0)')
    stamp(4)
    e('s_barrier')
    stamp(5)
    lp = opts.get('lpos', 'a')
    if lp == 'a': e('s_setprio %d' % int(opts.get('lprio', 2)))
    if lp == 'c': e('s_nop 15')
    tk = []
    for w in range(4):
        for k in range(4):
            e('ds_read_b128 %s, %s' % (a(16 * w + 4 * k, 4), v(64 + k)))
            if w < 3: e('v_add_u32 %s, %s, %s' % (v(64 + k), v(60 + k), v(64 + k)))
        tk.append(e.lg())
    if lp != 'a': e('s_setprio %d' % int(opts.get('lprio', 2)))
    e('v_mov_b32 v4, s47')
    e('v_mov_b32 v5, 1')
    e('ds_write_b64 v4, v[40:41] offset:760')
    if wqlate: wq_group(12, 6)
    DD = 68
    for w in range(4):
        e.wait_lg(tk[w])
        if w == 3:
            e('s_mov_b64 exec, 1')
            e('ds_add_u32 v55, v5')
            e('s_mov_b64 exec, -1')
        for i in range(2):
            for j in range(2):
                d = DD + 8 * i + 4 * j
                e('v_mfma_f32_16x16x32_bf16 %s, %s, %s, %s' % (v(d, 4), a(16 * w + 4 * i, 4), a(16 * w + 8 + 4 * j, 4), v(d, 4) if w else '0'))
    e('v_lshl_add_u32 v4, v1, 4, s47')
    e('v_add_u32 v16, 4096, v15')
    e('v_add_u32 v17, 8192, v15')
    for i in range(2):
        for j in range(2):
            d = DD + 8 * i + 4 * j
            o = 92 + 2 * (2 * i + j)
            for k in range(2): e('v_cvt_pk_bf16_f32 %s, %s, %s' % (v(o + k), v(d + 2 * k), v(d + 2 * k + 1)))
            e('ds_write_b64 %s, %s' % (v(45 + 2 * i + j), v(o, 2)))
    e('ds_read_b128 v[68:71], v4')
    flag = 's_mov_b64 exec, 1\nds_add_u32 v55, v5 offset:4\ns_mov_b64 exec, -1'
    if not wqlate: e('s_waitcnt vmcnt(0)\n' + flag + '\ns_waitcnt lgkmcnt(1)')
    else: e('s_waitcnt lgkmcnt(0)')
    e('v_min_u32 v68, -2, v68')
    e('s_mov_b32 exec_hi, 0xffff')
    e('global_store_dwordx4 v14, v[68:71], s[14:15] sc1')
    e('s_mov_b32 exec_hi, -1')
    if wqlate: e('s_waitcnt vmcnt(1)\n' + flag)
    if opts.get('lowmid'): e('s_setprio 0')
    stamp(6)
    def wo_block(first, last):
        e('s_add_u32 s35, s39, %d' % first)
        if first + 3 > last: e('s_min_u32 s35, s35, %d' % last)
        e('s_lshr_b32 s32, s35, 1')
        e('s_add_u32 s32, s32, s26')
        e('s_and_b32 s32, s32, 7')
        e('s_mul_i32 s32, s32, 72')
        e('s_and_b32 s33, s35, 1')
        e('s_lshl_b32 s33, s33, 5')
        e('s_add_u32 s32, s32, s33')
        e('s_add_u32 s32, s32, 8')
        e('s_mul_i32 s32, s32, 1152')
        e('s_mul_i32 s34, s35, 4608')
        if last < 13:
            e('s_add_u32 s33, s34, %d' % (SCR - 6 * 4608))
            e('s_cmp_ge_u32 s35, 6')
            e('s_cselect_b32 s34, s33, s34')
        else:
            e('s_add_u32 s34, s34, %d' % (WQ_LO - 13 * 4608))
        tile144('s[28:31]', 29, 's32')
    e('s_mov_b32 s44, %d' % SPIN)
    e.label('L_b_lcnt')
    e('ds_read_b32 v4, v55')
    e('s_sub_u32 s44, s44, 1')
    e('s_cbranch_scc1 L_b_lcntdone')
    e('s_waitcnt lgkmcnt(0)')
    e('v_cmp_gt_u32 vcc, 4, v4')
    e('s_cbranch_vccnz L_b_lcnt')
    e.label('L_b_lcntdone')
    e('s_waitcnt lgkmcnt(0)')
    nearly = int(opts.get('woearly', 3))
    for k in range(nearly): wo_block(4 * k, 12)
    e('v_lshlrev_b32 v4, 8, v2')
    e('v_lshlrev_b32 v6, 4, v1')
    e('v_sub_u32 v5, v17, v6')
    e('v_add_u32 v4, v4, v5')
    e('s_mov_b32 s44, %d' % SPIN)
    if not opts.get('st4'): stamp(7)
    e('s_cmp_lg_u32 s39, 0')
    e('s_cbranch_scc1 L_b_gather')
    e('s_mov_b64 exec, 15')
    e('global_load_dword v50, v49, s[12:13] offset:4 sc1')
    e('s_mov_b64 exec, -1')
    e.label('L_b_gather')
    X = 64
    for b in range(3):
        for i in range(4): e('global_load_dwordx4 %s, %s, s[14:15] offset:%d sc1' % (v(X + 16 * b + 4 * i, 4), v(15 + b), 1024 * i))
    nanchk = int(opts.get('nanchk', 0))
    def markers():
        e('s_mov_b64 s[32:33], 0')
        for k in range(12):
            if k % 4 == 0 and not nanchk: e('s_waitcnt vmcnt(%d)' % (8 - k))
            e('v_cmp_eq_u32 vcc, -1, %s' % v(X + 4 * k))
            e('s_or_b64 s[32:33], s[32:33], vcc')
        e('s_cmp_eq_u64 s[32:33], 0')
        e('s_cbranch_scc1 L_b_gathered')
        e('s_mov_b64 exec, 0xffff')
        e.label('L_b_kvprobe')
        e('global_load_dword v5, v4, s[14:15] sc1')
        e('s_sub_u32 s44, s44, 1')
        e('s_cbranch_scc1 L_b_gathered')
        e('s_waitcnt vmcnt(0)')
        e('v_cmp_eq_u32 vcc, -1, v5')
        e('s_cbranch_vccnz L_b_kvprobe')
        e('s_mov_b64 exec, -1')
        e('s_branch L_b_gather')
    def sums():
        for b in range(3):
            if nanchk: e('s_waitcnt vmcnt(%d)' % (8 - 4 * b))
            for i in range(4):
                e('v_mfma_f32_16x16x32_bf16 %s, v[56:59], %s, %s' % (v(SUM[b], 4), v(X + 16 * b + 4 * i, 4), v(SUM[b], 4) if i else '0'))
    SUM = (8, 24, 44); PK = (20, 22, 12)
    if nanchk:
        sums()
        e('v_cmp_u_f32 vcc, v8, v24')
        e('v_cmp_u_f32 s[32:33], v44, v44')
        e('s_or_b64 vcc, vcc, s[32:33]')
        e('s_cbranch_vccnz L_b_markers')
        e.label('L_b_gathered')
        e('s_mov_b64 exec, -1')
        keep = e.L; e.section('strict', False); e.label('L_b_markers'); markers(); e.L = keep
        if not opts.get('st4'): stamp(8)
    else:
        markers()
        e.label('L_b_gathered')
        e('s_mov_b64 exec, -1')
        if not opts.get('st4'): stamp(8)
        sums()
    for b in range(3):
        for k in range(2): e('v_cvt_pk_bf16_f32 %s, %s, %s' % (v(PK[b] + k), v(SUM[b] + 2 * k), v(SUM[b] + 2 * k + 1)))
        e('ds_write_b64 %s, %s' % (v(51 + b), v(PK[b], 2)))
    for k in range(1, 4): e('ds_write_b64 v54, v[12:13] offset:%d' % (32 * k))
    e('s_cmp_lg_u32 s39, 0')
    e('s_cbranch_scc1 L_b_cnt2done')
    e('s_mov_b64 exec, 15')
    e('s_mov_b32 s44, %d' % SPIN)
    e.label('L_b_cnt2')
    e('v_cmp_gt_u32 vcc, 12, v50')
    e('s_cbranch_vccz L_b_cnt2done')
    e('global_load_dword v50, v49, s[12:13] offset:4 sc1')
    e('s_waitcnt vmcnt(0)')
    e('s_sub_u32 s44, s44, 1')
    e('s_cbranch_scc0 L_b_cnt2')
    e.label('L_b_cnt2done')
    e('s_mov_b64 exec, -1')
    if opts.get('lowend'): e('s_setprio 0')
    e('s_waitcnt lgkmcnt(0)')
    stamp(9)
    e('s_barrier')
    for k in range(nearly, 3): wo_block(4 * k, 12)
    e('s_cmp_lg_u32 s39, 0')
    e('s_cbranch_scc1 L_b_wo13')
    wo_block(12, 12)
    e('s_branch L_b_wo16')
    e.label('L_b_wo13')
    wo_block(12, 15)
    e.label('L_b_wo16')
    e('s_cmp_ge_u32 s39, 2')
    e('s_cbranch_scc1 L_b_wodone')
    e('s_mul_i32 s32, s39, %d' % (288 * 1152))
    e('s_mul_i32 s34, s39, 4608')
    e('s_add_u32 s34, s34, %d' % (WQ_LO + 3 * 4608))
    tile144('s[28:31]', 34, 's32')
    e.label('L_b_wodone')
    e('s_waitcnt vmcnt(0)')
    stamp(10)
    e('s_barrier')
    if opts.get('otouch'):
        e('s_lshl_b32 s32, s25, 7')
        e('s_lshl_b32 s33, s39, 5')
        e('s_add_u32 s32, s32, s33')
        e('s_mul_i32 s32, s32, 2304')
        e('s_add_u32 s32, s32, s40')
        e('s_add_u32 s32, s32, 1152')
        e('v_lshrrev_b32 v4, 1, v1')
        e('v_mul_u32_u24 v4, 2304, v4')
        e('v_and_b32 v5, 1, v1')
        e('v_mul_u32_u24 v5, 140, v5')
        e('v_add3_u32 v4, v4, v5, s32')
        if opts['otouch'] == '1': e('s_mov_b64 exec, 1')
        e('global_load_dword v5, v4, s[52:53]')
        e('s_mov_b64 exec, -1')
    e('s_endpgm')


def role_h(e, opts, stamp=None):
    stamp = stamp or (lambda i: None)
    e.label('L_roleH')
    e('s_getpc_b64 s[32:33]')
    e.label('L_h_pc')
    e('s_sub_u32 s32, s32, L_h_pc-KERNEL_START')
    e('s_subb_u32 s33, s33, 0')
    if int(opts.get('pfq', 0)):
        e('s_and_b32 s26, s24, 3')
        e('s_lshl_b32 s26, s26, 7')
        e('v_lshl_add_u32 v1, v0, 9, s26')
    else:
        e('v_lshlrev_b32 v1, 7, v0')
    e('v_cmp_gt_u32 vcc, KERNEL_END-KERNEL_START, v1')
    e('s_and_saveexec_b64 s[34:35], vcc')
    e('s_cbranch_execz L_h_nocode')
    if int(opts.get('pfcode', 1)): e('global_load_dword v2, v1, s[32:33]')
    e.label('L_h_nocode')
    e('s_mov_b64 exec, s[34:35]')
    e('s_mov_b32 s41, s24')
    e('s_mov_b32 s42, s25')
    e('s_sub_u32 s26, s2, 224')
    e('s_sub_u32 s27, s24, 8')
    e('s_mul_i32 s27, s27, 6')
    e('s_add_u32 s27, s27, s25')
    e('s_add_u32 s27, s27, 30')
    e('s_cmp_ge_u32 s24, 12')
    e('s_cselect_b32 s26, s26, s27')
    e('s_lshl_b32 s27, s26, 13')
    if KVP: e('s_add_u32 s27, s27, %d' % KVP)
    e('v_lshl_add_u32 v3, v0, 4, s27')
    e('s_mul_i32 s27, s26, 49152')
    e('s_add_u32 s27, s27, %d' % OB)
    e('v_lshl_add_u32 v4, v0, 4, s27')
    e('s_and_b32 s27, s26, 3')
    e('s_lshl_b32 s27, s27, 6')
    e('v_mov_b32 v30, s27')
    e('v_mov_b32 v31, 1')
    def announce(off, tag):
        e('s_waitcnt vmcnt(0)')
        e('s_barrier')
        e('s_cmp_ge_u32 s26, 48')
        e('s_cbranch_scc1 L_h_no%s' % tag)
        e('v_cmp_eq_u32 vcc, 0, v0')
        e('s_and_saveexec_b64 s[34:35], vcc')
        e('s_cbranch_execz L_h_re%s' % tag)
        e('global_atomic_add v30, v31, s[54:55] offset:%d sc1' % off)
        e.label('L_h_re%s' % tag)
        e('s_mov_b64 exec, s[34:35]')
        e.label('L_h_no%s' % tag)
    for k in range(4): e('v_mov_b32 %s, -1' % v(8 + k))
    e('s_and_b32 s24, s24, 3')
    e('s_mul_i32 s24, s24, 144')
    e('s_and_b32 s25, s25, 1')
    e('s_lshl_b32 s25, s25, 9')
    for k in range(2):
        e('v_add_u32 v16, %d, v0' % (512 * k))
        e('v_min_u32 v16, 719, v16')
        div_small(e, 5, 6, 16, 5, 7)
        e('v_add_u32 v5, s24, v5')
        e('v_lshl_add_u32 v6, v6, 7, s25')
        e('v_mul_u32_u24 v7, 3456, v5')
        e('v_mul_u32_u24 v5, 1152, v5')
        e('v_add_u32 %s, v7, v6' % v(14 + k))
        e('v_add_u32 %s, v5, v6' % v(12 + k))
    order = opts.get('horder', 'fwGqkKowc')
    e('s_waitcnt lgkmcnt(0)')
    for n_, ch in enumerate(order):
        stamp(n_)
        if ch == 'w': e('s_waitcnt vmcnt(0)')
        if ch == 'f': first_touch(e, 's41', 's42', 24, 20)
        if ch == 'u': touch_round(e, 's41', 's42', 24, 20, int(opts.get('u0', 1)), 'h0')
        if ch == 'U': touch_round(e, 's41', 's42', 24, 21, int(opts.get('u0', 1)) + 16, 'h1')
        if ch == 'Q': touch_cols(e, 's41', 's42', 24, 22, 's[48:49]', 3456)
        if ch == 'O': touch_cols(e, 's41', 's42', 24, 23, 's[50:51]', 1152)
        if ch == 'G': first_touch(e, 's41', 's42', 24, 21, 5)
        if ch == 'g':
            e('s_and_b32 s39, s41, 3')
            e('s_add_u32 s39, s39, 5')
            for k in range(3): touch_tiles(e, 0, 's39', 384 * k, 384, 's42', 24, 21 + k)
        if ch == 's':
            e('s_mov_b32 s28, %d' % int(opts.get('hspin', 100)))
            e.label('L_h_spin')
            e('s_sleep 1')
            e('s_sub_u32 s28, s28, 1')
            e('s_cbranch_scc0 L_h_spin')
        if ch == 't':
            e('s_and_b32 s27, s2, 7')
            e('s_lshl_b32 s27, s27, 2')
            e('v_mov_b32 v5, s27')
            e('s_mov_b32 s28, %d' % SPIN)
            e('v_readfirstlane_b32 s29, v0')
            e('s_cmp_lg_u32 s29, 0')
            e('s_cbranch_scc1 L_h_trigd')
            e('s_mov_b64 exec, 1')
            e.label('L_h_trig')
            e('global_load_dword v6, v5, s[54:55] offset:16 sc1')
            e('s_sub_u32 s28, s28, 1')
            e('s_cbranch_scc1 L_h_trigd')
            e('s_waitcnt vmcnt(0)')
            e('v_cmp_eq_u32 vcc, 0, v6')
            e('s_cbranch_vccnz L_h_trig')
            e.label('L_h_trigd')
            e('s_mov_b64 exec, -1')
            e('s_barrier')
        if ch == 'q':
            if int(opts.get('nodup', 1)): e('s_cmp_lt_u32 s41, 12\ns_cbranch_scc1 L_h_noq')
            for k in range(2): e('global_load_dword %s, %s, s[48:49]' % (v(16 + k), v(14 + k)))
            e.label('L_h_noq')
        if ch == 'o':
            if int(opts.get('nodup', 1)): e('s_cmp_lt_u32 s41, 12\ns_cbranch_scc1 L_h_noo')
            for k in range(2): e('global_load_dword %s, %s, s[50:51]' % (v(18 + k), v(12 + k)))
            e.label('L_h_noo')
        if ch == 'k':
            e('s_cmp_ge_u32 s26, 48')
            e('s_cbranch_scc1 L_h_nok')
            e('global_store_dwordx4 v3, v[8:11], s[56:57] sc1')
            e.label('L_h_nok')
        if ch == 'K': announce(0, 'K')
        if ch == 'c':
            e('s_cmp_ge_u32 s26, 48')
            e('s_cbranch_scc1 L_h_noc')
            for k in range(6):
                e('global_store_dwordx4 v4, v[8:11], s[56:57] sc1')
                if k < 5: e('v_add_u32 v4, 8192, v4')
            e.label('L_h_noc')
            stamp(8)
            announce(4, 'C')
            stamp(9)
    assert 'k' in order and 'K' in order and 'c' in order
    if 'q' not in order.lower():
        for k in range(2): e('global_load_dword %s, %s, s[48:49]' % (v(16 + k), v(14 + k)))
    if int(opts.get('nodup', 1)): e('s_cmp_lt_u32 s41, 12\ns_cbranch_scc1 L_exit')
    if 'o' not in order.lower() and not opts.get('noo'):
        for k in range(2): e('global_load_dword %s, %s, s[50:51]' % (v(18 + k), v(12 + k)))
    if opts.get('hst'):
        e('v_lshrrev_b32 v2, 6, v0\nv_readfirstlane_b32 s24, v2\ns_branch L_dump')
    e('s_endpgm')
```

```python
from asmlib import *
import math, struct

def f2u(x): return struct.unpack('<I', struct.pack('<f', x))[0]
LOG2E = f2u(math.log2(math.e)); INV2PI = f2u(1.0 / (2 * math.pi))

A_WORK = 64; A_WS = 8960
A_CMP = A_WORK + 8 * A_WS
CMPS = 3584
A_UT = A_CMP + 8 * CMPS
A_Y1 = A_UT + 8 * 4608
A_END = A_Y1 + 8 * 3072
assert A_END <= 163840
ROWB = 272
CS = 2240

def cmul(e, dst, x, y, t):
    return [lambda: e('v_pk_mul_f32 %s, %s, %s op_sel_hi:[1,0]' % (v(t, 2), v(x, 2), v(y, 2))),
            lambda: e('v_pk_fma_f32 %s, %s, %s, %s op_sel:[1,1,0] op_sel_hi:[0,1,1] neg_lo:[0,1,0]' % (v(dst, 2), v(x, 2), v(y, 2), v(t, 2)))]

def interleave(*streams):
    streams = [list(x) for x in streams]
    while any(streams):
        for st in streams:
            if st: st.pop(0)()

def role_a(e, stamp=None, opts=None):
    opts = opts or {}
    late = int(opts.get('ulate', 1))
    stamp = stamp or (lambda i: None)
    e.label('L_roleA')
    e('s_cmp_ge_u32 s2, 256')
    e('s_cbranch_scc1 L_exit')
    e('s_sub_u32 s24, s2, 128')
    e('s_and_b32 s25, s24, 7')
    e('s_lshr_b32 s24, s24, 3')
    e('s_lshr_b32 s27, s24, 2')
    e('s_lshl_b32 s27, s27, 3')
    e('s_add_u32 s27, s27, s25')
    e('s_cmp_ge_u32 s27, 18')
    e('s_cbranch_scc1 L_roleH')
    e('s_mov_b32 s41, s24')
    e('s_mov_b32 s42, s25')
    e('s_and_b32 s26, s24, 3')
    e('s_lshl_b32 s27, s25, 2')
    e('s_add_u32 s27, s27, 56')
    e('s_lshl_b32 s25, s25, 3')
    e('s_cmp_lt_u32 s24, 8')
    e('s_cselect_b32 s25, s25, s27')
    e('s_add_u32 s25, s25, s24')
    e('v_lshrrev_b32 v10, 6, v0')
    e('v_and_b32 v1, 63, v0')
    e('v_readfirstlane_b32 s24, v10')
    e('s_mov_b32 s30, 0x05040100')
    e('s_mov_b32 s31, 0x07060302')
    e('s_lshl_b32 s28, s25, 3')
    e('s_add_u32 s28, s28, s24')
    e('s_lshl_b32 s29, s28, 8')
    e('v_lshl_add_u32 v10, v1, 2, s29')
    e('s_lshl_b32 s29, s28, 1')
    e('v_mov_b32 v11, s29')
    uold = 0
    e('v_lshlrev_b32 v12, %d, v0' % (3 if uold else 2))
    e('v_mul_u32_u24 v13, 1152, v12')
    e('s_lshl_b32 s29, s25, 4')
    e('v_add_u32 v13, s29, v13')
    e('v_mul_u32_u24 v14, 4608, v0')
    e('v_add_u32 v14, s29, v14')
    e('s_mul_i32 s27, s24, %d' % A_WS)
    e('s_add_u32 s27, s27, %d' % A_WORK)
    e('s_mov_b32 m0, s27')
    e('s_waitcnt lgkmcnt(0)')
    e('global_load_ushort v8, v11, s[18:19]')
    for k in range(6):
        e('global_load_dword %s, v10, %s' % (v(2 + k), s(6 + 2 * k, 2)))
    e('global_load_ushort v9, v11, s[44:45]')
    t_par = e.vm()
    import gen_b
    if int(opts.get('atouch', 5)) in (1, 2, 4, 5):
        if opts.get('unit'): gen_b.touch_round(e, 's41', 's42', 36, 10, int(opts.get('u0', 1)), 'a0')
        else: gen_b.first_touch(e, 's41', 's42', 36, 10)
        if int(opts.get('atouch', 5)) == 5: gen_b.first_touch(e, 's41', 's42', 36, 11, 5)
    def uload1(slots, tag, second=False):
        for sub in range(4):
            if sub < 3:
                e('s_cmp_lg_u32 s26, %d' % sub)
                e('s_cbranch_scc1 L_a_u%s_%d' % (tag, sub + 1))
            for slot in slots:
                i = (slot + sub) & 3
                e('global_load_dwordx4 %s, v13, s[4:5] offset:%d' % (a(96 + 4 * i, 4) if second else v(16 + 4 * i, 4), 1152 * i))
            if sub < 3:
                e('s_branch L_a_udone%s' % tag)
                e.label('L_a_u%s_%d' % (tag, sub + 1))
    sched = opts.get('sched', 'A')
    pn = [0]
    def yprio(p):
        pn[0] += 1
        e('s_cmp_lt_u32 s24, 4')
        e('s_cbranch_scc1 L_a_pr%d' % pn[0])
        e('s_setprio %d' % p)
        e.label('L_a_pr%d' % pn[0])
    usplit = int(opts.get('usplit', 0))
    def uload(slot):
        if usplit:
            e('s_cmp_lt_u32 s24, 4')
            e('s_cbranch_scc1 L_a_uold%d' % slot)
            if slot == 1:
                e('s_cmp_lg_u32 s32, 2')
                e('s_cbranch_scc1 L_a_udone%d' % slot)
                uload1((1, 3), '%dy' % slot)
                e.label('L_a_udone%dy' % slot)
            e('s_branch L_a_udone%d' % slot)
            e.label('L_a_uold%d' % slot)
        if uold:
            e('s_cmp_ge_u32 s24, 4')
            e('s_cbranch_scc1 L_a_udone%d' % slot)
        uload1((slot,), '%d' % slot)
        e.label('L_a_udone%d' % slot)
    stamp(0)
    if sched in ('A', 'D', 'E'): yprio(1)
    e.section('amain')
    e('s_mul_i32 s33, s24, 4608')
    e('s_add_u32 s33, s33, %d' % A_UT)
    e('v_lshl_add_u32 v38, v1, 3, s33')
    e('v_mov_b32 v36, 0')
    e('v_mov_b32 v37, 0')
    e('ds_write_b64 v38, v[36:37]')
    e('v_and_b32 v36, 31, v1')
    e('v_lshrrev_b32 v37, 5, v1')
    e('v_mul_u32_u24 v86, %d, v36' % ROWB)
    e('v_lshl_add_u32 v86, v37, 4, v86')
    e('v_add_u32 v86, s27, v86')
    for i in range(16): e('v_mov_b32 %s, 0' % v(96 + i))
    e('v_and_b32 v36, 15, v1')
    e('v_lshrrev_b32 v37, 4, v1')
    e('v_lshlrev_b32 v37, 3, v37')
    e('s_movk_i32 s36, 0x3f80')
    for m, (bits, ar) in enumerate(((0x1ff0, 136), (0xfe0, 140))):
        e('v_mov_b32 v38, 0x%x' % bits)
        e('v_lshlrev_b32 v38, v36, v38')
        e('v_lshrrev_b32 v38, v37, v38')
        for k in range(4):
            e('v_bfe_u32 v39, v38, %d, 1' % (2 * k))
            e('v_bfe_u32 v40, v38, %d, 1' % (2 * k + 1))
            e('v_lshl_or_b32 v39, v40, 16, v39')
            e('v_mul_u32_u24 v39, s36, v39')
            e('v_accvgpr_write_b32 %s, v39' % a(ar + k))
    e('s_mul_i32 s34, s24, %d' % CMPS)
    e('s_add_u32 s34, s34, %d' % A_CMP)
    e('v_and_b32 v36, 31, v1')
    e('v_lshrrev_b32 v37, 5, v1')
    e('v_cmp_eq_u32 vcc, 0, v37')
    e('v_lshlrev_b32 v38, 5, v36')
    e('v_lshl_add_u32 v38, v37, 4, v38')
    e('v_add_u32 v87, s34, v38')
    e('v_lshlrev_b32 v39, 4, v36')
    e('v_add_u32 v39, 1024, v39')
    e('v_lshlrev_b32 v40, 3, v36')
    e('v_add_u32 v40, 1536, v40')
    e('v_cndmask_b32 v41, v40, v39, vcc')
    e('v_add_u32 v39, 8, v39')
    e('v_add_u32 v40, 256, v40')
    e('v_cndmask_b32 v42, v40, v39, vcc')
    e('v_add_u32 v88, s34, v41')
    e('v_add_u32 v89, s34, v42')
    e('v_lshlrev_b32 v43, 9, v37')
    e('v_lshl_add_u32 v43, v36, 2, v43')
    e('s_add_u32 s35, s34, 2048')
    e('v_add_u32 v90, s35, v43')
    e('v_lshl_add_u32 v91, v1, 3, s34')
    e('v_lshl_add_u32 v92, v1, 4, s34')
    e('v_cmp_eq_u32 vcc, 0, v1')
    e('v_cndmask_b32 v46, 0, -4, vcc')
    e('v_add_u32 v93, v46, v91')
    e('v_subrev_u32 v47, 16, v92')
    e('v_cndmask_b32 v94, v47, v92, vcc')
    e('v_lshlrev_b32 v49, 4, v1')
    e('v_sub_u32 v49, s27, v49')
    e('v_lshlrev_b32 v50, 3, v1')
    e('v_sub_u32 v50, s27, v50')
    e('v_add_u32 v95, 1072, v49')
    e('v_add_u32 v12, 1592, v50')
    e('v_lshlrev_b32 v15, %d, v0' % (4 if uold else 3))
    e('v_add_u32 v15, %d, v15' % (A_UT + 512))
    parked = []
    def park(src, home):
        e('v_accvgpr_write_b32 %s, %s' % (a(64 + len(parked)), v(src))); parked.append(home)
    def unpark(lo, hi):
        for k in range(lo, hi): e('v_accvgpr_read_b32 %s, %s' % (v(parked[k]), a(64 + k)))
    e('v_lshlrev_b32 v48, 2, v1')
    e('v_sub_u32 v48, s34, v48')
    e('v_add_u32 v48, %d, v48' % (3072 + 252)); park(48, 48)
    e('v_and_b32 v36, 7, v1')
    e('v_bfe_u32 v37, v1, 3, 2')
    e('v_mul_u32_u24 v37, %d, v37' % CS)
    e('v_min_u32 v36, 4, v36')
    e('v_lshlrev_b32 v38, 4, v36')
    e('v_cmp_lt_u32 vcc, 2, v36')
    e('v_add_u32 v39, %d, v38' % (2112 - 48))
    e('v_cndmask_b32 v38, v38, v39, vcc')
    e('v_add3_u32 v40, v38, v37, s27'); park(40, 36)
    e('v_and_b32 v36, 3, v1')
    e('v_lshl_add_u32 v40, v36, 4, s34'); park(40, 38)
    e('v_bfe_u32 v37, v1, 2, 2')
    e('v_lshlrev_b32 v38, 1, v36')
    e('v_sub_u32 v38, v37, v38')
    e('v_mul_u32_u24 v37, %d, v37' % CS)
    e('v_lshl_add_u32 v37, v36, 2, v37')
    e('v_add_u32 v37, s27, v37'); park(37, 37)
    e('v_cmp_lt_i32 s[20:21], 0, v38')
    e('v_cmp_lt_i32 s[22:23], 1, v38')
    e('v_cmp_eq_i32 s[58:59], -6, v38')
    e('v_and_b32 v36, 15, v1')
    e('v_lshrrev_b32 v37, 4, v1')
    e('v_and_b32 v38, 3, v36')
    e('v_sub_u32 v39, v36, v38')
    e('v_lshlrev_b32 v39, 1, v39')
    e('v_mul_u32_u24 v38, %d, v38' % CS)
    e('v_lshl_add_u32 v38, v37, 4, v38')
    e('v_sub_u32 v38, v38, v39')
    e('s_add_u32 s35, s27, 24')
    e('v_add_u32 v40, s35, v38'); park(40, 2)
    e('v_lshlrev_b32 v40, 4, v37')
    e('v_lshlrev_b32 v41, 2, v36')
    e('v_sub_u32 v40, v40, v41')
    e('s_add_u32 s35, s34, %d' % (3072 + 60))
    e('v_add_u32 v40, s35, v40'); park(40, 3)
    e('v_lshlrev_b32 v40, 5, v36')
    e('v_lshl_add_u32 v41, v37, 3, v40')
    e('v_lshl_add_u32 v40, v37, 4, v40')
    e('s_add_u32 s35, s33, 464')
    e('v_add_u32 v40, s35, v40'); park(40, 4)
    e('s_mul_i32 s35, s24, 3072')
    e('s_add_u32 s35, s35, %d' % A_Y1)
    e('v_add_u32 v40, s35, v41'); park(40, 7)
    e('s_add_u32 s35, s33, 512')
    e('v_add_u32 v40, s35, v41'); park(40, 6)
    e.wait_vm(t_par)
    stamp(1)
    if int(opts.get('atouch', 5)) == 3: gen_b.first_touch(e, 's41', 's42', 36, 10)
    if int(opts.get('atouch', 5)) in (2, 3):
        if opts.get('unit'): gen_b.touch_round(e, 's41', 's42', 36, 11, int(opts.get('u0', 1)) + 16, 'a1')
        else: gen_b.first_touch(e, 's41', 's42', 36, 11, 5)
    if opts.get('aexit') == '1': e('s_branch L_exit')
    e('v_lshlrev_b32 v8, 16, v8')
    e('v_mul_f32 v8, 0x%08x, v8' % LOG2E)
    e('v_exp_f32 v8, v8')
    e('v_lshlrev_b32 v9, 16, v9')
    e('v_cvt_pk_bf16_f32 v8, v8, v8')
    e('v_cmp_eq_u32 vcc, 0, v1')
    e('v_lshlrev_b32 v32, 16, v8')
    e('v_cndmask_b32 v35, 0, v9, vcc')
    e('v_mul_f32 v33, 0x%08x, v32' % LOG2E)
    e('v_mul_f32 v34, 0x%08x, v32' % INV2PI)
    if usplit:
        e('s_cmp_lt_u32 s24, 4')
        e('s_cbranch_scc1 L_a_udonez')
        uload1((0, 2), 'z')
        e.label('L_a_udonez')
    e('s_mov_b32 s32, 2')
    e.label('L_a_pass')
    stamp(8)
    if sched == 'B': yprio(1)
    if sched == 'C': yprio(0)
    if not late: uload(0)
    stamp(9)
    for k in range(6): e('v_lshlrev_b32 %s, 16, %s' % (v(36 + k), v(2 + k)))
    for k in range(6): e('v_lshrrev_b32 %s, 16, %s' % (v(2 + k), v(2 + k)))
    e('v_mul_f32 v36, v33, v36')
    e('v_mul_f32 v37, v34, v37')
    e('v_mul_f32 v38, v32, v38')
    e('v_mul_f32 v39, v32, v39')
    e('v_mul_f32 v70, 0x43800000, v36')
    e('v_mul_f32 v71, 0x43800000, v37')
    e('v_mul_f32 v72, 0x41000000, v36')
    e('v_mul_f32 v73, 0x41000000, v37')
    e('v_fract_f32 v71, v71')
    e('v_fract_f32 v37, v37')
    e('v_fract_f32 v73, v73')
    e('v_exp_f32 v70, v70')
    e('v_cos_f32 v48, v71')
    e('v_sin_f32 v49, v71')
    e('v_exp_f32 v36, v36')
    e('v_cos_f32 v44, v37')
    e('v_sin_f32 v45, v37')
    e('v_exp_f32 v72, v72')
    e('v_cos_f32 v46, v73')
    e('v_sin_f32 v47, v73')
    if int(opts.get('vop2', 0)):
        def cm(d, x, y, ny):
            return [lambda: e('v_mul_f32 %s, %s, %s' % (v(d), v(x), v(y))),
                    lambda: e('v_mul_f32 %s, %s, %s' % (v(d + 1), v(x + 1), v(y))),
                    lambda: e('v_fmac_f32 %s, %s, %s' % (v(d), v(x + 1), v(ny))),
                    lambda: e('v_fmac_f32 %s, %s, %s' % (v(d + 1), v(x), v(y + 1)))]
        neg = lambda d, x: [lambda: e('v_sub_f32 %s, 0, %s' % (v(d), v(x)))]
        e('v_sub_f32 v74, 0, v41')
        for f in cm(42, 38, 40, 74): f()
        e('v_mul_f32 v48, v70, v48')
        e('v_mul_f32 v49, v70, v49')
        e('v_mul_f32 v44, v36, v44')
        e('v_mul_f32 v45, v36, v45')
        e('v_mul_f32 v46, v72, v46')
        e('v_mul_f32 v47, v72, v47')
        e('v_sub_f32 v36, 0, v49')
        e('v_sub_f32 v37, 0, v45')
        e('v_sub_f32 v38, 0, v47')
        cv = {}
        def put(src, row, ng, ch=0):
            cv[ch] = cv.get(ch, 0) + 1
            r = 78 + 2 * ch + (cv[ch] & 1)
            return [lambda: e('v_cvt_pk_bf16_f32 %s, %s, %s%s' % (v(r), v(src), '-' if ng else '', v(src + 1))),
                    lambda: e('ds_write_addtid_b32 %s offset:%d' % (v(r), row * ROWB))]
        chA = put(42, 0, True); src = 42
        for k, r in enumerate([8, 12, 14, 16, 17, 18, 19, 20]):
            d = 50 + 2 * (k & 1)
            chA += cm(d, src, 48, 36) + put(d, r, True); src = d
        pB = lambda x, r: put(x, r, True, 1)
        chB = cm(60, 44, 44, 37) + neg(39, 61) + cm(68, 42, 44, 37) + pB(68, 1)
        chB += cm(62, 42, 60, 39) + pB(62, 2) + cm(70, 68, 60, 39) + pB(70, 3)
        chB += cm(64, 62, 60, 39) + pB(64, 4) + cm(68, 70, 60, 39) + pB(68, 5)
        chB += cm(66, 64, 60, 39) + pB(66, 6) + cm(70, 68, 60, 39) + pB(70, 7)
        chB += cm(68, 64, 48, 36) + pB(68, 10) + cm(70, 62, 48, 36) + pB(70, 9)
        chB += cm(64, 68, 48, 36) + pB(64, 13) + cm(70, 66, 48, 36) + pB(70, 11)
        chB += cm(68, 64, 48, 36) + pB(68, 15)
        chC = cm(54, 46, 46, 38) + cm(56, 54, 46, 38) + neg(40, 55) + cm(58, 54, 54, 40) + neg(41, 59)
        stamp(10)
        interleave(chA, chB, chC)
        stamp(11)
        uload(1)
        stamp(12)
        for k in range(8): e('ds_read_b128 %s, v86 offset:%d' % (a(4 * k, 4), 32 * k))
        e('v_mov_b32 v52, 0x3f80')
        e('ds_write_addtid_b32 v52')
        for f in put(46, 1, False) + put(54, 2, False) + put(56, 3, False) + put(58, 4, False): f()
        regs = {0: (58, 50, 52), 1: (46, 60, 62), 2: (54, 64, 66), 3: (56, 68, 70)}
        chains = []
        for c in (1, 2, 3, 0):
            st = []
            src, r0, r1 = regs[c]
            for j in range(5, 32):
                if j % 4 != c: continue
                st += cm(r0, src, 58, 41) + put(r0, j, False, c); src = r0; r0, r1 = r1, r0
            chains.append(st)
        interleave(*chains)
    else:
        for f in cmul(e, 42, 38, 40, 74): f()
        e('v_mul_f32 v48, v70, v48')
        e('v_mul_f32 v49, v70, v49')
        e('v_mul_f32 v44, v36, v44')
        e('v_mul_f32 v45, v36, v45')
        e('v_mul_f32 v46, v72, v46')
        e('v_mul_f32 v47, v72, v47')
        cv = {}
        def put(src, row, neg, ch=0):
            cv[ch] = cv.get(ch, 0) + 1
            r = 78 + 2 * ch + (cv[ch] & 1)
            return [lambda: e('v_cvt_pk_bf16_f32 %s, %s, %s%s' % (v(r), v(src), '-' if neg else '', v(src + 1))),
                    lambda: e('ds_write_addtid_b32 %s offset:%d' % (v(r), row * ROWB))]
        chA = put(42, 0, True)
        rowsA = [8, 12, 14, 16, 17, 18, 19, 20]
        src = 42
        for r in rowsA:
            chA += cmul(e, 50, src, 48, 70) + put(50, r, True); src = 50
        putB = lambda x, r, n: put(x, r, n, 1)
        chB = cmul(e, 60, 44, 44, 72) + cmul(e, 68, 42, 44, 74) + putB(68, 1, True)
        chB += cmul(e, 62, 42, 60, 72) + putB(62, 2, True) + cmul(e, 68, 68, 60, 74) + putB(68, 3, True)
        chB += cmul(e, 64, 62, 60, 72) + putB(64, 4, True) + cmul(e, 68, 68, 60, 74) + putB(68, 5, True)
        chB += cmul(e, 66, 64, 60, 72) + putB(66, 6, True) + cmul(e, 68, 68, 60, 74) + putB(68, 7, True)
        chB += cmul(e, 64, 64, 48, 72) + putB(64, 10, True) + cmul(e, 62, 62, 48, 74) + putB(62, 9, True)
        chB += cmul(e, 64, 64, 48, 72) + putB(64, 13, True) + cmul(e, 66, 66, 48, 74) + putB(66, 11, True)
        chB += cmul(e, 64, 64, 48, 72) + putB(64, 15, True)
        chC = cmul(e, 54, 46, 46, 76) + cmul(e, 56, 54, 46, 76) + cmul(e, 58, 54, 54, 76)
        stamp(10)
        interleave(chA, chB, chC)
        stamp(11)
        if sched == 'B': yprio(0)
        if sched == 'C': yprio(1)
        if sched == 'E': yprio(0)
        uload(1)
        stamp(12)
        for k in range(8): e('ds_read_b128 %s, v86 offset:%d' % (a(4 * k, 4), 32 * k))
        e('v_mov_b32 v52, 0x3f80')
        e('ds_write_addtid_b32 v52')
        for f in put(46, 1, False) + put(54, 2, False) + put(56, 3, False) + put(58, 4, False): f()
        regs = {0: (58, 50), 1: (46, 52), 2: (54, 54), 3: (56, 56)}
        chains = []
        for c in (1, 2, 3, 0):
            st = []
            src, run = regs[c]
            for j in range(5, 32):
                if j % 4 != c: continue
                st += cmul(e, run, src, 58, 70 + 2 * c) + put(run, j, False, c); src = run
            chains.append(st)
        interleave(*chains)
    stamp(13)
    if int(opts.get('atouch', 5)) == 4:
        e('s_cmp_lg_u32 s32, 2')
        e('s_cbranch_scc1 L_a_nog')
        gen_b.first_touch(e, 's41', 's42', 36, 11, 5)
        e.label('L_a_nog')
    if late: uload(0)
    e('s_add_u32 s26, s26, 2')
    e('s_and_b32 s26, s26, 3')
    t0 = e.lg()
    for k in range(8): e('ds_read_b128 %s, v86 offset:%d' % (a(32 + 4 * k, 4), 32 * k))
    for k in range(8):
        e.wait_lg(t0 + k + 1)
        e('v_mfma_f32_32x32x16_bf16 v[96:111], %s, %s, v[96:111]' % (a(4 * k, 4), a(32 + 4 * k, 4)))
    if sched in ('A', 'D'): e('s_setprio 0')
    e('s_sub_u32 s32, s32, 1')
    e('s_cmp_lg_u32 s32, 0')
    e('s_cbranch_scc1 L_a_pass')
    if sched == 'D': yprio(1)
    if sched in ('B', 'C'): e('s_setprio 0')
    stamp(2)
    if uold:
        e('s_cmp_ge_u32 s24, 4')
        e('s_cbranch_scc1 L_a_udones')
        e('v_add_u32 v13, 4608, v13')
        uload1((0, 1, 2, 3), 's', True)
        e.label('L_a_udones')
    if int(opts.get('aq', 0)):
        e('s_cmp_ge_u32 s24, 3')
        e('s_cbranch_scc1 L_a_noq')
        gen_b.touch_cols(e, 's41', 's42', 36, 8, 's[48:49]', 3456)
        if int(opts.get('aq', 0)) == 2: gen_b.touch_cols(e, 's41', 's42', 36, 9, 's[50:51]', 1152)
        e.label('L_a_noq')
    unpark(0, 4)
    e('v_cmp_eq_u32 vcc, 0, v1')
    e('v_mov_b32 v51, s34')
    for k in range(4): e('v_mov_b32 %s, 0' % v(76 + k))
    e('ds_write_b128 v87, v[96:99]')
    e('ds_write_b64 v88, v[100:101]')
    e('ds_write_b64 v89, v[102:103]')
    e('ds_write2_b32 v90, v104, v105 offset0:0 offset1:32')
    e('ds_write2_b32 v90, v106, v107 offset0:64 offset1:96')
    t0 = e.lg()
    e('ds_read_b64 v[56:57], v91 offset:1536')
    e('ds_read_b32 v58, v91 offset:1544')
    e('ds_read_b32 v59, v93 offset:1536')
    e('ds_read_b32 v55, v93 offset:1532')
    e('ds_read_b64 v[60:61], v91 offset:1024')
    e('ds_read_b32 v62, v91 offset:1032')
    e('ds_read_b32 v63, v93 offset:1024')
    e('ds_read2_b32 v[68:69], v93 offset0:254 offset1:255')
    e('ds_read_b128 v[64:67], v92')
    e('ds_read_b128 v[72:75], v94')
    e('ds_read_b32 v52, v91 offset:2052')
    e('ds_read_b32 v53, v91 offset:2056')
    e('ds_read_b32 v70, v51 offset:2044')
    e('ds_read_b32 v71, v51 offset:2048')
    e('ds_write_b128 v36, v[76:79]')
    e('ds_write_b128 v38, v[76:79] offset:%d' % (3072 + 256))
    def pk(d, x, y): e('v_cvt_pk_bf16_f32 %s, %s, %s' % (v(d), v(x), v(y)))
    def quad(base, pairs):
        for k, (x, y) in enumerate(pairs): pk(base + k, x, y)
    e.wait_lg(t0 + 4)
    A_, B_, C_, A2, D_ = 56, 57, 58, 59, 55
    quad(96, [(C_, C_), (B_, B_), (B_, A_), (A_, A_)]); e('ds_write_b128 v95, v[96:99] offset:%d' % (3 * CS))
    quad(100, [(C_, B_), (B_, B_), (A_, A_), (A_, A_)]); e('ds_write_b128 v95, v[100:103] offset:%d' % (2 * CS))
    quad(104, [(B_, B_), (B_, A_), (A_, A_), (A_, A2)]); e('ds_write_b128 v95, v[104:107] offset:%d' % CS)
    quad(108, [(B_, B_), (A_, A_), (A_, A_), (A2, D_)]); e('ds_write_b128 v95, v[108:111]')
    e.wait_lg(t0 + 14)
    A_, B_, C_, A1, E_, F_ = 60, 61, 62, 63, 69, 68
    e('v_add_f32 v64, v64, v35')
    for k in (73, 74, 75): e('v_cndmask_b32 %s, %s, v76, vcc' % (v(k), v(k)))
    quad(96, [(C_, B_), (A_, A_)]); e('ds_write_b64 v12, v[96:97] offset:%d' % (3 * CS))
    quad(98, [(B_, A_), (A_, A1)]); e('ds_write_b64 v12, v[98:99] offset:%d' % (2 * CS))
    quad(100, [(A_, A_), (A1, E_)]); e('ds_write_b64 v12, v[100:101] offset:%d' % CS)
    quad(102, [(A_, A1), (E_, F_)]); e('ds_write_b64 v12, v[102:103]')
    quad(104, [(67, 66), (65, 64)]); e('ds_write_b64 v12, v[104:105] offset:%d' % (3 * CS + 512))
    quad(106, [(66, 65), (64, 75)]); e('ds_write_b64 v12, v[106:107] offset:%d' % (2 * CS + 512))
    quad(108, [(65, 64), (75, 74)]); e('ds_write_b64 v12, v[108:109] offset:%d' % (CS + 512))
    quad(110, [(64, 75), (74, 73)]); e('ds_write_b64 v12, v[110:111] offset:512')
    pk(54, 53, 52); e('ds_write_b32 v48, v54')
    e('v_cndmask_b32 v39, v71, v76, s[20:21]')
    e('v_cndmask_b32 v40, v71, v76, s[22:23]')
    e('v_cndmask_b32 v40, v40, v70, s[58:59]')
    pk(39, 39, 40); e('ds_write_b32 v37, v39 offset:48')
    unpark(4, 9)
    e('v_add_u32 v5, 16, v4')
    ACC = 64
    for i in range(16): e('v_mov_b32 %s, 0' % v(ACC + i))
    t0 = e.lg()
    for d in range(4, 8):
        o = 16 * (7 - d)
        e('ds_read2_b32 %s, v3 offset0:%d offset1:%d' % (a(96 + 4 * (d - 4), 2), o, o + 1))
        e('ds_read2_b32 %s, v3 offset0:%d offset1:%d' % (a(98 + 4 * (d - 4), 2), o + 2, o + 3))
    e('ds_read_b64 a[128:129], v2')
    e('ds_read_b64 a[130:131], v2 offset:8')
    stamp(3)
    e('s_waitcnt vmcnt(0)')
    stamp(4)
    if uold:
        e('s_cmp_ge_u32 s24, 4')
        e('s_cbranch_scc1 L_a_notr')
        for k in range(16): e('v_accvgpr_read_b32 %s, %s' % (v(36 + k), a(96 + k)))
        for c in range(8):
            sel = 's31' if c & 1 else 's30'
            d = 52 + 4 * (c % 4)
            for k, r in enumerate((16, 24, 36, 44)): e('v_perm_b32 %s, %s, %s, %s' % (v(d + k), v(r + 4 + (c >> 1)), v(r + (c >> 1)), sel))
            e('ds_write_b128 v15, %s offset:%d' % (v(d, 4), c * 4608))
        e.label('L_a_notr')
    else:
        for c in range(8):
            sel = 's31' if c & 1 else 's30'
            d = 36 + 2 * (c % 8)
            e('v_perm_b32 %s, %s, %s, %s' % (v(d), v(20 + (c >> 1)), v(16 + (c >> 1)), sel))
            e('v_perm_b32 %s, %s, %s, %s' % (v(d + 1), v(28 + (c >> 1)), v(24 + (c >> 1)), sel))
            e('ds_write_b64 v15, %s offset:%d' % (v(d, 2), c * 4608))
    e('s_waitcnt lgkmcnt(0)')
    if sched == 'D': e('s_setprio 0')
    e('s_barrier')
    stamp(5)
    cs = int(opts.get('csched', 0))
    if cs & 1: yprio(1)
    if opts.get('aexit') == '2': e('s_branch L_exit')
    mf = lambda d, x, y, c: e('v_mfma_f32_16x16x32_bf16 %s, %s, %s, %s' % (d, x, y, c))
    G1 = int(opts.get('g1', 5))
    T1 = list(range(G1)); T2 = list(range(G1, 8))
    tok = {}
    wgrp = int(opts.get('wgrp', 2))
    def reads(bank, tiles):
        low = max(0, min(tiles) - 3)
        out = []; seen = set()
        def rd(key, txt): out.append(lambda: (e(txt), tok.__setitem__(key, e.lg())))
        for i in range(4):
            for h in range(2): rd(('A', bank, i), 'ds_read_b64 %s, v2 offset:%d' % (a(bank + 4 * i + 2 * h, 2), 2048 - 512 * i + 8 * h))
            for n in tiles:
                m = n - i
                if m >= 0 and m not in seen:
                    seen.add(m); rd(('B', bank, m), 'ds_read_b128 %s, v5 offset:%d' % (a(bank + 16 + 4 * (m - low), 4), 512 * m))
        out.append(lambda: e('v_subrev_u32 v2, 64, v2'))
        out.append(lambda: e('v_subrev_u32 v5, 64, v5'))
        return out
    def spread(nslots, fill):
        per = [len(fill) // nslots + (1 if k < len(fill) % nslots else 0) for k in range(nslots)]
        res = []; k = 0
        for p_ in per: res.append(fill[k:k + p_]); k += p_
        return res
    def half(bank, tiles, more=(), lead=0, nxt=None):
        low = max(0, min(tiles) - 3)
        ops = [(i, n) for i in range(4) for n in tiles if n >= i]
        rd_ = reads(48 - bank, nxt or tiles); more = list(more)
        fill = []
        while rd_ or more:
            fill += rd_[:1] + more[:lead or 1]; rd_ = rd_[1:]; more = more[lead or 1:]
        gaps = spread(len(ops), fill)
        have = -1
        for (i, n), gp in zip(ops, gaps):
            need_ = max(max(tok[('A', bank, i2)], tok[('B', bank, n2 - i2)]) for i2, n2 in ops if i2 // wgrp == i // wgrp)
            if need_ > have: e.wait_lg(need_); have = need_
            mf(v(ACC + 4 * n, 4), a(bank + 4 * i, 4), a(bank + 16 + 4 * (n - i - low), 4), v(ACC + 4 * n, 4))
            for f in gp: f()
    t0 = e.lg()
    for c in range(4):
        e('ds_read_b128 %s, v4 offset:%d' % (a(64 + 8 * c, 4), 512 * c))
        e('ds_read_b128 %s, v5 offset:%d' % (a(68 + 8 * c, 4), 512 * c))
    BX = 24
    for c in range(4):
        e.wait_lg(t0 + 2 * c + 2)
        mf(v(BX + 8 * c, 4), a(64 + 8 * c, 4), 'a[136:139]', '0')
        mf(v(BX + 8 * c + 4, 4), a(68 + 8 * c, 4), 'a[140:143]', '0')
        mf(v(ACC + 16 + 4 * c, 4), 'a[128:131]', a(68 + 8 * c, 4), '0')
        if c:
            for r in range(4): pk(BX + 8 * c - 8 + r, BX + 8 * c - 8 + r, BX + 8 * c - 4 + r)
    first = reads(0, T1)
    for c in range(4):
        if c == 1:
            for r in range(4): pk(BX + 24 + r, BX + 24 + r, BX + 28 + r)
        for n in range(4 + c, 8):
            mf(v(ACC + 4 * n, 4), v(BX + 8 * c, 4), a(96 + 4 * (n - c - 4), 4), v(ACC + 4 * n, 4))
            for f in first[:2]: f()
            first = first[2:]
    assert not first
    def loop(tiles, tag, trips, extra=None, head=None):
        e('s_mov_b32 s32, %d' % trips)
        e.label('L_a_conv%s' % tag)
        if head: head()
        half(0, tiles)
        if extra: extra()
        half(48, tiles)
        e('s_sub_u32 s32, s32, 1')
        e('s_cmp_lg_u32 s32, 0')
        e('s_cbranch_scc1 L_a_conv%s' % tag)
    def put_y(tiles, addr):
        r = []
        for n in tiles:
            r.append(lambda n=n: pk(36 + 2 * n, ACC + 4 * n, ACC + 4 * n + 1))
            r.append(lambda n=n: pk(37 + 2 * n, ACC + 4 * n + 2, ACC + 4 * n + 3))
            r.append(lambda n=n: e('ds_write_b64 %s, %s offset:%d' % (addr, v(36 + 2 * n, 2), 512 * n)))
        return r
    def gather(rows0, rnd, base, stride):
        src = 24 + 8 * rnd if rows0 == 0 else 24
        rd_ = [lambda c=c: (e('ds_read_b32 %s, v23 offset:%d' % (v(src + c), base + c * stride + 2048 * rnd)), tok.__setitem__('y', e.lg())) for c in range(8)]
        ad = v(12 + rnd)
        rd_.append(lambda: e('s_mov_b32 s35, %d\nv_add_u32 %s, s35, v14' % ((rows0 + 1024 * rnd) * 2304, ad)))
        sh = []; st = []
        for i in range(2):
            d = 44 + 8 * rnd + 4 * i
            for c2 in range(4): sh.append(lambda d=d, c2=c2, i=i: e('v_perm_b32 %s, %s, %s, %s' % (v(d + c2), v(src + 1 + 2 * c2), v(src + 2 * c2), 's31' if i else 's30')))
            st.append('global_store_dwordx4 %s, %s, s[52:53] offset:%d' % (ad, v(d, 4), 2304 * i))
        return rd_, sh, st
    def drop():
        e('s_cmp_lg_u32 s32, %d' % int(opts.get('cdrop', 3)))
        e('s_cbranch_scc1 L_a_nodrop')
        e('s_setprio 0')
        e.label('L_a_nodrop')
    if opts.get('s3st'): stamp(0)
    loop(T1, 'a', 3, drop if cs & 1 else None)
    half(0, T1)
    e('v_add_u32 v2, 512, v2')
    e('v_add_u32 v5, 512, v5')
    half(48, T1, nxt=T2)
    stamp(14)
    py = put_y(T1, 'v7') + [lambda: e('v_lshlrev_b32 v23, 2, v0'), lambda: e('v_add_u32 v23, %d, v23' % A_UT)]
    hb = int(opts.get('hb', 2))
    if hb == 1: half(0, T2, py)
    else:
        half(0, T2, py[:9]); half(48, T2, py[9:])
    e('s_waitcnt lgkmcnt(0)')
    e('s_barrier')
    if cs & 2: yprio(1)
    if opts.get('s3st'): stamp(1)
    held = []
    e('s_cmp_ge_u32 s24, 4')
    e('s_cbranch_scc1 L_a_nosend')
    n0 = e.nlg
    e('v_lshlrev_b32 v13, 3, v0')
    e('v_add_u32 v13, %d, v13' % A_Y1)
    for c in range(8): e('ds_read_b64 %s, v13 offset:%d' % (v(96 + 2 * c, 2), 3072 * c))
    if G1 > 4:
        e('v_lshlrev_b32 v13, %d, v0' % (G1 - 4))
        e('v_add_u32 v13, %d, v13' % (A_Y1 + 2048))
        for c in range(8):
            if G1 == 5: e('ds_read_u16 %s, v13 offset:%d' % (v(24 + c), 3072 * c))
            else: e('ds_read_b32 %s, v13 offset:%d' % (v(24 + c), 3072 * c))
    e('s_lshl_b32 s35, s25, 4')
    e('v_mul_u32_u24 v12, 9216, v0')
    e('v_add_u32 v12, s35, v12')
    e('v_add_u32 v15, 4608, v12')
    e('s_add_u32 s35, s35, %d' % (1024 * 2304))
    e('v_mul_u32_u24 v13, %d, v0' % (2304 * max(1, G1 - 4)))
    e('s_waitcnt lgkmcnt(%d)' % (8 if G1 > 4 else 0))
    e('v_add_u32 v13, s35, v13')
    for i in range(4):
        for c2 in range(4): e('v_perm_b32 %s, %s, %s, %s' % (v(36 + 4 * i + c2), v(98 + 4 * c2 + (i >> 1)), v(96 + 4 * c2 + (i >> 1)), 's31' if i & 1 else 's30'))
        held.append('global_store_dwordx4 %s, %s, s[52:53] offset:%d' % ('v15' if i >= 2 else 'v12', v(36 + 4 * i, 4), 2304 * (i & 1)))
    e('s_waitcnt lgkmcnt(0)')
    if G1 == 5:
        for c2 in range(4): e('v_perm_b32 %s, %s, %s, s30' % (v(52 + c2), v(25 + 2 * c2), v(24 + 2 * c2)))
        held.append('global_store_dwordx4 v13, v[52:55], s[52:53]')
    if G1 == 6:
        for i in range(2):
            for c2 in range(4): e('v_perm_b32 %s, %s, %s, %s' % (v(52 + 4 * i + c2), v(25 + 2 * c2), v(24 + 2 * c2), 's31' if i else 's30'))
            held.append('global_store_dwordx4 v13, %s, s[52:53] offset:%d' % (v(52 + 4 * i, 4), 2304 * i))
    e(held.pop(0))
    e.label('L_a_nosend')
    e.nlg = n0
    stamp(15)
    if hb == 1: half(48, T2)
    if opts.get('s3st'): stamp(2)
    tn = [0]
    def trickle(pos):
        tn[0] += 1
        mine = [(3 - k // 2, st) for k, st in enumerate(held) if k % 2 == pos]
        e('s_cmp_ge_u32 s24, 4')
        e('s_cbranch_scc1 L_a_trd%d' % tn[0])
        for k, (trip, st) in enumerate(mine):
            e('s_cmp_lg_u32 s32, %d' % trip)
            e('s_cbranch_scc1 L_a_tr%d_%d' % (tn[0], k))
            e(st)
            e.label('L_a_tr%d_%d' % (tn[0], k))
        e.label('L_a_trd%d' % tn[0])
    loop(T2, 'b', 3, lambda: trickle(1), lambda: trickle(0))
    stamp(6)
    for f in put_y(T2, 'v6'): f()
    e('s_waitcnt lgkmcnt(0)')
    e('s_barrier')
    n2 = 2048 - 256 * G1
    if n2 < 1024:
        e('s_cmp_ge_u32 s24, %d' % (n2 // 128))
        e('s_cbranch_scc1 L_a_done')
    rd_, sh, st = gather(256 * G1, 0, 512 + 512 * G1, 4608)
    for f in rd_: f()
    e.wait_lg(tok['y'])
    for i in range(2):
        for f in sh[4 * i:4 * i + 4]: f()
        e(st[i])
    e.label('L_a_done')
    if opts.get('awb'):
        e('s_waitcnt vmcnt(0)')
        e('s_barrier')
        e('s_cmp_lg_u32 s24, 0')
        e('s_cbranch_scc1 L_a_nowb')
        e('buffer_wbl2 sc1')
        e.label('L_a_nowb')
    stamp(7)
    e('s_endpgm')
```
